```python
import torch

def _softmax(x, axis=-1):
    return torch.softmax(x, dim=axis)
def _gelu(x):
    return torch.nn.functional.gelu(x, approximate="tanh")
def _silu(x):
    return torch.nn.functional.silu(x)
def _sigmoid(x):
    return torch.sigmoid(x)
def _layernorm(x, axis=-1, eps=1e-5):
    m = x.mean(dim=axis, keepdim=True)
    v = x.var(dim=axis, keepdim=True, unbiased=False)
    return (x - m) / torch.sqrt(v + eps)
def _scatter_add(tgt, idx, src, axis=0):
    return tgt.clone().index_add_(axis, idx, src)
def _segment_sum(src, seg, n):
    out = torch.zeros((n,) + src.shape[1:], dtype=src.dtype)
    return out.index_add_(0, seg, src)
def _pad(x, pw):
    flat = tuple(v for pair in reversed(pw) for v in pair)
    return torch.nn.functional.pad(x, flat)

kernel_name = 'interleave_layers__spectral_gfnet__mixer_channel_mlp__prompt'

def setup_inputs():

    _w = (lambda a: (lambda t: t.to(torch.bfloat16) if t.is_floating_point() else t)(torch.as_tensor(a)))
    def _A_setup():
        B, S, D = 1, 2048, 512
        Df = D // 2 + 1
        return {
            "x": _w((lambda *s: torch.randn(*s, dtype=torch.bfloat16) * 0.05)(B, S, D)),
            "w_r": _w((lambda *s: torch.randn(*s, dtype=torch.bfloat16) * 0.8)(S, Df) * 0.02),
            "w_i": _w((lambda *s: torch.randn(*s, dtype=torch.bfloat16) * 0.8)(S, Df) * 0.02),
        }
    _A_in = _A_setup()

    def _B_setup():
        B, S, D, F = 1, 2048, 512, 1792
        return {
            "x": _w((lambda *s: torch.randn(*s, dtype=torch.bfloat16) * 0.05)(B, S, D)),
            "w1": _w((lambda *s: torch.randn(*s, dtype=torch.bfloat16) * 0.8)(D, F) * (D ** -0.5)),
            "b1": _w((lambda *s: torch.randn(*s, dtype=torch.bfloat16) * 0.4)(F)),
            "w2": _w((lambda *s: torch.randn(*s, dtype=torch.bfloat16) * 0.05)(F, D) * (F ** -0.5)),
            "b2": _w((lambda *s: torch.randn(*s, dtype=torch.bfloat16) * 0.05)(D)),
        }
    _B_in = _B_setup()

    return {
        "A_x": _A_in["x"],
        "A_w_r": _A_in["w_r"],
        "A_w_i": _A_in["w_i"],
        "B_x": _B_in["x"],
        "B_w1": _B_in["w1"],
        "B_b1": _B_in["b1"],
        "B_w2": _B_in["w2"],
        "B_b2": _B_in["b2"],
    }

def reference(A_x, A_w_r, A_w_i, B_x, B_w1, B_b1, B_w2, B_b2):
    def _A_ref(x, w_r, w_i):
        B, S, D = x.shape
        X = (lambda x, axes=(-2,-1): torch.fft.rfft2(x.float(), dim=axes))(x, axes=(-2, -1))
        W = w_r + 1j * w_i
        X = X * W
        y = (lambda x, s, axes=(-2,-1): torch.fft.irfft2(x, s=s, dim=axes).to(torch.bfloat16))(X, (S, D), axes=(-2, -1))
        return y

    def _B_ref(x, w1, b1, w2, b2):
        y = _layernorm(x, axis=-1)
        h = _gelu(torch.einsum("bsd,df->bsf", y, w1) + b1)
        return torch.einsum("bsf,fd->bsd", h, w2) + b2

    x = A_x
    x = x + _A_ref(_layernorm(x, axis=-1), A_w_r, A_w_i)
    x = x + _B_ref(_layernorm(x, axis=-1), B_w1, B_b1, B_w2, B_b2)
    x = x + _A_ref(_layernorm(x, axis=-1), A_w_r, A_w_i)
    x = x + _B_ref(_layernorm(x, axis=-1), B_w1, B_b1, B_w2, B_b2)
    return x
```

```python
import re
import struct

TRANS = ("v_exp_f32", "v_log_f32", "v_rcp_f32", "v_rsq_f32", "v_sqrt_f32", "v_sin_f32", "v_cos_f32")
REG_RE = re.compile(r"^-?\|?(?:abs\()?([vas])(?:(\d+)|\[(\d+):(\d+)\])\)?\|?$")


def fbits(x):
    return "0x%08x" % struct.unpack("<I", struct.pack("<f", x))[0]


def v(i, n=1):
    return "v%d" % i if n == 1 else "v[%d:%d]" % (i, i + n - 1)


def a(i, n=1):
    return "a%d" % i if n == 1 else "a[%d:%d]" % (i, i + n - 1)


def s(i, n=1):
    return "s%d" % i if n == 1 else "s[%d:%d]" % (i, i + n - 1)


def regs_of(tok):
    tok = tok.strip()
    if tok in ("vcc", "exec", "m0"):
        return [tok]
    if tok in ("vcc_lo", "vcc_hi"):
        return ["vcc"]
    if tok in ("exec_lo", "exec_hi"):
        return ["exec"]
    m = REG_RE.match(tok)
    if not m:
        return []
    c = m.group(1)
    if m.group(2) is not None:
        return [(c, int(m.group(2)))]
    return [(c, i) for i in range(int(m.group(3)), int(m.group(4)) + 1)]


class Ins:
    __slots__ = ("text", "op", "dst", "src", "kind", "passes", "srcc", "srcab", "wide_data", "dpp", "ws", "tag")

    def __init__(self, text, tag=None):
        self.text = text
        self.tag = tag
        body = text.split(";")[0].strip()
        parts = body.split(None, 1)
        op = parts[0]
        for suf in ("_e32", "_e64"):
            if op.endswith(suf):
                op = op[: -len(suf)]
        self.op = op
        rest = parts[1] if len(parts) > 1 else ""
        toks, depth, cur = [], 0, ""
        for ch in rest:
            if ch in "[(":
                depth += 1
            if ch in "])":
                depth -= 1
            if ch == "," and depth == 0:
                toks.append(cur.strip())
                cur = ""
            else:
                cur += ch
        mods = ""
        if cur.strip():
            last = cur.strip().split(None, 1)
            toks.append(last[0])
            mods = last[1] if len(last) > 1 else ""
        R = [regs_of(t) for t in toks]
        flat = lambda L: set(r for x in L for r in x)
        self.dst, self.src = set(), set()
        self.kind, self.passes, self.srcc, self.srcab = "other", 0, set(), set()
        self.wide_data, self.dpp, self.ws = set(), False, 1
        modl = mods.split()
        if op.startswith(("buffer_load", "global_load")):
            if "lds" in modl or "_lds_" in op:
                self.kind, self.src = "dma", flat(R) | {"m0"}
            else:
                self.kind, self.dst, self.src = "vload", flat(R[:1]), flat(R[1:])
        elif op.startswith(("buffer_store", "buffer_atomic")):
            assert not (op.startswith("buffer_atomic") and "sc0" in modl), "returning atomics unsupported"
            self.kind, self.src = "vstore", flat(R)
            if op.endswith(("x3", "x4")):
                self.wide_data = flat(R[:1])
        elif op.startswith(("global_store", "global_atomic")):
            self.kind, self.src = "vstore", flat(R)
            if op.endswith(("x3", "x4")):
                self.wide_data = flat(R[1:2])
        elif op.startswith(("ds_read", "ds_bpermute", "ds_permute", "ds_swizzle")):
            self.kind, self.dst, self.src = "dsload", flat(R[:1]), flat(R[1:])
        elif op.startswith("ds_"):
            self.kind, self.src = "dsstore", flat(R)
        elif op.startswith(("s_load", "s_memtime", "s_memrealtime", "s_buffer_load")):
            self.kind, self.dst, self.src = "smem", flat(R[:1]), flat(R[1:])
        elif op.startswith("v_mfma"):
            self.kind = "mfma"
            self.passes = 8 if "32x32" in op else 4
            self.dst, self.srcab, self.srcc = flat(R[:1]), flat(R[1:3]), flat(R[3:4])
            self.src = self.srcab | self.srcc
        elif op.startswith("v_"):
            self.kind = "valu"
            base = op.replace("_dpp", "").replace("_sdwa", "")
            if base in TRANS:
                self.kind = "trans"
            self.dpp = op.endswith("_dpp")
            assert not op.startswith("v_cmpx"), "v_cmpx unsupported"
            if op.startswith(("v_swap", "v_permlane16_swap", "v_permlane32_swap")):
                self.dst = self.src = flat(R)
            elif op.startswith(("v_add_co", "v_sub_co", "v_addc_co", "v_subb_co")):
                self.dst, self.src = flat(R[:2]), flat(R[2:])
            else:
                self.dst, self.src = flat(R[:1]), flat(R[1:])
                if self.dpp or op.startswith(("v_fmac", "v_pk_fmac", "v_writelane", "v_dot2c")):
                    self.src = self.src | self.dst
        elif op.startswith("s_"):
            self.kind = "salu"
            if op == "s_nop":
                self.ws = int(toks[0], 0) + 1
            elif op.startswith(("s_cmp", "s_cbranch", "s_branch", "s_waitcnt", "s_barrier", "s_endpgm", "s_sleep",
                                "s_setprio", "s_bitcmp")):
                self.src = flat(R)
            else:
                self.dst, self.src = flat(R[:1]), flat(R[1:])
                if "saveexec" in op:
                    self.dst = self.dst | {"exec"}
                if op.startswith(("s_addk", "s_mulk", "s_cmov", "s_bitset")):
                    self.src = self.src | self.dst
        else:
            raise ValueError("unknown instruction: " + text)

    @property
    def is_valu(self):
        return self.kind in ("valu", "trans")

    @property
    def is_vmem(self):
        return self.kind in ("vload", "vstore", "dma")


def is_vreg(r):
    return isinstance(r, tuple) and r[0] in "va"


def is_sreg(r):
    return r == "vcc" or (isinstance(r, tuple) and r[0] == "s")


def need_states(p, c):
    n = 0
    if p.is_valu:
        vd = {r for r in p.dst if is_vreg(r)}
        sd = {r for r in p.dst if is_sreg(r)}
        if c.kind == "mfma" and vd & c.src:
            n = max(n, 2)
        if c.is_valu:
            if vd & c.src:
                if c.dpp or c.op.startswith("v_permlane"):
                    n = max(n, 2)
                if c.op.startswith(("v_readlane", "v_readfirstlane")):
                    n = max(n, 1)
                if p.kind == "trans" and c.kind != "trans":
                    n = max(n, 1)
            if sd & c.src:
                n = max(n, 4 if c.op.startswith(("v_readlane", "v_writelane")) else 2)
        if p.kind == "trans" and (c.is_vmem or c.kind.startswith("ds")) and vd & c.src:
            n = max(n, 1)
        if c.is_vmem and sd & c.src:
            n = max(n, 5)
    if p.kind == "mfma":
        big = p.passes == 8
        if c.kind == "mfma":
            if p.dst & c.srcab:
                n = max(n, 12 if big else 8)
            if p.dst & c.srcc and not (p.dst == c.srcc and p.op == c.op):
                n = max(n, 10 if big else 6)
            if p.dst & c.dst and p.op != c.op:
                n = max(n, 10 if big else 6)
        elif c.is_valu or c.is_vmem or c.kind.startswith("ds"):
            if p.dst & (c.src | c.dst):
                n = max(n, 12 if big else 8)
            if c.is_valu and p.srcc & c.dst:
                n = max(n, 7 if big else 3)
    if p.kind == "salu" and "m0" in p.dst and c.kind == "dma":
        n = max(n, 1)
    if p.wide_data and p.wide_data & c.dst:
        n = max(n, 2 if c.is_valu or c.kind == "mfma" else 1)
    return n


class State:
    def __init__(self):
        self.vm = []
        self.lg = []
        self.smem = set()
        self.smem_any = False
        self.hist = [[]]

    def copy(self):
        t = State()
        t.vm, t.lg, t.smem, t.smem_any = list(self.vm), list(self.lg), set(self.smem), self.smem_any
        t.hist = [list(h) for h in self.hist]
        return t

    @staticmethod
    def _merge_q(x, y):
        n = max(len(x), len(y))
        x = [(set(), ())] * (n - len(x)) + x
        y = [(set(), ())] * (n - len(y)) + y
        return [(p[0] | q[0], tuple(p[1]) + tuple(q[1])) for p, q in zip(x, y)]

    def merge(self, o):
        self.vm, self.lg = self._merge_q(self.vm, o.vm), self._merge_q(self.lg, o.lg)
        self.smem |= o.smem
        self.smem_any |= o.smem_any
        self.hist += [list(h) for h in o.hist]


class Kernel:
    def __init__(self, name):
        self.name = name
        self.out = []
        self.st = State()
        self.saved = {}
        self.seen_labels = set()
        self.dead = False
        self.max = {"v": -1, "a": -1, "s": -1}
        self.nops = 0
        self.count = {}

    def raw(self, text):
        self.out.append(text)

    def comment(self, text):
        self.out.append("    ; " + text)

    def _push(self, ins):
        self.out.append("    " + ins.text)
        self.count[ins.kind] = self.count.get(ins.kind, 0) + 1
        for h in self.st.hist:
            h.append(ins)
            if len(h) > 24:
                del h[0]
        if len(self.st.hist) > 1 and all(h[-20:] == self.st.hist[0][-20:] and len(h) >= 20 for h in self.st.hist):
            self.st.hist = self.st.hist[:1]

    def _apply_wait(self, vm=None, lg=None):
        st = self.st
        if vm is not None and len(st.vm) > vm:
            st.vm = st.vm[len(st.vm) - vm:] if vm else []
        if lg is not None:
            if lg == 0:
                st.lg, st.smem, st.smem_any = [], set(), False
            elif not st.smem_any and len(st.lg) > lg:
                st.lg = st.lg[len(st.lg) - lg:]

    def wait(self, vm=None, lg=None):
        st = self.st
        if vm is not None and len(st.vm) <= vm:
            vm = None
        if lg is not None:
            if st.smem_any:
                lg = 0
            elif len(st.lg) <= lg:
                lg = None
        if vm is None and lg is None:
            return
        parts = []
        if vm is not None:
            vm = min(vm, 62)
            parts.append("vmcnt(%d)" % vm)
        if lg is not None:
            lg = min(lg, 14)
            parts.append("lgkmcnt(%d)" % lg)
        self._apply_wait(vm, lg)
        self._push(Ins("s_waitcnt " + " ".join(parts)))

    def wait_tag(self, tag):
        vm = lg = None
        for q, name in ((self.st.vm, "vm"), (self.st.lg, "lg")):
            idx = [i for i, e in enumerate(q) if tag in e[1]]
            if idx:
                n = len(q) - 1 - idx[-1]
                if name == "vm":
                    vm = n
                else:
                    lg = n
        self.wait(vm, lg)

    def __call__(self, text, tag=None):
        for line in text.strip().split("\n"):
            line = line.strip()
            if line and not line.startswith(";"):
                self._emit(Ins(line, tag))

    def _emit(self, ins):
        assert not self.dead, "unreachable instruction: " + ins.text
        st = self.st
        for r in ins.src | ins.dst:
            if isinstance(r, tuple):
                self.max[r[0]] = max(self.max[r[0]], r[1])
        if ins.op == "s_waitcnt":
            m1, m2 = re.search(r"vmcnt\((\d+)\)", ins.text), re.search(r"lgkmcnt\((\d+)\)", ins.text)
            self._apply_wait(int(m1.group(1)) if m1 else None, int(m2.group(1)) if m2 else None)
            self._push(ins)
            return
        touched = ins.src | ins.dst
        vm = lg = None
        idx = [i for i, e in enumerate(st.vm) if e[0] & touched]
        if idx and not (ins.kind == "vload" and not any(e[0] & ins.src for e in st.vm)):
            vm = len(st.vm) - 1 - idx[-1]
        idx = [i for i, e in enumerate(st.lg) if e[0] & touched]
        if idx and not (ins.kind == "dsload" and not st.smem_any and not any(e[0] & ins.src for e in st.lg)):
            lg = len(st.lg) - 1 - idx[-1]
        if st.smem & touched:
            lg = 0
        self.wait(vm, lg)
        need = 0
        for h in st.hist:
            dist = 0
            for p in reversed(h):
                n = need_states(p, ins)
                if n > dist:
                    need = max(need, n - dist)
                dist += p.ws
                if dist >= 20:
                    break
        if need:
            self.nops += need
            self._push(Ins("s_nop %d" % (need - 1)))
        self._push(ins)
        tags = (ins.tag,) if ins.tag is not None else ()
        if ins.is_vmem:
            st.vm.append((set(ins.dst), tags))
        elif ins.kind in ("dsload", "dsstore"):
            st.lg.append((set(ins.dst), tags))
        elif ins.kind == "smem":
            st.smem |= ins.dst
            st.smem_any = True
        if ins.op.startswith(("s_cbranch", "s_branch")):
            tgt = ins.text.split(";")[0].split()[-1]
            if tgt not in self.seen_labels:
                if tgt in self.saved:
                    self.saved[tgt].merge(st)
                else:
                    self.saved[tgt] = st.copy()
            if ins.op == "s_branch":
                self.dead = True
        if ins.op == "s_endpgm":
            self.dead = True

    def label(self, name):
        self.seen_labels.add(name)
        inc = self.saved.pop(name, None)
        if self.dead:
            assert inc is not None, "label never branched to: " + name
            self.st, self.dead = inc, False
        elif inc is not None:
            self.st.merge(inc)
        self.out.append(name + ":")

    def entry(self, name):
        assert self.dead or not self.out
        self.st, self.dead = State(), False
        self.out += [".globl " + name, ".p2align 8", ".type %s,@function" % name, name + ":"]

    def align8(self):
        self.out.append("    .p2align 3")

    def text(self):
        assert not self.saved, "dangling branch targets: %s" % list(self.saved)
        return "\n".join(self.out) + "\n"

    def descriptor(self, name, force_full=False):
        nv = self.max["v"] + 1
        acc = max(4, (nv + 3) // 4 * 4)
        nfv = acc + self.max["a"] + 1 if self.max["a"] >= 0 else nv
        assert acc <= 256 and nfv <= 512 and self.max["s"] < 102
        return "\n".join([
            ".p2align 6",
            ".amdhsa_kernel " + name,
            "  .amdhsa_next_free_vgpr %d" % nfv,
            "  .amdhsa_next_free_sgpr %d" % max(self.max["s"] + 1, 16),
            "  .amdhsa_accum_offset %d" % acc,
            "  .amdhsa_group_segment_fixed_size 0",
            "  .amdhsa_kernarg_size 88",
            "  .amdhsa_user_sgpr_count 2",
            "  .amdhsa_user_sgpr_kernarg_segment_ptr 1",
            "  .amdhsa_system_sgpr_workgroup_id_x 1",
            "  .amdhsa_float_denorm_mode_32 3",
            ".end_amdhsa_kernel",
        ]) + "\n"


class Alloc:
    def __init__(self, start, limit):
        self.p, self.limit = start, limit

    def __call__(self, n=1, align=None):
        al = align or (1 if n == 1 else 2)
        self.p = (self.p + al - 1) // al * al
        r = self.p
        self.p += n
        assert self.p <= self.limit, "out of registers"
        return r
```

```python
from asmlib import Kernel, Alloc, v, s, fbits
import layout as L

MF = "v_mfma_f32_16x16x32_bf16"
LDS_BYTES = 16384
WS = 4


def cmul(k, ore, oim, re, im, c, sn, tmp, conj):
    for h in (0, 2):
        k("v_pk_mul_f32 %s, %s, %s" % (v(tmp + h, 2), v(im + h, 2), v(sn + h, 2)))
        k("v_pk_mul_f32 %s, %s, %s" % (v(tmp + 4 + h, 2), v(re + h, 2), v(sn + h, 2)))
    neg = " neg_lo:[0,0,1] neg_hi:[0,0,1]"
    for h in (0, 2):
        k("v_pk_fma_f32 %s, %s, %s, %s%s" % (v(ore + h, 2), v(re + h, 2), v(c + h, 2), v(tmp + h, 2), neg if conj else ""))
        k("v_pk_fma_f32 %s, %s, %s, %s%s" % (v(oim + h, 2), v(im + h, 2), v(c + h, 2), v(tmp + 4 + h, 2), "" if conj else neg))


def build(names, stamp=None, prefetch=True):
    k = Kernel("col")
    sIn, sOut, sSsq, sW, sC, sWv = 8, 9, 10, 11, 12, 13
    for li, name in enumerate(names):
        k.entry(name)
        k("s_load_dwordx2 s[4:5], s[0:1], 80")
        k("s_mov_b32 %s, 0x%x" % (s(sIn), (L.X0, L.X2)[li]))
        k("s_mov_b32 %s, 0x%x" % (s(sOut), (L.X1, L.X3)[li]))
        k("s_mov_b32 %s, 0x%x" % (s(sSsq), (L.SSQ0, L.SSQ2)[li]))
        if stamp:
            k("s_mov_b32 s79, %d" % (1, 3)[li])
        if li == 0:
            k("s_branch COL_BODY")
    k.label("COL_BODY")
    va = Alloc(1, 256)
    vl, vn, vg, voff, vfg4, vfk, vfn, vsn = (va() for _ in range(8))
    t = [va() for _ in range(6)]
    XR, SQ, WR = va(8, 4), va(8, 4), va(8, 4)
    C64 = va(32, 4)
    C32 = va(32, 4)
    T1C, T1S, T2C, T2S = (va(8, 4) for _ in range(4))
    WC, WSn = va(8, 4), va(8, 4)
    XF = va(16, 4)
    FR = va(32, 4)
    AC = va(16, 4)
    PK = va(8, 4)
    tmp = va(16, 4)

    k("s_cmp_ge_u32 s2, 256")
    k("s_cbranch_scc1 COL_END")
    if stamp:
        stamp(k, 0)
    k("s_mov_b32 s6, 0x%x" % L.WS_USED)
    k("s_mov_b32 s7, 0x20000")
    k("v_and_b32 %s, 63, v0" % v(vl))
    k("v_lshrrev_b32 %s, 6, v0" % v(t[0]))
    k("v_lshlrev_b32 %s, 4, %s" % (v(voff), v(vl)))
    k("v_lshl_add_u32 %s, %s, 11, %s" % (v(voff), v(t[0]), v(voff)))
    k("s_lshl_b32 %s, s2, 13" % s(sC))
    k("s_add_u32 %s, %s, %s" % (s(sIn), s(sIn), s(sC)))
    k("s_add_u32 %s, %s, %s" % (s(sOut), s(sOut), s(sC)))
    k("s_add_u32 %s, %s, 0x%x" % (s(sW), s(sC), L.WT))
    k("v_and_b32 %s, 15, v0" % v(vn))
    k("v_lshrrev_b32 %s, 4, %s" % (v(vg), v(vl)))
    for b in range(2):
        k("buffer_load_dwordx4 %s, %s, s[4:7], %s offen offset:%d" % (v(SQ + 4 * b, 4), v(voff), s(sSsq), 1024 * b))
        k("buffer_load_dwordx4 %s, %s, s[4:7], %s offen offset:%d" % (v(XR + 4 * b, 4), v(voff), s(sIn), 1024 * b))
    for b in range(2):
        k("buffer_load_dwordx4 %s, %s, s[4:7], %s offen offset:%d" % (v(WR + 4 * b, 4), v(voff), s(sW), 1024 * b))
    if prefetch:
        k("v_lshlrev_b32 %s, 7, v0" % v(t[1]))
        k("s_lshr_b32 %s, s2, 3" % s(sC))
        k("s_mul_i32 %s, %s, 57344" % (s(sC), s(sC)))
        k("s_add_u32 %s, %s, 0x%x" % (s(sC), s(sC), L.W1F))
        k("buffer_load_dword %s, %s, s[4:7], %s offen" % (v(t[2]), v(t[1]), s(sC)))
        k("s_add_u32 %s, %s, 24576" % (s(sC), s(sC)))
        k("buffer_load_dword %s, %s, s[4:7], %s offen" % (v(t[2]), v(t[1]), s(sC)))

    k("v_lshlrev_b32 %s, 2, %s" % (v(t[1]), v(vg)))
    k("v_cvt_f32_u32 %s, %s" % (v(vfg4), v(t[1])))
    k("v_cvt_f32_u32 %s, %s" % (v(vfn), v(vn)))
    k("v_lshl_add_u32 %s, %s, 4, %s" % (v(t[3]), v(t[0]), v(vn)))
    k("v_cvt_f32_u32 %s, %s" % (v(vfk), v(t[3])))
    k("v_lshl_add_u32 %s, %s, 4, %s" % (v(t[3]), v(t[0]), v(t[1])))
    k("v_cvt_f32_u32 %s, %s" % (v(t[3]), v(t[3])))
    k("v_and_b32 %s, 1, v0" % v(vsn))
    k("v_mul_u32_u24 %s, 0x8000, %s" % (v(vsn), v(vsn)))
    k("v_lshl_or_b32 %s, %s, 16, %s" % (v(vsn), v(vsn), v(vsn)))
    f, b0 = t[4], t[5]
    k("v_mul_f32 %s, %s, %s" % (v(f), fbits(1 / 64), v(vfk)))
    k("v_mul_f32 %s, %s, %s" % (v(b0), v(f), v(vfg4)))
    for i in range(8):
        k("v_fmamk_f32 %s, %s, %s, %s" % (v(tmp + i), v(f), fbits(16 * (i >> 2) + (i & 3)), v(b0)))
    for i in range(8):
        k("v_sin_f32 %s, %s" % (v(tmp + 8 + i), v(tmp + i)))
        k("v_cos_f32 %s, %s" % (v(tmp + i), v(tmp + i)))
    for i in range(8):
        ks, r = i >> 2, i & 3
        k("v_cvt_pk_bf16_f32 %s, %s, %s" % (v(C64 + 8 * ks + r), v(tmp + i), v(tmp + 8 + i)))
        k("v_cvt_pk_bf16_f32 %s, -%s, %s" % (v(C64 + 8 * ks + 4 + r), v(tmp + 8 + i), v(tmp + i)))
    for i in range(16):
        k("v_xor_b32 %s, %s, %s" % (v(C64 + 16 + i), v(vsn), v(C64 + i)))
    k("v_mul_f32 %s, %s, %s" % (v(f), fbits(1 / 2048), v(vfk)))
    k("v_mul_f32 %s, %s, %s" % (v(b0), v(f), v(vfg4)))
    for i in range(8):
        k("v_fmamk_f32 %s, %s, %s, %s" % (v(tmp + i), v(f), fbits(16 * (i >> 2) + (i & 3)), v(b0)))
    for i in range(8):
        k("v_cos_f32 %s, %s" % (v(T1C + i), v(tmp + i)))
        k("v_sin_f32 %s, %s" % (v(T1S + i), v(tmp + i)))
    k("v_mul_f32 %s, %s, %s" % (v(f), fbits(1 / 32), v(vfn)))
    k("v_mul_f32 %s, %s, %s" % (v(b0), v(f), v(vfg4)))
    for r in range(4):
        k("v_fmamk_f32 %s, %s, %s, %s" % (v(tmp + r), v(f), fbits(r), v(b0)))
    for r in range(4):
        k("v_sin_f32 %s, %s" % (v(tmp + 8 + r), v(tmp + r)))
        k("v_cos_f32 %s, %s" % (v(tmp + r), v(tmp + r)))
    for r in range(4):
        k("v_cvt_pk_bf16_f32 %s, %s, %s" % (v(C32 + r), v(tmp + r), v(tmp + 8 + r)))
        k("v_cvt_pk_bf16_f32 %s, -%s, %s" % (v(C32 + 4 + r), v(tmp + 8 + r), v(tmp + r)))
    for i in range(8):
        k("v_xor_b32 %s, %s, %s" % (v(C32 + 8 + i), v(vsn), v(C32 + i)))
    for i in range(16):
        if i & 1:
            k("v_xor_b32 %s, 0x80008000, %s" % (v(C32 + 16 + i), v(C32 + i)))
        else:
            k("v_mov_b32 %s, %s" % (v(C32 + 16 + i), v(C32 + i)))
    for bt in range(2):
        if bt == 0:
            k("v_mul_f32 %s, %s, %s" % (v(f), fbits(1 / 2048), v(vfn)))
        else:
            k("v_add_f32 %s, %s, %s" % (v(f), fbits(16 / 2048), v(f)))
        k("v_mul_f32 %s, %s, %s" % (v(b0), v(f), v(t[3])))
        for r in range(4):
            k("v_fmamk_f32 %s, %s, %s, %s" % (v(tmp + 4 * bt + r), v(f), fbits(r), v(b0)))
    for i in range(8):
        k("v_cos_f32 %s, %s" % (v(T2C + i), v(tmp + i)))
        k("v_sin_f32 %s, %s" % (v(T2S + i), v(tmp + i)))
    k("v_mov_b32 %s, %s" % (v(t[4]), fbits(1e-5 * 2.0 ** 22)))
    k("v_lshlrev_b32 %s, 4, %s" % (v(t[5]), v(vl)))
    if stamp:
        stamp(k, 1)

    for b in range(2):
        for r in range(4):
            k("v_fmamk_f32 %s, %s, %s, %s" % (v(SQ + 4 * b + r), v(SQ + 4 * b + r), fbits(2.0 ** 13), v(t[4])))
        for r in range(4):
            k("v_rsq_f32 %s, %s" % (v(SQ + 4 * b + r), v(SQ + 4 * b + r)))
        for r in range(4):
            k("v_lshlrev_b32 %s, 16, %s" % (v(XF + 8 * b + r), v(XR + 4 * b + r)))
            k("v_and_b32 %s, 0xffff0000, %s" % (v(XF + 8 * b + 4 + r), v(XR + 4 * b + r)))
        for h in (0, 2):
            k("v_pk_mul_f32 %s, %s, %s" % (v(tmp + h, 2), v(XF + 8 * b + h, 2), v(SQ + 4 * b + h, 2)))
            k("v_pk_mul_f32 %s, %s, %s" % (v(tmp + 4 + h, 2), v(XF + 8 * b + 4 + h, 2), v(SQ + 4 * b + h, 2)))
        for r in range(4):
            k("v_cvt_pk_bf16_f32 %s, %s, %s" % (v(PK + 4 * b + r), v(tmp + r), v(tmp + 4 + r)))
    k("s_cmp_lg_u32 s2, 0")
    k("s_cbranch_scc1 COL_NOT0_A")
    for i in range(8):
        k("v_and_b32 %s, 0xffff, %s" % (v(PK + i), v(PK + i)))
    k.label("COL_NOT0_A")
    for b in range(2):
        k("ds_write_b128 %s, %s offset:%d" % (v(voff), v(PK + 4 * b, 4), 1024 * b))
    for i in range(8):
        k("v_lshlrev_b32 %s, 16, %s" % (v(WC + i), v(WR + i)))
        k("v_and_b32 %s, 0xffff0000, %s" % (v(WSn + i), v(WR + i)))
    k("s_waitcnt lgkmcnt(0)")
    k("s_barrier")
    for bt in range(2):
        for ks in range(4):
            k("ds_read_b128 %s, %s offset:%d" % (v(FR + 16 * bt + 4 * ks, 4), v(t[5]), 1024 * (2 * ks + bt)))
    if stamp:
        stamp(k, 2)
    for bt in range(2):
        for ks in range(4):
            for ri in range(2):
                d = v(AC + 8 * bt + 4 * ri, 4)
                k("%s %s, %s, %s, %s" % (MF, d, v(FR + 16 * bt + 4 * ks, 4), v(C64 + 8 * ks + 4 * ri, 4), d if ks else "0"))
    for bt in range(2):
        cmul(k, tmp, tmp + 4, AC + 8 * bt, AC + 8 * bt + 4, T1C + 4 * bt, T1S + 4 * bt, tmp, False)
        for r in range(4):
            k("v_cvt_pk_bf16_f32 %s, %s, %s" % (v(PK + 4 * bt + r), v(tmp + r), v(tmp + 4 + r)))
    for kt in range(2):
        for ks in range(2):
            for ri in range(2):
                d = v(FR + 8 * kt + 4 * ri, 4)
                k("%s %s, %s, %s, %s" % (MF, d, v(C32 + 16 * kt + 8 * ks + 4 * ri, 4), v(PK + 4 * ks, 4), d if ks else "0"))
    P2 = FR + 16
    for kt in range(2):
        cmul(k, tmp, tmp + 4, FR + 8 * kt, FR + 8 * kt + 4, WC + 4 * kt, WSn + 4 * kt, tmp, True)
        for r in range(4):
            k("v_cvt_pk_bf16_f32 %s, %s, %s" % (v(P2 + 4 * kt + r), v(tmp + 4 + r), v(tmp + r)))
    for bt in range(2):
        for ks in range(2):
            for ri in range(2):
                d = v(AC + 8 * bt + 4 * (1 - ri), 4)
                k("%s %s, %s, %s, %s" % (MF, d, v(P2 + 4 * ks, 4), v(C32 + 16 * bt + 8 * ks + 4 * ri, 4), d if ks else "0"))
    for bt in range(2):
        cmul(k, tmp, tmp + 4, AC + 8 * bt, AC + 8 * bt + 4, T2C + 4 * bt, T2S + 4 * bt, tmp, True)
        for r in range(4):
            k("v_cvt_pk_bf16_f32 %s, %s, %s" % (v(PK + 4 * bt + r), v(tmp + 4 + r), v(tmp + r)))
        k("ds_write_b128 %s, %s offset:%d" % (v(voff), v(PK + 4 * bt, 4), 8192 + 1024 * bt))
    k("s_waitcnt lgkmcnt(0)")
    k("s_barrier")
    for bt in range(2):
        for ks in range(4):
            k("ds_read_b128 %s, %s offset:%d" % (v(FR + 16 * bt + 4 * ks, 4), v(t[5]), 8192 + 1024 * (2 * ks + bt)))
    if stamp:
        stamp(k, 3)
    for bt in range(2):
        for ks in range(4):
            for ri in range(2):
                d = v(XF + 8 * bt + 4 * (1 - ri), 4)
                k("%s %s, %s, %s, %s" % (MF, d, v(C64 + 8 * ks + 4 * ri, 4), v(FR + 16 * bt + 4 * ks, 4), d))
    k("s_mov_b32 %s, 0xffff" % s(sC))
    k("s_cmp_lg_u32 s2, 0")
    k("s_cselect_b32 %s, -1, %s" % (s(sC), s(sC)))
    for bt in range(2):
        for r in range(4):
            k("v_cvt_pk_bf16_f32 %s, %s, %s" % (v(PK + 4 * bt + r), v(XF + 8 * bt + r), v(XF + 8 * bt + 4 + r)))
        for r in range(4):
            k("v_bfi_b32 %s, %s, %s, %s" % (v(PK + 4 * bt + r), s(sC), v(PK + 4 * bt + r), v(XR + 4 * bt + r)))
        k("buffer_store_dwordx4 %s, %s, s[4:7], %s offen offset:%d" % (v(PK + 4 * bt, 4), v(voff), s(sOut), 1024 * bt))
    if stamp:
        stamp(k, 4, final=True)
    k.label("COL_END")
    k("s_endpgm")
    return k
```

```python
from asmlib import Kernel, Alloc, v, a, s, fbits
import layout as L

MF16 = "v_mfma_f32_16x16x32_bf16"
MF32 = "v_mfma_f32_32x32x16_bf16"
LDS_BYTES = 163840
PRIV = 114688
X3IMG = 65536
WS = "s[4:7]"
C0 = -2 * 0.7978845608028654 * 1.4426950408889634
C1 = C0 * 0.044715
EPS = 1e-5


def build(name, layer, phase=0, stamp=None, opts=None):
    opts = opts or {}
    D = opts.get("D", 4)
    BP = opts.get("BP", 1)
    PD = opts.get("PD", 16)
    k = Kernel(name)
    k.entry(name)
    U = name.upper()
    XIN, XOUT, H = (L.X1, L.X3)[layer], L.X2, (L.H1, L.H2)[layer]
    W2 = (L.W2F, L.W2T)[layer]

    va = Alloc(1, 256)
    vX, vX2, vW, vrX, vrA, vH, vW2, vB1, vl = (va() for _ in range(9))
    vS, vC = va(2), va(2)
    tmp = va(16, 4)
    t = [tmp + i for i in range(8)]
    XB = va(128, 4)
    ACC = va(64, 4)
    SSQ = ACC + 56
    AF = va(28, 4)
    sWv, sP, sI, sPhi, sCt, sRB, sX, sW1, sT, sU, sW2, sH, sM1, sM2, sM3, sHst, sFl, sLw = \
        3, 16, 17, 18, 19, 20, 21, 22, 23, 24, 25, 26, 28, 30, 32, 34, 35, 36

    k("s_cmp_ge_u32 s2, 256")
    k("s_cbranch_scc1 %s_END" % U)
    k("s_load_dwordx2 s[4:5], s[0:1], 80")
    if layer == 1:
        k("s_load_dwordx2 s[8:9], s[0:1], 64")
        k("s_load_dwordx2 s[12:13], s[0:1], 56")
    if stamp:
        stamp(k, 0)
    k("v_lshrrev_b32 %s, 6, v0" % v(t[0]))
    k("v_and_b32 %s, 63, v0" % v(vl))
    k("v_readfirstlane_b32 %s, %s" % (s(sWv), v(t[0])))
    k("s_mov_b32 s6, 0x%x" % L.WS_USED)
    k("s_mov_b32 s7, 0x20000")
    k("s_and_b32 %s, s2, 7" % s(sP))
    k("s_lshl_b32 %s, %s, 1" % (s(sP), s(sP)))
    k("s_lshr_b32 %s, s2, 7" % s(sT))
    k("s_add_u32 %s, %s, %s" % (s(sP), s(sP), s(sT)))
    k("s_bfe_u32 %s, s2, 0x40003" % s(sI))
    k("v_bfe_u32 %s, v0, 3, 2" % v(t[1]))
    k("v_lshlrev_b32 %s, 19, %s" % (v(vX), v(t[1])))
    k("v_bfe_u32 %s, v0, 5, 1" % v(t[1]))
    k("v_lshl_add_u32 %s, %s, 17, %s" % (v(vX), v(t[1]), v(vX)))
    k("v_and_b32 %s, 7, v0" % v(t[1]))
    k("v_lshl_add_u32 %s, %s, 4, %s" % (v(vX), v(t[1]), v(vX)))
    k("v_lshl_add_u32 %s, %s, 7, %s" % (v(vX), v(t[0]), v(vX)))
    k("v_add_u32 %s, %d, %s" % (v(vX2), 32 * 8192 - 1024, v(vX)))
    k("v_lshlrev_b32 %s, 4, %s" % (v(vrA), v(vl)))
    k("v_lshl_add_u32 %s, %s, 11, %s" % (v(vW), v(t[0]), v(vrA)))
    k("s_mul_i32 %s, %s, 12288" % (s(sRB), s(sWv)))
    k("s_add_u32 %s, %s, %d" % (s(sRB), s(sRB), PRIV))
    k("s_lshl_b32 %s, %s, 9" % (s(sX), s(sP)))
    k("s_add_u32 %s, %s, 0x%x" % (s(sX), s(sX), XIN))
    k("s_mul_i32 %s, %s, 114688" % (s(sW1), s(sI)))
    k("s_add_u32 %s, %s, 0x%x" % (s(sW1), s(sW1), L.W1F))
    k("s_lshl_b32 %s, %s, 11" % (s(sLw), s(sWv)))
    k("s_mul_i32 %s, %s, 448" % (s(sU), s(sI)))
    k("s_add_u32 %s, %s, 0x%x" % (s(sU), s(sU), L.B1X))

    def bundle(ks):
        def x0():
            k("s_add_u32 m0, %s, %d" % (s(sRB), (ks % 5) * 2048))
            k("s_add_u32 %s, %s, %d" % (s(sT), s(sX), ks * 8192))
            k("buffer_load_dwordx4 %s, %s, %s offen lds" % (v(vX), WS, s(sT)), tag=("b", ks))

        def x1():
            k("buffer_load_dwordx4 %s, %s, %s offen offset:1024 lds" % (v(vX2), WS, s(sT)), tag=("b", ks))
        ops = [x0, x1]
        if ks not in (7, 15):
            g = ks if ks < 7 else ks - 1

            def w0():
                k("s_add_u32 m0, %s, %d" % (s(sLw), g * 8192))
                k("s_add_u32 %s, %s, %d" % (s(sU), s(sW1), g * 8192))
                k("buffer_load_dwordx4 %s, %s, %s offen lds" % (v(vW), WS, s(sU)), tag=("b", ks))

            def w1():
                k("buffer_load_dwordx4 %s, %s, %s offen offset:1024 lds" % (v(vW), WS, s(sU)), tag=("b", ks))
            ops += [w0, w1]
        return ops

    k("s_add_u32 m0, %s, 10240" % s(sRB))
    k("buffer_load_dwordx4 %s, %s, %s offen lds" % (v(vrA), WS, s(sU)), tag=("b", 0))
    for ks in range(D):
        for op in bundle(ks):
            op()

    k("s_lshr_b32 %s, %s, 3" % (s(sPhi), s(sI)))
    k("s_and_b32 %s, %s, 7" % (s(sCt), s(sI)))
    vn, vg = t[2], t[3]
    k("v_and_b32 %s, 15, v0" % v(vn))
    k("v_lshrrev_b32 %s, 4, %s" % (v(vg), v(vl)))
    k("v_lshl_add_u32 %s, %s, 3, %s" % (v(vrX), v(vl), s(sRB)))
    k("v_lshl_add_u32 %s, %s, 4, %s" % (v(vB1), v(vg), s(sRB)))
    k("v_mov_b32 %s, %s" % (v(vC), fbits(C1)))
    k("v_mov_b32 %s, %s" % (v(vC + 1), fbits(C0)))
    for m, c in ((sM1, 0x22222222), (sM2, 0x44444444), (sM3, 0x88888888)):
        k("s_mov_b32 %s, 0x%x" % (s(m), c))
        k("s_mov_b32 %s, 0x%x" % (s(m + 1), c))
    k("s_mul_i32 %s, %s, %d" % (s(sH), s(sP), 4 * 114688))
    k("s_add_u32 %s, %s, 0x%x" % (s(sH), s(sH), H))
    k("s_mul_i32 %s, %s, 7168" % (s(sHst), s(sI)))
    k("s_add_u32 %s, %s, %s" % (s(sHst), s(sHst), s(sH)))
    if layer == 0:
        k("v_mul_u32_u24 %s, 114688, %s" % (v(vH), v(t[0])))
        k("v_add_u32 %s, %s, %s" % (v(vH), v(vH), v(vrA)))
    else:
        k("v_and_b32 %s, 1, %s" % (v(t[1]), v(vg)))
        k("v_lshrrev_b32 %s, 1, %s" % (v(t[4]), v(t[0])))
        k("v_lshl_add_u32 %s, %s, 1, %s" % (v(t[1]), v(t[1]), v(t[4])))
        k("v_mul_u32_u24 %s, 114688, %s" % (v(vH), v(t[1])))
        k("v_and_b32 %s, 0x2f, %s" % (v(t[1]), v(vl)))
        k("v_and_b32 %s, 1, %s" % (v(t[4]), v(t[0])))
        k("v_lshl_add_u32 %s, %s, 4, %s" % (v(t[1]), v(t[4]), v(t[1])))
        k("v_lshl_add_u32 %s, %s, 4, %s" % (v(vH), v(t[1]), v(vH)))
        k("s_mov_b32 s10, 0x200000")
        k("s_mov_b32 s11, 0x20000")
        k("s_mov_b32 s14, 0x400")
        k("s_mov_b32 s15, 0x20000")
    k("s_and_b32 %s, %s, 1" % (s(sFl), s(sWv)))
    k("s_xor_b32 %s, %s, 1" % (s(sFl), s(sFl)))
    k("s_lshl_b32 %s, %s, 8" % (s(sFl), s(sFl)))
    k("v_xor_b32 %s, %s, %s" % (v(vW2), s(sFl), v(vrA)))
    k("s_mul_i32 %s, %s, 229376" % (s(sW2), s(sCt)))
    k("s_mul_i32 %s, %s, 57344" % (s(sFl), s(sWv)))
    k("s_add_u32 %s, %s, %s" % (s(sW2), s(sW2), s(sFl)))
    k("s_add_u32 %s, %s, 0x%x" % (s(sW2), s(sW2), W2))

    w2_next = [0]

    def w2_load():
        j = w2_next[0]
        if j >= 56 or phase == 1:
            return
        w2_next[0] += 1
        k("buffer_load_dwordx4 %s, %s, %s, %s offen offset:%d" % (a(4 * j, 4), v(vW2), WS, s(sW2), (j & 3) * 1024))
        if j & 3 == 3:
            k("s_add_u32 %s, %s, 4096" % (s(sW2), s(sW2)))

    def read_x(ks):
        for i, ro in ((0, 0), (1, 4), (2, 2), (3, 6)):
            k("ds_read_b64 %s, %s offset:%d" % (v(XB + 8 * ks + ro, 2), v(vrX), (ks % 5) * 2048 + 512 * i))

    def swap_x(ks):
        k("v_swap_b32 %s, %s" % (v(XB + 8 * ks + 1), v(XB + 8 * ks + 4)))
        k("v_swap_b32 %s, %s" % (v(XB + 8 * ks + 3), v(XB + 8 * ks + 6)))

    def read_a(ks, ft):
        off = (7 * ks + ft) * 1024
        if off < 65536:
            k("ds_read_b128 %s, %s offset:%d" % (v(AF + 4 * ft, 4), v(vrA), off))
        else:
            k("ds_read_b128 %s, %s offset:%d" % (v(AF + 4 * ft, 4), v(vA2), off - 65536))

    vA2 = va()
    k("v_add_u32 %s, 0x10000, %s" % (v(vA2), v(vrA)))
    k("v_mov_b32 %s, 0xffff" % v(t[4]))
    k("v_cmp_gt_u32 vcc, 16, %s" % v(vl))
    k("v_cndmask_b32 %s, -1, %s, vcc" % (v(vS), v(t[4])))

    k.wait_tag(("b", BP - 1))
    k("s_barrier")
    if stamp:
        stamp(k, 1)
    read_x(0)
    for ft in range(7):
        read_a(0, ft)
    swap_x(0)
    for tt in range(2):
        k("v_and_b32 %s, %s, %s" % (v(tmp + 8 + 4 * tt), v(vS), v(XB + 4 * tt)))
        for i in range(1, 4):
            k("v_mov_b32 %s, %s" % (v(tmp + 8 + 4 * tt + i), v(XB + 4 * tt + i)))

    for ks in range(16):
        if ks < 15 and (ks + 1) % BP == 0:
            k.wait_tag(("b", min(15, ks + BP)))
            k("s_barrier")
        if ks < 15:
            read_x(ks + 1)
        side = bundle(ks + D) if ks + D < 16 else [w2_load] * 4
        for tt in range(2):
            bb = v(XB + 8 * ks + 4 * tt, 4)
            d = v(SSQ + 4 * tt, 4)
            k("%s %s, %s, %s, %s" % (MF16, d, v(tmp + 8 + 4 * tt, 4) if ks == 0 else bb, bb, d if ks else "0"))
        for ft in range(7):
            for tt in range(2):
                d = v(ACC + 8 * ft + 4 * tt, 4)
                k("%s %s, %s, %s, %s" % (MF16, d, v(AF + 4 * ft, 4), v(XB + 8 * ks + 4 * tt, 4), d if ks else "0"))
            if ks < 15:
                read_a(ks + 1, ft)
            else:
                k("ds_read_b128 %s, %s offset:%d" % (v(AF + 4 * ft, 4), v(vB1), 10240 + 64 * ft))
            if ft in (0, 2, 4, 6) and side:
                side.pop(0)()
            if ft == 3 and ks < 15:
                swap_x(ks + 1)
            if ks == 15 and ft == 2:
                k("v_and_b32 %s, 12, v0" % v(t[2]))
                k("v_and_b32 %s, 15, v0" % v(t[3]))
                k("v_lshl_add_u32 %s, %s, 2, %s" % (v(t[2]), v(t[2]), v(t[3])))
                k("v_lshlrev_b32 %s, 2, %s" % (v(t[2]), v(t[2])))
            if ks == 15 and ft == 4:
                for tt in range(2):
                    k("v_cndmask_b32 %s, %s, %s, %s" % (v(t[tt]), v(SSQ + 4 * tt), v(SSQ + 4 * tt + 1), s(sM1, 2)))
                    k("v_cndmask_b32 %s, %s, %s, %s" % (v(t[tt]), v(t[tt]), v(SSQ + 4 * tt + 2), s(sM2, 2)))
                    k("v_cndmask_b32 %s, %s, %s, %s" % (v(t[tt]), v(t[tt]), v(SSQ + 4 * tt + 3), s(sM3, 2)))
                    k("ds_bpermute_b32 %s, %s, %s" % (v(vS + tt), v(t[2]), v(t[tt])))
    if stamp:
        stamp(k, 2)
    k("v_mov_b32 %s, %s" % (v(t[3]), fbits(EPS * EPS)))
    for tt in range(2):
        k("v_fmamk_f32 %s, %s, %s, %s" % (v(vS + tt), v(vS + tt), fbits((1 + EPS) / 512), v(t[3])))
    for tt in range(2):
        k("v_rsq_f32 %s, %s" % (v(vS + tt), v(vS + tt)))

    side = []
    if layer == 1 and phase != 1:
        k("s_barrier")
        k("s_lshl_b32 %s, %s, 16" % (s(sU), s(sCt)))
        k("s_add_u32 %s, %s, 0x%x" % (s(sU), s(sU), L.FT))

        def ft_dma(j):
            def op():
                if j & 1 == 0:
                    k("s_add_u32 m0, %s, %d" % (s(sLw), (j >> 1) * 8192))
                    k("s_add_u32 %s, %s, %d" % (s(sT), s(sU), (j >> 1) * 8192))
                k("buffer_load_dwordx4 %s, %s, %s offen offset:%d lds" % (v(vW), WS, s(sT), (j & 1) * 1024), tag="ft")
            return op
        side += [ft_dma(j) for j in range(16)]
    RES, BIAS = XB, XB + 8
    vRes = vX
    if layer == 0 and phase != 1:
        k("v_lshrrev_b32 %s, 4, %s" % (v(t[0]), v(vl)))
        k("v_and_b32 %s, 1, %s" % (v(t[1]), v(t[0])))
        k("v_lshrrev_b32 %s, 1, %s" % (v(t[0]), v(t[0])))
        k("v_lshl_add_u32 %s, %s, 2, %s" % (v(t[1]), v(t[0]), v(t[1])))
        k("v_and_b32 %s, 15, v0" % v(t[2]))
        k("v_lshlrev_b32 %s, 3, %s" % (v(t[2]), v(t[2])))
        k("v_lshl_add_u32 %s, %s, 13, %s" % (v(vRes), v(t[1]), v(t[2])))
        k("v_lshlrev_b32 %s, 4, %s" % (v(vX2), v(t[0])))
        k("s_lshl_b32 %s, %s, 1" % (s(sT), s(sCt)))
        k("s_and_b32 %s, %s, 1" % (s(sU), s(sWv)))
        k("s_add_u32 %s, %s, %s" % (s(sT), s(sT), s(sU)))
        k("s_lshl_b32 %s, %s, 6" % (s(sU), s(sT)))
        k("s_add_u32 %s, %s, 0x%x" % (s(sU), s(sU), L.B2F))
        k("s_lshl_b32 %s, %s, 17" % (s(sT), s(sT)))
        k("s_add_u32 %s, %s, %s" % (s(sX), s(sX), s(sT)))
        k("s_lshl_b32 %s, %s, 1" % (s(sT), s(sPhi)))
        k("s_lshr_b32 %s, %s, 1" % (s(sFl), s(sWv)))
        k("s_add_u32 %s, %s, %s" % (s(sT), s(sT), s(sFl)))
        k("s_lshl_b32 %s, %s, 7" % (s(sT), s(sT)))
        k("s_add_u32 %s, %s, %s" % (s(sX), s(sX), s(sT)))

        def res_load(j):
            def op():
                k("s_add_u32 %s, %s, %d" % (s(sT), s(sX), (8 * (j >> 1) + 2 * (j & 1)) * 8192))
                k("buffer_load_dwordx2 %s, %s, %s, %s offen" % (v(RES + 2 * j, 2), v(vRes), WS, s(sT)))
            return op

        def bias_load(j):
            def op():
                k("buffer_load_dwordx4 %s, %s, %s, %s offen offset:%d"
                  % (v(BIAS + 4 * j, 4), v(vX2), WS, s(sU), (j >> 1) * 1024 + (j & 1) * 32))
            return op
        side += [res_load(j) for j in range(4)] + [bias_load(j) for j in range(4)]
    side += [w2_load] * 56

    for ft in range(7):
        x = ACC + 8 * ft
        o = tmp + 8 + 4 * (ft & 1)
        for h in range(4):
            tt = h >> 1
            k("v_pk_fma_f32 %s, %s, %s, %s op_sel:[0,%d,0] op_sel_hi:[1,%d,1]"
              % (v(x + 2 * h, 2), v(x + 2 * h, 2), v(vS, 2), v(AF + 4 * ft + 2 * (h & 1), 2), tt, tt))
        for h in range(4):
            k("v_pk_mul_f32 %s, %s, %s" % (v(tmp + 2 * h, 2), v(x + 2 * h, 2), v(x + 2 * h, 2)))
        for h in range(4):
            k("v_pk_fma_f32 %s, %s, %s, %s op_sel:[0,0,1] op_sel_hi:[1,0,1]" % (v(tmp + 2 * h, 2), v(tmp + 2 * h, 2), v(vC, 2), v(vC, 2)))
        for h in range(4):
            k("v_pk_mul_f32 %s, %s, %s" % (v(tmp + 2 * h, 2), v(x + 2 * h, 2), v(tmp + 2 * h, 2)))
        side.pop(0)()
        for i in range(8):
            k("v_exp_f32 %s, %s" % (v(tmp + i), v(tmp + i)))
        side.pop(0)()
        for h in range(4):
            k("v_pk_add_f32 %s, %s, 1.0 op_sel_hi:[1,0]" % (v(tmp + 2 * h, 2), v(tmp + 2 * h, 2)))
        for i in range(8):
            k("v_rcp_f32 %s, %s" % (v(tmp + i), v(tmp + i)))
        side.pop(0)()
        for h in range(4):
            k("v_pk_mul_f32 %s, %s, %s" % (v(tmp + 2 * h, 2), v(x + 2 * h, 2), v(tmp + 2 * h, 2)))
        for h in range(4):
            k("v_cvt_pk_bf16_f32 %s, %s, %s" % (v(o + h), v(tmp + 2 * h), v(tmp + 2 * h + 1)))
        k("v_permlane16_swap_b32 %s, %s" % (v(o), v(o + 2)))
        k("v_permlane16_swap_b32 %s, %s" % (v(o + 1), v(o + 3)))
        k("buffer_store_dwordx4 %s, %s, %s, %s offen offset:%d sc1" % (v(o, 4), v(vH), WS, s(sHst), (ft & 3) * 1024), tag="h")
        if ft == 3:
            k("s_add_u32 %s, %s, 4096" % (s(sHst), s(sHst)))
    if stamp:
        stamp(k, 3)
    if phase == 1:
        if stamp:
            stamp(k, 4, final=True)
        k.label("%s_END" % U)
        k("s_endpgm")
        return k

    B2R = AF + 20
    if layer == 1:
        k("v_lshrrev_b32 %s, 5, %s" % (v(t[0]), v(vl)))
        k("v_lshlrev_b32 %s, 5, %s" % (v(vX2), v(t[0])))
        k("s_lshl_b32 %s, %s, 1" % (s(sU), s(sCt)))
        k("s_and_b32 %s, %s, 1" % (s(sT), s(sWv)))
        k("s_add_u32 %s, %s, %s" % (s(sU), s(sU), s(sT)))
        k("s_lshl_b32 %s, %s, 6" % (s(sU), s(sU)))
        k("buffer_load_dwordx4 %s, %s, s[12:15], %s offen" % (v(B2R, 4), v(vX2), s(sU)))
        k("buffer_load_dwordx4 %s, %s, s[12:15], %s offen offset:16" % (v(B2R + 4, 4), v(vX2), s(sU)))
    for _ in range(opts.get("NW", 13)):
        side.pop(0)()
    k("s_lshl_b32 %s, %s, 4" % (s(sFl), s(sP)))
    k("s_add_u32 %s, %s, %s" % (s(sT), s(sFl), s(sI)))
    k("s_lshl_b32 %s, %s, 2" % (s(sT), s(sT)))
    k("s_add_u32 %s, %s, %s" % (s(sT), s(sT), s(sWv)))
    k("s_lshl_b32 %s, %s, 6" % (s(sT), s(sT)))
    k("s_add_u32 %s, %s, 0x%x" % (s(sT), s(sT), L.FLAGS + layer * 65536))
    k("s_lshl_b32 s37, %s, 2" % s(sWv))
    k("s_add_u32 %s, %s, s37" % (s(sFl), s(sFl)))
    k("s_lshl_b32 %s, %s, 8" % (s(sFl), s(sFl)))
    k("s_add_u32 %s, %s, 0x%x" % (s(sFl), s(sFl), L.FLAGS + layer * 65536))
    k("v_mov_b32 %s, 1" % v(t[0]))
    k("v_and_b32 %s, 15, v0" % v(t[1]))
    k("v_lshlrev_b32 %s, 6, %s" % (v(vB1), v(t[1])))
    k.wait_tag("h")
    k("s_mov_b64 exec, 1")
    k("buffer_store_dword %s, %s, %s, %s offen sc1" % (v(t[0]), v(vB1), WS, s(sT)))
    k("s_mov_b64 exec, -1")
    if stamp:
        stamp(k, 4)

    own = lambda sg, gm, r: ACC + 32 + 16 * sg + 8 + 4 * gm + r
    for sg in range(2):
        for i in range(8):
            k("v_mov_b32 %s, 0" % v(ACC + 32 + 16 * sg + i))
    if layer == 0:
        for j in range(4):
            k("v_permlane16_swap_b32 %s, %s" % (v(RES + 2 * j), v(RES + 2 * j + 1)))
        for gm in range(2):
            for r in range(4):
                src = RES + 4 * gm + r
                k("v_lshlrev_b32 %s, 16, %s" % (v(own(0, gm, r)), v(src)))
                k("v_and_b32 %s, 0xffff0000, %s" % (v(own(1, gm, r)), v(src)))
        for sg in range(2):
            for gm in range(2):
                for h in (0, 2):
                    k("v_pk_add_f32 %s, %s, %s" % (v(own(sg, gm, h), 2), v(own(sg, gm, h), 2), v(BIAS + 8 * sg + 4 * gm + h, 2)))
        while w2_next[0] < 56:
            w2_load()
    else:
        for sg in range(2):
            for gm in range(2):
                for h in range(2):
                    src = B2R + 4 * sg + 2 * gm + h
                    k("v_lshlrev_b32 %s, 16, %s" % (v(own(sg, gm, 2 * h)), v(src)))
                    k("v_and_b32 %s, 0xffff0000, %s" % (v(own(sg, gm, 2 * h + 1)), v(src)))
        k("s_barrier")
        start = w2_next[0]
        k("s_cmp_eq_u32 %s, 1" % s(sPhi))
        k("s_cbranch_scc1 %s_X3B" % U)
        for tt in range(2):
            w2_next[0] = start
            if tt == 1:
                k.label("%s_X3B" % U)
            for j in range(5):
                k("ds_read_b128 %s, %s offset:%d" % (v(AF + 4 * j, 4), v(vrA), j * 1024))
            for j in range(64):
                ks, dt = j >> 2, j & 3
                d = v(tmp + 4 * dt, 4)
                k("%s %s, %s, %s, %s" % (MF16, d, v(AF + 4 * (j % 5), 4), v(XB + 8 * ks + 4 * tt, 4), d if ks else "0"))
                if j + 5 < 64:
                    k("ds_read_b128 %s, %s offset:%d" % (v(AF + 4 * (j % 5), 4), v(vrA), (j + 5) * 1024))
                if j % 3 == 0:
                    w2_load()
            while w2_next[0] < 56:
                w2_load()
            if tt == 0:
                k("s_branch %s_X3E" % U)
        k.label("%s_X3E" % U)
        k("v_and_b32 %s, 15, v0" % v(AF))
        k("v_lshrrev_b32 %s, 6, v0" % v(AF + 1))
        k("v_lshl_add_u32 %s, %s, 4, %s" % (v(AF), v(AF + 1), v(AF)))
        k("v_mul_u32_u24 %s, 272, %s" % (v(AF), v(AF)))
        k("v_and_b32 %s, 48, v0" % v(AF + 1))
        k("v_add3_u32 %s, %s, %s, %s" % (v(AF), v(AF), v(AF + 1), v(vA2)))
        k("v_sub_u32 %s, %s, %s" % (v(AF), v(AF), v(vrA)))
        for dt in range(4):
            k("ds_write_b128 %s, %s offset:%d" % (v(AF), v(tmp + 4 * dt, 4), 64 * dt))

    k("s_lshr_b32 %s, %s, 1" % (s(sT), s(sWv)))
    k("s_xor_b32 %s, %s, 1" % (s(sT), s(sT)))
    k("s_lshl_b32 %s, %s, 1" % (s(sU), s(sPhi)))
    k("s_add_u32 %s, %s, %s" % (s(sT), s(sT), s(sU)))
    k("s_xor_b32 %s, %s, 1" % (s(sU), s(sT)))
    k("s_mul_i32 %s, %s, 114688" % (s(sT), s(sT)))
    k("s_mul_i32 %s, %s, 114688" % (s(sU), s(sU)))
    k("s_mul_i32 s37, %s, 28672" % s(sWv))
    k("s_add_u32 %s, %s, s37" % (s(sH), s(sH)))
    k("s_add_u32 %s, %s, %s" % (s(sT), s(sT), s(sH)))
    k("s_add_u32 %s, %s, %s" % (s(sU), s(sU), s(sH)))
    if phase == 0:
        k("s_mov_b32 s37, 0")
        k.label("%s_POLL" % U)
        k("buffer_load_dword %s, %s, %s, %s offen sc1" % (v(vS), v(vB1), WS, s(sFl)))
        k("s_add_u32 s37, s37, 1")
        k("s_waitcnt vmcnt(0)")
        k("v_cmp_eq_u32 vcc, 0, %s" % v(vS))
        k("s_cmp_lt_u32 s37, 0x40000")
        k("s_cselect_b64 vcc, vcc, 0")
        k("s_cbranch_vccnz %s_POLL" % U)
    if stamp:
        stamp(k, 5)

    def h_load(j):
        sb = sT if j < 28 else sU
        jj = j % 28
        k("buffer_load_dwordx4 %s, %s, %s, %s offen offset:%d sc1" % (v(XB + 4 * (j % 32), 4), v(vrA), WS, s(sb), (jj & 3) * 1024))
        if jj & 3 == 3:
            k("s_add_u32 %s, %s, 4096" % (s(sb), s(sb)))

    vRW = vrX
    k("v_add_u32 %s, %s, %s" % (v(vRW), s(sRB), v(vrA)))

    def part_write(kap, grp):
        sg, gm = grp >> 1, grp & 1
        k("ds_write_b128 %s, %s offset:%d" % (v(vRW), v(ACC + 32 * (kap >> 1) + 16 * sg + 8 * (kap & 1) + 4 * gm, 4), kap * 4096 + grp * 1024))

    for j in range(PD):
        h_load(j)
    vRd = [AF + 2, AF + 3, AF + 4]
    for dl in range(1, 4):
        k("s_xor_b32 s37, %s, %d" % (s(sWv), dl))
        k("s_mul_i32 s37, s37, 12288")
        k("s_add_u32 s37, s37, %d" % (PRIV + (3 ^ dl) * 4096))
        k("v_add_u32 %s, s37, %s" % (v(vRd[dl - 1]), v(vrA)))
    if layer == 1:
        vO, vI = vX, AF + 5
        k("v_and_b32 %s, 15, v0" % v(t[0]))
        k("v_bfe_u32 %s, v0, 4, 1" % v(t[1]))
        k("v_lshl_add_u32 %s, %s, 1, %s" % (v(t[2]), v(t[0]), s(sPhi)))
        k("v_and_b32 %s, 3, %s" % (v(t[2]), v(t[2])))
        k("v_lshrrev_b32 %s, 1, %s" % (v(t[0]), v(t[0])))
        k("v_lshl_add_u32 %s, %s, 3, %s" % (v(t[0]), v(t[1]), v(t[0])))
        k("v_lshl_add_u32 %s, %s, 5, %s" % (v(t[0]), v(t[2]), v(t[0])))
        k("v_lshl_add_u32 %s, %s, 10, %s" % (v(vO), v(t[0]), v(vX2)))
        k("s_lshr_b32 s37, %s, 2" % s(sP))
        k("s_lshl_b32 %s, s37, 9" % s(sX))
        k("s_and_b32 s37, %s, 1" % s(sP))
        k("s_lshl_b32 s37, s37, 8")
        k("s_add_u32 %s, %s, s37" % (s(sX), s(sX)))
        k("s_lshr_b32 s37, %s, 1" % s(sWv))
        k("s_lshl_b32 s37, s37, 7")
        k("s_add_u32 %s, %s, s37" % (s(sX), s(sX)))
        k("s_bfe_u32 s37, %s, 0x10001" % s(sP))
        k("s_lshl_b32 s37, s37, 4")
        k("s_add_u32 %s, %s, s37" % (s(sX), s(sX)))
        k("s_lshl_b32 %s, %s, 10" % (s(sX), s(sX)))
        k("s_lshl_b32 s37, %s, 7" % s(sCt))
        k("s_add_u32 %s, %s, s37" % (s(sX), s(sX)))
        k("s_and_b32 s37, %s, 1" % s(sWv))
        k("s_lshl_b32 s38, s37, 6")
        k("s_add_u32 %s, %s, s38" % (s(sX), s(sX)))
        k("s_lshl_b32 s37, s37, 7")
        k("s_lshr_b32 s38, %s, 1" % s(sWv))
        k("s_mul_i32 s38, s38, %d" % (32 * 272))
        k("s_add_u32 s37, s37, s38")
        k("s_add_u32 s37, s37, %d" % X3IMG)
        k("v_and_b32 %s, 31, v0" % v(t[0]))
        k("v_mul_u32_u24 %s, 272, %s" % (v(t[0]), v(t[0])))
        k("v_lshl_add_u32 %s, %s, 1, %s" % (v(t[0]), v(vX2), v(t[0])))
        k("v_add_u32 %s, s37, %s" % (v(vI), v(t[0])))
    for j in range(56):
        ptr, ks2 = j // 28, j % 28
        if j + PD < 56:
            h_load(j + PD)
        for sg in range(2):
            d = v(ACC + 32 * ptr + 16 * sg, 16)
            k("%s %s, %s, %s, %s" % (MF32, d, a(8 * ks2 + 4 * sg, 4), v(XB + 4 * (j % 32), 4), d if j else "0"))
        if 36 <= j < 44:
            part_write((j - 36) >> 2, (j - 36) & 3)
    if stamp:
        stamp(k, 6)
    for grp in range(4):
        part_write(2, grp)
    k("s_waitcnt lgkmcnt(0)")
    k("s_barrier")
    srcs = []
    for dl in range(3):
        for grp in range(4):
            k("ds_read_b128 %s, %s offset:%d" % (v(XB + 16 * dl + 4 * grp, 4), v(vRd[dl]), grp * 1024))
        srcs.append(XB + 16 * dl)
    if layer == 1:
        for grp in range(4):
            k("ds_read_b128 %s, %s offset:%d" % (v(XB + 48 + 4 * grp, 4), v(vI), grp * 16))
        srcs.append(XB + 48)
    for src in srcs:
        for grp in range(4):
            for h in (0, 2):
                d = v(own(grp >> 1, grp & 1, h), 2)
                k("v_pk_add_f32 %s, %s, %s" % (d, d, v(src + 4 * grp + h, 2)))
    if layer == 0:
        for gm in range(2):
            for r in range(4):
                k("v_cvt_pk_bf16_f32 %s, %s, %s" % (v(tmp + 4 * gm + r), v(own(0, gm, r)), v(own(1, gm, r))))
        k("s_add_u32 %s, %s, 0x%x" % (s(sX), s(sX), XOUT - XIN))
        for j in range(4):
            k("v_permlane16_swap_b32 %s, %s" % (v(tmp + 2 * j), v(tmp + 2 * j + 1)))
            k("s_add_u32 %s, %s, %d" % (s(sT), s(sX), (8 * (j >> 1) + 2 * (j & 1)) * 8192))
            k("buffer_store_dwordx2 %s, %s, %s, %s offen" % (v(tmp + 2 * j, 2), v(vRes), WS, s(sT)))
        k("s_and_b32 s37, %s, 1" % s(sWv))
        k("s_or_b32 s37, s37, %s" % s(sCt))
        k("s_cmp_eq_u32 s37, 0")
        k("s_cselect_b32 vcc_lo, -1, 0")
        k("s_mov_b32 vcc_hi, 0")
        k("v_cndmask_b32 %s, %s, 0, vcc" % (v(own(1, 0, 0)), v(own(1, 0, 0))))
        q = tmp + 8
        for i in range(2):
            k("v_pk_mul_f32 %s, %s, %s" % (v(q + 2 * i, 2), v(own(i, 0, 0), 2), v(own(i, 0, 0), 2)))
        for hh in (2, 4, 6):
            for i in range(2):
                k("v_pk_fma_f32 %s, %s, %s, %s" % (v(q + 2 * i, 2), v(own(i, 0, hh), 2), v(own(i, 0, hh), 2), v(q + 2 * i, 2)))
        k("v_pk_add_f32 %s, %s, %s" % (v(q, 2), v(q, 2), v(q + 2, 2)))
        k("v_and_b32 %s, 15, v0" % v(q + 2))
        k("v_bfe_u32 %s, v0, 4, 1" % v(q + 3))
        k("v_permlane32_swap_b32 %s, %s" % (v(q), v(q + 1)))
        k("v_lshl_add_u32 %s, %s, 1, %s" % (v(q + 2), v(q + 2), v(q + 3)))
        k("v_add_f32 %s, %s, %s" % (v(q), v(q), v(q + 1)))
        k("v_lshlrev_b32 %s, 2, %s" % (v(q + 2), v(q + 2)))
        k("v_mov_b32 %s, %s" % (v(q + 1), v(q)))
        k("s_lshl_b32 %s, %s, 2" % (s(sT), s(sP)))
        k("s_lshl_b32 s37, %s, 1" % s(sPhi))
        k("s_add_u32 %s, %s, s37" % (s(sT), s(sT)))
        k("v_permlane32_swap_b32 %s, %s" % (v(q), v(q + 1)))
        k("s_lshr_b32 s37, %s, 1" % s(sWv))
        k("s_add_u32 %s, %s, s37" % (s(sT), s(sT)))
        k("s_lshl_b32 %s, %s, 7" % (s(sT), s(sT)))
        k("s_add_u32 %s, %s, 0x%x" % (s(sT), s(sT), L.SSQ2))
        k("v_add_f32 %s, %s, %s" % (v(q), v(q), v(q + 1)))
        k("s_mov_b32 exec_hi, 0")
        k("buffer_atomic_add_f32 %s, %s, %s, %s offen" % (v(q), v(q + 2), WS, s(sT)))
        if stamp:
            k("s_mov_b64 exec, -1")
    else:
        for sg in range(2):
            for i in range(4):
                k("v_cvt_pk_bf16_f32 %s, %s, %s" % (v(tmp + 4 * sg + i), v(own(sg, 0, 2 * i)), v(own(sg, 0, 2 * i + 1))))
            k("buffer_store_dwordx4 %s, %s, s[8:11], %s offen offset:%d" % (v(tmp + 4 * sg, 4), v(vO), s(sX), 16 * sg))
    if stamp:
        stamp(k, 7, final=True)
    k.label("%s_END" % U)
    k("s_endpgm")
    return k
```

```python
import math
from asmlib import Kernel, Alloc, v, s, fbits
import layout as L

MF = "v_mfma_f32_16x16x32_bf16"
PITCH = 1088
LDS_BYTES = 2 * 8 * PITCH
WS, IN, IN2 = 4, 8, 12


def srd_words(k, base, nbytes):
    k("s_mov_b32 %s, 0x%x" % (s(base + 2), nbytes))
    k("s_mov_b32 %s, 0x20000" % s(base + 3))


def build(name, code_bytes=True, stamp=None):
    k = Kernel(name)
    k.entry(name)
    va = Alloc(1, 256)
    vl, vn, vg, vfn, vfg4 = va(), va(), va(), va(), va()
    t = [va() for _ in range(8)]
    A = va(32, 4)
    D = va(64, 4)
    RAW = D
    B1re, B1im, A2re, A2im, S2re, S2im = (va(4, 4) for _ in range(6))
    TC, TS = va(4, 4), va(4, 4)
    Bm, Bs = va(8, 4), va(8, 4)
    tmp = va(16, 4)
    O = va(32, 4)
    sM0, sM8, sDC, sRole, sT, sA, sB, sC, sLds = 32, 34, 36, 3, 38, 39, 40, 41, 42
    sSelLo, sSelHi = 43, 44

    k("s_cmp_ge_u32 s2, 256")
    k("s_cbranch_scc1 PREP_END")
    k("s_load_dwordx16 s[16:31], s[0:1], 0")
    k("s_load_dwordx2 s[4:5], s[0:1], 80")
    if stamp:
        stamp(k, 0)
    k("v_lshrrev_b32 %s, 6, v0" % v(t[0]))
    k("v_and_b32 %s, 63, v0" % v(vl))
    k("v_readfirstlane_b32 %s, %s" % (s(sRole), v(t[0])))
    k("v_and_b32 %s, 15, v0" % v(vn))
    k("v_lshrrev_b32 %s, 4, %s" % (v(vg), v(vl)))
    srd_words(k, WS, L.WS_USED)
    k("s_mov_b32 %s, 0x20000" % s(IN + 3))
    k("s_mov_b32 %s, 0x05040100" % s(sSelLo))
    k("s_mov_b32 %s, 0x07060302" % s(sSelHi))
    k("s_mov_b32 %s, 0x00010001" % s(sM0))
    k("s_mov_b32 %s, 0x00010001" % s(sM0 + 1))
    k("s_mov_b32 %s, 0xff00ff00" % s(sM8))
    k("s_mov_b32 %s, 0xff00ff00" % s(sM8 + 1))
    k("s_mov_b32 %s, %s" % (s(sDC), fbits(1 / (16 * math.sqrt(2)))))
    k("v_cvt_f32_u32 %s, %s" % (v(vfn), v(vn)))
    k("v_lshlrev_b32 %s, 2, %s" % (v(t[0]), v(vg)))
    k("v_cvt_f32_u32 %s, %s" % (v(vfg4), v(t[0])))
    k("s_and_b32 %s, s2, 7" % s(sA))
    k("s_lshr_b32 %s, s2, 3" % s(sB))
    k("s_cmp_eq_u32 %s, 1" % s(sRole))
    k("s_cbranch_scc1 PREP_IN_W2")
    k("s_cmp_eq_u32 %s, 2" % s(sRole))
    k("s_cbranch_scc1 PREP_IN_W1")
    k("s_cmp_eq_u32 %s, 3" % s(sRole))
    k("s_cbranch_scc1 PREP_MISC")

    def dma_rows(soff_of_row):
        k("v_lshlrev_b32 %s, 4, %s" % (v(t[0]), v(vl)))
        for j in range(8):
            k("s_add_u32 m0, %s, %d" % (s(sLds), j * PITCH))
            k("s_add_u32 %s, %s, %d" % (s(sC), s(sA), soff_of_row(j)))
            k("buffer_load_dwordx4 %s, %s, %s offen lds" % (v(t[0]), s(IN, 4), s(sC)), tag="in")

    k("s_lshl_b32 %s, %s, 5" % (s(sT), s(sA)))
    k("s_add_u32 %s, %s, %s" % (s(sT), s(sT), s(sB)))
    k("s_lshr_b32 %s, %s, 1" % (s(sC), s(sA)))
    k("s_lshl_b32 %s, %s, 9" % (s(sC), s(sC)))
    k("s_and_b32 %s, %s, 1" % (s(sA), s(sA)))
    k("s_lshl_b32 %s, %s, 4" % (s(sA), s(sA)))
    k("s_add_u32 %s, %s, %s" % (s(sA), s(sA), s(sC)))
    k("s_lshr_b32 %s, %s, 3" % (s(sC), s(sB)))
    k("s_lshl_b32 %s, %s, 7" % (s(sC), s(sC)))
    k("s_add_u32 %s, %s, %s" % (s(sA), s(sA), s(sC)))
    k("s_and_b32 %s, %s, 7" % (s(sC), s(sB)))
    k("s_lshl_b32 %s, %s, 1" % (s(sC), s(sC)))
    k("s_add_u32 %s, %s, %s" % (s(sA), s(sA), s(sC)))
    k("s_lshl_b32 %s, %s, 10" % (s(sA), s(sA)))
    k("s_mov_b32 %s, 0" % s(sLds))
    k("s_mov_b32 %s, 0x200000" % s(IN + 2))
    k("s_mov_b64 %s, s[16:17]" % s(IN, 2))
    dma_rows(lambda j: (32 * (j & 3) + (j >> 2)) * 1024)
    k("s_branch PREP_CONST")

    k.label("PREP_IN_W2")
    k("s_cmp_gt_u32 s2, 224")
    k("s_cbranch_scc1 PREP_END")
    k("s_mov_b32 %s, s2" % s(sT))
    k("s_lshl_b32 %s, s2, 13" % s(sA))
    k("s_mov_b32 %s, %d" % (s(sLds), 8 * PITCH))
    k("s_cmp_eq_u32 s2, 224")
    k("s_cselect_b32 %s, 0, %s" % (s(sA), s(sA)))
    k("s_movk_i32 %s, 0x400" % s(sC))
    k("s_cselect_b32 %s, %s, 0x1c0000" % (s(IN + 2), s(sC)))
    k("s_cselect_b64 %s, s[30:31], s[28:29]" % s(IN, 2))
    dma_rows(lambda j: j * 1024)
    k("s_branch PREP_CONST")

    k.label("PREP_IN_W1")
    k("s_cmp_ge_u32 %s, 28" % s(sB))
    k("s_cbranch_scc1 PREP_END")
    k("s_mul_i32 %s, %s, 28" % (s(sT), s(sA)))
    k("s_add_u32 %s, %s, %s" % (s(sT), s(sT), s(sB)))
    k("s_mov_b32 %s, 0" % s(sDC))
    k("s_lshl_b32 %s, %s, 4" % (s(sA), s(sT)))
    k("v_lshl_add_u32 %s, %s, 6, %s" % (v(t[0]), v(vg), v(vn)))
    k("v_mul_u32_u24 %s, 3584, %s" % (v(t[0]), v(t[0])))
    k("s_mov_b32 %s, 0x1c0000" % s(IN + 2))
    k("s_mov_b64 %s, s[24:25]" % s(IN, 2))
    for jj in range(8):
        k("s_add_u32 %s, %s, %d" % (s(sC), s(sA), 16 * (16 * (jj >> 2) + (jj & 3)) * 3584))
        k("buffer_load_dwordx4 %s, %s, %s, %s offen" % (v(RAW + 4 * jj, 4), v(t[0]), s(IN, 4), s(sC)))

    k.label("PREP_CONST")
    f1, b1, f2, b2 = t[0], t[1], t[2], t[3]
    k("v_mul_f32 %s, %s, %s" % (v(f1), fbits(1 / 32), v(vfn)))
    k("v_mul_f32 %s, %s, %s" % (v(b1), v(f1), v(vfg4)))
    k("v_cndmask_b32 %s, %s, 0.5, %s" % (v(f2), v(f1), s(sM0, 2)))
    k("v_mov_b32 %s, %s" % (v(t[4]), fbits(0.25)))
    k("v_cndmask_b32 %s, %s, 0, %s" % (v(t[4]), v(t[4]), s(sM0, 2)))
    k("v_fma_f32 %s, %s, %s, %s" % (v(b2), v(f2), v(vfg4), v(t[4])))
    for jj in range(8):
        c = fbits(16 * (jj >> 2) + (jj & 3))
        k("v_fmamk_f32 %s, %s, %s, %s" % (v(tmp + jj), v(f1), c, v(b1)))
        k("v_fmamk_f32 %s, %s, %s, %s" % (v(tmp + 8 + jj), v(f2), c, v(b2)))
    for i in range(16):
        k("v_cos_f32 %s, %s" % (v(tmp + i), v(tmp + i)))
    for i in range(4):
        k("v_cvt_pk_bf16_f32 %s, %s, %s" % (v(B1re + i), v(tmp + 2 * i), v(tmp + 2 * i + 1)))
        k("v_cvt_pk_bf16_f32 %s, %s, %s" % (v(B1im + i), v(tmp + 8 + 2 * i), v(tmp + 8 + 2 * i + 1)))
    ftw, fa2, fs2, sctw, scs, vsh, vsg = t[0], t[1], t[2], t[3], t[4], t[5], t[6]
    k("v_mul_f32 %s, %s, %s" % (v(ftw), fbits(1 / 512), v(vfn)))
    k("v_mul_f32 %s, %s, %s" % (v(fa2), fbits(1 / 16), v(vfn)))
    k("v_add_f32 %s, %s, %s" % (v(fs2), fbits(-15 / 32), v(fa2)))
    k("v_cndmask_b32 %s, %s, %s, %s" % (v(fs2), v(fa2), v(fs2), s(sM8, 2)))
    k("v_cndmask_b32 %s, %s, 0.5, %s" % (v(fs2), v(fs2), s(sM0, 2)))
    k("v_mov_b32 %s, %s" % (v(scs), fbits(1 / 16)))
    k("v_cndmask_b32 %s, %s, 0, %s" % (v(sctw), v(scs), s(sM0, 2)))
    k("v_mov_b32 %s, %s" % (v(t[7]), fbits(1 / (16 * math.sqrt(2)))))
    k("v_cndmask_b32 %s, %s, %s, %s" % (v(scs), v(scs), v(t[7]), s(sM0, 2)))
    k("v_cndmask_b32 %s, 0, 16, %s" % (v(vsh), s(sM8, 2)))
    k("v_mov_b32 %s, 0x80008000" % v(vsg))
    k("v_cndmask_b32 %s, 0, %s, %s" % (v(vsg), v(vsg), s(sM8, 2)))
    k("v_mov_b32 %s, %s" % (v(t[7]), s(sDC)))
    for r in range(4):
        fb = tmp + 12 + r
        k("v_add_f32 %s, %s, %s" % (v(fb), fbits(r), v(vfg4)))
        k("v_mul_f32 %s, %s, %s" % (v(tmp + r), v(fb), v(ftw)))
        k("v_mul_f32 %s, %s, %s" % (v(tmp + 4 + r), v(fb), v(fa2)))
        k("v_mul_f32 %s, %s, %s" % (v(tmp + 8 + r), v(fb), v(fs2)))
    for r in range(4):
        k("v_cos_f32 %s, %s" % (v(TC + r), v(tmp + r)))
        k("v_sin_f32 %s, %s" % (v(TS + r), v(tmp + r)))
        k("v_cos_f32 %s, %s" % (v(Bm + r), v(tmp + 4 + r)))
        k("v_sin_f32 %s, %s" % (v(Bm + 4 + r), v(tmp + 4 + r)))
        k("v_cos_f32 %s, %s" % (v(S2re + r), v(tmp + 8 + r)))
        k("v_sin_f32 %s, %s" % (v(S2im + r), v(tmp + 8 + r)))
    for r in range(4):
        k("v_mul_f32 %s, %s, %s" % (v(TC + r), v(TC + r), v(sctw)))
        k("v_mul_f32 %s, %s, %s" % (v(TS + r), v(TS + r), v(sctw)))
        k("v_cvt_pk_bf16_f32 %s, %s, %s" % (v(A2re + r), v(Bm + r), v(Bm + 4 + r)))
        k("v_cvt_pk_bf16_f32 %s, -%s, %s" % (v(A2im + r), v(Bm + 4 + r), v(Bm + r)))
        k("v_xor_b32 %s, %s, %s" % (v(A2im + r), v(A2im + r), v(vsg)))
        k("v_mul_f32 %s, %s, %s" % (v(S2re + r), v(S2re + r), v(scs)))
        k("v_mul_f32 %s, %s, %s" % (v(S2im + r), fbits(-1 / 16), v(S2im + r)))
        k("v_cndmask_b32 %s, %s, %s, %s" % (v(S2im + r), v(S2im + r), v(t[7]), s(sM0, 2)))
        k("v_cvt_pk_bf16_f32 %s, %s, 0" % (v(S2re + r), v(S2re + r)))
        k("v_cvt_pk_bf16_f32 %s, %s, 0" % (v(S2im + r), v(S2im + r)))
        k("v_lshlrev_b32 %s, %s, %s" % (v(S2re + r), v(vsh), v(S2re + r)))
        k("v_lshlrev_b32 %s, %s, %s" % (v(S2im + r), v(vsh), v(S2im + r)))
    for i in range(8):
        k("v_mov_b32 %s, 0" % v(Bs + i))

    k("s_cmp_eq_u32 %s, 2" % s(sRole))
    k("s_cbranch_scc1 PREP_A_W1")
    k("v_lshl_add_u32 %s, %s, 3, %s" % (v(t[0]), v(vl), s(sLds)))
    k("s_waitcnt vmcnt(0)")
    for j in range(8):
        k("ds_read_b64_tr_b16 %s, %s offset:%d" % (v(A + 4 * j, 2), v(t[0]), j * PITCH))
        k("ds_read_b64_tr_b16 %s, %s offset:%d" % (v(A + 4 * j + 2, 2), v(t[0]), j * PITCH + 512))
    k("s_branch PREP_CORE")
    k.label("PREP_A_W1")
    for j in range(8):
        for i in range(4):
            k("v_perm_b32 %s, %s, %s, %s" % (v(A + 4 * j + i), v(RAW + 4 * (2 * i + 1) + (j >> 1)),
                                            v(RAW + 4 * (2 * i) + (j >> 1)), s(sSelHi if j & 1 else sSelLo)))

    k.label("PREP_CORE")
    if stamp:
        stamp(k, 1)
    for j in range(8):
        k("%s %s, %s, %s, 0" % (MF, v(D + 8 * j, 4), v(A + 4 * j, 4), v(B1re, 4)))
        k("%s %s, %s, %s, 0" % (MF, v(D + 8 * j + 4, 4), v(A + 4 * j, 4), v(B1im, 4)))
    for j in range(8):
        re, im = D + 8 * j, D + 8 * j + 4
        bm, bs = Bm + 4 * (j & 1), Bs + 4 * (j & 1)
        for h in (0, 2):
            k("v_pk_mul_f32 %s, %s, %s" % (v(tmp + h, 2), v(im + h, 2), v(TS + h, 2)))
            k("v_pk_mul_f32 %s, %s, %s" % (v(tmp + 4 + h, 2), v(re + h, 2), v(TS + h, 2)))
        for h in (0, 2):
            k("v_pk_fma_f32 %s, %s, %s, %s" % (v(tmp + h, 2), v(re + h, 2), v(TC + h, 2), v(tmp + h, 2)))
            k("v_pk_fma_f32 %s, %s, %s, %s neg_lo:[0,0,1] neg_hi:[0,0,1]"
              % (v(tmp + 4 + h, 2), v(im + h, 2), v(TC + h, 2), v(tmp + 4 + h, 2)))
        for r in range(4):
            k("v_cvt_pk_bf16_f32 %s, %s, %s" % (v(bm + r), v(tmp + r), v(tmp + 4 + r)))
        k("s_mov_b64 exec, %s" % s(sM0, 2))
        for r in range(4):
            k("v_cvt_pk_bf16_f32 %s, %s, %s" % (v(bs + r), v(re + r), v(im + r)))
        k("s_mov_b64 exec, -1")
        k("%s %s, %s, %s, 0" % (MF, v(re, 4), v(A2re, 4), v(bm, 4)))
        k("%s %s, %s, %s, 0" % (MF, v(im, 4), v(A2im, 4), v(bm, 4)))
        k("%s %s, %s, %s, %s" % (MF, v(re, 4), v(S2re, 4), v(bs, 4), v(re, 4)))
        k("%s %s, %s, %s, %s" % (MF, v(im, 4), v(S2im, 4), v(bs, 4), v(im, 4)))
    if stamp:
        stamp(k, 2)
    k("s_cmp_eq_u32 %s, 1" % s(sRole))
    k("s_cbranch_scc1 PREP_OUT_W2")
    k("s_cmp_eq_u32 %s, 2" % s(sRole))
    k("s_cbranch_scc1 PREP_OUT_W1")

    k("v_lshl_add_u32 %s, %s, 6, %s" % (v(t[0]), v(vg), v(vn)))
    k("v_lshlrev_b32 %s, 13, %s" % (v(t[0]), v(t[0])))
    k("s_lshl_b32 %s, %s, 5" % (s(sA), s(sT)))
    for r in range(4):
        for j in range(8):
            k("v_cvt_pk_bf16_f32 %s, %s, %s" % (v(O + 8 * r + j), v(D + 8 * j + r), v(D + 8 * j + 4 + r)))
        k("s_add_u32 %s, %s, 0x%x" % (s(sC), s(sA), L.X0 + r * 16 * 8192))
        k("buffer_store_dwordx4 %s, %s, %s, %s offen" % (v(O + 8 * r, 4), v(t[0]), s(WS, 4), s(sC)))
        k("buffer_store_dwordx4 %s, %s, %s, %s offen offset:16" % (v(O + 8 * r + 4, 4), v(t[0]), s(WS, 4), s(sC)))
    k("s_mov_b64 exec, 1")
    for j in range(8):
        k("v_mov_b32 %s, 0" % v(D + 8 * j + 4))
    k("s_mov_b64 exec, -1")
    for j in range(8):
        k("v_pk_mul_f32 %s, %s, %s" % (v(tmp + 2 * j, 2), v(D + 8 * j, 2), v(D + 8 * j, 2)))
    for h in (2, 4, 6):
        for j in range(8):
            k("v_pk_fma_f32 %s, %s, %s, %s" % (v(tmp + 2 * j, 2), v(D + 8 * j + h, 2), v(D + 8 * j + h, 2), v(tmp + 2 * j, 2)))
    for j in range(8):
        k("v_add_f32 %s, %s, %s" % (v(A + j), v(tmp + 2 * j), v(tmp + 2 * j + 1)))
    for j in range(4):
        k("v_permlane32_swap_b32 %s, %s" % (v(A + j), v(A + j + 4)))
    for j in range(4):
        k("v_add_f32 %s, %s, %s" % (v(A + j), v(A + j), v(A + j + 4)))
    for e in range(2):
        k("v_permlane16_swap_b32 %s, %s" % (v(A + e), v(A + e + 2)))
    for e in range(2):
        k("v_add_f32 %s, %s, %s" % (v(A + e), v(A + e), v(A + e + 2)))
    for sh in (8, 4, 2, 1):
        for e in range(2):
            k("v_add_f32_dpp %s, %s, %s row_ror:%d row_mask:0xf bank_mask:0xf" % (v(A + e), v(A + e), v(A + e), sh))
    k("v_lshlrev_b32 %s, 3, %s" % (v(t[0]), v(vg)))
    k("s_add_u32 %s, %s, 0x%x" % (s(sC), s(sA), L.SSQ0))
    k("s_mov_b64 exec, %s" % s(sM0, 2))
    k("buffer_store_dwordx2 %s, %s, %s, %s offen" % (v(A, 2), v(t[0]), s(WS, 4), s(sC)))
    if stamp:
        k("s_mov_b64 exec, -1")
        stamp(k, 3, final=True)
    k("s_endpgm")

    k.label("PREP_OUT_W2")
    k("s_cmp_eq_u32 s2, 224")
    k("s_cbranch_scc1 PREP_OUT_B2")
    k("s_lshr_b32 %s, %s, 1" % (s(sA), s(sT)))
    k("s_lshl_b32 %s, %s, 11" % (s(sA), s(sA)))
    k("s_and_b32 %s, %s, 1" % (s(sB), s(sT)))
    k("s_lshl_b32 %s, %s, 9" % (s(sB), s(sB)))
    k("s_add_u32 %s, %s, %s" % (s(sA), s(sA), s(sB)))
    k("v_lshrrev_b32 %s, 2, %s" % (v(t[1]), v(vn)))
    k("v_mul_u32_u24 %s, %d, %s" % (v(t[1]), PITCH, v(t[1])))
    k("v_and_b32 %s, 1, %s" % (v(t[2]), v(vn)))
    k("v_lshl_add_u32 %s, %s, 5, %s" % (v(t[1]), v(t[2]), v(t[1])))
    k("v_bfe_u32 %s, %s, 1, 1" % (v(t[2]), v(vn)))
    k("v_lshl_add_u32 %s, %s, 3, %s" % (v(t[1]), v(t[2]), v(t[1])))
    k("v_and_b32 %s, 1, %s" % (v(t[2]), v(vg)))
    k("v_lshl_add_u32 %s, %s, 6, %s" % (v(t[1]), v(t[2]), v(t[1])))
    k("v_lshrrev_b32 %s, 1, %s" % (v(t[2]), v(vg)))
    k("v_lshl_add_u32 %s, %s, 4, %s" % (v(t[1]), v(t[2]), v(t[1])))
    k("v_add_u32 %s, %s, %s" % (v(t[1]), s(sLds), v(t[1])))
    for dt in range(8):
        k("ds_read_b64_tr_b16 %s, %s offset:%d" % (v(A + 4 * dt, 2), v(t[1]), dt * 128))
        k("ds_read_b64_tr_b16 %s, %s offset:%d" % (v(A + 4 * dt + 2, 2), v(t[1]), dt * 128 + 4 * PITCH))
    k("v_mul_u32_u24 %s, %d, %s" % (v(t[0]), 2 * 112 * 2048, v(vg)))
    k("v_lshl_add_u32 %s, %s, 4, %s" % (v(t[0]), v(vn), v(t[0])))
    for r in range(4):
        k("s_add_u32 %s, %s, 0x%x" % (s(sC), s(sA), L.W2F + (r >> 1) * 112 * 2048 + (r & 1) * 256))
        for ri in range(2):
            o = O + 8 * r + 4 * ri
            for i in range(4):
                k("v_cvt_pk_bf16_f32 %s, %s, %s" % (v(o + i), v(D + 16 * i + 4 * ri + r), v(D + 16 * i + 8 + 4 * ri + r)))
            k("buffer_store_dwordx4 %s, %s, %s, %s offen offset:%d" % (v(o, 4), v(t[0]), s(WS, 4), s(sC), ri * 1024))
    k("v_lshlrev_b32 %s, 10, %s" % (v(t[0]), v(t[2])))
    k("v_and_b32 %s, 31, %s" % (v(t[3]), v(vl)))
    k("v_lshl_add_u32 %s, %s, 4, %s" % (v(t[0]), v(t[3]), v(t[0])))
    for dt in range(8):
        k("s_add_u32 %s, %s, 0x%x" % (s(sC), s(sA), L.W2T + dt * 112 * 2048))
        k("buffer_store_dwordx4 %s, %s, %s, %s offen" % (v(A + 4 * dt, 4), v(t[0]), s(WS, 4), s(sC)))
    if stamp:
        stamp(k, 3, final=True)
    k("s_endpgm")
    k.label("PREP_OUT_B2")
    k("v_lshl_add_u32 %s, %s, 6, %s" % (v(t[0]), v(vg), v(vn)))
    k("v_lshlrev_b32 %s, 2, %s" % (v(t[0]), v(t[0])))
    k("s_mov_b32 %s, 0x%x" % (s(sC), L.B2F))
    for r in range(4):
        for ri in range(2):
            k("buffer_store_dword %s, %s, %s, %s offen offset:%d" % (v(D + 4 * ri + r), v(t[0]), s(WS, 4), s(sC), r * 64 + ri * 1024))
    k("s_endpgm")

    k.label("PREP_OUT_W1")
    k("s_lshr_b32 %s, %s, 1" % (s(sA), s(sT)))
    k("s_mul_i32 %s, %s, 9363" % (s(sB), s(sA)))
    k("s_lshr_b32 %s, %s, 16" % (s(sB), s(sB)))
    k("s_mul_i32 %s, %s, 105" % (s(sB), s(sB)))
    k("s_add_u32 %s, %s, %s" % (s(sA), s(sA), s(sB)))
    k("s_lshl_b32 %s, %s, 10" % (s(sA), s(sA)))
    k("s_and_b32 %s, %s, 1" % (s(sB), s(sT)))
    k("s_lshl_b32 %s, %s, 7" % (s(sB), s(sB)))
    k("s_add_u32 %s, %s, %s" % (s(sA), s(sA), s(sB)))
    k("s_add_u32 %s, %s, 0x%x" % (s(sA), s(sA), L.W1F))
    k("v_mul_u32_u24 %s, 7168, %s" % (v(t[0]), v(vn)))
    k("v_lshl_add_u32 %s, %s, 8, %s" % (v(t[0]), v(vg), v(t[0])))
    for j in range(8):
        for r in range(4):
            k("v_cvt_pk_bf16_f32 %s, %s, %s" % (v(O + 4 * j + r), v(D + 8 * j + r), v(D + 8 * j + 4 + r)))
        k("buffer_store_dwordx4 %s, %s, %s, %s offen offset:%d" % (v(O + 4 * j, 4), v(t[0]), s(WS, 4), s(sA), j * 16))
    if stamp:
        stamp(k, 3, final=True)
    k("s_endpgm")

    k.label("PREP_MISC")
    sCb, sRb = 45, 46
    k("s_and_b32 %s, %s, 7" % (s(sCb), s(sB)))
    k("s_lshl_b32 %s, %s, 2" % (s(sRb), s(sA)))
    k("s_lshr_b32 %s, s2, 6" % s(sC))
    k("s_add_u32 %s, %s, %s" % (s(sRb), s(sRb), s(sC)))
    k("s_lshr_b32 %s, %s, 3" % (s(sA), s(sRb)))
    k("s_lshl_b32 %s, %s, 4" % (s(sA), s(sA)))
    k("s_and_b32 %s, %s, 7" % (s(sC), s(sRb)))
    k("s_lshl_b32 %s, %s, 8" % (s(sC), s(sC)))
    k("s_add_u32 %s, %s, %s" % (s(sA), s(sA), s(sC)))
    k("s_mul_i32 %s, %s, 514" % (s(sA), s(sA)))
    k("s_lshl_b32 %s, %s, 6" % (s(sC), s(sCb)))
    k("s_add_u32 %s, %s, %s" % (s(sA), s(sA), s(sC)))
    vn4, vc4 = t[1], t[2]
    k("v_lshrrev_b32 %s, 2, %s" % (v(vn4), v(vl)))
    k("v_and_b32 %s, 3, %s" % (v(vc4), v(vl)))
    k("v_mul_u32_u24 %s, 514, %s" % (v(t[0]), v(vn4)))
    k("v_lshl_add_u32 %s, %s, 4, %s" % (v(t[0]), v(vc4), v(t[0])))
    k("s_mov_b32 %s, %d" % (s(IN + 2), 2048 * 514))
    srd_words(k, IN2, 2048 * 514)
    k("s_mov_b64 %s, s[18:19]" % s(IN, 2))
    k("s_mov_b64 %s, s[20:21]" % s(IN2, 2))
    for r in range(4):
        k("s_add_u32 %s, %s, %d" % (s(sC), s(sA), r * 64 * 514 + 2))
        k("buffer_load_dwordx4 %s, %s, %s, %s offen" % (v(RAW + 8 * r, 4), v(t[0]), s(IN, 4), s(sC)))
        k("buffer_load_dwordx4 %s, %s, %s, %s offen" % (v(RAW + 8 * r + 4, 4), v(t[0]), s(IN2, 4), s(sC)))
    IN3 = 48
    srd_words(k, IN3, 3584)
    k("s_mov_b64 %s, s[26:27]" % s(IN3, 2))
    k("v_lshlrev_b32 %s, 1, %s" % (v(t[3]), v(vl)))
    k("s_lshl_b32 %s, s2, 4" % s(sC))
    k("buffer_load_ushort %s, %s, %s, %s offen" % (v(Bs), v(t[3]), s(IN3, 4), s(sC)))
    if code_bytes:
        k("s_getpc_b64 s[52:53]")
        k.raw("PREP_PC:")
        k("s_sub_u32 s52, s52, PREP_PC-%s" % name)
        k("s_subb_u32 s53, s53, 0")
        k("s_mov_b32 s54, CODE_END-%s" % name)
        k("s_mov_b32 s55, 0x20000")
        k("v_lshlrev_b32 %s, 7, %s" % (v(t[4]), v(vl)))
        k("s_lshl_b32 %s, %s, 13" % (s(sC), s(sB)))
        k("buffer_load_dword %s, %s, s[52:55], %s offen" % (v(Bs + 1), v(t[4]), s(sC)))
    for i in range(4):
        k("v_mov_b32 %s, 0" % v(Bm + i))
    k("v_lshlrev_b32 %s, 3, %s" % (v(t[4]), v(vl)))
    k("s_lshl_b32 %s, s2, 9" % s(sC))
    k("s_add_u32 %s, %s, 0x%x" % (s(sC), s(sC), L.FLAGS))
    assert L.FLAG_BYTES == 256 * 512
    k("buffer_store_dwordx2 %s, %s, %s, %s offen" % (v(Bm, 2), v(t[4]), s(WS, 4), s(sC)))
    k("s_lshl_b32 %s, s2, 5" % s(sC))
    k("s_add_u32 %s, %s, 0x%x" % (s(sC), s(sC), L.SSQ2))
    k("s_mov_b64 exec, 15")
    k("buffer_store_dwordx2 %s, %s, %s, %s offen" % (v(Bm, 2), v(t[4]), s(WS, 4), s(sC)))
    k("s_mov_b64 exec, -1")
    sKs, sD0 = 47, 56
    k("s_bfe_u32 %s, s2, 0x40001" % s(sKs))
    k("s_lshr_b32 %s, s2, 5" % s(sD0))
    k("s_lshl_b32 %s, %s, 6" % (s(sD0), s(sD0)))
    k("s_and_b32 %s, s2, 1" % s(sC))
    k("s_lshl_b32 %s, %s, 5" % (s(sC), s(sC)))
    k("s_add_u32 %s, %s, %s" % (s(sD0), s(sD0), s(sC)))
    k("v_add_u32 %s, %s, %s" % (v(t[4]), s(sD0), v(vn)))
    k("s_mov_b32 s58, 0")
    k("s_mov_b32 s59, -1")
    for i in range(4):
        kk = tmp + i
        k("v_lshl_add_u32 %s, %s, 7, %s" % (v(kk), v(vg), s(sKs)))
        k("v_add_u32 %s, %d, %s" % (v(kk), 32 * i, v(kk)))
        k("v_sub_u32 %s, 512, %s" % (v(t[5]), v(kk)))
        k("v_add_u32 %s, %d, %s" % (v(t[6]), -240, v(kk)))
        k("s_cmp_eq_u32 %s, 0" % s(sKs))
        k("s_cselect_b64 vcc, -1, 0")
        k("v_cndmask_b32 %s, %s, %s, vcc" % (v(t[5]), v(t[5]), v(t[6])))
        k("v_cndmask_b32 %s, %s, %s, s[58:59]" % (v(kk), v(kk), v(t[5])))
    k("v_cmp_eq_u32 vcc, 0, %s" % v(tmp))
    k("v_mov_b32 %s, 256" % v(t[5]))
    k("v_cndmask_b32 %s, %s, %s, vcc" % (v(tmp), v(tmp), v(t[5])))
    k("v_mov_b32 %s, %s" % (v(t[6]), fbits(1 / 16)))
    k("v_mov_b32 %s, %s" % (v(t[7]), s(sDC)))
    k("v_cndmask_b32 %s, %s, %s, vcc" % (v(t[5]), v(t[6]), v(t[7])))
    for e in range(2):
        for i in range(4):
            an, c, sn = tmp + 4 + i, tmp + 8 + i, tmp + 12 + i
            k("v_mul_u32_u24 %s, %s, %s" % (v(an), v(tmp + i), v(t[4])))
            k("v_and_b32 %s, 511, %s" % (v(an), v(an)))
            k("v_cvt_f32_u32 %s, %s" % (v(an), v(an)))
            k("v_mul_f32 %s, %s, %s" % (v(an), fbits(1 / 512), v(an)))
            k("v_cos_f32 %s, %s" % (v(c), v(an)))
            k("v_sin_f32 %s, %s" % (v(sn), v(an)))
        for i in range(4):
            c, sn = tmp + 8 + i, tmp + 12 + i
            k("v_mul_f32 %s, %s, %s" % (v(c), v(t[5] if i == 0 else t[6]), v(c)))
            k("v_mul_f32 %s, %s, %s" % (v(sn), fbits(-1 / 16), v(sn)))
            if i == 0:
                k("v_cndmask_b32 %s, %s, %s, vcc" % (v(sn), v(sn), v(t[7])))
            k("v_cvt_pk_bf16_f32 %s, %s, %s" % (v(A + 4 * e + i), v(c), v(sn)))
        if e == 0:
            k("v_add_u32 %s, 16, %s" % (v(t[4]), v(t[4])))
    k("v_lshlrev_b32 %s, 4, %s" % (v(t[4]), v(vl)))
    k("s_lshl_b32 %s, s2, 11" % s(sC))
    k("s_add_u32 %s, %s, 0x%x" % (s(sC), s(sC), L.FT))
    k("buffer_store_dwordx4 %s, %s, %s, %s offen" % (v(A, 4), v(t[4]), s(WS, 4), s(sC)))
    k("buffer_store_dwordx4 %s, %s, %s, %s offen offset:1024" % (v(A + 4, 4), v(t[4]), s(WS, 4), s(sC)))
    q0, qs, q7 = t[4], t[5], t[6]
    k("s_lshl_b32 %s, %s, 4" % (s(sA), s(sCb)))
    k("s_add_u32 %s, %s, 1" % (s(sB), s(sA)))
    k("v_lshl_add_u32 %s, %s, 3, %s" % (v(q0), v(vc4), s(sB)))
    k("s_sub_u32 %s, 271, %s" % (s(sB), s(sA)))
    k("v_lshlrev_b32 %s, 3, %s" % (v(t[7]), v(vc4)))
    k("v_sub_u32 %s, %s, %s" % (v(t[7]), s(sB), v(t[7])))
    k("v_cmp_lt_u32 vcc, 1, %s" % v(vc4))
    k("v_cndmask_b32 %s, %s, %s, vcc" % (v(q0), v(q0), v(t[7])))
    k("v_cndmask_b32 %s, 1, -1, vcc" % v(qs))
    k("s_add_u32 %s, %s, 128" % (s(sB), s(sA)))
    k("s_add_u32 %s, %s, 16" % (s(sC), s(sA)))
    k("s_and_b32 %s, %s, 127" % (s(sC), s(sC)))
    k("v_mov_b32 %s, %s" % (v(q7), s(sB)))
    k("v_mov_b32 %s, %s" % (v(t[7]), s(sC)))
    k("v_cndmask_b32 %s, %s, %s, vcc" % (v(q7), v(q7), v(t[7])))
    k("v_mad_i32_i24 %s, %s, 7, %s" % (v(t[7]), v(qs), v(q0)))
    k("s_mov_b32 vcc_lo, 0xaaaaaaaa")
    k("s_mov_b32 vcc_hi, 0xaaaaaaaa")
    k("v_cndmask_b32 %s, %s, %s, vcc" % (v(q7), v(t[7]), v(q7)))
    k("v_lshlrev_b32 %s, 4, %s" % (v(vn4), v(vn4)))
    k("v_lshl_add_u32 %s, %s, 13, %s" % (v(q0), v(q0), v(vn4)))
    k("v_lshl_add_u32 %s, %s, 13, %s" % (v(q7), v(q7), v(vn4)))
    k("v_lshlrev_b32 %s, 13, %s" % (v(qs), v(qs)))
    k("s_lshl_b32 %s, %s, 8" % (s(sC), s(sRb)))
    k("s_add_u32 %s, %s, 0x%x" % (s(sC), s(sC), L.WT))
    for e in range(8):
        for r in range(4):
            k("v_perm_b32 %s, %s, %s, %s" % (v(O + 4 * e + r), v(RAW + 8 * r + 4 + (e >> 1)), v(RAW + 8 * r + (e >> 1)),
                                            s(sSelHi if e & 1 else sSelLo)))
        k("buffer_store_dwordx4 %s, %s, %s, %s offen" % (v(O + 4 * e, 4), v(q7 if e == 7 else q0), s(WS, 4), s(sC)))
        if e < 6:
            k("v_add_u32 %s, %s, %s" % (v(q0), v(q0), v(qs)))
    k("s_cmp_ge_u32 s2, 224")
    k("s_cbranch_scc1 PREP_END")
    k("v_lshlrev_b32 %s, 16, %s" % (v(Bs), v(Bs)))
    k("v_lshlrev_b32 %s, 2, %s" % (v(t[3]), v(vl)))
    k("s_lshl_b32 %s, s2, 5" % s(sC))
    k("s_add_u32 %s, %s, 0x%x" % (s(sC), s(sC), L.B1X))
    k("s_mov_b64 exec, 0xff")
    k("buffer_store_dword %s, %s, %s, %s offen" % (v(Bs), v(t[3]), s(WS, 4), s(sC)))
    if stamp:
        k("s_mov_b64 exec, -1")
        stamp(k, 3, final=True)
    k.label("PREP_END")
    k("s_endpgm")
    return k
```

```python
MB = 1 << 20
X0 = 0 * MB
X1 = 2 * MB
X2 = 4 * MB
X3 = 6 * MB
WT = 8 * MB
W1F = 10 * MB
SMALL = W1F + 0x1C0000
SSQ0 = SMALL
SSQ2 = SMALL + 0x2000
B2F = SMALL + 0x4000
B1X = SMALL + 0x5000
FLAGS = SMALL + 0x8000
FLAG_STRIDE = 64
FLAG_BYTES = 2 * 1024 * FLAG_STRIDE
W2F = 12 * MB
W2T = 14 * MB
FT = 16 * MB
H1 = 18 * MB
H2 = 26 * MB
STAMP = 34 * MB
WS_USED = 36 * MB
assert FLAGS + FLAG_BYTES <= W2F
```

```python
import sys, argparse
import layout as L
import k_prep, k_col
from asmlib import v, s

HEADER = open("interleave_layers__spectral_gfnet__mixer_channel_mlp__prompt.s.ref").read().split("; Override launch")[0]


def make_stamp(kidx):
    def stamp(k, i, final=False):
        k("s_memrealtime %s" % s(80 + 2 * i, 2))
        if i == 0:
            k("v_lshrrev_b32 v255, 6, v0")
            k("v_readfirstlane_b32 s78, v255")
            if kidx is not None:
                k("s_mov_b32 s79, %d" % kidx)
        if final:
            k("s_waitcnt vmcnt(0)")
            k("s_memrealtime %s" % s(80 + 2 * (i + 1), 2))
            k("s_lshl_b32 s77, s79, 16")
            k("s_lshl_b32 s76, s2, 8")
            k("s_add_u32 s77, s77, s76")
            k("s_lshl_b32 s76, s78, 6")
            k("s_add_u32 s77, s77, s76")
            k("s_add_u32 s77, s77, 0x%x" % L.STAMP)
            k("s_mov_b64 exec, 1")
            k("v_mov_b32 v254, 0")
            for j in range(i + 2):
                k("v_mov_b32 v255, %s" % s(80 + 2 * j))
                k("buffer_store_dword v255, v254, s[4:7], s77 offen offset:%d" % (4 * j))
    return stamp


def generate(stamps=False, upto=99, opts=None):
    opts = opts or {}
    launches, bodies, descs = [], [], []
    kp = k_prep.build("prep_kernel", stamp=make_stamp(0) if stamps else None)
    kc = k_col.build(["col1_kernel", "col2_kernel"], stamp=make_stamp(None) if stamps else None)
    bodies += [kp, kc]
    descs += [kp.descriptor("prep_kernel"), kc.descriptor("col1_kernel"), kc.descriptor("col2_kernel")]
    seq = [("prep_kernel", k_prep.LDS_BYTES), ("col1_kernel", k_col.LDS_BYTES)]
    if upto > 2:
        import k_mlp
        for li in range(2):
            if opts.get("split"):
                for ph in (1, 2):
                    nm = "mlp%d_p%d_kernel" % (li + 1, ph)
                    km = k_mlp.build(nm, li, phase=ph, stamp=make_stamp(2 + 2 * li + 4 * (ph - 1)) if stamps else None, opts=opts)
                    bodies.append(km); descs.append(km.descriptor(nm)); seq.append((nm, k_mlp.LDS_BYTES))
            else:
                nm = "mlp%d_kernel" % (li + 1)
                km = k_mlp.build(nm, li, phase=0, stamp=make_stamp(2 + 2 * li) if stamps else None, opts=opts)
                bodies.append(km); descs.append(km.descriptor(nm)); seq.append((nm, k_mlp.LDS_BYTES))
            if li == 0:
                seq.append(("col2_kernel", k_col.LDS_BYTES))
    seq = seq[:upto]
    out = HEADER
    for nm, lds in seq:
        out += "; @launch kernel=%s grid=(256,1,1) block=(256,1,1) lds=%d\n" % (nm, lds)
    out += '.amdgcn_target "amdgcn-amd-amdhsa--gfx950"\n.text\n'
    for b in bodies:
        out += b.text()
        sys.stderr.write("%s: v%d a%d s%d nops=%d %s\n" % (b.name, b.max["v"] + 1, b.max["a"] + 1, b.max["s"] + 1, b.nops, b.count))
    out += "CODE_END:\n"
    out += '.section .rodata,"a"\n' + "".join(descs)
    return out


if __name__ == "__main__":
    ap = argparse.ArgumentParser()
    ap.add_argument("-o", default="out.s")
    ap.add_argument("--stamps", action="store_true")
    ap.add_argument("--upto", type=int, default=99)
    ap.add_argument("--opt", action="append", default=[])
    args = ap.parse_args()
    opts = {}
    for o in args.opt:
        kk, _, vv = o.partition("=")
        opts[kk] = int(vv) if vv else 1
    open(args.o, "w").write(generate(args.stamps, args.upto, opts))
```

```python
import sys, re
import layout as L
def make(src, dst, a, b):
    s = open(src).read()
    names = re.findall(r"; @launch kernel=(\w+)", s)
    for i, n in enumerate(names):
        pre = f"""{n}:
    s_memrealtime s[90:91]
    s_load_dwordx2 s[92:93], s[0:1], 80
    s_cmp_lg_u32 s2, 0
    s_cbranch_scc1 PRB_{i}
    s_mov_b32 s94, 0x{L.WS_USED:x}
    s_mov_b32 s95, 0x20000
    s_waitcnt lgkmcnt(0)
    v_mov_b32 v1, s90
    v_mov_b32 v2, 0x{L.STAMP + 64 * i:x}
    buffer_store_dword v1, v2, s[92:95], 0 offen
PRB_{i}:
"""
        s = s.replace(f"\n{n}:\n", "\n" + pre, 1)
    s = re.sub(r"next_free_sgpr \d+", "next_free_sgpr 102", s)
    last = [m for m in re.finditer(r"; @launch[^\n]*\n", s)][-1]
    s = s[:last.end()] + "; @launch kernel=probe_kernel grid=(1,1,1) block=(64,1,1) lds=0\n" + s[last.end():]
    n = len(names)
    body = f""".globl probe_kernel
.p2align 8
.type probe_kernel,@function
probe_kernel:
    s_memrealtime s[10:11]
    s_load_dwordx2 s[4:5], s[0:1], 80
    s_cmp_lg_u32 s2, 0
    s_cbranch_scc1 PRB_END
    s_mov_b32 s6, 0x{L.WS_USED:x}
    s_mov_b32 s7, 0x20000
    v_mov_b32 v2, 0x{L.STAMP:x}
    s_waitcnt lgkmcnt(0)
    buffer_load_dword v3, v2, s[4:7], 0 offen offset:{64 * a}
    buffer_load_dword v4, v2, s[4:7], 0 offen offset:{64 * min(b, n - 1)}
    s_waitcnt vmcnt(0)
    v_readfirstlane_b32 s8, v3
    v_readfirstlane_b32 s9, v4
    s_nop 4
""" + ("    s_mov_b32 s9, s10\n" if b >= n else "") + """    s_sub_u32 s8, s9, s8
    s_min_u32 s8, s8, 20000
    s_lshl_b32 s8, s8, 3
PRB_SPIN:
    s_memrealtime s[12:13]
    s_waitcnt lgkmcnt(0)
    s_sub_u32 s12, s12, s10
    s_cmp_lt_u32 s12, s8
    s_cbranch_scc1 PRB_SPIN
PRB_END:
    s_endpgm
CODE_END:"""
    s = s.replace("CODE_END:", body)
    s += """.p2align 6
.amdhsa_kernel probe_kernel
  .amdhsa_next_free_vgpr 8
  .amdhsa_next_free_sgpr 16
  .amdhsa_accum_offset 8
  .amdhsa_group_segment_fixed_size 0
  .amdhsa_kernarg_size 88
  .amdhsa_user_sgpr_count 2
  .amdhsa_user_sgpr_kernarg_segment_ptr 1
  .amdhsa_system_sgpr_workgroup_id_x 1
.end_amdhsa_kernel
"""
    open(dst, "w").write(s)
if __name__ == "__main__":
    src = sys.argv[1]
    for a, b in [(0, 0), (0, 1), (1, 2), (2, 3), (3, 4), (4, 5)]:
        make(src, f"p_{a}{b}.s", a, b)
```

```python
import re, sys
src, dst, mult = sys.argv[1], sys.argv[2], int(sys.argv[3])
NAME = "interleave_layers__spectral_gfnet__mixer_channel_mlp__prompt_kernel"
s = open(src).read()
head, rest = s.split('.amdgcn_target', 1)
head = re.sub(r"; @launch[^\n]*\n", "", head) + "; @launch grid=(256,1,1) block=(256,1,1) lds=163840\n"
code, _ = rest.split('.section .rodata', 1)
code = re.sub(r"\.globl \w+\n\.p2align 8\n\.type [^\n]*\n", "", code)
code = code.replace("s_endpgm", "s_branch GBAR")
code = code.replace("_kernel", "_phase")
entry = f""".globl {NAME}
.p2align 8
.type {NAME},@function
{NAME}:
    s_cmp_ge_u32 s2, 256
    s_cbranch_scc1 GEND
    s_memrealtime s[70:71]
    s_load_dwordx2 s[96:97], s[0:1], 72
    s_mov_b32 s98, 256
    s_mov_b32 s99, 0x20000
    s_mov_b32 s95, 0
    s_branch prep_phase
GBAR:
    s_mov_b64 exec, -1
    s_waitcnt vmcnt(0) lgkmcnt(0)
    s_cmp_eq_u32 s95, 4
    s_cbranch_scc1 GFIN
    s_barrier
    v_cmp_gt_u32 vcc, 1, v0
    s_and_saveexec_b64 s[92:93], vcc
    s_cbranch_execz GBAR2
    buffer_wbl2 sc1
    s_waitcnt vmcnt(0)
    s_lshl_b32 s94, s95, 2
    v_mov_b32 v1, 1
    v_mov_b32 v2, s94
    buffer_atomic_add v1, v2, s[96:99], 0 offen sc1
    s_mov_b32 s91, 0
GPOLL:
    s_sleep 2
    buffer_load_dword v1, v2, s[96:99], 0 offen sc1
    s_add_u32 s91, s91, 1
    s_waitcnt vmcnt(0)
    v_cmp_gt_u32 vcc, 0x100, v1
    s_cmp_lt_u32 s91, 0x40000
    s_cselect_b64 vcc, vcc, 0
    s_cbranch_vccnz GPOLL
    buffer_inv sc1
    s_waitcnt vmcnt(0)
GBAR2:
    s_mov_b64 exec, -1
    s_barrier
    s_add_u32 s95, s95, 1
    s_cmp_eq_u32 s95, 1
    s_cbranch_scc1 col1_phase
    s_cmp_eq_u32 s95, 2
    s_cbranch_scc1 mlp1_phase
    s_cmp_eq_u32 s95, 3
    s_cbranch_scc1 col2_phase
    s_branch mlp2_phase
GFIN:
    s_memrealtime s[72:73]
    s_waitcnt lgkmcnt(0)
    s_sub_u32 s74, s72, s70
    s_min_u32 s74, s74, 20000
    s_mul_i32 s74, s74, {mult}
GSPIN:
    s_memrealtime s[76:77]
    s_waitcnt lgkmcnt(0)
    s_sub_u32 s76, s76, s72
    s_cmp_lt_u32 s76, s74
    s_cbranch_scc1 GSPIN
GEND:
    s_endpgm
"""
code = code.replace(".text\n", ".text\n" + entry, 1)
desc = f""".section .rodata,"a"
.p2align 6
.amdhsa_kernel {NAME}
  .amdhsa_next_free_vgpr 512
  .amdhsa_next_free_sgpr 102
  .amdhsa_accum_offset 256
  .amdhsa_group_segment_fixed_size 0
  .amdhsa_kernarg_size 88
  .amdhsa_user_sgpr_count 2
  .amdhsa_user_sgpr_kernarg_segment_ptr 1
  .amdhsa_system_sgpr_workgroup_id_x 1
  .amdhsa_float_denorm_mode_32 3
.end_amdhsa_kernel
"""
open(dst, "w").write(head + ".amdgcn_target" + code + desc)
```

```python
from asmlib import Kernel, Alloc, v, s, fbits
import layout as L

MF = "v_mfma_f32_16x16x32_bf16"
LDS_BYTES = 16384
WS = 4


def cmul(k, ore, oim, re, im, c, sn, tmp, conj):
    for h in (0, 2):
        k("v_pk_mul_f32 %s, %s, %s" % (v(tmp + h, 2), v(im + h, 2), v(sn + h, 2)))
        k("v_pk_mul_f32 %s, %s, %s" % (v(tmp + 4 + h, 2), v(re + h, 2), v(sn + h, 2)))
    neg = " neg_lo:[0,0,1] neg_hi:[0,0,1]"
    for h in (0, 2):
        k("v_pk_fma_f32 %s, %s, %s, %s%s" % (v(ore + h, 2), v(re + h, 2), v(c + h, 2), v(tmp + h, 2), neg if conj else ""))
        k("v_pk_fma_f32 %s, %s, %s, %s%s" % (v(oim + h, 2), v(im + h, 2), v(c + h, 2), v(tmp + 4 + h, 2), "" if conj else neg))


def build(names, stamp=None, opts=None):
    opts = opts or {}
    prefetch = opts.get("pf", 64)
    k = Kernel("col")
    sIn, sOut, sSsq, sW, sC, sWv = 8, 9, 10, 11, 12, 13
    for li, name in enumerate(names):
        k.entry(name)
        k("s_load_dwordx2 s[4:5], s[0:1], 80")
        k("s_mov_b32 %s, 0x%x" % (s(sIn), (L.X0, L.X2)[li]))
        k("s_mov_b32 %s, 0x%x" % (s(sOut), (L.X1, L.X3)[li]))
        k("s_mov_b32 %s, 0x%x" % (s(sSsq), (L.SSQ0, L.SSQ2)[li]))
        if stamp:
            k("s_mov_b32 s101, %d" % (1, 3)[li])
        if li == 0:
            k("s_branch COL_BODY")
    k.label("COL_BODY")
    va = Alloc(1, 256)
    vl, vn, vg, voff, vfg4, vfk, vfn, vsn = (va() for _ in range(8))
    t = [va() for _ in range(6)]
    XR, SQ, WR = va(8, 4), va(8, 4), va(8, 4)
    C64 = va(32, 4)
    C32 = va(32, 4)
    T1C, T1S, T2C, T2S = (va(8, 4) for _ in range(4))
    WC, WSn = va(8, 4), va(8, 4)
    XF = va(16, 4)
    FR = va(32, 4)
    AC = va(16, 4)
    PK = va(8, 4)
    tmp = va(16, 4)

    k("s_cmp_ge_u32 s2, 256")
    k("s_cbranch_scc1 COL_END")
    if stamp:
        stamp(k, 0)
    k("s_mov_b32 s6, 0x%x" % L.WS_USED)
    k("s_mov_b32 s7, 0x20000")
    k("v_and_b32 %s, 63, v0" % v(vl))
    k("v_lshrrev_b32 %s, 6, v0" % v(t[0]))
    k("v_lshlrev_b32 %s, 4, %s" % (v(voff), v(vl)))
    k("v_lshl_add_u32 %s, %s, 11, %s" % (v(voff), v(t[0]), v(voff)))
    k("s_lshl_b32 %s, s2, 13" % s(sC))
    k("s_add_u32 %s, %s, %s" % (s(sIn), s(sIn), s(sC)))
    k("s_add_u32 %s, %s, %s" % (s(sOut), s(sOut), s(sC)))
    k("s_add_u32 %s, %s, 0x%x" % (s(sW), s(sC), L.WT))
    k("v_and_b32 %s, 15, v0" % v(vn))
    k("v_lshrrev_b32 %s, 4, %s" % (v(vg), v(vl)))
    for b in range(2):
        k("buffer_load_dwordx4 %s, %s, s[4:7], %s offen offset:%d" % (v(SQ + 4 * b, 4), v(voff), s(sSsq), 1024 * b))
        k("buffer_load_dwordx4 %s, %s, s[4:7], %s offen offset:%d" % (v(XR + 4 * b, 4), v(voff), s(sIn), 1024 * b))
    for b in range(2):
        k("buffer_load_dwordx4 %s, %s, s[4:7], %s offen offset:%d" % (v(WR + 4 * b, 4), v(voff), s(sW), 1024 * b))
    if prefetch and opts.get("map", 1):
        k("v_lshlrev_b32 %s, 7, v0" % v(t[1]))
        k("s_and_b32 %s, s2, 1" % s(sC))
        k("s_lshl_b32 %s, %s, 5" % (s(sC), s(sC)))
        k("s_lshr_b32 s14, s2, 3")
        k("s_add_u32 %s, %s, s14" % (s(sC), s(sC)))
        k("s_mul_i32 %s, %s, 28672" % (s(sC), s(sC)))
        k("s_add_u32 %s, %s, 0x%x" % (s(sC), s(sC), L.W1F))
        k("buffer_load_dword %s, %s, s[4:7], %s offen" % (v(t[2]), v(t[1]), s(sC)))
    elif prefetch:
        k("v_lshlrev_b32 %s, 8, v0" % v(t[1]))
        k("s_bfe_u32 %s, s2, 0x40003" % s(sC))
        k("s_mul_i32 %s, %s, 114688" % (s(sC), s(sC)))
        k("s_and_b32 s14, s2, 128")
        k("s_add_u32 %s, %s, s14" % (s(sC), s(sC)))
        k("s_add_u32 %s, %s, 0x%x" % (s(sC), s(sC), L.W1F))
        k("buffer_load_dword %s, %s, s[4:7], %s offen" % (v(t[2]), v(t[1]), s(sC)))

    k("v_lshlrev_b32 %s, 2, %s" % (v(t[1]), v(vg)))
    k("v_cvt_f32_u32 %s, %s" % (v(vfg4), v(t[1])))
    k("v_cvt_f32_u32 %s, %s" % (v(vfn), v(vn)))
    k("v_lshl_add_u32 %s, %s, 4, %s" % (v(t[3]), v(t[0]), v(vn)))
    k("v_cvt_f32_u32 %s, %s" % (v(vfk), v(t[3])))
    k("v_lshl_add_u32 %s, %s, 4, %s" % (v(t[3]), v(t[0]), v(t[1])))
    k("v_cvt_f32_u32 %s, %s" % (v(t[3]), v(t[3])))
    k("v_and_b32 %s, 1, v0" % v(vsn))
    k("v_mul_u32_u24 %s, 0x8000, %s" % (v(vsn), v(vsn)))
    k("v_lshl_or_b32 %s, %s, 16, %s" % (v(vsn), v(vsn), v(vsn)))
    f, b0 = t[4], t[5]
    k("v_mul_f32 %s, %s, %s" % (v(f), fbits(1 / 64), v(vfk)))
    k("v_mul_f32 %s, %s, %s" % (v(b0), v(f), v(vfg4)))
    for i in range(8):
        k("v_fmamk_f32 %s, %s, %s, %s" % (v(tmp + i), v(f), fbits(16 * (i >> 2) + (i & 3)), v(b0)))
    for i in range(8):
        k("v_sin_f32 %s, %s" % (v(tmp + 8 + i), v(tmp + i)))
        k("v_cos_f32 %s, %s" % (v(tmp + i), v(tmp + i)))
    for i in range(8):
        ks, r = i >> 2, i & 3
        k("v_cvt_pk_bf16_f32 %s, %s, %s" % (v(C64 + 8 * ks + r), v(tmp + i), v(tmp + 8 + i)))
        k("v_cvt_pk_bf16_f32 %s, -%s, %s" % (v(C64 + 8 * ks + 4 + r), v(tmp + 8 + i), v(tmp + i)))
    for i in range(16):
        k("v_xor_b32 %s, %s, %s" % (v(C64 + 16 + i), v(vsn), v(C64 + i)))
    k("v_mul_f32 %s, %s, %s" % (v(f), fbits(1 / 2048), v(vfk)))
    k("v_mul_f32 %s, %s, %s" % (v(b0), v(f), v(vfg4)))
    for i in range(8):
        k("v_fmamk_f32 %s, %s, %s, %s" % (v(tmp + i), v(f), fbits(16 * (i >> 2) + (i & 3)), v(b0)))
    for i in range(8):
        k("v_cos_f32 %s, %s" % (v(T1C + i), v(tmp + i)))
        k("v_sin_f32 %s, %s" % (v(T1S + i), v(tmp + i)))
    k("v_mul_f32 %s, %s, %s" % (v(f), fbits(1 / 32), v(vfn)))
    k("v_mul_f32 %s, %s, %s" % (v(b0), v(f), v(vfg4)))
    for r in range(4):
        k("v_fmamk_f32 %s, %s, %s, %s" % (v(tmp + r), v(f), fbits(r), v(b0)))
    for r in range(4):
        k("v_sin_f32 %s, %s" % (v(tmp + 8 + r), v(tmp + r)))
        k("v_cos_f32 %s, %s" % (v(tmp + r), v(tmp + r)))
    for r in range(4):
        k("v_cvt_pk_bf16_f32 %s, %s, %s" % (v(C32 + r), v(tmp + r), v(tmp + 8 + r)))
        k("v_cvt_pk_bf16_f32 %s, -%s, %s" % (v(C32 + 4 + r), v(tmp + 8 + r), v(tmp + r)))
    for i in range(8):
        k("v_xor_b32 %s, %s, %s" % (v(C32 + 8 + i), v(vsn), v(C32 + i)))
    for i in range(16):
        if i & 1:
            k("v_xor_b32 %s, 0x80008000, %s" % (v(C32 + 16 + i), v(C32 + i)))
        else:
            k("v_mov_b32 %s, %s" % (v(C32 + 16 + i), v(C32 + i)))
    for bt in range(2):
        if bt == 0:
            k("v_mul_f32 %s, %s, %s" % (v(f), fbits(1 / 2048), v(vfn)))
        else:
            k("v_add_f32 %s, %s, %s" % (v(f), fbits(16 / 2048), v(f)))
        k("v_mul_f32 %s, %s, %s" % (v(b0), v(f), v(t[3])))
        for r in range(4):
            k("v_fmamk_f32 %s, %s, %s, %s" % (v(tmp + 4 * bt + r), v(f), fbits(r), v(b0)))
    for i in range(8):
        k("v_cos_f32 %s, %s" % (v(T2C + i), v(tmp + i)))
        k("v_sin_f32 %s, %s" % (v(T2S + i), v(tmp + i)))
    k("v_mov_b32 %s, %s" % (v(t[4]), fbits(1e-5 * 2.0 ** 22)))
    k("v_lshlrev_b32 %s, 4, %s" % (v(t[5]), v(vl)))
    if stamp:
        stamp(k, 1)

    for b in range(2):
        for r in range(4):
            k("v_fmamk_f32 %s, %s, %s, %s" % (v(SQ + 4 * b + r), v(SQ + 4 * b + r), fbits(2.0 ** 13), v(t[4])))
        for r in range(4):
            k("v_rsq_f32 %s, %s" % (v(SQ + 4 * b + r), v(SQ + 4 * b + r)))
        for r in range(4):
            k("v_lshlrev_b32 %s, 16, %s" % (v(XF + 8 * b + r), v(XR + 4 * b + r)))
            k("v_and_b32 %s, 0xffff0000, %s" % (v(XF + 8 * b + 4 + r), v(XR + 4 * b + r)))
        for h in (0, 2):
            k("v_pk_mul_f32 %s, %s, %s" % (v(tmp + h, 2), v(XF + 8 * b + h, 2), v(SQ + 4 * b + h, 2)))
            k("v_pk_mul_f32 %s, %s, %s" % (v(tmp + 4 + h, 2), v(XF + 8 * b + 4 + h, 2), v(SQ + 4 * b + h, 2)))
        for r in range(4):
            k("v_cvt_pk_bf16_f32 %s, %s, %s" % (v(PK + 4 * b + r), v(tmp + r), v(tmp + 4 + r)))
    k("s_cmp_lg_u32 s2, 0")
    k("s_cbranch_scc1 COL_NOT0_A")
    for i in range(8):
        k("v_and_b32 %s, 0xffff, %s" % (v(PK + i), v(PK + i)))
    k.label("COL_NOT0_A")
    for b in range(2):
        k("ds_write_b128 %s, %s offset:%d" % (v(voff), v(PK + 4 * b, 4), 1024 * b))
    for i in range(8):
        k("v_lshlrev_b32 %s, 16, %s" % (v(WC + i), v(WR + i)))
        k("v_and_b32 %s, 0xffff0000, %s" % (v(WSn + i), v(WR + i)))
    k("s_waitcnt lgkmcnt(0)")
    k("s_barrier")
    for bt in range(2):
        for ks in range(4):
            k("ds_read_b128 %s, %s offset:%d" % (v(FR + 16 * bt + 4 * ks, 4), v(t[5]), 1024 * (2 * ks + bt)))
    if stamp:
        stamp(k, 2)
    for bt in range(2):
        for ks in range(4):
            for ri in range(2):
                d = v(AC + 8 * bt + 4 * ri, 4)
                k("%s %s, %s, %s, %s" % (MF, d, v(FR + 16 * bt + 4 * ks, 4), v(C64 + 8 * ks + 4 * ri, 4), d if ks else "0"))
    for bt in range(2):
        cmul(k, tmp, tmp + 4, AC + 8 * bt, AC + 8 * bt + 4, T1C + 4 * bt, T1S + 4 * bt, tmp, False)
        for r in range(4):
            k("v_cvt_pk_bf16_f32 %s, %s, %s" % (v(PK + 4 * bt + r), v(tmp + r), v(tmp + 4 + r)))
    for kt in range(2):
        for ks in range(2):
            for ri in range(2):
                d = v(FR + 8 * kt + 4 * ri, 4)
                k("%s %s, %s, %s, %s" % (MF, d, v(C32 + 16 * kt + 8 * ks + 4 * ri, 4), v(PK + 4 * ks, 4), d if ks else "0"))
    P2 = FR + 16
    for kt in range(2):
        cmul(k, tmp, tmp + 4, FR + 8 * kt, FR + 8 * kt + 4, WC + 4 * kt, WSn + 4 * kt, tmp, True)
        for r in range(4):
            k("v_cvt_pk_bf16_f32 %s, %s, %s" % (v(P2 + 4 * kt + r), v(tmp + 4 + r), v(tmp + r)))
    for bt in range(2):
        for ks in range(2):
            for ri in range(2):
                d = v(AC + 8 * bt + 4 * (1 - ri), 4)
                k("%s %s, %s, %s, %s" % (MF, d, v(P2 + 4 * ks, 4), v(C32 + 16 * bt + 8 * ks + 4 * ri, 4), d if ks else "0"))
    for bt in range(2):
        cmul(k, tmp, tmp + 4, AC + 8 * bt, AC + 8 * bt + 4, T2C + 4 * bt, T2S + 4 * bt, tmp, True)
        for r in range(4):
            k("v_cvt_pk_bf16_f32 %s, %s, %s" % (v(PK + 4 * bt + r), v(tmp + 4 + r), v(tmp + r)))
        k("ds_write_b128 %s, %s offset:%d" % (v(voff), v(PK + 4 * bt, 4), 8192 + 1024 * bt))
    k("s_waitcnt lgkmcnt(0)")
    k("s_barrier")
    for bt in range(2):
        for ks in range(4):
            k("ds_read_b128 %s, %s offset:%d" % (v(FR + 16 * bt + 4 * ks, 4), v(t[5]), 8192 + 1024 * (2 * ks + bt)))
    if stamp:
        stamp(k, 3)
    for bt in range(2):
        for ks in range(4):
            for ri in range(2):
                d = v(XF + 8 * bt + 4 * (1 - ri), 4)
                k("%s %s, %s, %s, %s" % (MF, d, v(C64 + 8 * ks + 4 * ri, 4), v(FR + 16 * bt + 4 * ks, 4), d))
    k("s_mov_b32 %s, 0xffff" % s(sC))
    k("s_cmp_lg_u32 s2, 0")
    k("s_cselect_b32 %s, -1, %s" % (s(sC), s(sC)))
    for bt in range(2):
        for r in range(4):
            k("v_cvt_pk_bf16_f32 %s, %s, %s" % (v(PK + 4 * bt + r), v(XF + 8 * bt + r), v(XF + 8 * bt + 4 + r)))
        for r in range(4):
            k("v_bfi_b32 %s, %s, %s, %s" % (v(PK + 4 * bt + r), s(sC), v(PK + 4 * bt + r), v(XR + 4 * bt + r)))
        k("buffer_store_dwordx4 %s, %s, s[4:7], %s offen offset:%d" % (v(PK + 4 * bt, 4), v(voff), s(sOut), 1024 * bt))
    if stamp:
        stamp(k, 4, final=True)
    k.label("COL_END")
    k("s_endpgm")
    return k
```

```python
from asmlib import Kernel, Alloc, v, a, s, fbits
import layout as L

MF16 = "v_mfma_f32_16x16x32_bf16"
MF32 = "v_mfma_f32_32x32x16_bf16"
LDS_BYTES = 163840
RING = 65536
WB1 = 131072
B1L = 159744
WS = "s[4:7]"
C0 = -2 * 0.7978845608028654 * 1.4426950408889634
C1 = C0 * 0.044715
EPS = 1e-5
KA = [7 * sl + ft for sl in range(4) for ft in range(4)]
KB = [7 * sl + ft for sl in range(4) for ft in range(4, 7)]


def build(name, layer, phase=0, stamp=None, opts=None):
    opts = opts or {}
    D = opts.get("D", 7)
    D0 = opts.get("D0", 5)
    PD = opts.get("PD", 14)
    GA, GB = opts.get("GA", 4), opts.get("GB", 4)
    NF = opts.get("NF", 4)
    FA = opts.get("FA", 60)
    poll = phase == 0
    k = Kernel(name)
    k.entry(name)
    U = name.upper()
    XIN, XOUT, H = (L.X1, L.X3)[layer], L.X2, (L.H1, L.H2)[layer]
    W2 = (L.W2F, L.W2T)[layer]
    st = (lambda n, **kw: stamp(k, n, **kw)) if stamp else (lambda n, **kw: None)

    if opts.get("nomfma"):
        k0 = k._emit

        def emit(ins):
            if ins.kind == "mfma":
                from asmlib import Ins
                k0(Ins("s_nop %d" % (3 if ins.passes == 4 else 7)))
                k.max["a"] = 223
            else:
                k0(ins)
        k._emit = emit
    va = Alloc(1, 256)
    vX, vX2, vW, vrX, vrA, vH, vW2, vB1, vA2 = (va() for _ in range(9))
    vS, vC = va(2), va(2)
    vP = va()
    tmp = va(16, 4)
    t = [tmp + i for i in range(8)]
    XB = va(128, 4)
    ACC = va(64, 4)
    SSQ = ACC + 56
    AF = va(32, 4)
    sWv, sP, sI, sPhi, sCt, sRB, sX, sW1, sT, sU, sW2, sH, sHst, sFl, sLw, sPl, sV = \
        3, 12, 13, 14, 15, 16, 17, 18, 19, 20, 21, 22, 23, 24, 25, 26, 27
    sB = 28
    sM1, sM2, sM3 = 8, 10, "vcc"

    k("s_cmp_ge_u32 s2, 256")
    k("s_cbranch_scc1 %s_END" % U)
    k("s_load_dwordx2 s[4:5], s[0:1], 80")
    if layer == 1:
        k("s_load_dwordx2 %s, s[0:1], 56" % s(sB + 16, 2))
    st("start")
    k("v_lshrrev_b32 %s, 6, v0" % v(t[0]))
    k("v_and_b32 %s, 63, v0" % v(vrA))
    k("v_readfirstlane_b32 %s, %s" % (s(sWv), v(t[0])))
    k("s_mov_b32 s6, 0x%x" % L.WS_USED)
    k("s_mov_b32 s7, 0x20000")
    k("s_and_b32 %s, s2, 6" % s(sP))
    k("s_lshl_b32 %s, %s, 1" % (s(sP), s(sP)))
    k("s_lshr_b32 %s, s2, 6" % s(sT))
    k("s_add_u32 %s, %s, %s" % (s(sP), s(sP), s(sT)))
    k("s_bfe_u32 %s, s2, 0x30003" % s(sI))
    k("s_and_b32 %s, s2, 1" % s(sCt))
    k("s_lshl_b32 %s, %s, 3" % (s(sT), s(sCt)))
    k("s_add_u32 %s, %s, %s" % (s(sI), s(sI), s(sT)))
    k("v_bfe_u32 %s, v0, 3, 2" % v(t[1]))
    k("v_lshlrev_b32 %s, 19, %s" % (v(vX), v(t[1])))
    k("v_bfe_u32 %s, v0, 5, 1" % v(t[1]))
    k("v_lshl_add_u32 %s, %s, 17, %s" % (v(vX), v(t[1]), v(vX)))
    k("v_and_b32 %s, 7, v0" % v(t[1]))
    k("v_lshl_add_u32 %s, %s, 4, %s" % (v(vX), v(t[1]), v(vX)))
    k("v_lshl_add_u32 %s, %s, 7, %s" % (v(vX), v(t[0]), v(vX)))
    k("v_add_u32 %s, %d, %s" % (v(vX2), 32 * 8192 - 1024, v(vX)))
    k("v_lshlrev_b32 %s, 4, %s" % (v(vrA), v(vrA)))
    k("v_lshlrev_b32 %s, 4, v0" % v(vW))
    k("s_lshl_b32 %s, %s, 14" % (s(sRB), s(sWv)))
    k("s_add_u32 %s, %s, %d" % (s(sRB), s(sRB), RING))
    k("s_lshl_b32 %s, %s, 9" % (s(sX), s(sP)))
    k("s_add_u32 %s, %s, 0x%x" % (s(sX), s(sX), XIN))
    k("s_mul_i32 %s, %s, 114688" % (s(sW1), s(sI)))
    k("s_add_u32 %s, %s, 0x%x" % (s(sW1), s(sW1), L.W1F))
    k("s_lshl_b32 %s, %s, 10" % (s(sLw), s(sWv)))

    issued = {}

    def dma(vv, ss, off, tag):
        def op():
            issued[tag] = issued.get(tag, 0) + 1
            k("buffer_load_dwordx4 %s, %s, %s offen offset:%d lds" % (v(vv), WS, s(ss), off), tag=tag)
        return op

    def setup(m0base, m0off, sd, sbase, off):
        def op():
            k("s_add_u32 m0, %s, %d" % (s(m0base), m0off))
            k("s_add_u32 %s, %s, %d" % (s(sd), s(sbase), off))
        return op

    def bundle(ks):
        tg = ("b", ks)
        return [(setup(sRB, (ks % 8) * 2048, sT, sX, ks * 8192), dma(vX, sT, 0, tg)), (None, dma(vX2, sT, 1024, tg)),
                (setup(sLw, ks * 4096, sU, sW1, ks * 4096), dma(vW, sU, 0, tg))]

    def issue(ops):
        for su, ld in ops:
            if su:
                su()
            ld()

    for ks in range(D0):
        issue(bundle(ks))

    k("s_bfe_u32 %s, s2, 0x10005" % s(sPhi))
    k("s_lshl_b32 %s, %s, 2" % (s(sCt), s(sCt)))
    k("s_bfe_u32 %s, s2, 0x20003" % s(sV))
    k("s_add_u32 %s, %s, %s" % (s(sCt), s(sCt), s(sV)))
    k("s_lshl_b32 %s, %s, 1" % (s(sPl), s(sCt)))
    k("s_and_b32 %s, %s, 1" % (s(sV), s(sWv)))
    k("s_add_u32 %s, %s, %s" % (s(sPl), s(sPl), s(sV)))
    k("s_lshl_b32 %s, %s, 6" % (s(sPl), s(sPl)))
    if layer == 0:
        k("s_add_u32 %s, %s, 0x%x" % (s(sPl), s(sPl), L.B2F))
        k("s_buffer_load_dwordx16 %s, %s, %s" % (s(sB, 16), WS, s(sPl)))
        k("s_add_u32 %s, %s, 1024" % (s(sPl), s(sPl)))
        k("s_buffer_load_dwordx16 %s, %s, %s" % (s(sB + 16, 16), WS, s(sPl)))
    else:
        k("s_load_dwordx16 %s, %s, %s" % (s(sB, 16), s(sB + 16, 2), s(sPl)))
    k("s_xor_b32 %s, %s, 1" % (s(sV), s(sV)))
    k("s_lshl_b32 %s, %s, 8" % (s(sV), s(sV)))
    k("v_xor_b32 %s, %s, %s" % (v(vW2), s(sV), v(vrA)))
    k("v_lshrrev_b32 %s, 1, %s" % (v(t[1]), v(vrA)))
    k("v_add_u32 %s, %s, %s" % (v(vrX), s(sRB), v(t[1])))
    k("v_and_b32 %s, 48, v0" % v(t[1]))
    k("s_add_u32 %s, %s, %d" % (s(sV), s(sLw), B1L))
    k("v_add_u32 %s, %s, %s" % (v(vB1), s(sV), v(t[1])))
    k("v_add_u32 %s, %d, %s" % (v(vA2), WB1, v(vrA)))
    k("v_mov_b32 %s, %s" % (v(vC), fbits(C1)))
    k("v_mov_b32 %s, %s" % (v(vC + 1), fbits(C0)))
    k("s_mul_i32 %s, %s, %d" % (s(sH), s(sP), 4 * 114688))
    k("s_add_u32 %s, %s, 0x%x" % (s(sH), s(sH), H))
    k("s_mul_i32 %s, %s, 7168" % (s(sHst), s(sI)))
    k("s_add_u32 %s, %s, %s" % (s(sHst), s(sHst), s(sH)))
    if layer == 0:
        k("v_mul_u32_u24 %s, 114688, %s" % (v(vH), v(t[0])))
        k("v_add_u32 %s, %s, %s" % (v(vH), v(vH), v(vrA)))
    else:
        k("v_bfe_u32 %s, v0, 4, 1" % v(t[1]))
        k("v_lshrrev_b32 %s, 1, %s" % (v(t[4]), v(t[0])))
        k("v_lshl_add_u32 %s, %s, 1, %s" % (v(t[1]), v(t[1]), v(t[4])))
        k("v_mul_u32_u24 %s, 114688, %s" % (v(vH), v(t[1])))
        k("v_and_b32 %s, 0x2f, v0" % v(t[1]))
        k("v_and_b32 %s, 1, %s" % (v(t[4]), v(t[0])))
        k("v_lshl_add_u32 %s, %s, 4, %s" % (v(t[1]), v(t[4]), v(t[1])))
        k("v_lshl_add_u32 %s, %s, 4, %s" % (v(vH), v(t[1]), v(vH)))
    k("s_mul_i32 %s, %s, 229376" % (s(sW2), s(sCt)))
    k("s_mul_i32 %s, %s, 57344" % (s(sV), s(sWv)))
    k("s_add_u32 %s, %s, %s" % (s(sW2), s(sW2), s(sV)))
    k("s_add_u32 %s, %s, 0x%x" % (s(sW2), s(sW2), W2))
    k("s_lshr_b32 %s, %s, 1" % (s(sV), s(sV)))
    k("s_add_u32 %s, %s, %s" % (s(sH), s(sH), s(sV)))
    k("s_lshl_b32 %s, %s, 4" % (s(sPl), s(sP)))
    k("s_add_u32 %s, %s, %s" % (s(sFl), s(sPl), s(sI)))
    k("s_lshl_b32 %s, %s, 2" % (s(sFl), s(sFl)))
    k("s_add_u32 %s, %s, %s" % (s(sFl), s(sFl), s(sWv)))
    k("s_lshl_b32 %s, %s, 6" % (s(sFl), s(sFl)))
    k("s_add_u32 %s, %s, 0x%x" % (s(sFl), s(sFl), L.FLAGS + layer * 131072))
    k("s_lshl_b32 %s, %s, 8" % (s(sPl), s(sPl)))
    k("s_add_u32 %s, %s, %s" % (s(sPl), s(sPl), s(sLw)))
    k("s_add_u32 %s, %s, 0x%x" % (s(sPl), s(sPl), L.FLAGS + layer * 131072))
    k("v_mov_b32 %s, 0xffff" % v(t[4]))
    k("v_cmp_gt_u32 vcc, 256, %s" % v(vrA))
    k("v_cndmask_b32 %s, -1, %s, vcc" % (v(vS), v(t[4])))
    for m, c in ((8, 0x22222222), (9, 0x22222222), (10, 0x44444444), (11, 0x44444444)):
        k("s_mov_b32 %s, 0x%x" % (s(m), c))
    k("s_mov_b32 vcc_lo, 0x88888888")
    k("s_mov_b32 vcc_hi, 0x88888888")
    k("s_mul_i32 %s, %s, 448" % (s(sV), s(sI)))
    k("s_add_u32 %s, %s, 0x%x" % (s(sV), s(sV), L.B1X))

    queue = []
    for m in range(12):
        lds = WB1 + 4096 * m if m < 7 else 4096 * (m - 7)
        queue.append((setup(sLw, lds, sU, sW1, 65536 + 4096 * m), dma(vW, sU, 0, "wb")))

    def w2_pair(ks2):
        su = lambda: k("s_add_u32 %s, %s, %d" % (s(sU), s(sW2), ks2 * 2048))
        ld = lambda sg: (lambda: k("buffer_load_dwordx4 %s, %s, %s, %s offen offset:%d" % (a(8 * ks2 + 4 * sg, 4), v(vW2), WS, s(sU), sg * 1024)))
        return [(su, ld(0)), (None, ld(1))]

    def ft_piece(j):
        su = setup(sRB, (j >> 2) * 4096, sT, sX, (j >> 2) * 4096) if j & 3 == 0 else None
        return (su, dma(vrA, sT, (j & 3) * 1024, "ft"))

    w2q = [op for ks2 in KA + KB for op in w2_pair(ks2)]
    if phase == 1:
        w2q = []

    def side(n=1):
        for _ in range(n):
            if queue:
                issue([queue.pop(0)])

    def x_read(ks, n):
        i, ro = ((0, 0), (1, 4), (2, 2), (3, 6))[n]
        return lambda: k("ds_read_b64 %s, %s offset:%d" % (v(XB + 8 * ks + ro, 2), v(vrX), (ks % 8) * 2048 + 512 * i))

    def x_swap(ks, n):
        return lambda: k("v_swap_b32 %s, %s" % (v(XB + 8 * ks + 1 + 2 * n), v(XB + 8 * ks + 4 + 2 * n)))

    def a_read(ks, ft):
        return lambda: k("ds_read_b128 %s, %s offset:%d" % (v(AF + 16 * (ks & 1) + 4 * ft, 4), v(vrA), (4 * ks + ft) * 1024))

    def b1_read(reg, ft):
        return lambda: k("ds_read_b128 %s, %s offset:%d" % (v(reg, 4), v(vB1), 64 * ft))

    k("s_waitcnt lgkmcnt(0)")
    k.wait_tag(("b", 0))
    k("s_barrier")
    st("first")
    for n in range(4):
        x_read(0, n)()
    for ft in range(4):
        a_read(0, ft)()
    for ks in range(D0, D):
        issue(bundle(ks))
    k("s_add_u32 m0, %s, %d" % (s(sLw), B1L))
    dma(vrA, sV, 0, ("b", D - 1))()
    x_swap(0, 0)()
    x_swap(0, 1)()
    for tt in range(2):
        k("v_and_b32 %s, %s, %s" % (v(tmp + 8 + 4 * tt), v(vS), v(XB + 4 * tt)))
        for i in range(1, 4):
            k("v_mov_b32 %s, %s" % (v(tmp + 8 + 4 * tt + i), v(XB + 4 * tt + i)))

    def diag(tt):
        def op():
            k("v_cndmask_b32 %s, %s, %s, %s" % (v(t[tt]), v(SSQ + 4 * tt), v(SSQ + 4 * tt + 1), s(sM1, 2)))
            k("v_cndmask_b32 %s, %s, %s, %s" % (v(t[tt]), v(t[tt]), v(SSQ + 4 * tt + 2), s(sM2, 2)))
            k("v_cndmask_b32 %s, %s, %s, vcc" % (v(t[tt]), v(t[tt]), v(SSQ + 4 * tt + 3)))
            k("ds_bpermute_b32 %s, %s, %s" % (v(vS + tt), v(t[2]), v(t[tt])))
        return op

    ntail = 0
    for ks in range(16):
        if ks < 15:
            k.wait_tag(("b", ks + 1))
            k("s_barrier")
        if opts.get("kst") and ks % 4 == 0 and ks:
            st("ks%d" % ks)
        fill = [[] for _ in range(10)]
        if ks + D < 16:
            ops = bundle(ks + D)
        else:
            if len(queue) < 3:
                queue += w2q[:4]
                del w2q[:4]
            n = opts.get("NT", 3) if ks < 15 else 2
            ops, queue[:n] = queue[:n], []
        slot = opts.get("slot", 1)
        for n, (su, ld) in enumerate(ops):
            if su:
                fill[((4, 6, 8), (0, 4, 7))[slot][n]].append(su)
            fill[((5, 7, 9), (1, 5, 8))[slot][n]].append(ld)
        if ks < 15:
            for n in range(4):
                fill[((0, 0, 1, 1), (0, 1, 2, 2))[slot][n]].append(x_read(ks + 1, n))
                fill[((2, 2, 3, 3), (3, 3, 4, 5))[slot][n]].append(a_read(ks + 1, n))
            fill[(6, 6)[slot]].insert(0, x_swap(ks + 1, 0))
            fill[(7, 9)[slot]].insert(0, x_swap(ks + 1, 1))
        else:
            fill[0] += [lambda: k("v_and_b32 %s, 12, v0\nv_and_b32 %s, 15, v0" % (v(t[2]), v(t[3])))]
            fill[1] += [lambda: k("v_lshl_add_u32 %s, %s, 2, %s\nv_lshlrev_b32 %s, 2, %s" % (v(t[2]), v(t[2]), v(t[3]), v(t[2]), v(t[2])))]
            for n in range(4):
                fill[2 + (n >> 1)].append(b1_read(AF + 4 * n, n))
            fill[4].insert(0, diag(0))
            fill[6].insert(0, diag(1))
            fill[8] += [lambda: k("v_mov_b32 %s, %s" % (v(t[3]), fbits(EPS * EPS)))]
        for m in range(10):
            tt = m & 1
            bb = v(XB + 8 * ks + 4 * tt, 4)
            if m < 2:
                d = v(SSQ + 4 * tt, 4)
                k("%s %s, %s, %s, %s" % (MF16, d, v(tmp + 8 + 4 * tt, 4) if ks == 0 else bb, bb, d if ks else "0"))
            else:
                ft = (m - 2) >> 1
                d = v(ACC + 8 * ft + 4 * tt, 4)
                k("%s %s, %s, %s, %s" % (MF16, d, v(AF + 16 * (ks & 1) + 4 * ft, 4), bb, d if ks else "0"))
            for op in fill[m]:
                op()
    st("passA")
    for tt in range(2):
        k("v_fmamk_f32 %s, %s, %s, %s" % (v(vS + tt), v(vS + tt), fbits((1 + EPS) / 512), v(t[3])))
    for tt in range(2):
        k("v_rsq_f32 %s, %s" % (v(vS + tt), v(vS + tt)))

    RES = SSQ
    vRes = vX
    if phase != 1:
        if layer == 1:
            k("s_lshl_b32 %s, %s, 16" % (s(sX), s(sCt)))
            k("s_add_u32 %s, %s, %s" % (s(sX), s(sX), s(sRB)))
            k("s_add_u32 %s, %s, 0x%x" % (s(sX), s(sX), L.FT - RING))
            n = 2 * ((opts.get("FTP", 16)) // 2)
            queue += w2q[:n] + [ft_piece(j) for j in range(16)] + w2q[n:]
        else:
            queue += w2q

    def gelu(ft, bias, nside, part):
        x = ACC + 8 * ft
        o = tmp + 8 + 4 * (ft & 1)
        sd = [(nside + 3 - i) // 4 for i in range(4)]
        for h in range(4):
            tt = h >> 1
            k("v_pk_fma_f32 %s, %s, %s, %s op_sel:[0,%d,0] op_sel_hi:[1,%d,1]"
              % (v(x + 2 * h, 2), v(x + 2 * h, 2), v(vS, 2), v(bias + 2 * (h & 1), 2), tt, tt))
        for h in range(4):
            k("v_pk_mul_f32 %s, %s, %s" % (v(tmp + 2 * h, 2), v(x + 2 * h, 2), v(x + 2 * h, 2)))
        for h in range(4):
            k("v_pk_fma_f32 %s, %s, %s, %s op_sel:[0,0,1] op_sel_hi:[1,0,1]" % (v(tmp + 2 * h, 2), v(tmp + 2 * h, 2), v(vC, 2), v(vC, 2)))
        side(sd[3])
        for h in range(4):
            k("v_pk_mul_f32 %s, %s, %s" % (v(tmp + 2 * h, 2), v(x + 2 * h, 2), v(tmp + 2 * h, 2)))
        for i in range(8):
            k("v_exp_f32 %s, %s" % (v(tmp + i), v(tmp + i)))
            if i == 4:
                side(sd[0])
        for h in range(4):
            k("v_pk_add_f32 %s, %s, 1.0 op_sel_hi:[1,0]" % (v(tmp + 2 * h, 2), v(tmp + 2 * h, 2)))
        for i in range(8):
            k("v_rcp_f32 %s, %s" % (v(tmp + i), v(tmp + i)))
            if i == 1:
                side(sd[2])
        side(sd[1])
        for h in range(4):
            k("v_pk_mul_f32 %s, %s, %s" % (v(tmp + 2 * h, 2), v(x + 2 * h, 2), v(tmp + 2 * h, 2)))
        for h in (0, 2, 1, 3):
            k("v_cvt_pk_bf16_f32 %s, %s, %s" % (v(o + h), v(tmp + 2 * h), v(tmp + 2 * h + 1)))
        k("v_permlane16_swap_b32 %s, %s" % (v(o), v(o + 2)))
        k("v_permlane16_swap_b32 %s, %s" % (v(o + 1), v(o + 3)))
        k("buffer_store_dwordx4 %s, %s, %s, %s offen offset:%d sc1" % (v(o, 4), v(vH), WS, s(sHst), (ft & 3) * 1024), tag=part)

    def b_slot(j):
        return AF + 4 * ((j + 4) % 8)

    def b_read(j):
        if j < 28:
            k("ds_read_b128 %s, %s offset:%d" % (v(b_slot(j), 4), v(vA2), j * 1024))
        else:
            k("ds_read_b128 %s, %s offset:%d" % (v(b_slot(j), 4), v(vrA), (j - 28) * 1024))

    def publish(part):
        k.wait_tag(part)
        k("s_mov_b64 exec, 1")
        k("buffer_store_dword %s, %s, %s, %s offen sc1" % (v(vC), v(vrA), WS, s(sFl)))
        k("s_mov_b64 exec, -1")
        k("s_add_u32 %s, %s, 65536" % (s(sFl), s(sFl)))

    def poll_issue():
        if poll:
            k("buffer_load_dword %s, %s, %s, %s offen sc1" % (v(vP), v(vB1), WS, s(sPl)))

    def poll_check(lbl):
        if poll:
            k("v_cmp_eq_u32 vcc, 0, %s" % v(vP))
            k("s_cbranch_vccz %s_GO%s" % (U, lbl))
            k("s_mov_b32 %s, 0" % s(sV))
            k.label("%s_POLL%s" % (U, lbl))
            k("buffer_load_dword %s, %s, %s, %s offen sc1" % (v(vP), v(vB1), WS, s(sPl)))
            k("s_add_u32 %s, %s, 1" % (s(sV), s(sV)))
            k("s_waitcnt vmcnt(0)")
            k("v_cmp_eq_u32 vcc, 0, %s" % v(vP))
            k("s_cmp_lt_u32 %s, 0x8000" % s(sV))
            k("s_cselect_b64 vcc, vcc, 0")
            k("s_cbranch_vccnz %s_POLL%s" % (U, lbl))
            k.label("%s_GO%s" % (U, lbl))

    for ft in range(4):
        gelu(ft, AF + 4 * ft, GA, "hA")
        if ft == 2:
            assert issued["wb"] == 12
            k.wait_tag("wb")
            k("s_barrier")
            for j in range(4):
                b_read(j)
    k("s_add_u32 %s, %s, 4096" % (s(sHst), s(sHst)))
    st("geluA")

    for j in range(4, 7):
        b_read(j)
    for j in range(48):
        ks, ft = j // 3, 4 + j % 3
        pend = None
        for tt in range(2):
            d = v(ACC + 8 * ft + 4 * tt, 4)
            k("%s %s, %s, %s, %s" % (MF16, d, v(b_slot(j), 4), v(XB + 8 * ks + 4 * tt, 4), d if ks else "0"))
            if tt == 0:
                if j + 7 < 48:
                    b_read(j + 7)
                elif j + 7 < 51:
                    b1_read(b_slot(j + 7), j + 7 - 44)()
                if j & 1 and queue and 2 * j != FA:
                    su, pend = queue.pop(0)
                    if su:
                        su()
            elif pend:
                pend()
            if 2 * j + tt == FA:
                publish("hA")
    st("passB")
    k("v_and_b32 %s, 15, v0" % v(vB1))
    k("v_lshlrev_b32 %s, 6, %s" % (v(vB1), v(vB1)))
    if layer == 0 and phase != 1:
        k("v_bfe_u32 %s, v0, 4, 1" % v(t[1]))
        k("v_bfe_u32 %s, v0, 5, 1" % v(t[0]))
        k("v_lshl_add_u32 %s, %s, 2, %s" % (v(t[1]), v(t[0]), v(t[1])))
        k("v_lshrrev_b32 %s, 3, %s" % (v(t[2]), v(vB1)))
        k("v_lshl_add_u32 %s, %s, 13, %s" % (v(vRes), v(t[1]), v(t[2])))
        k("s_lshl_b32 %s, %s, 1" % (s(sT), s(sCt)))
        k("s_and_b32 %s, %s, 1" % (s(sV), s(sWv)))
        k("s_add_u32 %s, %s, %s" % (s(sT), s(sT), s(sV)))
        k("s_lshl_b32 %s, %s, 17" % (s(sT), s(sT)))
        k("s_add_u32 %s, %s, %s" % (s(sX), s(sX), s(sT)))
        k("s_lshl_b32 %s, %s, 1" % (s(sT), s(sPhi)))
        k("s_lshr_b32 %s, %s, 1" % (s(sV), s(sWv)))
        k("s_add_u32 %s, %s, %s" % (s(sT), s(sT), s(sV)))
        k("s_lshl_b32 %s, %s, 7" % (s(sT), s(sT)))
        k("s_add_u32 %s, %s, %s" % (s(sX), s(sX), s(sT)))
        for j in range(4):
            queue.append((lambda j=j: k("s_add_u32 %s, %s, %d" % (s(sT), s(sX), (8 * (j >> 1) + 2 * (j & 1)) * 8192)),
                          lambda j=j: k("buffer_load_dwordx2 %s, %s, %s, %s offen" % (v(AF + 2 * j, 2), v(vRes), WS, s(sT)))))
    for ft in range(4, 7):
        if ft == 4 + opts.get("PA", 1):
            poll_issue()
        gelu(ft, b_slot(44 + ft), GB, "hB")
    st("geluB")
    if phase == 1:
        st("end", final=True)
        k.label("%s_END" % U)
        k("s_endpgm")
        return k

    assert layer == 0 or issued["ft"] == 16
    sH0, sH1 = sW1, sH
    k("s_lshr_b32 %s, %s, 1" % (s(sT), s(sWv)))
    k("s_lshl_b32 %s, %s, 1" % (s(sV), s(sPhi)))
    k("s_add_u32 %s, %s, %s" % (s(sT), s(sT), s(sV)))
    k("s_xor_b32 %s, %s, 1" % (s(sV), s(sT)))
    k("s_mul_i32 %s, %s, 114688" % (s(sV), s(sV)))
    k("s_mul_i32 %s, %s, 114688" % (s(sT), s(sT)))
    k("s_add_u32 %s, %s, %s" % (s(sH0), s(sH), s(sV)))
    k("s_add_u32 %s, %s, %s" % (s(sH1), s(sH), s(sT)))
    order = [(0, x) for x in KA] + [(1, x) for x in KA] + [(0, x) for x in KB] + [(1, x) for x in KB]

    def h_load(j):
        ptr, ks2 = order[j]
        ft = ks2 % 7
        if ft in (0, 4):
            k("s_add_u32 %s, %s, %d" % (s(sHst), s((sH0, sH1)[ptr]), ks2 * 1024))
        k("buffer_load_dwordx4 %s, %s, %s, %s offen offset:%d sc1" % (v(XB + 4 * (j % 32), 4), v(vrA), WS, s(sHst), (ft & 3) * 1024))

    own = lambda sg, gm, r: ACC + 32 + 16 * sg + 8 + 4 * gm + r
    FB = min(PD - 1, opts.get("FB", 10))
    if layer == 0:
        side(len(queue))
        poll_check("A")
        st("pollA")
        for j in range(PD):
            h_load(j)
            if j == FB:
                publish("hB")
    else:
        side(NF)
        k.wait_tag("ft")
        k("s_barrier")
        k("v_add_u32 %s, %d, %s" % (v(vX), RING, v(vrA)))
        k("s_cmp_eq_u32 %s, 1" % s(sPhi))
        k("s_cbranch_scc1 %s_X3B" % U)
        saved = list(queue)
        for tt in range(2):
            queue[:] = saved
            if tt == 1:
                k.label("%s_X3B" % U)
            for j in range(7):
                k("ds_read_b128 %s, %s offset:%d" % (v(AF + 4 * j, 4), v(vX), j * 1024))
            nh = 0
            for j in range(64):
                ks, dt = j >> 2, j & 3
                d = v(tmp + 4 * dt, 4)
                k("%s %s, %s, %s, %s" % (MF16, d, v(AF + 4 * (j % 8), 4), v(XB + 8 * ks + 4 * tt, 4), d if ks else "0"))
                if j + 7 < 64:
                    k("ds_read_b128 %s, %s offset:%d" % (v(AF + 4 * ((j + 7) % 8), 4), v(vX), (j + 7) * 1024))
                if dt == 1:
                    if queue:
                        side()
                    elif ks >= 1 and nh < PD:
                        if nh == 0:
                            poll_check("A%d" % tt)
                        assert nh < 2 * ks
                        h_load(nh)
                        nh += 1
                if j == opts.get("FBX", 40):
                    publish("hB")
            side(len(queue))
            if nh == 0:
                poll_check("A%d" % tt)
            for j in range(nh, PD):
                h_load(j)
            if tt == 0:
                k("s_branch %s_X3E" % U)
        k.label("%s_X3E" % U)
        st("pollA")
        k("v_and_b32 %s, 15, v0" % v(AF))
        k("v_lshrrev_b32 %s, 6, v0" % v(AF + 1))
        k("v_lshl_add_u32 %s, %s, 4, %s" % (v(AF), v(AF + 1), v(AF)))
        k("v_mul_u32_u24 %s, 272, %s" % (v(AF), v(AF)))
        k("v_and_b32 %s, 48, v0" % v(AF + 1))
        k("v_add_u32 %s, %d, %s" % (v(AF + 1), WB1, v(AF + 1)))
        k("v_add_u32 %s, %s, %s" % (v(AF), v(AF), v(AF + 1)))
        for dt in range(4):
            k("ds_write_b128 %s, %s offset:%d" % (v(AF), v(tmp + 4 * dt, 4), 64 * dt))
    k("s_add_u32 %s, %s, 65536" % (s(sPl), s(sPl)))

    pre = []
    P = lambda txt: pre.append(txt)
    for sg in range(2):
        for i in range(8):
            P("v_mov_b32 %s, 0" % v(ACC + 32 + 16 * sg + i))
    if layer == 0:
        for j in range(4):
            P("v_permlane16_swap_b32 %s, %s" % (v(AF + 2 * j), v(AF + 2 * j + 1)))
        for gm in range(2):
            for r in range(4):
                P("v_lshlrev_b32 %s, 16, %s" % (v(own(0, gm, r)), v(AF + 4 * gm + r)))
                P("v_and_b32 %s, 0xffff0000, %s" % (v(own(1, gm, r)), v(AF + 4 * gm + r)))
    for txt in pre:
        k(txt)
    for hh in range(2):
        k("s_mov_b32 exec_lo, %d" % (-1, 0)[hh])
        k("s_mov_b32 exec_hi, %d" % (0, -1)[hh])
        for sg in range(2):
            for gm in range(2):
                for r in range(4):
                    if layer == 0:
                        k("v_add_f32 %s, %s, %s" % (v(own(sg, gm, r)), s(sB + 16 * sg + 8 * gm + 4 * hh + r), v(own(sg, gm, r))))
                    else:
                        src = s(sB + 8 * hh + 4 * sg + 2 * gm + (r >> 1))
                        if r & 1:
                            k("s_and_b32 %s, %s, 0xffff0000" % (s(sV), src))
                            k("v_mov_b32 %s, %s" % (v(own(sg, gm, r)), s(sV)))
                        else:
                            k("v_lshlrev_b32 %s, 16, %s" % (v(own(sg, gm, r)), src))
    k("s_mov_b64 exec, -1")

    vRW, vRd, vO, vI = vrX, [AF + 8, AF + 9, AF + 10], vX, AF + 11
    pitch, base = (16384, RING) if layer == 0 else (12288, 0)
    late = []
    Q = lambda txt: late.append(txt)
    Q("s_mul_i32 %s, %s, %d\ns_add_u32 %s, %s, %d\nv_add_u32 %s, %s, %s" % (s(sV), s(sWv), pitch, s(sV), s(sV), base, v(vRW), s(sV), v(vrA)))
    for dl in range(1, 4):
        Q("s_xor_b32 %s, %s, %d\ns_mul_i32 %s, %s, %d" % (s(sV), s(sWv), dl, s(sV), s(sV), pitch))
        Q("s_add_u32 %s, %s, %d\nv_add_u32 %s, %s, %s" % (s(sV), s(sV), base + (3 ^ dl) * 4096, v(vRd[dl - 1]), s(sV), v(vrA)))
    if layer == 1:
        Q("s_load_dwordx2 s[8:9], s[0:1], 64\ns_mov_b32 s10, 0x200000\ns_mov_b32 s11, 0x20000")
        Q("v_and_b32 %s, 15, v0\nv_bfe_u32 %s, v0, 4, 1\nv_lshl_add_u32 %s, %s, 1, %s" % (v(t[0]), v(t[1]), v(t[2]), v(t[0]), s(sPhi)))
        Q("v_and_b32 %s, 3, %s\nv_lshrrev_b32 %s, 1, %s\nv_lshl_add_u32 %s, %s, 3, %s" % (v(t[2]), v(t[2]), v(t[0]), v(t[0]), v(t[0]), v(t[1]), v(t[0])))
        Q("v_lshl_add_u32 %s, %s, 5, %s\nv_and_b32 %s, 32, v0\nv_lshl_add_u32 %s, %s, 10, %s" % (v(t[0]), v(t[2]), v(t[0]), v(t[3]), v(vO), v(t[0]), v(t[3])))
        Q("s_lshr_b32 %s, %s, 2\ns_lshl_b32 %s, %s, 9\ns_and_b32 %s, %s, 1" % (s(sV), s(sP), s(sX), s(sV), s(sV), s(sP)))
        Q("s_lshl_b32 %s, %s, 8\ns_add_u32 %s, %s, %s\ns_lshr_b32 %s, %s, 1" % (s(sV), s(sV), s(sX), s(sX), s(sV), s(sT), s(sWv)))
        Q("s_lshl_b32 %s, %s, 7\ns_add_u32 %s, %s, %s\ns_bfe_u32 %s, %s, 0x10001" % (s(sV), s(sT), s(sX), s(sX), s(sV), s(sV), s(sP)))
        Q("s_lshl_b32 %s, %s, 4\ns_add_u32 %s, %s, %s\ns_lshl_b32 %s, %s, 10" % (s(sV), s(sV), s(sX), s(sX), s(sV), s(sX), s(sX)))
        Q("s_lshl_b32 %s, %s, 7\ns_add_u32 %s, %s, %s\ns_and_b32 %s, %s, 1" % (s(sV), s(sCt), s(sX), s(sX), s(sV), s(sV), s(sWv)))
        Q("s_lshl_b32 %s, %s, 6\ns_add_u32 %s, %s, %s\ns_mul_i32 %s, %s, %d" % (s(sV), s(sV), s(sX), s(sX), s(sV), s(sT), s(sT), 32 * 272))
        Q("s_lshl_b32 %s, %s, 1\ns_add_u32 %s, %s, %s\ns_add_u32 %s, %s, %d" % (s(sV), s(sV), s(sT), s(sT), s(sV), s(sT), s(sT), WB1))
        Q("v_and_b32 %s, 31, v0\nv_mul_u32_u24 %s, 272, %s" % (v(t[0]), v(t[0]), v(t[0])))
        Q("v_lshl_add_u32 %s, %s, 1, %s\nv_add_u32 %s, %s, %s" % (v(t[0]), v(t[3]), v(t[0]), v(vI), s(sT), v(t[0])))
    else:
        q = tmp + 8
        Q("s_add_u32 %s, %s, 0x%x\ns_and_b32 %s, %s, 1\ns_or_b32 %s, %s, %s" % (s(sX), s(sX), XOUT - XIN, s(sV), s(sWv), s(sV), s(sV), s(sCt)))
        Q("s_cmp_eq_u32 %s, 0\ns_cselect_b32 s8, -1, 0\ns_mov_b32 s9, 0" % s(sV))
        Q("v_and_b32 %s, 15, v0\nv_bfe_u32 %s, v0, 4, 1" % (v(vI), v(t[0])))
        Q("v_lshl_add_u32 %s, %s, 1, %s\nv_lshlrev_b32 %s, 2, %s" % (v(vI), v(vI), v(t[0]), v(vI), v(vI)))
        Q("s_lshl_b32 %s, %s, 2\ns_lshl_b32 %s, %s, 1\ns_add_u32 %s, %s, %s" % (s(sU), s(sP), s(sV), s(sPhi), s(sU), s(sU), s(sV)))
        Q("s_lshr_b32 %s, %s, 1\ns_add_u32 %s, %s, %s" % (s(sV), s(sWv), s(sU), s(sU), s(sV)))
        Q("s_lshl_b32 %s, %s, 7\ns_add_u32 %s, %s, 0x%x" % (s(sU), s(sU), s(sU), s(sU), L.SSQ2))

    def part_write(kap, grp):
        sg, gm = grp >> 1, grp & 1
        k("ds_write_b128 %s, %s offset:%d" % (v(vRW), v(ACC + 32 * (kap >> 1) + 16 * sg + 8 * (kap & 1) + 4 * gm, 4), kap * 4096 + grp * 1024))

    for j in range(56):
        ptr, ks2 = order[j]
        for sg in range(2):
            d = v(ACC + 32 * ptr + 16 * sg, 16)
            k("%s %s, %s, %s, %s" % (MF32, d, a(8 * ks2 + 4 * sg, 4), v(XB + 4 * (j % 32), 4), d if j else "0"))
            if sg == 0:
                if j == 0:
                    st("h0")
                if j + PD == 32:
                    st("preB")
                    poll_check("B")
                    st("pollB")
                if j + PD < 56:
                    h_load(j + PD)
            else:
                if j == opts.get("PB", 8):
                    poll_issue()
                if j + PD > 32 and late:
                    k(late.pop(0))
                if 48 <= j < 56:
                    part_write((j - 48) >> 2, (j - 48) & 3)
    assert not late
    st("gemm2")
    for grp in range(4):
        part_write(2, grp)
    k("s_waitcnt lgkmcnt(0)")
    k("s_barrier")
    srcs = []
    for dl in range(3):
        for grp in range(4):
            k("ds_read_b128 %s, %s offset:%d" % (v(XB + 16 * dl + 4 * grp, 4), v(vRd[dl]), grp * 1024))
        srcs.append(XB + 16 * dl)
    if layer == 1:
        for grp in range(4):
            k("ds_read_b128 %s, %s offset:%d" % (v(XB + 48 + 4 * grp, 4), v(vI), grp * 16))
        srcs.append(XB + 48)
    for src in srcs:
        for grp in range(4):
            for h in (0, 2):
                d = v(own(grp >> 1, grp & 1, h), 2)
                k("v_pk_add_f32 %s, %s, %s" % (d, d, v(src + 4 * grp + h, 2)))
    if layer == 0:
        for gm in range(2):
            for r in range(4):
                k("v_cvt_pk_bf16_f32 %s, %s, %s" % (v(tmp + 4 * gm + r), v(own(0, gm, r)), v(own(1, gm, r))))
        k("v_cndmask_b32 %s, %s, 0, s[8:9]" % (v(own(1, 0, 0)), v(own(1, 0, 0))))
        for i in range(2):
            k("v_pk_mul_f32 %s, %s, %s" % (v(q + 2 * i, 2), v(own(i, 0, 0), 2), v(own(i, 0, 0), 2)))
        for hh in (2, 4, 6):
            for i in range(2):
                k("v_pk_fma_f32 %s, %s, %s, %s" % (v(q + 2 * i, 2), v(own(i, 0, hh), 2), v(own(i, 0, hh), 2), v(q + 2 * i, 2)))
        k("v_pk_add_f32 %s, %s, %s" % (v(q, 2), v(q, 2), v(q + 2, 2)))
        k("v_add_f32 %s, %s, %s" % (v(q), v(q), v(q + 1)))
        k("v_mov_b32 %s, %s" % (v(q + 1), v(q)))
        for j in range(4):
            k("v_permlane16_swap_b32 %s, %s" % (v(tmp + 2 * j), v(tmp + 2 * j + 1)))
        k("v_permlane32_swap_b32 %s, %s" % (v(q), v(q + 1)))
        k("v_add_f32 %s, %s, %s" % (v(q), v(q), v(q + 1)))
        k("s_mov_b32 exec_hi, 0")
        k("buffer_atomic_add_f32 %s, %s, %s, %s offen" % (v(q), v(vI), WS, s(sU)))
        k("s_mov_b32 exec_hi, -1")
        for j in range(4):
            k("s_add_u32 %s, %s, %d" % (s(sT), s(sX), (8 * (j >> 1) + 2 * (j & 1)) * 8192))
            k("buffer_store_dwordx2 %s, %s, %s, %s offen" % (v(tmp + 2 * j, 2), v(vRes), WS, s(sT)))
    else:
        for sg in range(2):
            for i in range(4):
                k("v_cvt_pk_bf16_f32 %s, %s, %s" % (v(tmp + 4 * sg + i), v(own(sg, 0, 2 * i)), v(own(sg, 0, 2 * i + 1))))
            k("buffer_store_dwordx4 %s, %s, s[8:11], %s offen offset:%d" % (v(tmp + 4 * sg, 4), v(vO), s(sX), 16 * sg))
    st("end", final=True)
    k.label("%s_END" % U)
    k("s_endpgm")
    return k
```

```python
import math
from asmlib import Kernel, Alloc, v, s, fbits
import layout as L

MF = "v_mfma_f32_16x16x32_bf16"
PITCH = 1088
LDS_BYTES = 2 * 8 * PITCH
WS, IN, IN2 = 4, 8, 12


def srd_words(k, base, nbytes):
    k("s_mov_b32 %s, 0x%x" % (s(base + 2), nbytes))
    k("s_mov_b32 %s, 0x20000" % s(base + 3))


def build(name, code_bytes=True, stamp=None):
    k = Kernel(name)
    k.entry(name)
    va = Alloc(1, 256)
    vl, vn, vg, vfn, vfg4 = va(), va(), va(), va(), va()
    t = [va() for _ in range(8)]
    A = va(32, 4)
    D = va(64, 4)
    RAW = D
    B1re, B1im, A2re, A2im, S2re, S2im = (va(4, 4) for _ in range(6))
    TC, TS = va(4, 4), va(4, 4)
    Bm, Bs = va(8, 4), va(8, 4)
    tmp = va(16, 4)
    O = va(32, 4)
    sM0, sM8, sDC, sRole, sT, sA, sB, sC, sLds = 32, 34, 36, 3, 38, 39, 40, 41, 42
    sSelLo, sSelHi = 43, 44

    k("s_cmp_ge_u32 s2, 256")
    k("s_cbranch_scc1 PREP_END")
    k("s_load_dwordx16 s[16:31], s[0:1], 0")
    k("s_load_dwordx2 s[4:5], s[0:1], 80")
    if stamp:
        stamp(k, 0)
    k("v_lshrrev_b32 %s, 6, v0" % v(t[0]))
    k("v_and_b32 %s, 63, v0" % v(vl))
    k("v_readfirstlane_b32 %s, %s" % (s(sRole), v(t[0])))
    k("v_and_b32 %s, 15, v0" % v(vn))
    k("v_lshrrev_b32 %s, 4, %s" % (v(vg), v(vl)))
    srd_words(k, WS, L.WS_USED)
    k("s_mov_b32 %s, 0x20000" % s(IN + 3))
    k("s_mov_b32 %s, 0x05040100" % s(sSelLo))
    k("s_mov_b32 %s, 0x07060302" % s(sSelHi))
    k("s_mov_b32 %s, 0x00010001" % s(sM0))
    k("s_mov_b32 %s, 0x00010001" % s(sM0 + 1))
    k("s_mov_b32 %s, 0xff00ff00" % s(sM8))
    k("s_mov_b32 %s, 0xff00ff00" % s(sM8 + 1))
    k("s_mov_b32 %s, %s" % (s(sDC), fbits(1 / (16 * math.sqrt(2)))))
    k("v_cvt_f32_u32 %s, %s" % (v(vfn), v(vn)))
    k("v_lshlrev_b32 %s, 2, %s" % (v(t[0]), v(vg)))
    k("v_cvt_f32_u32 %s, %s" % (v(vfg4), v(t[0])))
    k("s_and_b32 %s, s2, 7" % s(sA))
    k("s_lshr_b32 %s, s2, 3" % s(sB))
    k("s_cmp_eq_u32 %s, 1" % s(sRole))
    k("s_cbranch_scc1 PREP_IN_W2")
    k("s_cmp_eq_u32 %s, 2" % s(sRole))
    k("s_cbranch_scc1 PREP_IN_W1")
    k("s_cmp_eq_u32 %s, 3" % s(sRole))
    k("s_cbranch_scc1 PREP_MISC")

    def dma_rows(soff_of_row):
        k("v_lshlrev_b32 %s, 4, %s" % (v(t[0]), v(vl)))
        for j in range(8):
            k("s_add_u32 m0, %s, %d" % (s(sLds), j * PITCH))
            k("s_add_u32 %s, %s, %d" % (s(sC), s(sA), soff_of_row(j)))
            k("buffer_load_dwordx4 %s, %s, %s offen lds" % (v(t[0]), s(IN, 4), s(sC)), tag="in")

    k("s_lshl_b32 %s, %s, 5" % (s(sT), s(sA)))
    k("s_add_u32 %s, %s, %s" % (s(sT), s(sT), s(sB)))
    k("s_lshr_b32 %s, %s, 1" % (s(sC), s(sA)))
    k("s_lshl_b32 %s, %s, 9" % (s(sC), s(sC)))
    k("s_and_b32 %s, %s, 1" % (s(sA), s(sA)))
    k("s_lshl_b32 %s, %s, 4" % (s(sA), s(sA)))
    k("s_add_u32 %s, %s, %s" % (s(sA), s(sA), s(sC)))
    k("s_lshr_b32 %s, %s, 3" % (s(sC), s(sB)))
    k("s_lshl_b32 %s, %s, 7" % (s(sC), s(sC)))
    k("s_add_u32 %s, %s, %s" % (s(sA), s(sA), s(sC)))
    k("s_and_b32 %s, %s, 7" % (s(sC), s(sB)))
    k("s_lshl_b32 %s, %s, 1" % (s(sC), s(sC)))
    k("s_add_u32 %s, %s, %s" % (s(sA), s(sA), s(sC)))
    k("s_lshl_b32 %s, %s, 10" % (s(sA), s(sA)))
    k("s_mov_b32 %s, 0" % s(sLds))
    k("s_mov_b32 %s, 0x200000" % s(IN + 2))
    k("s_mov_b64 %s, s[16:17]" % s(IN, 2))
    dma_rows(lambda j: (32 * (j & 3) + (j >> 2)) * 1024)
    k("s_branch PREP_CONST")

    k.label("PREP_IN_W2")
    k("s_cmp_gt_u32 s2, 224")
    k("s_cbranch_scc1 PREP_END")
    k("s_mov_b32 %s, s2" % s(sT))
    k("s_lshl_b32 %s, s2, 13" % s(sA))
    k("s_mov_b32 %s, %d" % (s(sLds), 8 * PITCH))
    k("s_cmp_eq_u32 s2, 224")
    k("s_cselect_b32 %s, 0, %s" % (s(sA), s(sA)))
    k("s_movk_i32 %s, 0x400" % s(sC))
    k("s_cselect_b32 %s, %s, 0x1c0000" % (s(IN + 2), s(sC)))
    k("s_cselect_b64 %s, s[30:31], s[28:29]" % s(IN, 2))
    dma_rows(lambda j: j * 1024)
    k("s_branch PREP_CONST")

    k.label("PREP_IN_W1")
    k("s_cmp_ge_u32 %s, 28" % s(sB))
    k("s_cbranch_scc1 PREP_END")
    k("s_mul_i32 %s, %s, 28" % (s(sT), s(sA)))
    k("s_add_u32 %s, %s, %s" % (s(sT), s(sT), s(sB)))
    k("s_mov_b32 %s, 0" % s(sDC))
    k("s_lshl_b32 %s, %s, 4" % (s(sA), s(sT)))
    k("v_lshl_add_u32 %s, %s, 6, %s" % (v(t[0]), v(vg), v(vn)))
    k("v_mul_u32_u24 %s, 3584, %s" % (v(t[0]), v(t[0])))
    k("s_mov_b32 %s, 0x1c0000" % s(IN + 2))
    k("s_mov_b64 %s, s[24:25]" % s(IN, 2))
    for jj in range(8):
        k("s_add_u32 %s, %s, %d" % (s(sC), s(sA), 16 * (16 * (jj >> 2) + (jj & 3)) * 3584))
        k("buffer_load_dwordx4 %s, %s, %s, %s offen" % (v(RAW + 4 * jj, 4), v(t[0]), s(IN, 4), s(sC)))

    k.label("PREP_CONST")
    f1, b1, f2, b2 = t[0], t[1], t[2], t[3]
    k("v_mul_f32 %s, %s, %s" % (v(f1), fbits(1 / 32), v(vfn)))
    k("v_mul_f32 %s, %s, %s" % (v(b1), v(f1), v(vfg4)))
    k("v_cndmask_b32 %s, %s, 0.5, %s" % (v(f2), v(f1), s(sM0, 2)))
    k("v_mov_b32 %s, %s" % (v(t[4]), fbits(0.25)))
    k("v_cndmask_b32 %s, %s, 0, %s" % (v(t[4]), v(t[4]), s(sM0, 2)))
    k("v_fma_f32 %s, %s, %s, %s" % (v(b2), v(f2), v(vfg4), v(t[4])))
    for jj in range(8):
        c = fbits(16 * (jj >> 2) + (jj & 3))
        k("v_fmamk_f32 %s, %s, %s, %s" % (v(tmp + jj), v(f1), c, v(b1)))
        k("v_fmamk_f32 %s, %s, %s, %s" % (v(tmp + 8 + jj), v(f2), c, v(b2)))
    for i in range(16):
        k("v_cos_f32 %s, %s" % (v(tmp + i), v(tmp + i)))
    for i in range(4):
        k("v_cvt_pk_bf16_f32 %s, %s, %s" % (v(B1re + i), v(tmp + 2 * i), v(tmp + 2 * i + 1)))
        k("v_cvt_pk_bf16_f32 %s, %s, %s" % (v(B1im + i), v(tmp + 8 + 2 * i), v(tmp + 8 + 2 * i + 1)))
    ftw, fa2, fs2, sctw, scs, vsh, vsg = t[0], t[1], t[2], t[3], t[4], t[5], t[6]
    k("v_mul_f32 %s, %s, %s" % (v(ftw), fbits(1 / 512), v(vfn)))
    k("v_mul_f32 %s, %s, %s" % (v(fa2), fbits(1 / 16), v(vfn)))
    k("v_add_f32 %s, %s, %s" % (v(fs2), fbits(-15 / 32), v(fa2)))
    k("v_cndmask_b32 %s, %s, %s, %s" % (v(fs2), v(fa2), v(fs2), s(sM8, 2)))
    k("v_cndmask_b32 %s, %s, 0.5, %s" % (v(fs2), v(fs2), s(sM0, 2)))
    k("v_mov_b32 %s, %s" % (v(scs), fbits(1 / 16)))
    k("v_cndmask_b32 %s, %s, 0, %s" % (v(sctw), v(scs), s(sM0, 2)))
    k("v_mov_b32 %s, %s" % (v(t[7]), fbits(1 / (16 * math.sqrt(2)))))
    k("v_cndmask_b32 %s, %s, %s, %s" % (v(scs), v(scs), v(t[7]), s(sM0, 2)))
    k("v_cndmask_b32 %s, 0, 16, %s" % (v(vsh), s(sM8, 2)))
    k("v_mov_b32 %s, 0x80008000" % v(vsg))
    k("v_cndmask_b32 %s, 0, %s, %s" % (v(vsg), v(vsg), s(sM8, 2)))
    k("v_mov_b32 %s, %s" % (v(t[7]), s(sDC)))
    for r in range(4):
        fb = tmp + 12 + r
        k("v_add_f32 %s, %s, %s" % (v(fb), fbits(r), v(vfg4)))
        k("v_mul_f32 %s, %s, %s" % (v(tmp + r), v(fb), v(ftw)))
        k("v_mul_f32 %s, %s, %s" % (v(tmp + 4 + r), v(fb), v(fa2)))
        k("v_mul_f32 %s, %s, %s" % (v(tmp + 8 + r), v(fb), v(fs2)))
    for r in range(4):
        k("v_cos_f32 %s, %s" % (v(TC + r), v(tmp + r)))
        k("v_sin_f32 %s, %s" % (v(TS + r), v(tmp + r)))
        k("v_cos_f32 %s, %s" % (v(Bm + r), v(tmp + 4 + r)))
        k("v_sin_f32 %s, %s" % (v(Bm + 4 + r), v(tmp + 4 + r)))
        k("v_cos_f32 %s, %s" % (v(S2re + r), v(tmp + 8 + r)))
        k("v_sin_f32 %s, %s" % (v(S2im + r), v(tmp + 8 + r)))
    for r in range(4):
        k("v_mul_f32 %s, %s, %s" % (v(TC + r), v(TC + r), v(sctw)))
        k("v_mul_f32 %s, %s, %s" % (v(TS + r), v(TS + r), v(sctw)))
        k("v_cvt_pk_bf16_f32 %s, %s, %s" % (v(A2re + r), v(Bm + r), v(Bm + 4 + r)))
        k("v_cvt_pk_bf16_f32 %s, -%s, %s" % (v(A2im + r), v(Bm + 4 + r), v(Bm + r)))
        k("v_xor_b32 %s, %s, %s" % (v(A2im + r), v(A2im + r), v(vsg)))
        k("v_mul_f32 %s, %s, %s" % (v(S2re + r), v(S2re + r), v(scs)))
        k("v_mul_f32 %s, %s, %s" % (v(S2im + r), fbits(-1 / 16), v(S2im + r)))
        k("v_cndmask_b32 %s, %s, %s, %s" % (v(S2im + r), v(S2im + r), v(t[7]), s(sM0, 2)))
        k("v_cvt_pk_bf16_f32 %s, %s, 0" % (v(S2re + r), v(S2re + r)))
        k("v_cvt_pk_bf16_f32 %s, %s, 0" % (v(S2im + r), v(S2im + r)))
        k("v_lshlrev_b32 %s, %s, %s" % (v(S2re + r), v(vsh), v(S2re + r)))
        k("v_lshlrev_b32 %s, %s, %s" % (v(S2im + r), v(vsh), v(S2im + r)))
    for i in range(8):
        k("v_mov_b32 %s, 0" % v(Bs + i))

    k("s_cmp_eq_u32 %s, 2" % s(sRole))
    k("s_cbranch_scc1 PREP_A_W1")
    k("v_lshl_add_u32 %s, %s, 3, %s" % (v(t[0]), v(vl), s(sLds)))
    k("s_waitcnt vmcnt(0)")
    for j in range(8):
        k("ds_read_b64_tr_b16 %s, %s offset:%d" % (v(A + 4 * j, 2), v(t[0]), j * PITCH))
        k("ds_read_b64_tr_b16 %s, %s offset:%d" % (v(A + 4 * j + 2, 2), v(t[0]), j * PITCH + 512))
    k("s_branch PREP_CORE")
    k.label("PREP_A_W1")
    for j in range(8):
        for i in range(4):
            k("v_perm_b32 %s, %s, %s, %s" % (v(A + 4 * j + i), v(RAW + 4 * (2 * i + 1) + (j >> 1)),
                                            v(RAW + 4 * (2 * i) + (j >> 1)), s(sSelHi if j & 1 else sSelLo)))

    k.label("PREP_CORE")
    if stamp:
        stamp(k, 1)
    for j in range(8):
        k("%s %s, %s, %s, 0" % (MF, v(D + 8 * j, 4), v(A + 4 * j, 4), v(B1re, 4)))
        k("%s %s, %s, %s, 0" % (MF, v(D + 8 * j + 4, 4), v(A + 4 * j, 4), v(B1im, 4)))
    for j in range(8):
        re, im = D + 8 * j, D + 8 * j + 4
        bm, bs = Bm + 4 * (j & 1), Bs + 4 * (j & 1)
        for h in (0, 2):
            k("v_pk_mul_f32 %s, %s, %s" % (v(tmp + h, 2), v(im + h, 2), v(TS + h, 2)))
            k("v_pk_mul_f32 %s, %s, %s" % (v(tmp + 4 + h, 2), v(re + h, 2), v(TS + h, 2)))
        for h in (0, 2):
            k("v_pk_fma_f32 %s, %s, %s, %s" % (v(tmp + h, 2), v(re + h, 2), v(TC + h, 2), v(tmp + h, 2)))
            k("v_pk_fma_f32 %s, %s, %s, %s neg_lo:[0,0,1] neg_hi:[0,0,1]"
              % (v(tmp + 4 + h, 2), v(im + h, 2), v(TC + h, 2), v(tmp + 4 + h, 2)))
        for r in range(4):
            k("v_cvt_pk_bf16_f32 %s, %s, %s" % (v(bm + r), v(tmp + r), v(tmp + 4 + r)))
        k("s_mov_b64 exec, %s" % s(sM0, 2))
        for r in range(4):
            k("v_cvt_pk_bf16_f32 %s, %s, %s" % (v(bs + r), v(re + r), v(im + r)))
        k("s_mov_b64 exec, -1")
        k("%s %s, %s, %s, 0" % (MF, v(re, 4), v(A2re, 4), v(bm, 4)))
        k("%s %s, %s, %s, 0" % (MF, v(im, 4), v(A2im, 4), v(bm, 4)))
        k("%s %s, %s, %s, %s" % (MF, v(re, 4), v(S2re, 4), v(bs, 4), v(re, 4)))
        k("%s %s, %s, %s, %s" % (MF, v(im, 4), v(S2im, 4), v(bs, 4), v(im, 4)))
    if stamp:
        stamp(k, 2)
    k("s_cmp_eq_u32 %s, 1" % s(sRole))
    k("s_cbranch_scc1 PREP_OUT_W2")
    k("s_cmp_eq_u32 %s, 2" % s(sRole))
    k("s_cbranch_scc1 PREP_OUT_W1")

    k("v_lshl_add_u32 %s, %s, 6, %s" % (v(t[0]), v(vg), v(vn)))
    k("v_lshlrev_b32 %s, 13, %s" % (v(t[0]), v(t[0])))
    k("s_lshl_b32 %s, %s, 5" % (s(sA), s(sT)))
    for r in range(4):
        for j in range(8):
            k("v_cvt_pk_bf16_f32 %s, %s, %s" % (v(O + 8 * r + j), v(D + 8 * j + r), v(D + 8 * j + 4 + r)))
        k("s_add_u32 %s, %s, 0x%x" % (s(sC), s(sA), L.X0 + r * 16 * 8192))
        k("buffer_store_dwordx4 %s, %s, %s, %s offen" % (v(O + 8 * r, 4), v(t[0]), s(WS, 4), s(sC)))
        k("buffer_store_dwordx4 %s, %s, %s, %s offen offset:16" % (v(O + 8 * r + 4, 4), v(t[0]), s(WS, 4), s(sC)))
    k("s_mov_b64 exec, 1")
    for j in range(8):
        k("v_mov_b32 %s, 0" % v(D + 8 * j + 4))
    k("s_mov_b64 exec, -1")
    for j in range(8):
        k("v_pk_mul_f32 %s, %s, %s" % (v(tmp + 2 * j, 2), v(D + 8 * j, 2), v(D + 8 * j, 2)))
    for h in (2, 4, 6):
        for j in range(8):
            k("v_pk_fma_f32 %s, %s, %s, %s" % (v(tmp + 2 * j, 2), v(D + 8 * j + h, 2), v(D + 8 * j + h, 2), v(tmp + 2 * j, 2)))
    for j in range(8):
        k("v_add_f32 %s, %s, %s" % (v(A + j), v(tmp + 2 * j), v(tmp + 2 * j + 1)))
    for j in range(4):
        k("v_permlane32_swap_b32 %s, %s" % (v(A + j), v(A + j + 4)))
    for j in range(4):
        k("v_add_f32 %s, %s, %s" % (v(A + j), v(A + j), v(A + j + 4)))
    for e in range(2):
        k("v_permlane16_swap_b32 %s, %s" % (v(A + e), v(A + e + 2)))
    for e in range(2):
        k("v_add_f32 %s, %s, %s" % (v(A + e), v(A + e), v(A + e + 2)))
    for sh in (8, 4, 2, 1):
        for e in range(2):
            k("v_add_f32_dpp %s, %s, %s row_ror:%d row_mask:0xf bank_mask:0xf" % (v(A + e), v(A + e), v(A + e), sh))
    k("v_lshlrev_b32 %s, 3, %s" % (v(t[0]), v(vg)))
    k("s_add_u32 %s, %s, 0x%x" % (s(sC), s(sA), L.SSQ0))
    k("s_mov_b64 exec, %s" % s(sM0, 2))
    k("buffer_store_dwordx2 %s, %s, %s, %s offen" % (v(A, 2), v(t[0]), s(WS, 4), s(sC)))
    if stamp:
        k("s_mov_b64 exec, -1")
        stamp(k, 3, final=True)
    k("s_endpgm")

    k.label("PREP_OUT_W2")
    k("s_cmp_eq_u32 s2, 224")
    k("s_cbranch_scc1 PREP_OUT_B2")
    k("s_lshr_b32 %s, %s, 1" % (s(sA), s(sT)))
    k("s_lshl_b32 %s, %s, 11" % (s(sA), s(sA)))
    k("s_and_b32 %s, %s, 1" % (s(sB), s(sT)))
    k("s_lshl_b32 %s, %s, 9" % (s(sB), s(sB)))
    k("s_add_u32 %s, %s, %s" % (s(sA), s(sA), s(sB)))
    k("v_lshrrev_b32 %s, 2, %s" % (v(t[1]), v(vn)))
    k("v_mul_u32_u24 %s, %d, %s" % (v(t[1]), PITCH, v(t[1])))
    k("v_and_b32 %s, 1, %s" % (v(t[2]), v(vn)))
    k("v_lshl_add_u32 %s, %s, 5, %s" % (v(t[1]), v(t[2]), v(t[1])))
    k("v_bfe_u32 %s, %s, 1, 1" % (v(t[2]), v(vn)))
    k("v_lshl_add_u32 %s, %s, 3, %s" % (v(t[1]), v(t[2]), v(t[1])))
    k("v_and_b32 %s, 1, %s" % (v(t[2]), v(vg)))
    k("v_lshl_add_u32 %s, %s, 6, %s" % (v(t[1]), v(t[2]), v(t[1])))
    k("v_lshrrev_b32 %s, 1, %s" % (v(t[2]), v(vg)))
    k("v_lshl_add_u32 %s, %s, 4, %s" % (v(t[1]), v(t[2]), v(t[1])))
    k("v_add_u32 %s, %s, %s" % (v(t[1]), s(sLds), v(t[1])))
    for dt in range(8):
        k("ds_read_b64_tr_b16 %s, %s offset:%d" % (v(A + 4 * dt, 2), v(t[1]), dt * 128))
        k("ds_read_b64_tr_b16 %s, %s offset:%d" % (v(A + 4 * dt + 2, 2), v(t[1]), dt * 128 + 4 * PITCH))
    k("v_mul_u32_u24 %s, %d, %s" % (v(t[0]), 2 * 112 * 2048, v(vg)))
    k("v_lshl_add_u32 %s, %s, 4, %s" % (v(t[0]), v(vn), v(t[0])))
    for r in range(4):
        k("s_add_u32 %s, %s, 0x%x" % (s(sC), s(sA), L.W2F + (r >> 1) * 112 * 2048 + (r & 1) * 256))
        for ri in range(2):
            o = O + 8 * r + 4 * ri
            for i in range(4):
                k("v_cvt_pk_bf16_f32 %s, %s, %s" % (v(o + i), v(D + 16 * i + 4 * ri + r), v(D + 16 * i + 8 + 4 * ri + r)))
            k("buffer_store_dwordx4 %s, %s, %s, %s offen offset:%d" % (v(o, 4), v(t[0]), s(WS, 4), s(sC), ri * 1024))
    k("v_lshlrev_b32 %s, 10, %s" % (v(t[0]), v(t[2])))
    k("v_and_b32 %s, 31, %s" % (v(t[3]), v(vl)))
    k("v_lshl_add_u32 %s, %s, 4, %s" % (v(t[0]), v(t[3]), v(t[0])))
    for dt in range(8):
        k("s_add_u32 %s, %s, 0x%x" % (s(sC), s(sA), L.W2T + dt * 112 * 2048))
        k("buffer_store_dwordx4 %s, %s, %s, %s offen" % (v(A + 4 * dt, 4), v(t[0]), s(WS, 4), s(sC)))
    if stamp:
        stamp(k, 3, final=True)
    k("s_endpgm")
    k.label("PREP_OUT_B2")
    k("v_lshl_add_u32 %s, %s, 6, %s" % (v(t[0]), v(vg), v(vn)))
    k("v_lshlrev_b32 %s, 2, %s" % (v(t[0]), v(t[0])))
    k("s_mov_b32 %s, 0x%x" % (s(sC), L.B2F))
    for r in range(4):
        for ri in range(2):
            k("buffer_store_dword %s, %s, %s, %s offen offset:%d" % (v(D + 4 * ri + r), v(t[0]), s(WS, 4), s(sC), r * 64 + ri * 1024))
    k("s_endpgm")

    k.label("PREP_OUT_W1")
    k("s_lshr_b32 %s, %s, 1" % (s(sA), s(sT)))
    k("s_mul_i32 %s, %s, 9363" % (s(sB), s(sA)))
    k("s_lshr_b32 %s, %s, 16" % (s(sB), s(sB)))
    k("s_mul_i32 %s, %s, 7" % (s(sC), s(sB)))
    k("s_sub_u32 %s, %s, %s" % (s(sA), s(sA), s(sC)))
    k("s_mul_i32 %s, %s, 112" % (s(sB), s(sB)))
    k("s_add_u32 %s, %s, %s" % (s(sB), s(sB), s(sA)))
    k("s_cmp_lt_u32 %s, 4" % s(sA))
    k("s_cselect_b32 %s, 0, 60" % s(sA))
    k("s_movk_i32 %s, 0x1000" % s(sC))
    k("s_cselect_b32 %s, %s, 0xc00" % (s(sC), s(sC)))
    k("s_add_u32 %s, %s, %s" % (s(sA), s(sA), s(sB)))
    k("s_lshl_b32 %s, %s, 10" % (s(sA), s(sA)))
    k("s_and_b32 %s, %s, 1" % (s(sB), s(sT)))
    k("s_lshl_b32 %s, %s, 7" % (s(sB), s(sB)))
    k("s_add_u32 %s, %s, %s" % (s(sA), s(sA), s(sB)))
    k("s_add_u32 %s, %s, 0x%x" % (s(sA), s(sA), L.W1F))
    k("v_mul_u32_u24 %s, %s, %s" % (v(t[0]), s(sC), v(vn)))
    k("v_lshl_add_u32 %s, %s, 8, %s" % (v(t[0]), v(vg), v(t[0])))
    for j in range(8):
        for r in range(4):
            k("v_cvt_pk_bf16_f32 %s, %s, %s" % (v(O + 4 * j + r), v(D + 8 * j + r), v(D + 8 * j + 4 + r)))
        k("buffer_store_dwordx4 %s, %s, %s, %s offen offset:%d" % (v(O + 4 * j, 4), v(t[0]), s(WS, 4), s(sA), j * 16))
    if stamp:
        stamp(k, 3, final=True)
    k("s_endpgm")

    k.label("PREP_MISC")
    sCb, sRb = 45, 46
    k("s_and_b32 %s, %s, 7" % (s(sCb), s(sB)))
    k("s_lshl_b32 %s, %s, 2" % (s(sRb), s(sA)))
    k("s_lshr_b32 %s, s2, 6" % s(sC))
    k("s_add_u32 %s, %s, %s" % (s(sRb), s(sRb), s(sC)))
    k("s_lshr_b32 %s, %s, 3" % (s(sA), s(sRb)))
    k("s_lshl_b32 %s, %s, 4" % (s(sA), s(sA)))
    k("s_and_b32 %s, %s, 7" % (s(sC), s(sRb)))
    k("s_lshl_b32 %s, %s, 8" % (s(sC), s(sC)))
    k("s_add_u32 %s, %s, %s" % (s(sA), s(sA), s(sC)))
    k("s_mul_i32 %s, %s, 514" % (s(sA), s(sA)))
    k("s_lshl_b32 %s, %s, 6" % (s(sC), s(sCb)))
    k("s_add_u32 %s, %s, %s" % (s(sA), s(sA), s(sC)))
    vn4, vc4 = t[1], t[2]
    k("v_lshrrev_b32 %s, 2, %s" % (v(vn4), v(vl)))
    k("v_and_b32 %s, 3, %s" % (v(vc4), v(vl)))
    k("v_mul_u32_u24 %s, 514, %s" % (v(t[0]), v(vn4)))
    k("v_lshl_add_u32 %s, %s, 4, %s" % (v(t[0]), v(vc4), v(t[0])))
    k("s_mov_b32 %s, %d" % (s(IN + 2), 2048 * 514))
    srd_words(k, IN2, 2048 * 514)
    k("s_mov_b64 %s, s[18:19]" % s(IN, 2))
    k("s_mov_b64 %s, s[20:21]" % s(IN2, 2))
    for r in range(4):
        k("s_add_u32 %s, %s, %d" % (s(sC), s(sA), r * 64 * 514 + 2))
        k("buffer_load_dwordx4 %s, %s, %s, %s offen" % (v(RAW + 8 * r, 4), v(t[0]), s(IN, 4), s(sC)))
        k("buffer_load_dwordx4 %s, %s, %s, %s offen" % (v(RAW + 8 * r + 4, 4), v(t[0]), s(IN2, 4), s(sC)))
    IN3 = 48
    srd_words(k, IN3, 3584)
    k("s_mov_b64 %s, s[26:27]" % s(IN3, 2))
    k("v_lshlrev_b32 %s, 1, %s" % (v(t[3]), v(vl)))
    k("s_lshl_b32 %s, s2, 4" % s(sC))
    k("buffer_load_ushort %s, %s, %s, %s offen" % (v(Bs), v(t[3]), s(IN3, 4), s(sC)))
    if code_bytes:
        k("s_getpc_b64 s[52:53]")
        k.raw("PREP_PC:")
        k("s_sub_u32 s52, s52, PREP_PC-%s" % name)
        k("s_subb_u32 s53, s53, 0")
        k("s_mov_b32 s54, CODE_END-%s" % name)
        k("s_mov_b32 s55, 0x20000")
        k("v_lshlrev_b32 %s, 7, %s" % (v(t[4]), v(vl)))
        k("s_lshl_b32 %s, %s, 13" % (s(sC), s(sB)))
        k("buffer_load_dword %s, %s, s[52:55], %s offen" % (v(Bs + 1), v(t[4]), s(sC)))
    for i in range(4):
        k("v_mov_b32 %s, 0" % v(Bm + i))
    k("v_lshlrev_b32 %s, 4, %s" % (v(t[4]), v(vl)))
    k("s_lshl_b32 %s, s2, 10" % s(sC))
    k("s_add_u32 %s, %s, 0x%x" % (s(sC), s(sC), L.FLAGS))
    assert L.FLAG_BYTES == 256 * 1024
    k("buffer_store_dwordx4 %s, %s, %s, %s offen" % (v(Bm, 4), v(t[4]), s(WS, 4), s(sC)))
    k("s_lshl_b32 %s, s2, 5" % s(sC))
    k("s_add_u32 %s, %s, 0x%x" % (s(sC), s(sC), L.SSQ2))
    k("s_mov_b64 exec, 3")
    k("buffer_store_dwordx4 %s, %s, %s, %s offen" % (v(Bm, 4), v(t[4]), s(WS, 4), s(sC)))
    k("s_mov_b64 exec, -1")
    sKs, sD0 = 47, 56
    k("s_bfe_u32 %s, s2, 0x40001" % s(sKs))
    k("s_lshr_b32 %s, s2, 5" % s(sD0))
    k("s_lshl_b32 %s, %s, 6" % (s(sD0), s(sD0)))
    k("s_and_b32 %s, s2, 1" % s(sC))
    k("s_lshl_b32 %s, %s, 5" % (s(sC), s(sC)))
    k("s_add_u32 %s, %s, %s" % (s(sD0), s(sD0), s(sC)))
    k("v_add_u32 %s, %s, %s" % (v(t[4]), s(sD0), v(vn)))
    k("s_mov_b32 s58, 0")
    k("s_mov_b32 s59, -1")
    for i in range(4):
        kk = tmp + i
        k("v_lshl_add_u32 %s, %s, 7, %s" % (v(kk), v(vg), s(sKs)))
        k("v_add_u32 %s, %d, %s" % (v(kk), 32 * i, v(kk)))
        k("v_sub_u32 %s, 512, %s" % (v(t[5]), v(kk)))
        k("v_add_u32 %s, %d, %s" % (v(t[6]), -240, v(kk)))
        k("s_cmp_eq_u32 %s, 0" % s(sKs))
        k("s_cselect_b64 vcc, -1, 0")
        k("v_cndmask_b32 %s, %s, %s, vcc" % (v(t[5]), v(t[5]), v(t[6])))
        k("v_cndmask_b32 %s, %s, %s, s[58:59]" % (v(kk), v(kk), v(t[5])))
    k("v_cmp_eq_u32 vcc, 0, %s" % v(tmp))
    k("v_mov_b32 %s, 256" % v(t[5]))
    k("v_cndmask_b32 %s, %s, %s, vcc" % (v(tmp), v(tmp), v(t[5])))
    k("v_mov_b32 %s, %s" % (v(t[6]), fbits(1 / 16)))
    k("v_mov_b32 %s, %s" % (v(t[7]), s(sDC)))
    k("v_cndmask_b32 %s, %s, %s, vcc" % (v(t[5]), v(t[6]), v(t[7])))
    for e in range(2):
        for i in range(4):
            an, c, sn = tmp + 4 + i, tmp + 8 + i, tmp + 12 + i
            k("v_mul_u32_u24 %s, %s, %s" % (v(an), v(tmp + i), v(t[4])))
            k("v_and_b32 %s, 511, %s" % (v(an), v(an)))
            k("v_cvt_f32_u32 %s, %s" % (v(an), v(an)))
            k("v_mul_f32 %s, %s, %s" % (v(an), fbits(1 / 512), v(an)))
            k("v_cos_f32 %s, %s" % (v(c), v(an)))
            k("v_sin_f32 %s, %s" % (v(sn), v(an)))
        for i in range(4):
            c, sn = tmp + 8 + i, tmp + 12 + i
            k("v_mul_f32 %s, %s, %s" % (v(c), v(t[5] if i == 0 else t[6]), v(c)))
            k("v_mul_f32 %s, %s, %s" % (v(sn), fbits(-1 / 16), v(sn)))
            if i == 0:
                k("v_cndmask_b32 %s, %s, %s, vcc" % (v(sn), v(sn), v(t[7])))
            k("v_cvt_pk_bf16_f32 %s, %s, %s" % (v(A + 4 * e + i), v(c), v(sn)))
        if e == 0:
            k("v_add_u32 %s, 16, %s" % (v(t[4]), v(t[4])))
    k("v_lshlrev_b32 %s, 4, %s" % (v(t[4]), v(vl)))
    k("s_lshl_b32 %s, s2, 11" % s(sC))
    k("s_add_u32 %s, %s, 0x%x" % (s(sC), s(sC), L.FT))
    k("buffer_store_dwordx4 %s, %s, %s, %s offen" % (v(A, 4), v(t[4]), s(WS, 4), s(sC)))
    k("buffer_store_dwordx4 %s, %s, %s, %s offen offset:1024" % (v(A + 4, 4), v(t[4]), s(WS, 4), s(sC)))
    q0, qs, q7 = t[4], t[5], t[6]
    k("s_lshl_b32 %s, %s, 4" % (s(sA), s(sCb)))
    k("s_add_u32 %s, %s, 1" % (s(sB), s(sA)))
    k("v_lshl_add_u32 %s, %s, 3, %s" % (v(q0), v(vc4), s(sB)))
    k("s_sub_u32 %s, 271, %s" % (s(sB), s(sA)))
    k("v_lshlrev_b32 %s, 3, %s" % (v(t[7]), v(vc4)))
    k("v_sub_u32 %s, %s, %s" % (v(t[7]), s(sB), v(t[7])))
    k("v_cmp_lt_u32 vcc, 1, %s" % v(vc4))
    k("v_cndmask_b32 %s, %s, %s, vcc" % (v(q0), v(q0), v(t[7])))
    k("v_cndmask_b32 %s, 1, -1, vcc" % v(qs))
    k("s_add_u32 %s, %s, 128" % (s(sB), s(sA)))
    k("s_add_u32 %s, %s, 16" % (s(sC), s(sA)))
    k("s_and_b32 %s, %s, 127" % (s(sC), s(sC)))
    k("v_mov_b32 %s, %s" % (v(q7), s(sB)))
    k("v_mov_b32 %s, %s" % (v(t[7]), s(sC)))
    k("v_cndmask_b32 %s, %s, %s, vcc" % (v(q7), v(q7), v(t[7])))
    k("v_mad_i32_i24 %s, %s, 7, %s" % (v(t[7]), v(qs), v(q0)))
    k("s_mov_b32 vcc_lo, 0xaaaaaaaa")
    k("s_mov_b32 vcc_hi, 0xaaaaaaaa")
    k("v_cndmask_b32 %s, %s, %s, vcc" % (v(q7), v(t[7]), v(q7)))
    k("v_lshlrev_b32 %s, 4, %s" % (v(vn4), v(vn4)))
    k("v_lshl_add_u32 %s, %s, 13, %s" % (v(q0), v(q0), v(vn4)))
    k("v_lshl_add_u32 %s, %s, 13, %s" % (v(q7), v(q7), v(vn4)))
    k("v_lshlrev_b32 %s, 13, %s" % (v(qs), v(qs)))
    k("s_lshl_b32 %s, %s, 8" % (s(sC), s(sRb)))
    k("s_add_u32 %s, %s, 0x%x" % (s(sC), s(sC), L.WT))
    for e in range(8):
        for r in range(4):
            k("v_perm_b32 %s, %s, %s, %s" % (v(O + 4 * e + r), v(RAW + 8 * r + 4 + (e >> 1)), v(RAW + 8 * r + (e >> 1)),
                                            s(sSelHi if e & 1 else sSelLo)))
        k("buffer_store_dwordx4 %s, %s, %s, %s offen" % (v(O + 4 * e, 4), v(q7 if e == 7 else q0), s(WS, 4), s(sC)))
        if e < 6:
            k("v_add_u32 %s, %s, %s" % (v(q0), v(q0), v(qs)))
    k("s_cmp_ge_u32 s2, 224")
    k("s_cbranch_scc1 PREP_END")
    k("v_lshlrev_b32 %s, 16, %s" % (v(Bs), v(Bs)))
    k("v_lshlrev_b32 %s, 2, %s" % (v(t[3]), v(vl)))
    k("s_lshl_b32 %s, s2, 5" % s(sC))
    k("s_add_u32 %s, %s, 0x%x" % (s(sC), s(sC), L.B1X))
    k("s_mov_b64 exec, 0xff")
    k("buffer_store_dword %s, %s, %s, %s offen" % (v(Bs), v(t[3]), s(WS, 4), s(sC)))
    if stamp:
        k("s_mov_b64 exec, -1")
        stamp(k, 3, final=True)
    k.label("PREP_END")
    k("s_endpgm")
    return k
```

```python
MB = 1 << 20
X0 = 0 * MB
X1 = 2 * MB
X2 = 4 * MB
X3 = 6 * MB
WT = 8 * MB
W1F = 10 * MB
SMALL = W1F + 0x1C0000
SSQ0 = SMALL
SSQ2 = SMALL + 0x2000
B2F = SMALL + 0x4000
B1X = SMALL + 0x5000
W2F = 12 * MB
FLAGS = W2F + 0x1C0000
FLAG_STRIDE = 64
FLAG_BYTES = 4 * 1024 * FLAG_STRIDE
W2T = 14 * MB
FT = 16 * MB
GFLAGS = FT + 0x80000
H1 = 18 * MB
H2 = 26 * MB
STAMP = 34 * MB
WS_USED = 36 * MB
assert FLAGS + FLAG_BYTES <= W2T
```

```python
import sys, argparse
import layout as L
import k_prep, k_col
from asmlib import v, s

HEADER = open("interleave_layers__spectral_gfnet__mixer_channel_mlp__prompt.s.ref").read().split("; Override launch")[0]


def make_stamp(kidx):
    names = []

    def stamp(k, name, final=False):
        if name not in names:
            names.append(name)
        i = names.index(name)
        assert i < 19
        k("s_memrealtime %s" % s(60 + 2 * i, 2))
        if i == 0:
            if kidx is not None:
                k("s_mov_b32 s101, %d" % kidx)
            k("s_waitcnt lgkmcnt(0)")
            stamp(k, "karg")
        if final:
            k("s_waitcnt vmcnt(0)")
            stamp(k, "drain")
            k("v_lshrrev_b32 v255, 6, v0")
            k("v_lshlrev_b32 v254, 7, v255")
            k("s_lshl_b32 s101, s101, 17")
            k("s_lshl_b32 s100, s2, 9")
            k("s_add_u32 s101, s101, s100")
            k("s_add_u32 s101, s101, 0x%x" % L.STAMP)
            k("s_mov_b64 exec, 1")
            k("s_getreg_b32 s100, hwreg(HW_REG_XCC_ID)")
            k("v_mov_b32 v255, s100")
            k("buffer_store_dword v255, v254, s[4:7], s101 offen offset:124")
            for j in range(len(names)):
                k("v_mov_b32 v255, %s" % s(60 + 2 * j))
                k("buffer_store_dword v255, v254, s[4:7], s101 offen offset:%d" % (4 * j))
            k.comment("STAMPS %s: %s" % (kidx, " ".join(str(n) for n in names)))
    return stamp


def generate(stamps=False, upto=99, opts=None):
    opts = opts or {}
    launches, bodies, descs = [], [], []
    kp = k_prep.build("prep_kernel", code_bytes=opts.get("cpf", 1), stamp=make_stamp(0) if stamps else None)
    kc = k_col.build(["col1_kernel", "col2_kernel"], stamp=make_stamp(None) if stamps else None, opts=opts)
    bodies += [kp, kc]
    descs += [kp.descriptor("prep_kernel"), kc.descriptor("col1_kernel"), kc.descriptor("col2_kernel")]
    seq = [("prep_kernel", k_prep.LDS_BYTES), ("col1_kernel", k_col.LDS_BYTES)]
    if upto > 2:
        import k_mlp
        for li in range(2):
            if opts.get("split"):
                for ph in (1, 2):
                    nm = "mlp%d_p%d_kernel" % (li + 1, ph)
                    km = k_mlp.build(nm, li, phase=ph, stamp=make_stamp(2 + 2 * li + 4 * (ph - 1)) if stamps else None, opts=opts)
                    bodies.append(km); descs.append(km.descriptor(nm)); seq.append((nm, k_mlp.LDS_BYTES))
            else:
                nm = "mlp%d_kernel" % (li + 1)
                km = k_mlp.build(nm, li, phase=0, stamp=make_stamp(2 + 2 * li) if stamps else None, opts=opts)
                bodies.append(km); descs.append(km.descriptor(nm)); seq.append((nm, k_mlp.LDS_BYTES))
            if li == 0:
                seq.append(("col2_kernel", k_col.LDS_BYTES))
    seq = seq[:upto]
    out = HEADER
    for nm, lds in seq:
        out += "; @launch kernel=%s grid=(256,1,1) block=(256,1,1) lds=%d\n" % (nm, lds)
    out += '.amdgcn_target "amdgcn-amd-amdhsa--gfx950"\n.text\n'
    for b in bodies:
        out += b.text()
        sys.stderr.write("%s: v%d a%d s%d nops=%d %s\n" % (b.name, b.max["v"] + 1, b.max["a"] + 1, b.max["s"] + 1, b.nops, b.count))
    out += "CODE_END:\n"
    out += '.section .rodata,"a"\n' + "".join(descs)
    return out


if __name__ == "__main__":
    ap = argparse.ArgumentParser()
    ap.add_argument("-o", default="out.s")
    ap.add_argument("--stamps", action="store_true")
    ap.add_argument("--upto", type=int, default=99)
    ap.add_argument("--opt", action="append", default=[])
    args = ap.parse_args()
    opts = {}
    for o in args.opt:
        kk, _, vv = o.partition("=")
        opts[kk] = int(vv) if vv else 1
    open(args.o, "w").write(generate(args.stamps, args.upto, opts))
```

```python
from asmlib import Kernel, Alloc, v, a, s, fbits
import layout as L

MF = "v_mfma_f32_16x16x32_bf16"
LDS_BYTES = 163840
WB = 65536
PRIV = 114688
WS = "s[4:7]"
C0 = -2 * 0.7978845608028654 * 1.4426950408889634
C1 = C0 * 0.044715
EPS = 1e-5
TILE = 57344

vrA, vP = 1, 2
sWv, sP, sI, sPhi, sCt, sRB, sX, sW1, sT, sU, sW2, sHst, sFl, sPl, sV = 3, 12, 13, 14, 15, 16, 17, 18, 19, 20, 21, 22, 23, 24, 25
sHA, sHB, sH6, sHt, sQ, sG = 26, 27, 28, 30, 34, 35


class Main:
    def __init__(self, name, stamp, opts):
        self.o = opts or {}
        self.k = Kernel(name)
        self.name = name
        self.stamp = stamp
        self.queue = []
        self.issued = {}
        self.nlab = 0

    def st(self, n, **kw):
        if self.stamp and (n in ("start", "end") or self.o.get("stl", 0) == self.layer):
            self.stamp(self.k, n, **kw)

    def dma(self, vv, ss, off, tag, sc=""):
        def op():
            self.issued[tag] = self.issued.get(tag, 0) + 1
            self.k("buffer_load_dwordx4 %s, %s, %s offen offset:%d%s lds" % (v(vv), WS, s(ss), off, sc), tag=tag)
        return op

    def setup(self, m0base, m0off, sd, sbase, off):
        def op():
            self.k("s_add_u32 m0, %s, %d" % (s(m0base), m0off))
            self.k("s_add_u32 %s, %s, %d" % (s(sd), s(sbase), off))
        return op

    def issue(self, ops):
        for su, ld in ops:
            if su:
                su()
            ld()

    def side(self, n=1):
        for _ in range(n):
            if self.queue:
                self.issue([self.queue.pop(0)])

    def w2_ops(self):
        k, ops = self.k, []
        for kf in range(14):
            for c in range(4):
                su = None
                if c == 0:
                    su = lambda kf=kf: k("s_add_u32 %s, %s, %d" % (s(sU), s(sW2), kf * 4096))
                if c == 2:
                    su = lambda: k("s_xor_b32 %s, %s, 0x800" % (s(sU), s(sU)))
                ops.append((su, lambda kf=kf, c=c: k("buffer_load_dwordx4 %s, %s, %s, %s offen offset:%d"
                                                     % (a(16 * kf + 4 * c, 4), v(vrA), WS, s(sU), (c & 1) * 1024))))
        return ops

    def publish(self, tag, vval, sflag):
        k = self.k
        k.wait_tag(tag)
        k("s_mov_b64 exec, 1")
        k("buffer_store_dword %s, %s, %s, %s offen sc1" % (v(vval), v(vrA), WS, s(sflag)))
        k("s_mov_b64 exec, -1")

    def poll_issue(self, voff, sbase, n=1):
        self.k("buffer_load_dword%s %s, %s, %s, %s offen sc1" % ("x4" if n == 4 else "", v(vP, n), v(voff), WS, s(sbase)))

    def poll_check(self, voff, sbase, n=1):
        k = self.k
        self.nlab += 1
        go, again = "GO%d" % self.nlab, "POLL%d" % self.nlab

        def test():
            if n == 4:
                k("v_min3_u32 %s, %s, %s, %s" % (v(vP), v(vP), v(vP + 1), v(vP + 2)))
                k("v_min_u32 %s, %s, %s" % (v(vP), v(vP), v(vP + 3)))
            k("v_cmp_eq_u32 vcc, 0, %s" % v(vP))
        test()
        k("s_cbranch_vccz " + go)
        k("s_mov_b32 %s, 0" % s(sV))
        k.label(again)
        k("s_mov_b64 exec, vcc")
        self.poll_issue(voff, sbase, n)
        k("s_add_u32 %s, %s, 1" % (s(sV), s(sV)))
        k("s_waitcnt vmcnt(0)")
        test()
        k("s_cmp_lt_u32 %s, 0x8000" % s(sV))
        k("s_cselect_b64 vcc, vcc, 0")
        k("s_cbranch_vccnz " + again)
        k("s_mov_b64 exec, -1")
        k.label(go)

    def col_alloc(self):
        va = Alloc(6, 256)
        r = self.c = type("R", (), {})()
        r.voff, r.vwr, r.vrd, r.vfg4, r.vfk, r.vfn, r.vsn, r.veps = (va() for _ in range(8))
        r.t = [va() for _ in range(5)]
        r.XR, r.SQ, r.WR = va(8, 4), va(8, 4), va(8, 4)
        r.C64, r.C32 = va(32, 4), va(32, 4)
        r.T1C, r.T1S, r.T2C, r.T2S, r.WC, r.WS = (va(8, 4) for _ in range(6))
        r.XF, r.FR, r.AC, r.PK, r.tmp = va(16, 4), va(32, 4), va(16, 4), va(8, 4), va(16, 4)

    def col_addr(self):
        k, r = self.k, self.c
        k("v_lshrrev_b32 %s, 6, v0" % v(r.t[0]))
        k("v_lshl_add_u32 %s, %s, 11, %s" % (v(r.voff), v(r.t[0]), v(vrA)))

    def col_load_w(self):
        k, r = self.k, self.c
        k("s_add_u32 %s, %s, 0x%x" % (s(sT), s(sQ), L.WT))
        for b in range(2):
            k("buffer_load_dwordx4 %s, %s, %s, %s offen offset:%d" % (v(r.WR + 4 * b, 4), v(r.voff), WS, s(sT), 1024 * b))

    def col_load_x(self):
        k, r, li = self.k, self.c, self.layer
        sc = " sc1" if li else ""
        k("s_mov_b32 %s, 0x%x" % (s(sV), (L.SSQ0, L.SSQ2)[li]))
        k("s_add_u32 %s, %s, 0x%x" % (s(sT), s(sQ), (L.X0, L.X2)[li]))
        for b in range(2):
            k("buffer_load_dwordx4 %s, %s, %s, %s offen offset:%d%s" % (v(r.SQ + 4 * b, 4), v(r.voff), WS, s(sV), 1024 * b, sc))
            k("buffer_load_dwordx4 %s, %s, %s, %s offen offset:%d%s" % (v(r.XR + 4 * b, 4), v(r.voff), WS, s(sT), 1024 * b, sc))

    def col_consts(self):
        r, out = self.c, []
        k, t, tmp = out.append, r.t, r.tmp
        k("v_add_u32 %s, %s, %s" % (v(r.vwr), s(sRB), v(vrA)))
        k("v_add_u32 %s, %d, %s" % (v(r.vrd), PRIV, v(vrA)))
        k("v_bfe_u32 %s, v0, 4, 2" % v(t[1]))
        k("v_lshlrev_b32 %s, 2, %s" % (v(t[1]), v(t[1])))
        k("v_cvt_f32_u32 %s, %s" % (v(r.vfg4), v(t[1])))
        k("v_and_b32 %s, 15, v0" % v(t[2]))
        k("v_cvt_f32_u32 %s, %s" % (v(r.vfn), v(t[2])))
        k("v_lshl_add_u32 %s, %s, 4, %s" % (v(t[2]), v(t[0]), v(t[2])))
        k("v_cvt_f32_u32 %s, %s" % (v(r.vfk), v(t[2])))
        k("v_lshl_add_u32 %s, %s, 4, %s" % (v(t[2]), v(t[0]), v(t[1])))
        k("v_cvt_f32_u32 %s, %s" % (v(t[2]), v(t[2])))
        k("v_and_b32 %s, 1, v0" % v(r.vsn))
        k("v_mul_u32_u24 %s, 0x8000, %s" % (v(r.vsn), v(r.vsn)))
        k("v_lshl_or_b32 %s, %s, 16, %s" % (v(r.vsn), v(r.vsn), v(r.vsn)))
        k("v_mov_b32 %s, %s" % (v(r.veps), fbits(EPS * 2.0 ** 22)))
        f, b0 = t[3], t[4]
        k("v_mul_f32 %s, %s, %s" % (v(f), fbits(1 / 64), v(r.vfk)))
        k("v_mul_f32 %s, %s, %s" % (v(b0), v(f), v(r.vfg4)))
        for i in range(8):
            k("v_fmamk_f32 %s, %s, %s, %s" % (v(r.T1C + i), v(f), fbits(16 * (i >> 2) + (i & 3)), v(b0)))
        for i in range(8):
            k("v_sin_f32 %s, %s" % (v(tmp + 8 + i), v(r.T1C + i)))
            k("v_cos_f32 %s, %s" % (v(tmp + i), v(r.T1C + i)))
        for i in range(8):
            ks, rr = i >> 2, i & 3
            k("v_cvt_pk_bf16_f32 %s, %s, %s" % (v(r.C64 + 8 * ks + rr), v(tmp + i), v(tmp + 8 + i)))
            k("v_cvt_pk_bf16_f32 %s, -%s, %s" % (v(r.C64 + 8 * ks + 4 + rr), v(tmp + 8 + i), v(tmp + i)))
        for i in range(16):
            k("v_xor_b32 %s, %s, %s" % (v(r.C64 + 16 + i), v(r.vsn), v(r.C64 + i)))
        self.n_first = len(out)
        for i in range(8):
            k("v_mul_f32 %s, %s, %s" % (v(r.T1C + i), fbits(1 / 32), v(r.T1C + i)))
        for i in range(8):
            k("v_sin_f32 %s, %s" % (v(r.T1S + i), v(r.T1C + i)))
            k("v_cos_f32 %s, %s" % (v(r.T1C + i), v(r.T1C + i)))
        k("v_mul_f32 %s, %s, %s" % (v(f), fbits(1 / 32), v(r.vfn)))
        k("v_mul_f32 %s, %s, %s" % (v(b0), v(f), v(r.vfg4)))
        for rr in range(4):
            k("v_fmamk_f32 %s, %s, %s, %s" % (v(r.T2C + rr), v(f), fbits(rr), v(b0)))
        for rr in range(4):
            k("v_sin_f32 %s, %s" % (v(r.T2S + rr), v(r.T2C + rr)))
            k("v_cos_f32 %s, %s" % (v(r.T2C + rr), v(r.T2C + rr)))
        for rr in range(4):
            k("v_cvt_pk_bf16_f32 %s, %s, %s" % (v(r.C32 + rr), v(r.T2C + rr), v(r.T2S + rr)))
            k("v_cvt_pk_bf16_f32 %s, -%s, %s" % (v(r.C32 + 4 + rr), v(r.T2S + rr), v(r.T2C + rr)))
        for i in range(8):
            k("v_xor_b32 %s, %s, %s" % (v(r.C32 + 8 + i), v(r.vsn), v(r.C32 + i)))
        for i in range(16):
            if i & 1:
                k("v_xor_b32 %s, 0x80008000, %s" % (v(r.C32 + 16 + i), v(r.C32 + i)))
            else:
                k("v_mov_b32 %s, %s" % (v(r.C32 + 16 + i), v(r.C32 + i)))
        for bt in range(2):
            if bt == 0:
                k("v_mul_f32 %s, %s, %s" % (v(f), fbits(1 / 2048), v(r.vfn)))
            else:
                k("v_add_f32 %s, %s, %s" % (v(f), fbits(16 / 2048), v(f)))
            k("v_mul_f32 %s, %s, %s" % (v(b0), v(f), v(t[2])))
            for rr in range(4):
                k("v_fmamk_f32 %s, %s, %s, %s" % (v(r.T2C + 4 * bt + rr), v(f), fbits(rr), v(b0)))
        for i in range(8):
            k("v_sin_f32 %s, %s" % (v(r.T2S + i), v(r.T2C + i)))
            k("v_cos_f32 %s, %s" % (v(r.T2C + i), v(r.T2C + i)))
        return out

    def col_unpack_w(self):
        r = self.c
        return [x for i in range(8) for x in ("v_lshlrev_b32 %s, 16, %s" % (v(r.WC + i), v(r.WR + i)),
                                              "v_and_b32 %s, 0xffff0000, %s" % (v(r.WS + i), v(r.WR + i)))]

    def cmul(self, re, im, c, sn, conj):
        k, tmp = self.k, self.c.tmp
        for h in (0, 2):
            k("v_pk_mul_f32 %s, %s, %s" % (v(tmp + h, 2), v(im + h, 2), v(sn + h, 2)))
            k("v_pk_mul_f32 %s, %s, %s" % (v(tmp + 4 + h, 2), v(re + h, 2), v(sn + h, 2)))
        neg = " neg_lo:[0,0,1] neg_hi:[0,0,1]"
        for h in (0, 2):
            k("v_pk_fma_f32 %s, %s, %s, %s%s" % (v(tmp + h, 2), v(re + h, 2), v(c + h, 2), v(tmp + h, 2), neg if conj else ""))
            k("v_pk_fma_f32 %s, %s, %s, %s%s" % (v(tmp + 4 + h, 2), v(im + h, 2), v(c + h, 2), v(tmp + 4 + h, 2), "" if conj else neg))

    def col_compute(self, late):
        k, r, li = self.k, self.c, self.layer
        tmp, late = r.tmp, list(late)

        def fill(n):
            for _ in range(n):
                if late:
                    k(late.pop(0))
        for b in range(2):
            for rr in range(4):
                k("v_fmamk_f32 %s, %s, %s, %s" % (v(r.SQ + 4 * b + rr), v(r.SQ + 4 * b + rr), fbits(2.0 ** 13), v(r.veps)))
            for rr in range(4):
                k("v_rsq_f32 %s, %s" % (v(r.SQ + 4 * b + rr), v(r.SQ + 4 * b + rr)))
            for rr in range(4):
                k("v_lshlrev_b32 %s, 16, %s" % (v(r.XF + 8 * b + rr), v(r.XR + 4 * b + rr)))
                k("v_and_b32 %s, 0xffff0000, %s" % (v(r.XF + 8 * b + 4 + rr), v(r.XR + 4 * b + rr)))
            for h in (0, 2):
                k("v_pk_mul_f32 %s, %s, %s" % (v(tmp + h, 2), v(r.XF + 8 * b + h, 2), v(r.SQ + 4 * b + h, 2)))
                k("v_pk_mul_f32 %s, %s, %s" % (v(tmp + 4 + h, 2), v(r.XF + 8 * b + 4 + h, 2), v(r.SQ + 4 * b + h, 2)))
            for rr in range(4):
                k("v_cvt_pk_bf16_f32 %s, %s, %s" % (v(r.PK + 4 * b + rr), v(tmp + rr), v(tmp + 4 + rr)))
        k("s_cmp_lg_u32 s2, 0")
        k("s_cbranch_scc1 COL_A%d" % li)
        for i in range(8):
            k("v_and_b32 %s, 0xffff, %s" % (v(r.PK + i), v(r.PK + i)))
        k.label("COL_A%d" % li)
        for b in range(2):
            k("ds_write_b128 %s, %s offset:%d" % (v(r.vwr), v(r.PK + 4 * b, 4), 1024 * b))
        fill(12)
        k("s_waitcnt lgkmcnt(0)")
        k("s_barrier")
        for bt in range(2):
            for ks in range(4):
                k("ds_read_b128 %s, %s offset:%d" % (v(r.FR + 16 * bt + 4 * ks, 4), v(r.vrd), 12288 * ks + 1024 * bt))
        fill(max(12, len(late) - 24))
        self.st("c_x1")
        for bt in range(2):
            for ri in range(2):
                for ks in range(4):
                    d = v(r.AC + 8 * bt + 4 * ri, 4)
                    k("%s %s, %s, %s, %s" % (MF, d, v(r.FR + 16 * bt + 4 * ks, 4), v(r.C64 + 8 * ks + 4 * ri, 4), d if ks else "0"))
                    fill(1 if late and "_sin" in late[0] or late and "_cos" in late[0] else 2)
        fill(len(late))
        for bt in range(2):
            self.cmul(r.AC + 8 * bt, r.AC + 8 * bt + 4, r.T1C + 4 * bt, r.T1S + 4 * bt, False)
            for rr in range(4):
                k("v_cvt_pk_bf16_f32 %s, %s, %s" % (v(r.PK + 4 * bt + rr), v(tmp + rr), v(tmp + 4 + rr)))
        for kt in range(2):
            for ri in range(2):
                for ks in range(2):
                    d = v(r.FR + 8 * kt + 4 * ri, 4)
                    k("%s %s, %s, %s, %s" % (MF, d, v(r.C32 + 16 * kt + 8 * ks + 4 * ri, 4), v(r.PK + 4 * ks, 4), d if ks else "0"))
        P2 = r.FR + 16
        for kt in range(2):
            self.cmul(r.FR + 8 * kt, r.FR + 8 * kt + 4, r.WC + 4 * kt, r.WS + 4 * kt, True)
            for rr in range(4):
                k("v_cvt_pk_bf16_f32 %s, %s, %s" % (v(P2 + 4 * kt + rr), v(tmp + 4 + rr), v(tmp + rr)))
        for bt in range(2):
            for ri in range(2):
                for ks in range(2):
                    d = v(r.AC + 8 * bt + 4 * (1 - ri), 4)
                    k("%s %s, %s, %s, %s" % (MF, d, v(P2 + 4 * ks, 4), v(r.C32 + 16 * bt + 8 * ks + 4 * ri, 4), d if ks else "0"))
        for bt in range(2):
            self.cmul(r.AC + 8 * bt, r.AC + 8 * bt + 4, r.T2C + 4 * bt, r.T2S + 4 * bt, True)
            for rr in range(4):
                k("v_cvt_pk_bf16_f32 %s, %s, %s" % (v(r.PK + 4 * bt + rr), v(tmp + 4 + rr), v(tmp + rr)))
            k("ds_write_b128 %s, %s offset:%d" % (v(r.vwr), v(r.PK + 4 * bt, 4), 2048 + 1024 * bt))
        k("s_add_u32 %s, %s, 0x%x" % (s(sT), s(sQ), (L.X1, L.X3)[li]))
        k("s_waitcnt lgkmcnt(0)")
        k("s_barrier")
        for bt in range(2):
            for ks in range(4):
                k("ds_read_b128 %s, %s offset:%d" % (v(r.FR + 16 * bt + 4 * ks, 4), v(r.vrd), 2048 + 12288 * ks + 1024 * bt))
        self.st("c_x2")
        for bt in range(2):
            for ri in range(2):
                for ks in range(4):
                    d = v(r.XF + 8 * bt + 4 * (1 - ri), 4)
                    k("%s %s, %s, %s, %s" % (MF, d, v(r.C64 + 8 * ks + 4 * ri, 4), v(r.FR + 16 * bt + 4 * ks, 4), d))
        k("s_cmp_lg_u32 s2, 0")
        for bt in range(2):
            for rr in range(4):
                k("v_cvt_pk_bf16_f32 %s, %s, %s" % (v(r.PK + 4 * bt + rr), v(r.XF + 8 * bt + rr), v(r.XF + 8 * bt + 4 + rr)))
            k("s_cbranch_scc1 COL_B%d%d" % (li, bt))
            k("s_mov_b32 %s, 0xffff" % s(sV))
            for rr in range(4):
                k("v_bfi_b32 %s, %s, %s, %s" % (v(r.PK + 4 * bt + rr), s(sV), v(r.PK + 4 * bt + rr), v(r.XR + 4 * bt + rr)))
            k.label("COL_B%d%d" % (li, bt))
            k("buffer_store_dwordx4 %s, %s, %s, %s offen offset:%d sc1" % (v(r.PK + 4 * bt, 4), v(r.voff), WS, s(sT), 1024 * bt), tag="xs")
        self.st("c_end")

    def mlp(self):
        k, o, li = self.k, self.o, self.layer
        D, PD, CH = o.get("D", 6), o.get("PD", 14), o.get("CH", 2)
        FS = o.get("FS", 64)
        XIN, H = (L.X1, L.X3)[li], (L.H1, L.H2)[li]
        TS = TILE if li == 0 else 4 * TILE
        va = Alloc(3, 256)
        vX, vX2, vrX, vH6, vB1, vA2, vF = (va() for _ in range(7))
        vS, vC = va(2), va(2)
        tmp = va(16, 4)
        t = [tmp + i for i in range(8)]
        XB, ACC, AF = va(128, 4), va(64, 4), va(32, 4)
        SSQ = ACC + 56
        acc1 = lambda ft, tt: ACC + 16 * (ft >> 1) + 8 * tt + 4 * (ft & 1) if ft < 6 else ACC + 48 + 4 * tt
        queue, side = self.queue, self.side

        side(o.get("N1", 14))
        k("s_lshl_b32 %s, %s, 8" % (s(sV), s(sWv)))
        k("s_add_u32 %s, %s, s2" % (s(sV), s(sV)))
        k("s_mul_i32 %s, %s, %d" % (s(sV), s(sV), FS))
        k("s_add_u32 %s, %s, 0x%x" % (s(sV), s(sV), L.GFLAGS + 131072 * li))
        k("v_mov_b32 %s, %s" % (v(vC), fbits(C1)))
        self.publish("xs", vC, sV)
        self.st("s_pub")
        pre = []
        P = pre.append
        P("v_mov_b32 %s, %s" % (v(vC + 1), fbits(C0)))
        P("v_lshrrev_b32 %s, 6, v0" % v(t[0]))
        P("v_bfe_u32 %s, v0, 3, 2" % v(t[1]))
        P("v_lshlrev_b32 %s, 19, %s" % (v(vX), v(t[1])))
        P("v_bfe_u32 %s, v0, 5, 1" % v(t[1]))
        P("v_lshl_add_u32 %s, %s, 17, %s" % (v(vX), v(t[1]), v(vX)))
        P("v_and_b32 %s, 7, v0" % v(t[1]))
        P("v_lshl_add_u32 %s, %s, 4, %s" % (v(vX), v(t[1]), v(vX)))
        P("v_lshl_add_u32 %s, %s, 7, %s" % (v(vX), v(t[0]), v(vX)))
        P("v_add_u32 %s, %d, %s" % (v(vX2), 32 * 8192 - 1024, v(vX)))
        P("v_lshrrev_b32 %s, 1, %s" % (v(t[1]), v(vrA)))
        P("v_add_u32 %s, %s, %s" % (v(vrX), s(sRB), v(t[1])))
        P("v_and_b32 %s, 48, v0" % v(t[1]))
        P("v_add_u32 %s, %s, %s" % (v(vB1), s(sRB), v(t[1])))
        P("v_add_u32 %s, %d, %s" % (v(vA2), WB, v(vrA)))
        P("v_bfe_u32 %s, v0, 4, 1" % v(t[1]))
        P("v_mul_u32_u24 %s, %d, %s" % (v(vH6), TS, v(t[1])))
        P("v_bfe_u32 %s, v0, 5, 1" % v(t[1]))
        P("v_lshl_add_u32 %s, %s, 8, %s" % (v(vH6), v(t[1]), v(vH6)))
        P("v_and_b32 %s, 15, v0" % v(t[1]))
        P("v_lshl_add_u32 %s, %s, 4, %s" % (v(vH6), v(t[1]), v(vH6)))
        P("v_mul_u32_u24 %s, %d, v0" % (v(vF), FS))
        P("v_mov_b32 %s, 0xffff" % v(t[4]))
        P("v_cmp_gt_u32 vcc, 256, %s" % v(vrA))
        P("v_cndmask_b32 %s, -1, %s, vcc" % (v(vS), v(t[4])))
        P("s_lshl_b32 %s, %s, 9" % (s(sX), s(sP)))
        P("s_add_u32 %s, %s, 0x%x" % (s(sX), s(sX), XIN))
        P("s_lshr_b32 %s, %s, 2" % (s(sG), s(sP)))
        P("s_mul_i32 %s, %s, %d" % (s(sG), s(sG), 256 * FS))
        P("s_add_u32 %s, %s, 0x%x" % (s(sG), s(sG), L.GFLAGS + 131072 * li))
        P("s_mul_i32 %s, %s, %d" % (s(sHst), s(sP), 8 * TILE))
        P("s_add_u32 %s, %s, 0x%x" % (s(sHst), s(sHst), H))
        P("s_mul_i32 %s, %s, %d" % (s(sHA), s(sWv), 2 * TILE if li == 0 else TILE))
        P("s_add_u32 %s, %s, %s" % (s(sHA), s(sHA), s(sHst)))
        P("s_lshr_b32 %s, %s, 2" % (s(sV), s(sI)))
        P("s_mul_i32 %s, %s, 14336" % (s(sV), s(sV)))
        P("s_add_u32 %s, %s, %s" % (s(sHA), s(sHA), s(sV)))
        P("s_and_b32 %s, %s, 3" % (s(sV), s(sI)))
        P("s_lshl_b32 %s, %s, 9" % (s(sV), s(sV)))
        P("s_add_u32 %s, %s, %s" % (s(sH6), s(sHA), s(sV)))
        P("s_add_u32 %s, %s, %s" % (s(sHB), s(sH6), s(sV)))
        P("s_lshl_b32 %s, %s, 2" % (s(sV), s(sV)))
        P("s_add_u32 %s, %s, %s" % (s(sHA), s(sHA), s(sV)))
        P("s_add_u32 %s, %s, %d" % (s(sH6), s(sH6), 12 * 1024))
        P("s_add_u32 %s, %s, %d" % (s(sHB), s(sHB), 8 * 1024))
        P("s_mul_i32 %s, %s, %d" % (s(sV), s(sPhi), 4 * TILE))
        P("s_add_u32 %s, %s, %s" % (s(sHst), s(sHst), s(sV)))
        P("s_mul_i32 %s, %s, 14336" % (s(sV), s(sWv)))
        P("s_add_u32 %s, %s, %s" % (s(sHst), s(sHst), s(sV)))
        P("s_and_b32 %s, %s, %d" % (s(sPl), s(sWv), 2 if li == 0 else 3))
        for kt in range(4):
            P("s_xor_b32 %s, %s, %d" % (s(sV), s(sPl), kt ^ (2 if li == 0 else 3)))
            P("s_mul_i32 %s, %s, %d" % (s(sV), s(sV), TILE))
            P("s_add_u32 %s, %s, %s" % (s(sHt + kt), s(sHst), s(sV)))
        P("s_lshl_b32 %s, %s, 4" % (s(sPl), s(sP)))
        P("s_add_u32 %s, %s, %s" % (s(sFl), s(sPl), s(sI)))
        P("s_lshl_b32 %s, %s, 2" % (s(sFl), s(sFl)))
        P("s_add_u32 %s, %s, %s" % (s(sFl), s(sFl), s(sWv)))
        P("s_lshl_b32 %s, %s, 6" % (s(sFl), s(sFl)))
        P("s_add_u32 %s, %s, 0x%x" % (s(sFl), s(sFl), L.FLAGS + li * 131072))
        P("s_lshl_b32 %s, %s, 8" % (s(sPl), s(sPl)))
        P("s_lshl_b32 %s, %s, 10" % (s(sV), s(sWv)))
        P("s_add_u32 %s, %s, %s" % (s(sPl), s(sPl), s(sV)))
        P("s_add_u32 %s, %s, 0x%x" % (s(sPl), s(sPl), L.FLAGS + li * 131072))
        for m, c in ((8, 0x22222222), (9, 0x22222222), (10, 0x44444444), (11, 0x44444444), (36, 0x88888888), (37, 0x88888888)):
            P("s_mov_b32 %s, 0x%x" % (s(m), c))
        n2 = o.get("N2", 16)
        per = -(-len(pre) // max(1, n2))
        for j in range(n2):
            side()
            for txt in pre[:per]:
                k(txt)
            del pre[:per]
        for txt in pre:
            k(txt)
        assert li or self.issued["w1"] == 28
        k("s_mul_i32 %s, %s, 448" % (s(sW1), s(sI)))
        k("s_add_u32 %s, %s, 0x%x" % (s(sW1), s(sW1), L.B1X))
        self.poll_issue(vF, sG)
        side(o.get("N3", 10))
        self.poll_check(vF, sG)
        k("s_barrier")
        self.st("s_go")

        def bundle(ks):
            tg = ("b", ks)
            if ks == 16:
                return [(lambda: k("s_add_u32 m0, %s, %d" % (s(sRB), 4 * 2048)), self.dma(vrA, sW1, 0, tg))]
            return [(self.setup(sRB, (ks % 6) * 2048, sT, sX, ks * 8192), self.dma(vX, sT, 0, tg, " sc1")),
                    (None, self.dma(vX2, sT, 1024, tg, " sc1"))]

        def x_read(ks, n):
            i, ro = ((0, 0), (1, 4), (2, 2), (3, 6))[n]
            return lambda: k("ds_read_b64 %s, %s offset:%d" % (v(XB + 8 * ks + ro, 2), v(vrX), (ks % 6) * 2048 + 512 * i))

        def x_swap(ks, n):
            return lambda: k("v_swap_b32 %s, %s" % (v(XB + 8 * ks + 1 + 2 * n), v(XB + 8 * ks + 4 + 2 * n)))

        def a_read(ks, ft):
            return lambda: k("ds_read_b128 %s, %s offset:%d" % (v(AF + 16 * (ks & 1) + 4 * ft, 4), v(vrA), (4 * ks + ft) * 1024))

        def b1_read(reg, ft):
            return lambda: k("ds_read_b128 %s, %s offset:%d" % (v(reg, 4), v(vB1), 4 * 2048 + 64 * ft))

        def diag(tt):
            def op():
                k("v_cndmask_b32 %s, %s, %s, s[8:9]" % (v(t[tt]), v(SSQ + 4 * tt), v(SSQ + 4 * tt + 1)))
                k("v_cndmask_b32 %s, %s, %s, s[10:11]" % (v(t[tt]), v(t[tt]), v(SSQ + 4 * tt + 2)))
                k("v_cndmask_b32 %s, %s, %s, s[36:37]" % (v(t[tt]), v(t[tt]), v(SSQ + 4 * tt + 3)))
                k("ds_bpermute_b32 %s, %s, %s" % (v(vS + tt), v(t[2]), v(t[tt])))
            return op

        for ks in range(D):
            self.issue(bundle(ks))
        for ft in range(4):
            a_read(0, ft)()
        k("v_and_b32 %s, 12, v0" % v(t[2]))
        k("v_and_b32 %s, 15, v0" % v(t[3]))
        k("v_lshlrev_b32 %s, 6, %s" % (v(vF), v(t[3])))
        k("v_lshl_add_u32 %s, %s, 2, %s" % (v(t[2]), v(t[2]), v(t[3])))
        k("v_lshlrev_b32 %s, 2, %s" % (v(t[2]), v(t[2])))
        k("v_mov_b32 %s, %s" % (v(t[3]), fbits(EPS * EPS)))
        k.wait_tag(("b", 0))
        self.st("first")
        for n in range(4):
            x_read(0, n)()
        x_swap(0, 0)()
        x_swap(0, 1)()
        for ks in range(16):
            k.wait_tag(("b", ks + 1))
            fill = [[] for _ in range(10)]
            ops = bundle(ks + D) if ks + D <= 16 else []
            while len(ops) < (2 if ks < 15 else 0) and queue:
                ops.append(queue.pop(0))
            for n, (su, ld) in enumerate(ops):
                if su:
                    fill[(2, 7)[n]].append(su)
                fill[(3, 8)[n]].append(ld)
            if ks < 15:
                for n in range(4):
                    fill[n >> 1].append(x_read(ks + 1, n))
                    fill[(3, 4, 4, 5)[n]].append(a_read(ks + 1, n))
                fill[6].insert(0, x_swap(ks + 1, 0))
                fill[9].insert(0, x_swap(ks + 1, 1))
            else:
                for n in range(4):
                    fill[n >> 1].append(b1_read(AF + 4 * n, n))
                fill[4].append(diag(0))
                fill[6].append(diag(1))
            order = list(range(10))
            if ks == 0:
                order = order[2:] + order[:2]
                for tt in range(2):
                    fill[2 + 3 * tt].append(lambda tt=tt: k("v_and_b32 %s, %s, %s\nv_mov_b32 %s, %s" % (
                        v(tmp + 8 + 4 * tt), v(vS), v(XB + 4 * tt), v(tmp + 9 + 4 * tt), v(XB + 4 * tt + 1))))
                    fill[4 + 2 * tt].append(lambda tt=tt: k("v_mov_b32 %s, %s\nv_mov_b32 %s, %s" % (
                        v(tmp + 10 + 4 * tt), v(XB + 4 * tt + 2), v(tmp + 11 + 4 * tt), v(XB + 4 * tt + 3))))
            for pos, m in enumerate(order):
                tt = m & 1
                bb = v(XB + 8 * ks + 4 * tt, 4)
                if m < 2:
                    d = v(SSQ + 4 * tt, 4)
                    k("%s %s, %s, %s, %s" % (MF, d, v(tmp + 8 + 4 * tt, 4) if ks == 0 else bb, bb, d if ks else "0"))
                else:
                    ft = (m - 2) >> 1
                    d = v(acc1(ft, tt), 4)
                    k("%s %s, %s, %s, %s" % (MF, d, v(AF + 16 * (ks & 1) + 4 * ft, 4), bb, d if ks else "0"))
                for op in fill[pos]:
                    op()
        self.st("passA")

        def b_slot(j):
            return AF + 4 * ((j + 4) % 8)

        def b_read(j):
            k("ds_read_b128 %s, %s offset:%d" % (v(b_slot(j), 4), v(vA2), j * 1024))

        for j in range(4):
            b_read(j)
        for tt in range(2):
            k("v_fmamk_f32 %s, %s, %s, %s" % (v(vS + tt), v(vS + tt), fbits((1 + EPS) / 512), v(t[3])))
        for tt in range(2):
            k("v_rsq_f32 %s, %s" % (v(vS + tt), v(vS + tt)))

        nunit = [0]

        def gelu(x, tts, bias, store):
            ob = tmp + 8 + 4 * (nunit[0] & 1)
            nunit[0] += 1
            for h in range(4):
                k("v_pk_fma_f32 %s, %s, %s, %s op_sel:[0,%d,0] op_sel_hi:[1,%d,1]"
                  % (v(x + 2 * h, 2), v(x + 2 * h, 2), v(vS, 2), v(bias[h], 2), tts[h], tts[h]))
            for h in range(4):
                k("v_pk_mul_f32 %s, %s, %s" % (v(tmp + 2 * h, 2), v(x + 2 * h, 2), v(x + 2 * h, 2)))
            for h in range(4):
                k("v_pk_fma_f32 %s, %s, %s, %s op_sel:[0,0,1] op_sel_hi:[1,0,1]" % (v(tmp + 2 * h, 2), v(tmp + 2 * h, 2), v(vC, 2), v(vC, 2)))
            for h in range(4):
                k("v_pk_mul_f32 %s, %s, %s" % (v(tmp + 2 * h, 2), v(x + 2 * h, 2), v(tmp + 2 * h, 2)))
            for i in range(8):
                k("v_exp_f32 %s, %s" % (v(tmp + i), v(tmp + i)))
            for h in range(4):
                k("v_pk_add_f32 %s, %s, 1.0 op_sel_hi:[1,0]" % (v(tmp + 2 * h, 2), v(tmp + 2 * h, 2)))
            for i in range(8):
                k("v_rcp_f32 %s, %s" % (v(tmp + i), v(tmp + i)))
            side(o.get("GS", 0))
            for h in range(4):
                k("v_pk_mul_f32 %s, %s, %s" % (v(tmp + 2 * h, 2), v(x + 2 * h, 2), v(tmp + 2 * h, 2)))
            for h in (0, 2, 1, 3):
                k("v_cvt_pk_bf16_f32 %s, %s, %s" % (v(ob + h), v(tmp + 2 * h), v(tmp + 2 * h + 1)))
            store(ob)

        def st_pair(sb, off, tag):
            return lambda ob: k("buffer_store_dwordx4 %s, %s, %s, %s offen offset:%d sc1" % (v(ob, 4), v(vrA), WS, s(sb), off), tag=tag)

        def st_six(ob):
            k("v_permlane16_swap_b32 %s, %s" % (v(ob), v(ob + 2)))
            k("v_permlane16_swap_b32 %s, %s" % (v(ob + 1), v(ob + 3)))
            k("buffer_store_dwordx4 %s, %s, %s, %s offen sc1" % (v(ob, 4), v(vH6), WS, s(sH6)), tag="hB")

        for tt in range(2):
            for pr in range(2):
                gelu(acc1(2 * pr, tt), [tt] * 4, [AF + 8 * pr + 2 * h for h in range(4)], st_pair(sHA, pr * 1024, "hA"))
            if tt == 0:
                k("s_add_u32 %s, %s, %d" % (s(sHA), s(sHA), TS))
                if li == 1:
                    k("s_barrier")
        if li == 1:
            k("s_lshl_b32 %s, %s, 14" % (s(sG), s(sWv)))
            k("s_lshl_b32 %s, %s, 16" % (s(sX), s(sCt)))
            k("s_add_u32 %s, %s, %s" % (s(sX), s(sX), s(sG)))
            k("s_add_u32 %s, %s, 0x%x" % (s(sX), s(sX), L.FT))
            queue[0:0] = [(self.setup(sG, (j >> 2) * 4096, sT, sX, (j >> 2) * 4096) if j & 3 == 0 else None,
                           self.dma(vrA, sT, (j & 3) * 1024, "ft")) for j in range(16)]
        self.st("geluA")

        FA = o.get("FA", 60)
        for j in range(4, 7):
            b_read(j)
        for j in range(48):
            ks, ft = j // 3, 4 + j % 3
            pend = None
            for tt in range(2):
                d = v(acc1(ft, tt), 4)
                k("%s %s, %s, %s, %s" % (MF, d, v(b_slot(j), 4), v(XB + 8 * ks + 4 * tt, 4), d if ks else "0"))
                if tt == 0:
                    if j + 7 < 48:
                        b_read(j + 7)
                    elif j + 7 < 51:
                        b1_read(b_slot(j + 7), j + 7 - 44)()
                    if j & 1 and queue:
                        su, pend = queue.pop(0)
                        if su:
                            su()
                elif pend:
                    pend()
                if 2 * j + tt == FA:
                    self.publish("hA", vC, sFl)
                    k("s_add_u32 %s, %s, 65536" % (s(sFl), s(sFl)))
        self.st("passB")
        RES, BIAS, vRes = AF, AF + 8, vX
        if li == 0:
            k("v_bfe_u32 %s, v0, 4, 2" % v(vX2))
            k("v_lshrrev_b32 %s, 3, %s" % (v(vRes), v(vF)))
            k("v_lshl_add_u32 %s, %s, 15, %s" % (v(vRes), v(vX2), v(vRes)))
            k("v_lshlrev_b32 %s, 4, %s" % (v(vX2), v(vX2)))
            k("s_lshl_b32 %s, %s, 1" % (s(sG), s(sCt)))
            k("s_and_b32 %s, %s, 1" % (s(sV), s(sWv)))
            k("s_add_u32 %s, %s, %s" % (s(sG), s(sG), s(sV)))
            k("s_lshl_b32 %s, %s, 17" % (s(sV), s(sG)))
            k("s_add_u32 %s, %s, %s" % (s(sX), s(sX), s(sV)))
            k("s_lshl_b32 %s, %s, 6" % (s(sG), s(sG)))
            k("s_add_u32 %s, %s, 0x%x" % (s(sG), s(sG), L.B2F))
            k("s_lshl_b32 %s, %s, 1" % (s(sT), s(sPhi)))
            k("s_lshr_b32 %s, %s, 1" % (s(sV), s(sWv)))
            k("s_add_u32 %s, %s, %s" % (s(sT), s(sT), s(sV)))
            k("s_lshl_b32 %s, %s, 7" % (s(sHA), s(sT)))
            k("s_add_u32 %s, %s, %s" % (s(sX), s(sX), s(sHA)))
            for r in range(4):
                queue.append((lambda r=r: k("s_add_u32 %s, %s, %d" % (s(sT), s(sX), r * 8192)),
                              lambda r=r: k("buffer_load_dwordx2 %s, %s, %s, %s offen sc1" % (v(RES + 2 * r, 2), v(vRes), WS, s(sT)))))
            for ri in range(2):
                queue.append((None, lambda ri=ri: k("buffer_load_dwordx4 %s, %s, %s, %s offen offset:%d" % (v(BIAS + 4 * ri, 4), v(vX2), WS, s(sG), ri * 1024))))
        else:
            assert self.issued["ft"] == 16
            k("v_and_b32 %s, 48, v0" % v(vX2))
            k("v_lshlrev_b32 %s, 1, %s" % (v(vX2), v(vX2)))
            k("s_lshl_b32 %s, %s, 7" % (s(sG), s(sCt)))
            for e in range(2):
                k("buffer_load_dwordx4 %s, %s, s[40:43], %s offen offset:%d" % (v(RES + 4 * e, 4), v(vX2), s(sG), e * 16))
        PA = o.get("PA", 1)
        bb = b_slot(48)
        for u in range(3):
            if u == PA:
                self.poll_issue(vF, sPl)
            if u < 2:
                gelu(acc1(4, u), [u] * 4, [bb + 2 * h for h in range(4)], st_pair(sHB, 0, "hB"))
                if u == 0:
                    k("s_add_u32 %s, %s, %d" % (s(sHB), s(sHB), TS))
            else:
                gelu(acc1(6, 0), [0, 0, 1, 1], [bb + 8, bb + 10, bb + 8, bb + 10], st_six)
        if PA == 3:
            self.poll_issue(vF, sPl)
        self.st("geluB")

        loads = [(kt, kf) for kt in range(4) for kf in range(8)] + [(kt, kf) for kt in range(4) for kf in range(8, 14)]
        slot = {x: XB + 4 * (j % 32) for j, x in enumerate(loads)}
        acc2 = lambda kt, c: ACC + 16 * kt + 4 * c
        own = [acc2(2 + (g >> 1), 2 + (g & 1)) for g in range(4)] if li == 0 else [acc2(3, g) for g in range(4)]

        def h_load(j):
            kt, kf = loads[j]
            if kf % 4 == 0:
                k("s_add_u32 %s, %s, %d" % (s(sHst), s(sHt + kt), kf * 1024))
            k("buffer_load_dwordx4 %s, %s, %s, %s offen offset:%d sc1" % (v(slot[loads[j]], 4), v(vrA), WS, s(sHst), (kf & 3) * 1024))

        FB = min(PD - 1, o.get("FB", 10))
        if li == 0:
            side(len(queue))
            self.poll_check(vF, sPl)
            self.st("pollA")
            for j in range(PD):
                h_load(j)
                if j == FB:
                    self.publish("hB", vC, sFl)
            for tt in range(2):
                for r in range(4):
                    k("v_lshlrev_b32 %s, 16, %s" % (v(own[2 * tt] + r), v(RES + 2 * r + tt)))
                    k("v_and_b32 %s, 0xffff0000, %s" % (v(own[2 * tt + 1] + r), v(RES + 2 * r + tt)))
            for g in range(4):
                for h in (0, 2):
                    k("v_pk_add_f32 %s, %s, %s" % (v(own[g] + h, 2), v(own[g] + h, 2), v(BIAS + 4 * (g & 1) + h, 2)))
        else:
            side(len(queue))
            for c in range(4):
                for h in range(2):
                    k("v_lshlrev_b32 %s, 16, %s" % (v(own[c] + 2 * h), v(RES + 2 * c + h)))
                    k("v_and_b32 %s, 0xffff0000, %s" % (v(own[c] + 2 * h + 1), v(RES + 2 * c + h)))
            k.wait_tag("ft")
            k("s_barrier")
            k("s_cmp_eq_u32 %s, 1" % s(sPhi))
            k("s_cbranch_scc1 X3B")
            for tt in range(2):
                if tt == 1:
                    k.label("X3B")
                for j in range(7):
                    k("ds_read_b128 %s, %s offset:%d" % (v(AF + 4 * j, 4), v(vrA), j * 1024))
                nh = 0
                for j in range(64):
                    ks, c = j >> 2, j & 3
                    d = v(own[c], 4)
                    k("%s %s, %s, %s, %s" % (MF, d, v(AF + 4 * (j % 8), 4), v(XB + 8 * ks + 4 * tt, 4), d))
                    if j + 7 < 64:
                        k("ds_read_b128 %s, %s offset:%d" % (v(AF + 4 * ((j + 7) % 8), 4), v(vrA), (j + 7) * 1024))
                    if c == 1 and ks >= o.get("XH", 1) and nh < PD:
                        if nh == 0:
                            self.poll_check(vF, sPl)
                        assert nh < 2 * ks
                        h_load(nh)
                        nh += 1
                    if j == o.get("FBX", 44):
                        self.publish("hB", vC, sFl)
                for j in range(nh, PD):
                    h_load(j)
                if tt == 0:
                    k("s_branch X3E")
            k.label("X3E")
            self.st("pollA")
        k("s_add_u32 %s, %s, 65536" % (s(sPl), s(sPl)))

        vRW, vRd, vO, vI = vrX, [AF + 16, AF + 17, AF + 18], vX, AF + 19
        late = []
        Q = late.append
        Q("v_add_u32 %s, %s, %s" % (v(vRW), s(sRB), v(vrA)))
        for dl in range(1, 4):
            Q("s_xor_b32 %s, %s, %d\ns_mul_i32 %s, %s, 12288" % (s(sV), s(sWv), dl, s(sV), s(sV)))
            Q("s_add_u32 %s, %s, %d\nv_add_u32 %s, %s, %s" % (s(sV), s(sV), PRIV + (3 ^ dl) * 4096, v(vRd[dl - 1]), s(sV), v(vrA)))
        if li == 1:
            Q("v_and_b32 %s, 15, v0\nv_lshl_add_u32 %s, %s, 1, %s" % (v(t[0]), v(t[2]), v(t[0]), s(sPhi)))
            Q("v_and_b32 %s, 3, %s\nv_lshrrev_b32 %s, 1, %s" % (v(t[2]), v(t[2]), v(t[0]), v(t[0])))
            Q("v_lshl_add_u32 %s, %s, 5, %s\nv_lshl_add_u32 %s, %s, 10, %s" % (v(t[0]), v(t[2]), v(t[0]), v(vO), v(t[0]), v(vX2)))
            Q("s_lshr_b32 %s, %s, 2\ns_lshl_b32 %s, %s, 9" % (s(sV), s(sP), s(sX), s(sV)))
            Q("s_and_b32 %s, %s, 1\ns_lshl_b32 %s, %s, 8" % (s(sV), s(sP), s(sV), s(sV)))
            Q("s_add_u32 %s, %s, %s\ns_lshr_b32 %s, %s, 1" % (s(sX), s(sX), s(sV), s(sV), s(sWv)))
            Q("s_lshl_b32 %s, %s, 7\ns_add_u32 %s, %s, %s" % (s(sV), s(sV), s(sX), s(sX), s(sV)))
            Q("s_bfe_u32 %s, %s, 0x10001\ns_lshl_b32 %s, %s, 4" % (s(sV), s(sP), s(sV), s(sV)))
            Q("s_add_u32 %s, %s, %s\ns_and_b32 %s, %s, 1" % (s(sX), s(sX), s(sV), s(sV), s(sWv)))
            Q("s_lshl_b32 %s, %s, 3\ns_add_u32 %s, %s, %s" % (s(sV), s(sV), s(sX), s(sX), s(sV)))
            Q("s_lshl_b32 %s, %s, 10\ns_add_u32 %s, %s, %s" % (s(sX), s(sX), s(sX), s(sX), s(sG)))
        else:
            Q("s_add_u32 %s, %s, 0x%x\ns_cmp_eq_u32 %s, 0x%x" % (s(sX), s(sX), L.X2 - XIN, s(sG), L.B2F) +
              "\ns_cselect_b32 s8, 0xffff, 0")
            Q("s_mov_b32 s9, 0\nv_bfe_u32 %s, v0, 4, 1" % v(t[0]))
            Q("v_lshrrev_b32 %s, 3, %s\nv_lshl_add_u32 %s, %s, 2, %s" % (v(vI), v(vF), v(vI), v(t[0]), v(vI)))
            Q("s_lshl_b32 %s, %s, 9\ns_add_u32 %s, %s, %s" % (s(sV), s(sP), s(sHA), s(sHA), s(sV)))
            Q("s_add_u32 %s, %s, 0x%x" % (s(sHA), s(sHA), L.SSQ2))

        def quarter(kap):
            return [acc2(2 * (kap >> 1) + (g >> 1), 2 * (kap & 1) + (g & 1)) for g in range(4)] if li == 0 else [acc2(kap, g) for g in range(4)]

        def block(kts, kfs, cs):
            return [(kt, kf, c) for kt in kts for g0 in range(0, len(kfs), CH) for c in cs for kf in kfs[g0:g0 + CH]]
        A8, B6, ALL = list(range(8)), list(range(8, 14)), list(range(4))
        seq = block(ALL, A8, ALL)
        if li == 0:
            seq += block([0, 1], B6, ALL) + block([2, 3], B6, [0, 1]) + block([2, 3], B6, [2, 3])
            wr = {176 + 6 + 2 * n: (n >> 2, n & 3) for n in range(8)}
        else:
            seq += block(ALL, B6, ALL)
            wr = {152 + 24 * (n >> 2) + 6 + 2 * (n & 3): (n >> 2, n & 3) for n in range(8)}
        wr.update({200 + 5 + n: (2, n) for n in range(4)})
        seen, nld = set(), PD
        RB = o.get("RB", 213)
        for m, (kt, kf, c) in enumerate(seq):
            d = acc2(kt, c)
            first = d not in seen and d not in own
            seen.add(d)
            k("%s %s, %s, %s, %s" % (MF, v(d, 4), a(16 * kf + 4 * c, 4), v(slot[(kt, kf)], 4), "0" if first else v(d, 4)))
            if m == 0:
                self.st("h0")
            if m % 4 == 1 and nld < 56:
                if nld == 32:
                    self.st("preB")
                    self.poll_check(vF, sPl)
                    self.st("pollB")
                h_load(nld)
                nld += 1
            elif m == 4 * o.get("PB", 8) + 3:
                self.poll_issue(vF, sPl)
            elif m % 4 == 3 and nld > 33 and late:
                k(late.pop(0))
            if m in wr:
                kap, g = wr[m]
                assert not late
                k("ds_write_b128 %s, %s offset:%d" % (v(vRW), v(quarter(kap)[g], 4), kap * 4096 + g * 1024))
            if m == RB:
                k("s_waitcnt lgkmcnt(0)")
                k("s_barrier")
            if RB <= m < RB + 6:
                for n in (2 * (m - RB), 2 * (m - RB) + 1):
                    k("ds_read_b128 %s, %s offset:%d" % (v(XB + 4 * n, 4), v(vRd[n >> 2]), (n & 3) * 1024))
        self.st("gemm2")
        for n in range(8):
            k("v_pk_add_f32 %s, %s, %s" % (v(XB + 2 * n, 2), v(XB + 2 * n, 2), v(XB + 16 + 2 * n, 2)))
        for n in range(8):
            k("v_pk_add_f32 %s, %s, %s" % (v(XB + 2 * n, 2), v(XB + 2 * n, 2), v(XB + 32 + 2 * n, 2)))
        for n in range(8):
            d = v(own[n >> 1] + 2 * (n & 1), 2)
            k("v_pk_add_f32 %s, %s, %s" % (d, d, v(XB + 2 * n, 2)))
        if li == 0:
            for r in range(4):
                for tt in range(2):
                    k("v_cvt_pk_bf16_f32 %s, %s, %s" % (v(tmp + 2 * r + tt), v(own[2 * tt] + r), v(own[2 * tt + 1] + r)))
                k("s_add_u32 %s, %s, %d" % (s(sT), s(sX), r * 8192))
                k("buffer_store_dwordx2 %s, %s, %s, %s offen sc1" % (v(tmp + 2 * r, 2), v(vRes), WS, s(sT)), tag="xs")
            q = tmp + 8
            for tt in range(2):
                k("v_cndmask_b32 %s, %s, 0, s[8:9]" % (v(own[2 * tt + 1]), v(own[2 * tt + 1])))
            for tt in range(2):
                k("v_pk_mul_f32 %s, %s, %s" % (v(q + 2 * tt, 2), v(own[2 * tt], 2), v(own[2 * tt], 2)))
            for h in (2, 4, 6):
                for tt in range(2):
                    k("v_pk_fma_f32 %s, %s, %s, %s" % (v(q + 2 * tt, 2), v(own[2 * tt] + h, 2), v(own[2 * tt] + h, 2), v(q + 2 * tt, 2)))
            k("v_add_f32 %s, %s, %s" % (v(q), v(q), v(q + 1)))
            k("v_add_f32 %s, %s, %s" % (v(q + 2), v(q + 2), v(q + 3)))
            k("v_permlane16_swap_b32 %s, %s" % (v(q), v(q + 2)))
            k("v_add_f32 %s, %s, %s" % (v(q), v(q), v(q + 2)))
            k("v_mov_b32 %s, %s" % (v(q + 1), v(q)))
            k("v_permlane32_swap_b32 %s, %s" % (v(q), v(q + 1)))
            k("v_add_f32 %s, %s, %s" % (v(q), v(q), v(q + 1)))
            k("s_mov_b32 exec_hi, 0")
            k("buffer_atomic_add_f32 %s, %s, %s, %s offen" % (v(q), v(vI), WS, s(sHA)), tag="xs")
            k("s_mov_b32 exec_hi, -1")
        else:
            for e in range(2):
                for i in range(4):
                    k("v_cvt_pk_bf16_f32 %s, %s, %s" % (v(tmp + 4 * e + i), v(own[0] + 8 * e + 2 * i), v(own[0] + 8 * e + 2 * i + 1)))
                k("buffer_store_dwordx4 %s, %s, s[44:47], %s offen offset:%d" % (v(tmp + 4 * e, 4), v(vO), s(sX), 16 * e))
        self.st("epi")

    def build(self):
        k, o = self.k, self.o
        k.entry(self.name)
        self.layer = 0
        self.col_alloc()
        r = self.c
        k("s_cmp_ge_u32 s2, 256")
        k("s_cbranch_scc1 MAIN_END")
        k("s_load_dwordx2 s[4:5], s[0:1], 80")
        k("s_load_dwordx2 s[40:41], s[0:1], 56")
        k("s_load_dwordx2 s[44:45], s[0:1], 64")
        self.st("start")
        k("v_and_b32 %s, 63, v0" % v(vrA))
        k("v_lshlrev_b32 %s, 4, %s" % (v(vrA), v(vrA)))
        self.col_addr()
        k("v_readfirstlane_b32 %s, %s" % (s(sWv), v(r.t[0])))
        k("s_mov_b32 s6, 0x%x" % L.WS_USED)
        k("s_mov_b32 s7, 0x20000")
        k("s_mov_b32 s42, 0x400")
        k("s_mov_b32 s43, 0x20000")
        k("s_mov_b32 s46, 0x200000")
        k("s_mov_b32 s47, 0x20000")
        k("s_lshl_b32 %s, s2, 13" % s(sQ))
        k("s_mul_i32 %s, %s, 12288" % (s(sRB), s(sWv)))
        k("s_add_u32 %s, %s, %d" % (s(sRB), s(sRB), PRIV))
        if o.get("map", 1):
            k("s_and_b32 %s, s2, 6" % s(sP))
            k("s_lshl_b32 %s, %s, 1" % (s(sP), s(sP)))
            k("s_lshr_b32 %s, s2, 6" % s(sT))
            k("s_add_u32 %s, %s, %s" % (s(sP), s(sP), s(sT)))
            k("s_bfe_u32 %s, s2, 0x30003" % s(sI))
            k("s_and_b32 %s, s2, 1" % s(sCt))
            k("s_lshl_b32 %s, %s, 3" % (s(sT), s(sCt)))
            k("s_add_u32 %s, %s, %s" % (s(sI), s(sI), s(sT)))
            k("s_bfe_u32 %s, s2, 0x10005" % s(sPhi))
            k("s_lshl_b32 %s, %s, 2" % (s(sCt), s(sCt)))
            k("s_bfe_u32 %s, s2, 0x20003" % s(sT))
            k("s_add_u32 %s, %s, %s" % (s(sCt), s(sCt), s(sT)))
        else:
            k("s_and_b32 %s, s2, 7" % s(sP))
            k("s_lshl_b32 %s, %s, 1" % (s(sP), s(sP)))
            k("s_lshr_b32 %s, s2, 7" % s(sT))
            k("s_add_u32 %s, %s, %s" % (s(sP), s(sP), s(sT)))
            k("s_bfe_u32 %s, s2, 0x40003" % s(sI))
            k("s_lshr_b32 %s, %s, 3" % (s(sPhi), s(sI)))
            k("s_and_b32 %s, %s, 7" % (s(sCt), s(sI)))
        k("s_lshl_b32 s38, %s, 12" % s(sWv))
        k("s_mul_i32 %s, %s, 114688" % (s(sW1), s(sI)))
        k("s_add_u32 %s, %s, s38" % (s(sW1), s(sW1)))
        k("s_add_u32 %s, %s, 0x%x" % (s(sW1), s(sW1), L.W1F))
        k("s_mul_i32 s39, %s, 229376" % s(sCt))
        k("s_mul_i32 %s, %s, 57344" % (s(sV), s(sWv)))
        k("s_add_u32 s39, s39, %s" % s(sV))
        k("s_and_b32 %s, %s, 1" % (s(sV), s(sWv)))
        k("s_xor_b32 %s, %s, 1" % (s(sV), s(sV)))
        k("s_lshl_b32 %s, %s, 11" % (s(sV), s(sV)))
        k("s_add_u32 %s, s39, %s" % (s(sW2), s(sV)))
        k("s_add_u32 %s, %s, 0x%x" % (s(sW2), s(sW2), L.W2F))
        self.col_load_x()
        self.col_load_w()
        self.queue += [(self.setup(38, (j >> 2) * 16384, sU, sW1, (j >> 2) * 16384) if j & 3 == 0 else None,
                        self.dma(vrA, sU, (j & 3) * 1024, "w1")) for j in range(28)] + self.w2_ops()
        consts = self.col_consts()
        n0 = max(self.n_first, o.get("C0", 130))
        for j, txt in enumerate(consts[:n0]):
            k(txt)
            if j % 16 == 8 and j // 16 < o.get("N0", 0):
                self.side()
        self.st("c_const")
        self.col_compute(consts[n0:] + self.col_unpack_w())
        self.mlp()

        self.layer = 1
        self.st("l2")
        self.col_addr()
        self.col_load_w()
        k("s_add_u32 %s, s39, 0x%x" % (s(sW2), L.W2T))
        self.queue += self.w2_ops()
        consts = self.col_consts() + self.col_unpack_w()
        n1 = o.get("C1", 150)
        for txt in consts[:n1]:
            k(txt)
        k("s_lshl_b32 %s, %s, 4" % (s(sV), s(sP)))
        k("s_add_u32 %s, %s, %s" % (s(sV), s(sV), s(sI)))
        k("s_lshl_b32 %s, %s, 4" % (s(sV), s(sV)))
        k("s_add_u32 %s, %s, %s" % (s(sV), s(sV), s(sWv)))
        k("s_lshl_b32 %s, %s, 2" % (s(sV), s(sV)))
        k("s_add_u32 %s, %s, 0x%x" % (s(sV), s(sV), L.GFLAGS + 65536))
        self.publish("xs", r.veps, sV)
        k("s_barrier")
        self.st("s2_pub")
        rest, n4 = consts[n1:], o.get("N4", 14)
        per = -(-len(rest) // max(1, n4))
        for j in range(n4):
            self.side()
            for txt in rest[:per]:
                k(txt)
            del rest[:per]
        for txt in rest:
            k(txt)
        k("v_lshlrev_b32 %s, 6, v0" % v(r.t[1]))
        k("s_mov_b32 %s, 0x%x" % (s(sG), L.GFLAGS + 65536))
        self.poll_issue(r.t[1], sG, 4)
        self.side(o.get("N5", 2))
        self.poll_check(r.t[1], sG, 4)
        self.st("s2_go")
        self.col_load_x()
        self.col_compute([])
        self.mlp()
        self.st("end", final=True)
        k.label("MAIN_END")
        k("s_endpgm")
        return k


def build(name, stamp=None, opts=None):
    return Main(name, stamp, opts).build()
```

```python
import math
from asmlib import Kernel, Alloc, v, s, fbits
import layout as L

MF = "v_mfma_f32_16x16x32_bf16"
PITCH = 1088
LDS_BYTES = 2 * 8 * PITCH
WS, IN, IN2 = 4, 8, 12


def srd_words(k, base, nbytes):
    k("s_mov_b32 %s, 0x%x" % (s(base + 2), nbytes))
    k("s_mov_b32 %s, 0x20000" % s(base + 3))


def split14(k, sS, sU, sT):
    k("s_mul_i32 %s, %s, 4682" % (s(sS), s(sT)))
    k("s_lshr_b32 %s, %s, 16" % (s(sS), s(sS)))
    k("s_mul_i32 %s, %s, 14" % (s(sU), s(sS)))
    k("s_sub_u32 %s, %s, %s" % (s(sU), s(sT), s(sU)))


def build(name, code_bytes=True, stamp=None):
    k = Kernel(name)
    k.entry(name)
    va = Alloc(1, 256)
    vl, vn, vg, vfn, vfg4 = va(), va(), va(), va(), va()
    t = [va() for _ in range(8)]
    A = va(32, 4)
    D = va(64, 4)
    RAW = D
    B1re, B1im, A2re, A2im, S2re, S2im = (va(4, 4) for _ in range(6))
    TC, TS = va(4, 4), va(4, 4)
    Bm, Bs = va(8, 4), va(8, 4)
    tmp = va(16, 4)
    O = va(32, 4)
    sM0, sM8, sDC, sRole, sT, sA, sB, sC, sLds = 32, 34, 36, 3, 38, 39, 40, 41, 42
    sSelLo, sSelHi = 43, 44

    k("s_cmp_ge_u32 s2, 256")
    k("s_cbranch_scc1 PREP_END")
    k("s_load_dwordx16 s[16:31], s[0:1], 0")
    k("s_load_dwordx2 s[4:5], s[0:1], 80")
    if stamp:
        stamp(k, 0)
    k("v_lshrrev_b32 %s, 6, v0" % v(t[0]))
    k("v_and_b32 %s, 63, v0" % v(vl))
    k("v_readfirstlane_b32 %s, %s" % (s(sRole), v(t[0])))
    k("v_and_b32 %s, 15, v0" % v(vn))
    k("v_lshrrev_b32 %s, 4, %s" % (v(vg), v(vl)))
    srd_words(k, WS, L.WS_USED)
    k("s_mov_b32 %s, 0x20000" % s(IN + 3))
    k("s_mov_b32 %s, 0x05040100" % s(sSelLo))
    k("s_mov_b32 %s, 0x07060302" % s(sSelHi))
    k("s_mov_b32 %s, 0x00010001" % s(sM0))
    k("s_mov_b32 %s, 0x00010001" % s(sM0 + 1))
    k("s_mov_b32 %s, 0xff00ff00" % s(sM8))
    k("s_mov_b32 %s, 0xff00ff00" % s(sM8 + 1))
    k("s_mov_b32 %s, %s" % (s(sDC), fbits(1 / (16 * math.sqrt(2)))))
    k("v_cvt_f32_u32 %s, %s" % (v(vfn), v(vn)))
    k("v_lshlrev_b32 %s, 2, %s" % (v(t[0]), v(vg)))
    k("v_cvt_f32_u32 %s, %s" % (v(vfg4), v(t[0])))
    k("s_and_b32 %s, s2, 7" % s(sA))
    k("s_lshr_b32 %s, s2, 3" % s(sB))
    k("s_cmp_eq_u32 %s, 1" % s(sRole))
    k("s_cbranch_scc1 PREP_IN_W2")
    k("s_cmp_eq_u32 %s, 2" % s(sRole))
    k("s_cbranch_scc1 PREP_IN_W1")
    k("s_cmp_eq_u32 %s, 3" % s(sRole))
    k("s_cbranch_scc1 PREP_MISC")

    def dma_rows(soff_of_row):
        k("v_lshlrev_b32 %s, 4, %s" % (v(t[0]), v(vl)))
        for j in range(8):
            k("s_add_u32 m0, %s, %d" % (s(sLds), j * PITCH))
            k("s_add_u32 %s, %s, %d" % (s(sC), s(sA), soff_of_row(j)))
            k("buffer_load_dwordx4 %s, %s, %s offen lds" % (v(t[0]), s(IN, 4), s(sC)), tag="in")

    k("s_lshl_b32 %s, %s, 5" % (s(sT), s(sA)))
    k("s_add_u32 %s, %s, %s" % (s(sT), s(sT), s(sB)))
    k("s_lshr_b32 %s, %s, 1" % (s(sC), s(sA)))
    k("s_lshl_b32 %s, %s, 9" % (s(sC), s(sC)))
    k("s_and_b32 %s, %s, 1" % (s(sA), s(sA)))
    k("s_lshl_b32 %s, %s, 4" % (s(sA), s(sA)))
    k("s_add_u32 %s, %s, %s" % (s(sA), s(sA), s(sC)))
    k("s_lshr_b32 %s, %s, 3" % (s(sC), s(sB)))
    k("s_lshl_b32 %s, %s, 7" % (s(sC), s(sC)))
    k("s_add_u32 %s, %s, %s" % (s(sA), s(sA), s(sC)))
    k("s_and_b32 %s, %s, 7" % (s(sC), s(sB)))
    k("s_lshl_b32 %s, %s, 1" % (s(sC), s(sC)))
    k("s_add_u32 %s, %s, %s" % (s(sA), s(sA), s(sC)))
    k("s_lshl_b32 %s, %s, 10" % (s(sA), s(sA)))
    k("s_mov_b32 %s, 0" % s(sLds))
    k("s_mov_b32 %s, 0x200000" % s(IN + 2))
    k("s_mov_b64 %s, s[16:17]" % s(IN, 2))
    dma_rows(lambda j: (32 * (j & 3) + (j >> 2)) * 1024)
    k("s_branch PREP_CONST")

    k.label("PREP_IN_W2")
    k("s_cmp_gt_u32 s2, 224")
    k("s_cbranch_scc1 PREP_END")
    k("s_mov_b32 %s, s2" % s(sT))
    k("s_lshl_b32 %s, s2, 13" % s(sA))
    k("s_mov_b32 %s, %d" % (s(sLds), 8 * PITCH))
    k("s_cmp_eq_u32 s2, 224")
    k("s_cselect_b32 %s, 0, %s" % (s(sA), s(sA)))
    k("s_movk_i32 %s, 0x400" % s(sC))
    k("s_cselect_b32 %s, %s, 0x1c0000" % (s(IN + 2), s(sC)))
    k("s_cselect_b64 %s, s[30:31], s[28:29]" % s(IN, 2))
    dma_rows(lambda j: j * 1024)
    k("s_branch PREP_CONST")

    k.label("PREP_IN_W1")
    k("s_cmp_ge_u32 %s, 28" % s(sB))
    k("s_cbranch_scc1 PREP_END")
    k("s_mul_i32 %s, %s, 28" % (s(sT), s(sA)))
    k("s_add_u32 %s, %s, %s" % (s(sT), s(sT), s(sB)))
    k("s_mov_b32 %s, 0" % s(sDC))
    k("s_lshl_b32 %s, %s, 4" % (s(sA), s(sT)))
    k("v_lshl_add_u32 %s, %s, 6, %s" % (v(t[0]), v(vg), v(vn)))
    k("v_mul_u32_u24 %s, 3584, %s" % (v(t[0]), v(t[0])))
    k("s_mov_b32 %s, 0x1c0000" % s(IN + 2))
    k("s_mov_b64 %s, s[24:25]" % s(IN, 2))
    for jj in range(8):
        k("s_add_u32 %s, %s, %d" % (s(sC), s(sA), 16 * (16 * (jj >> 2) + (jj & 3)) * 3584))
        k("buffer_load_dwordx4 %s, %s, %s, %s offen" % (v(RAW + 4 * jj, 4), v(t[0]), s(IN, 4), s(sC)))

    k.label("PREP_CONST")
    f1, b1, f2, b2 = t[0], t[1], t[2], t[3]
    k("v_mul_f32 %s, %s, %s" % (v(f1), fbits(1 / 32), v(vfn)))
    k("v_mul_f32 %s, %s, %s" % (v(b1), v(f1), v(vfg4)))
    k("v_cndmask_b32 %s, %s, 0.5, %s" % (v(f2), v(f1), s(sM0, 2)))
    k("v_mov_b32 %s, %s" % (v(t[4]), fbits(0.25)))
    k("v_cndmask_b32 %s, %s, 0, %s" % (v(t[4]), v(t[4]), s(sM0, 2)))
    k("v_fma_f32 %s, %s, %s, %s" % (v(b2), v(f2), v(vfg4), v(t[4])))
    for jj in range(8):
        c = fbits(16 * (jj >> 2) + (jj & 3))
        k("v_fmamk_f32 %s, %s, %s, %s" % (v(tmp + jj), v(f1), c, v(b1)))
        k("v_fmamk_f32 %s, %s, %s, %s" % (v(tmp + 8 + jj), v(f2), c, v(b2)))
    for i in range(16):
        k("v_cos_f32 %s, %s" % (v(tmp + i), v(tmp + i)))
    for i in range(4):
        k("v_cvt_pk_bf16_f32 %s, %s, %s" % (v(B1re + i), v(tmp + 2 * i), v(tmp + 2 * i + 1)))
        k("v_cvt_pk_bf16_f32 %s, %s, %s" % (v(B1im + i), v(tmp + 8 + 2 * i), v(tmp + 8 + 2 * i + 1)))
    ftw, fa2, fs2, sctw, scs, vsh, vsg = t[0], t[1], t[2], t[3], t[4], t[5], t[6]
    k("v_mul_f32 %s, %s, %s" % (v(ftw), fbits(1 / 512), v(vfn)))
    k("v_mul_f32 %s, %s, %s" % (v(fa2), fbits(1 / 16), v(vfn)))
    k("v_add_f32 %s, %s, %s" % (v(fs2), fbits(-15 / 32), v(fa2)))
    k("v_cndmask_b32 %s, %s, %s, %s" % (v(fs2), v(fa2), v(fs2), s(sM8, 2)))
    k("v_cndmask_b32 %s, %s, 0.5, %s" % (v(fs2), v(fs2), s(sM0, 2)))
    k("v_mov_b32 %s, %s" % (v(scs), fbits(1 / 16)))
    k("v_cndmask_b32 %s, %s, 0, %s" % (v(sctw), v(scs), s(sM0, 2)))
    k("v_mov_b32 %s, %s" % (v(t[7]), fbits(1 / (16 * math.sqrt(2)))))
    k("v_cndmask_b32 %s, %s, %s, %s" % (v(scs), v(scs), v(t[7]), s(sM0, 2)))
    k("v_cndmask_b32 %s, 0, 16, %s" % (v(vsh), s(sM8, 2)))
    k("v_mov_b32 %s, 0x80008000" % v(vsg))
    k("v_cndmask_b32 %s, 0, %s, %s" % (v(vsg), v(vsg), s(sM8, 2)))
    k("v_mov_b32 %s, %s" % (v(t[7]), s(sDC)))
    for r in range(4):
        fb = tmp + 12 + r
        k("v_add_f32 %s, %s, %s" % (v(fb), fbits(r), v(vfg4)))
        k("v_mul_f32 %s, %s, %s" % (v(tmp + r), v(fb), v(ftw)))
        k("v_mul_f32 %s, %s, %s" % (v(tmp + 4 + r), v(fb), v(fa2)))
        k("v_mul_f32 %s, %s, %s" % (v(tmp + 8 + r), v(fb), v(fs2)))
    for r in range(4):
        k("v_cos_f32 %s, %s" % (v(TC + r), v(tmp + r)))
        k("v_sin_f32 %s, %s" % (v(TS + r), v(tmp + r)))
        k("v_cos_f32 %s, %s" % (v(Bm + r), v(tmp + 4 + r)))
        k("v_sin_f32 %s, %s" % (v(Bm + 4 + r), v(tmp + 4 + r)))
        k("v_cos_f32 %s, %s" % (v(S2re + r), v(tmp + 8 + r)))
        k("v_sin_f32 %s, %s" % (v(S2im + r), v(tmp + 8 + r)))
    for r in range(4):
        k("v_mul_f32 %s, %s, %s" % (v(TC + r), v(TC + r), v(sctw)))
        k("v_mul_f32 %s, %s, %s" % (v(TS + r), v(TS + r), v(sctw)))
        k("v_cvt_pk_bf16_f32 %s, %s, %s" % (v(A2re + r), v(Bm + r), v(Bm + 4 + r)))
        k("v_cvt_pk_bf16_f32 %s, -%s, %s" % (v(A2im + r), v(Bm + 4 + r), v(Bm + r)))
        k("v_xor_b32 %s, %s, %s" % (v(A2im + r), v(A2im + r), v(vsg)))
        k("v_mul_f32 %s, %s, %s" % (v(S2re + r), v(S2re + r), v(scs)))
        k("v_mul_f32 %s, %s, %s" % (v(S2im + r), fbits(-1 / 16), v(S2im + r)))
        k("v_cndmask_b32 %s, %s, %s, %s" % (v(S2im + r), v(S2im + r), v(t[7]), s(sM0, 2)))
        k("v_cvt_pk_bf16_f32 %s, %s, 0" % (v(S2re + r), v(S2re + r)))
        k("v_cvt_pk_bf16_f32 %s, %s, 0" % (v(S2im + r), v(S2im + r)))
        k("v_lshlrev_b32 %s, %s, %s" % (v(S2re + r), v(vsh), v(S2re + r)))
        k("v_lshlrev_b32 %s, %s, %s" % (v(S2im + r), v(vsh), v(S2im + r)))
    for i in range(8):
        k("v_mov_b32 %s, 0" % v(Bs + i))

    k("s_cmp_eq_u32 %s, 2" % s(sRole))
    k("s_cbranch_scc1 PREP_A_W1")
    k("v_lshl_add_u32 %s, %s, 3, %s" % (v(t[0]), v(vl), s(sLds)))
    k("s_waitcnt vmcnt(0)")
    for j in range(8):
        k("ds_read_b64_tr_b16 %s, %s offset:%d" % (v(A + 4 * j, 2), v(t[0]), j * PITCH))
        k("ds_read_b64_tr_b16 %s, %s offset:%d" % (v(A + 4 * j + 2, 2), v(t[0]), j * PITCH + 512))
    k("s_branch PREP_CORE")
    k.label("PREP_A_W1")
    for j in range(8):
        for i in range(4):
            k("v_perm_b32 %s, %s, %s, %s" % (v(A + 4 * j + i), v(RAW + 4 * (2 * i + 1) + (j >> 1)),
                                            v(RAW + 4 * (2 * i) + (j >> 1)), s(sSelHi if j & 1 else sSelLo)))

    k.label("PREP_CORE")
    if stamp:
        stamp(k, 1)
    for j in range(8):
        k("%s %s, %s, %s, 0" % (MF, v(D + 8 * j, 4), v(A + 4 * j, 4), v(B1re, 4)))
        k("%s %s, %s, %s, 0" % (MF, v(D + 8 * j + 4, 4), v(A + 4 * j, 4), v(B1im, 4)))
    for j in range(8):
        re, im = D + 8 * j, D + 8 * j + 4
        bm, bs = Bm + 4 * (j & 1), Bs + 4 * (j & 1)
        for h in (0, 2):
            k("v_pk_mul_f32 %s, %s, %s" % (v(tmp + h, 2), v(im + h, 2), v(TS + h, 2)))
            k("v_pk_mul_f32 %s, %s, %s" % (v(tmp + 4 + h, 2), v(re + h, 2), v(TS + h, 2)))
        for h in (0, 2):
            k("v_pk_fma_f32 %s, %s, %s, %s" % (v(tmp + h, 2), v(re + h, 2), v(TC + h, 2), v(tmp + h, 2)))
            k("v_pk_fma_f32 %s, %s, %s, %s neg_lo:[0,0,1] neg_hi:[0,0,1]"
              % (v(tmp + 4 + h, 2), v(im + h, 2), v(TC + h, 2), v(tmp + 4 + h, 2)))
        for r in range(4):
            k("v_cvt_pk_bf16_f32 %s, %s, %s" % (v(bm + r), v(tmp + r), v(tmp + 4 + r)))
        k("s_mov_b64 exec, %s" % s(sM0, 2))
        for r in range(4):
            k("v_cvt_pk_bf16_f32 %s, %s, %s" % (v(bs + r), v(re + r), v(im + r)))
        k("s_mov_b64 exec, -1")
        k("%s %s, %s, %s, 0" % (MF, v(re, 4), v(A2re, 4), v(bm, 4)))
        k("%s %s, %s, %s, 0" % (MF, v(im, 4), v(A2im, 4), v(bm, 4)))
        k("%s %s, %s, %s, %s" % (MF, v(re, 4), v(S2re, 4), v(bs, 4), v(re, 4)))
        k("%s %s, %s, %s, %s" % (MF, v(im, 4), v(S2im, 4), v(bs, 4), v(im, 4)))
    if stamp:
        stamp(k, 2)
    k("s_cmp_eq_u32 %s, 1" % s(sRole))
    k("s_cbranch_scc1 PREP_OUT_W2")
    k("s_cmp_eq_u32 %s, 2" % s(sRole))
    k("s_cbranch_scc1 PREP_OUT_W1")

    k("v_lshl_add_u32 %s, %s, 6, %s" % (v(t[0]), v(vg), v(vn)))
    k("v_lshlrev_b32 %s, 13, %s" % (v(t[0]), v(t[0])))
    k("s_lshl_b32 %s, %s, 5" % (s(sA), s(sT)))
    for r in range(4):
        for j in range(8):
            k("v_cvt_pk_bf16_f32 %s, %s, %s" % (v(O + 8 * r + j), v(D + 8 * j + r), v(D + 8 * j + 4 + r)))
        k("s_add_u32 %s, %s, 0x%x" % (s(sC), s(sA), L.X0 + r * 16 * 8192))
        k("buffer_store_dwordx4 %s, %s, %s, %s offen" % (v(O + 8 * r, 4), v(t[0]), s(WS, 4), s(sC)))
        k("buffer_store_dwordx4 %s, %s, %s, %s offen offset:16" % (v(O + 8 * r + 4, 4), v(t[0]), s(WS, 4), s(sC)))
    k("s_mov_b64 exec, 1")
    for j in range(8):
        k("v_mov_b32 %s, 0" % v(D + 8 * j + 4))
    k("s_mov_b64 exec, -1")
    for j in range(8):
        k("v_pk_mul_f32 %s, %s, %s" % (v(tmp + 2 * j, 2), v(D + 8 * j, 2), v(D + 8 * j, 2)))
    for h in (2, 4, 6):
        for j in range(8):
            k("v_pk_fma_f32 %s, %s, %s, %s" % (v(tmp + 2 * j, 2), v(D + 8 * j + h, 2), v(D + 8 * j + h, 2), v(tmp + 2 * j, 2)))
    for j in range(8):
        k("v_add_f32 %s, %s, %s" % (v(A + j), v(tmp + 2 * j), v(tmp + 2 * j + 1)))
    for j in range(4):
        k("v_permlane32_swap_b32 %s, %s" % (v(A + j), v(A + j + 4)))
    for j in range(4):
        k("v_add_f32 %s, %s, %s" % (v(A + j), v(A + j), v(A + j + 4)))
    for e in range(2):
        k("v_permlane16_swap_b32 %s, %s" % (v(A + e), v(A + e + 2)))
    for e in range(2):
        k("v_add_f32 %s, %s, %s" % (v(A + e), v(A + e), v(A + e + 2)))
    for sh in (8, 4, 2, 1):
        for e in range(2):
            k("v_add_f32_dpp %s, %s, %s row_ror:%d row_mask:0xf bank_mask:0xf" % (v(A + e), v(A + e), v(A + e), sh))
    k("v_lshlrev_b32 %s, 3, %s" % (v(t[0]), v(vg)))
    k("s_add_u32 %s, %s, 0x%x" % (s(sC), s(sA), L.SSQ0))
    k("s_mov_b64 exec, %s" % s(sM0, 2))
    k("buffer_store_dwordx2 %s, %s, %s, %s offen" % (v(A, 2), v(t[0]), s(WS, 4), s(sC)))
    if stamp:
        k("s_mov_b64 exec, -1")
        stamp(k, 3, final=True)
    k("s_endpgm")

    k.label("PREP_OUT_W2")
    k("s_cmp_eq_u32 s2, 224")
    k("s_cbranch_scc1 PREP_OUT_B2")
    sS, sU, sG = 45, 46, 47
    split14(k, sS, sU, sT)
    k("s_and_b32 %s, %s, 3" % (s(sB), s(sS)))
    k("s_lshr_b32 %s, %s, 2" % (s(sC), s(sU)))
    k("s_lshl_b32 %s, %s, 1" % (s(sA), s(sB)))
    k("s_add_u32 %s, %s, %s" % (s(sA), s(sA), s(sC)))
    k("s_add_u32 %s, %s, 8" % (s(sG), s(sB)))
    k("s_cmp_eq_u32 %s, 2" % s(sC))
    k("s_cselect_b32 %s, %s, %s" % (s(sA), s(sG), s(sA)))
    k("s_lshr_b32 %s, %s, 1" % (s(sG), s(sB)))
    k("s_add_u32 %s, %s, 12" % (s(sG), s(sG)))
    k("s_and_b32 %s, %s, 1" % (s(sB), s(sB)))
    k("s_lshl_b32 %s, %s, 1" % (s(sB), s(sB)))
    k("s_cmp_eq_u32 %s, 3" % s(sC))
    k("s_cselect_b32 %s, %s, %s" % (s(sA), s(sG), s(sA)))
    k("s_cselect_b32 %s, %s, 0" % (s(sB), s(sB)))
    k("s_and_b32 %s, %s, 3" % (s(sG), s(sU)))
    k("s_add_u32 %s, %s, %s" % (s(sG), s(sG), s(sB)))
    k("s_lshr_b32 %s, %s, 2" % (s(sB), s(sS)))
    k("s_mul_i32 %s, %s, 14" % (s(sB), s(sB)))
    k("s_add_u32 %s, %s, %s" % (s(sA), s(sA), s(sB)))
    k("s_lshl_b32 %s, %s, 12" % (s(sA), s(sA)))
    k("s_lshl_b32 %s, %s, 8" % (s(sG), s(sG)))
    k("s_add_u32 %s, %s, %s" % (s(sA), s(sA), s(sG)))
    k("v_lshrrev_b32 %s, 2, %s" % (v(t[1]), v(vn)))
    k("v_mul_u32_u24 %s, %d, %s" % (v(t[1]), PITCH, v(t[1])))
    k("v_and_b32 %s, 3, %s" % (v(t[2]), v(vn)))
    k("v_lshl_add_u32 %s, %s, 5, %s" % (v(t[1]), v(t[2]), v(t[1])))
    k("v_lshl_add_u32 %s, %s, 3, %s" % (v(t[1]), v(vg), v(t[1])))
    k("v_add_u32 %s, %s, %s" % (v(t[1]), s(sLds), v(t[1])))
    for dt in range(8):
        k("ds_read_b64_tr_b16 %s, %s offset:%d" % (v(A + 4 * dt, 2), v(t[1]), dt * 128))
        k("ds_read_b64_tr_b16 %s, %s offset:%d" % (v(A + 4 * dt + 2, 2), v(t[1]), dt * 128 + 4 * PITCH))
    k("v_mul_u32_u24 %s, %d, %s" % (v(t[0]), 2 * 229376, v(vg)))
    k("v_lshl_add_u32 %s, %s, 4, %s" % (v(t[0]), v(vn), v(t[0])))
    for r in range(4):
        k("s_add_u32 %s, %s, 0x%x" % (s(sC), s(sA), L.W2F + (r >> 1) * 229376 + (r & 1) * 2048))
        for ri in range(2):
            o = O + 8 * r + 4 * ri
            for i in range(4):
                k("v_cvt_pk_bf16_f32 %s, %s, %s" % (v(o + i), v(D + 16 * i + 4 * ri + r), v(D + 16 * i + 8 + 4 * ri + r)))
            k("buffer_store_dwordx4 %s, %s, %s, %s offen offset:%d" % (v(o, 4), v(t[0]), s(WS, 4), s(sC), ri * 1024))
    k("v_lshlrev_b32 %s, 10, %s" % (v(t[0]), v(vg)))
    k("v_lshl_add_u32 %s, %s, 4, %s" % (v(t[0]), v(vn), v(t[0])))
    for dt in range(8):
        k("s_add_u32 %s, %s, 0x%x" % (s(sC), s(sA), L.W2T + dt * 229376))
        k("buffer_store_dwordx4 %s, %s, %s, %s offen" % (v(A + 4 * dt, 4), v(t[0]), s(WS, 4), s(sC)))
    if stamp:
        stamp(k, 3, final=True)
    k("s_endpgm")
    k.label("PREP_OUT_B2")
    k("v_lshl_add_u32 %s, %s, 6, %s" % (v(t[0]), v(vg), v(vn)))
    k("v_lshlrev_b32 %s, 2, %s" % (v(t[0]), v(t[0])))
    k("s_mov_b32 %s, 0x%x" % (s(sC), L.B2F))
    for r in range(4):
        for ri in range(2):
            k("buffer_store_dword %s, %s, %s, %s offen offset:%d" % (v(D + 4 * ri + r), v(t[0]), s(WS, 4), s(sC), r * 64 + ri * 1024))
    k("s_endpgm")

    k.label("PREP_OUT_W1")
    split14(k, sS, sU, sT)
    k("s_lshr_b32 %s, %s, 2" % (s(sC), s(sU)))
    k("s_lshl_b32 %s, %s, 1" % (s(sA), s(sC)))
    k("s_mul_i32 %s, %s, 112" % (s(sB), s(sS)))
    k("s_add_u32 %s, %s, %s" % (s(sA), s(sA), s(sB)))
    k("s_cmp_lt_u32 %s, 2" % s(sC))
    k("s_cselect_b32 %s, 0, 60" % s(sB))
    k("s_movk_i32 %s, 0x1000" % s(sG))
    k("s_cselect_b32 %s, %s, 0xc00" % (s(sG), s(sG)))
    k("s_add_u32 %s, %s, %s" % (s(sA), s(sA), s(sB)))
    k("s_lshl_b32 %s, %s, 10" % (s(sA), s(sA)))
    k("s_and_b32 %s, %s, 3" % (s(sU), s(sU)))
    k("s_cmp_eq_u32 %s, 3" % s(sC))
    k("s_cselect_b32 %s, 7, 6" % s(sB))
    k("s_movk_i32 %s, 0x400" % s(sC))
    k("s_cselect_b32 %s, 64, %s" % (s(sC), s(sC)))
    k("s_lshl_b32 %s, %s, %s" % (s(sU), s(sU), s(sB)))
    k("s_add_u32 %s, %s, %s" % (s(sA), s(sA), s(sU)))
    k("s_add_u32 %s, %s, 0x%x" % (s(sA), s(sA), L.W1F))
    k("s_add_u32 %s, %s, %s" % (s(sC), s(sC), s(sA)))
    k("v_mul_u32_u24 %s, %s, %s" % (v(t[0]), s(sG), v(vn)))
    k("v_lshl_add_u32 %s, %s, 8, %s" % (v(t[0]), v(vg), v(t[0])))
    for j in range(8):
        for r in range(4):
            k("v_cvt_pk_bf16_f32 %s, %s, %s" % (v(O + 4 * j + r), v(D + 8 * j + r), v(D + 8 * j + 4 + r)))
        k("buffer_store_dwordx4 %s, %s, %s, %s offen offset:%d" % (v(O + 4 * j, 4), v(t[0]), s(WS, 4), s(sC if j >= 4 else sA), (j & 3) * 16))
    if stamp:
        stamp(k, 3, final=True)
    k("s_endpgm")

    k.label("PREP_MISC")
    sCb, sRb = 45, 46
    k("s_and_b32 %s, %s, 7" % (s(sCb), s(sB)))
    k("s_lshl_b32 %s, %s, 2" % (s(sRb), s(sA)))
    k("s_lshr_b32 %s, s2, 6" % s(sC))
    k("s_add_u32 %s, %s, %s" % (s(sRb), s(sRb), s(sC)))
    k("s_lshr_b32 %s, %s, 3" % (s(sA), s(sRb)))
    k("s_lshl_b32 %s, %s, 4" % (s(sA), s(sA)))
    k("s_and_b32 %s, %s, 7" % (s(sC), s(sRb)))
    k("s_lshl_b32 %s, %s, 8" % (s(sC), s(sC)))
    k("s_add_u32 %s, %s, %s" % (s(sA), s(sA), s(sC)))
    k("s_mul_i32 %s, %s, 514" % (s(sA), s(sA)))
    k("s_lshl_b32 %s, %s, 6" % (s(sC), s(sCb)))
    k("s_add_u32 %s, %s, %s" % (s(sA), s(sA), s(sC)))
    vn4, vc4 = t[1], t[2]
    k("v_lshrrev_b32 %s, 2, %s" % (v(vn4), v(vl)))
    k("v_and_b32 %s, 3, %s" % (v(vc4), v(vl)))
    k("v_mul_u32_u24 %s, 514, %s" % (v(t[0]), v(vn4)))
    k("v_lshl_add_u32 %s, %s, 4, %s" % (v(t[0]), v(vc4), v(t[0])))
    k("s_mov_b32 %s, %d" % (s(IN + 2), 2048 * 514))
    srd_words(k, IN2, 2048 * 514)
    k("s_mov_b64 %s, s[18:19]" % s(IN, 2))
    k("s_mov_b64 %s, s[20:21]" % s(IN2, 2))
    for r in range(4):
        k("s_add_u32 %s, %s, %d" % (s(sC), s(sA), r * 64 * 514 + 2))
        k("buffer_load_dwordx4 %s, %s, %s, %s offen" % (v(RAW + 8 * r, 4), v(t[0]), s(IN, 4), s(sC)))
        k("buffer_load_dwordx4 %s, %s, %s, %s offen" % (v(RAW + 8 * r + 4, 4), v(t[0]), s(IN2, 4), s(sC)))
    IN3 = 48
    srd_words(k, IN3, 3584)
    k("s_mov_b64 %s, s[26:27]" % s(IN3, 2))
    k("v_lshlrev_b32 %s, 1, %s" % (v(t[3]), v(vl)))
    k("s_lshl_b32 %s, s2, 4" % s(sC))
    k("buffer_load_ushort %s, %s, %s, %s offen" % (v(Bs), v(t[3]), s(IN3, 4), s(sC)))
    if code_bytes:
        k("s_getpc_b64 s[52:53]")
        k.raw("PREP_PC:")
        k("s_sub_u32 s52, s52, PREP_PC-%s" % name)
        k("s_subb_u32 s53, s53, 0")
        k("s_mov_b32 s54, CODE_END-%s" % name)
        k("s_mov_b32 s55, 0x20000")
        k("v_lshlrev_b32 %s, 7, %s" % (v(t[4]), v(vl)))
        k("s_lshl_b32 %s, %s, 13" % (s(sC), s(sB)))
        k("buffer_load_dword %s, %s, s[52:55], %s offen" % (v(Bs + 1), v(t[4]), s(sC)))
    for i in range(4):
        k("v_mov_b32 %s, 0" % v(Bm + i))
    k("v_lshlrev_b32 %s, 4, %s" % (v(t[4]), v(vl)))
    k("s_lshl_b32 %s, s2, 10" % s(sC))
    k("s_add_u32 %s, %s, 0x%x" % (s(sC), s(sC), L.FLAGS))
    assert L.FLAG_BYTES == 256 * 1024
    k("buffer_store_dwordx4 %s, %s, %s, %s offen" % (v(Bm, 4), v(t[4]), s(WS, 4), s(sC)))
    k("s_add_u32 %s, %s, 0x%x" % (s(sC), s(sC), L.GFLAGS - L.FLAGS))
    k("buffer_store_dwordx4 %s, %s, %s, %s offen" % (v(Bm, 4), v(t[4]), s(WS, 4), s(sC)))
    k("s_lshl_b32 %s, s2, 5" % s(sC))
    k("s_add_u32 %s, %s, 0x%x" % (s(sC), s(sC), L.SSQ2))
    k("s_mov_b64 exec, 3")
    k("buffer_store_dwordx4 %s, %s, %s, %s offen" % (v(Bm, 4), v(t[4]), s(WS, 4), s(sC)))
    k("s_mov_b64 exec, -1")
    sKs, sD0 = 47, 56
    k("s_bfe_u32 %s, s2, 0x40001" % s(sKs))
    k("s_lshr_b32 %s, s2, 5" % s(sD0))
    k("s_lshl_b32 %s, %s, 6" % (s(sD0), s(sD0)))
    k("s_and_b32 %s, s2, 1" % s(sC))
    k("s_lshl_b32 %s, %s, 3" % (s(sC), s(sC)))
    k("s_add_u32 %s, %s, %s" % (s(sD0), s(sD0), s(sC)))
    k("v_and_b32 %s, 12, %s" % (v(t[5]), v(vn)))
    k("v_and_b32 %s, 3, %s" % (v(t[4]), v(vn)))
    k("v_lshl_add_u32 %s, %s, 2, %s" % (v(t[4]), v(t[5]), v(t[4])))
    k("v_add_u32 %s, %s, %s" % (v(t[4]), s(sD0), v(t[4])))
    k("s_mov_b32 s58, 0")
    k("s_mov_b32 s59, -1")
    for i in range(4):
        kk = tmp + i
        k("v_lshl_add_u32 %s, %s, 7, %s" % (v(kk), v(vg), s(sKs)))
        k("v_add_u32 %s, %d, %s" % (v(kk), 32 * i, v(kk)))
        k("v_sub_u32 %s, 512, %s" % (v(t[5]), v(kk)))
        k("v_add_u32 %s, %d, %s" % (v(t[6]), -240, v(kk)))
        k("s_cmp_eq_u32 %s, 0" % s(sKs))
        k("s_cselect_b64 vcc, -1, 0")
        k("v_cndmask_b32 %s, %s, %s, vcc" % (v(t[5]), v(t[5]), v(t[6])))
        k("v_cndmask_b32 %s, %s, %s, s[58:59]" % (v(kk), v(kk), v(t[5])))
    k("v_cmp_eq_u32 vcc, 0, %s" % v(tmp))
    k("v_mov_b32 %s, 256" % v(t[5]))
    k("v_cndmask_b32 %s, %s, %s, vcc" % (v(tmp), v(tmp), v(t[5])))
    k("v_mov_b32 %s, %s" % (v(t[6]), fbits(1 / 16)))
    k("v_mov_b32 %s, %s" % (v(t[7]), s(sDC)))
    k("v_cndmask_b32 %s, %s, %s, vcc" % (v(t[5]), v(t[6]), v(t[7])))
    for e in range(2):
        for i in range(4):
            an, c, sn = tmp + 4 + i, tmp + 8 + i, tmp + 12 + i
            k("v_mul_u32_u24 %s, %s, %s" % (v(an), v(tmp + i), v(t[4])))
            k("v_and_b32 %s, 511, %s" % (v(an), v(an)))
            k("v_cvt_f32_u32 %s, %s" % (v(an), v(an)))
            k("v_mul_f32 %s, %s, %s" % (v(an), fbits(1 / 512), v(an)))
            k("v_cos_f32 %s, %s" % (v(c), v(an)))
            k("v_sin_f32 %s, %s" % (v(sn), v(an)))
        for i in range(4):
            c, sn = tmp + 8 + i, tmp + 12 + i
            k("v_mul_f32 %s, %s, %s" % (v(c), v(t[5] if i == 0 else t[6]), v(c)))
            k("v_mul_f32 %s, %s, %s" % (v(sn), fbits(-1 / 16), v(sn)))
            if i == 0:
                k("v_cndmask_b32 %s, %s, %s, vcc" % (v(sn), v(sn), v(t[7])))
            k("v_cvt_pk_bf16_f32 %s, %s, %s" % (v(A + 4 * e + i), v(c), v(sn)))
        if e == 0:
            k("v_add_u32 %s, 4, %s" % (v(t[4]), v(t[4])))
    k("v_lshlrev_b32 %s, 4, %s" % (v(t[4]), v(vl)))
    k("s_lshl_b32 %s, s2, 11" % s(sC))
    k("s_add_u32 %s, %s, 0x%x" % (s(sC), s(sC), L.FT))
    k("buffer_store_dwordx4 %s, %s, %s, %s offen" % (v(A, 4), v(t[4]), s(WS, 4), s(sC)))
    k("buffer_store_dwordx4 %s, %s, %s, %s offen offset:1024" % (v(A + 4, 4), v(t[4]), s(WS, 4), s(sC)))
    q0, qs, q7 = t[4], t[5], t[6]
    k("s_lshl_b32 %s, %s, 4" % (s(sA), s(sCb)))
    k("s_add_u32 %s, %s, 1" % (s(sB), s(sA)))
    k("v_lshl_add_u32 %s, %s, 3, %s" % (v(q0), v(vc4), s(sB)))
    k("s_sub_u32 %s, 271, %s" % (s(sB), s(sA)))
    k("v_lshlrev_b32 %s, 3, %s" % (v(t[7]), v(vc4)))
    k("v_sub_u32 %s, %s, %s" % (v(t[7]), s(sB), v(t[7])))
    k("v_cmp_lt_u32 vcc, 1, %s" % v(vc4))
    k("v_cndmask_b32 %s, %s, %s, vcc" % (v(q0), v(q0), v(t[7])))
    k("v_cndmask_b32 %s, 1, -1, vcc" % v(qs))
    k("s_add_u32 %s, %s, 128" % (s(sB), s(sA)))
    k("s_add_u32 %s, %s, 16" % (s(sC), s(sA)))
    k("s_and_b32 %s, %s, 127" % (s(sC), s(sC)))
    k("v_mov_b32 %s, %s" % (v(q7), s(sB)))
    k("v_mov_b32 %s, %s" % (v(t[7]), s(sC)))
    k("v_cndmask_b32 %s, %s, %s, vcc" % (v(q7), v(q7), v(t[7])))
    k("v_mad_i32_i24 %s, %s, 7, %s" % (v(t[7]), v(qs), v(q0)))
    k("s_mov_b32 vcc_lo, 0xaaaaaaaa")
    k("s_mov_b32 vcc_hi, 0xaaaaaaaa")
    k("v_cndmask_b32 %s, %s, %s, vcc" % (v(q7), v(t[7]), v(q7)))
    k("v_lshlrev_b32 %s, 4, %s" % (v(vn4), v(vn4)))
    k("v_lshl_add_u32 %s, %s, 13, %s" % (v(q0), v(q0), v(vn4)))
    k("v_lshl_add_u32 %s, %s, 13, %s" % (v(q7), v(q7), v(vn4)))
    k("v_lshlrev_b32 %s, 13, %s" % (v(qs), v(qs)))
    k("s_lshl_b32 %s, %s, 8" % (s(sC), s(sRb)))
    k("s_add_u32 %s, %s, 0x%x" % (s(sC), s(sC), L.WT))
    for e in range(8):
        for r in range(4):
            k("v_perm_b32 %s, %s, %s, %s" % (v(O + 4 * e + r), v(RAW + 8 * r + 4 + (e >> 1)), v(RAW + 8 * r + (e >> 1)),
                                            s(sSelHi if e & 1 else sSelLo)))
        k("buffer_store_dwordx4 %s, %s, %s, %s offen" % (v(O + 4 * e, 4), v(q7 if e == 7 else q0), s(WS, 4), s(sC)))
        if e < 6:
            k("v_add_u32 %s, %s, %s" % (v(q0), v(q0), v(qs)))
    k("s_cmp_ge_u32 s2, 224")
    k("s_cbranch_scc1 PREP_END")
    k("v_lshlrev_b32 %s, 16, %s" % (v(Bs), v(Bs)))
    split14(k, sA, sB, 2)
    k("s_mul_i32 %s, %s, 448" % (s(sA), s(sA)))
    k("s_lshr_b32 %s, %s, 2" % (s(sC), s(sB)))
    k("s_and_b32 %s, %s, 3" % (s(sB), s(sB)))
    k("s_cmp_eq_u32 %s, 3" % s(sC))
    k("s_cselect_b32 %s, 5, 4" % s(sKs))
    k("s_cselect_b32 %s, 16, 64" % s(sD0))
    k("s_lshl_b32 %s, %s, %s" % (s(sB), s(sB), s(sKs)))
    k("s_lshl_b32 %s, %s, 7" % (s(sC), s(sC)))
    k("s_add_u32 %s, %s, %s" % (s(sC), s(sC), s(sA)))
    k("s_add_u32 %s, %s, %s" % (s(sC), s(sC), s(sB)))
    k("s_add_u32 %s, %s, 0x%x" % (s(sC), s(sC), L.B1X))
    k("v_lshrrev_b32 %s, 2, %s" % (v(t[3]), v(vl)))
    k("v_mul_u32_u24 %s, %s, %s" % (v(t[3]), s(sD0), v(t[3])))
    k("v_lshl_add_u32 %s, %s, 2, %s" % (v(t[3]), v(vc4), v(t[3])))
    k("s_mov_b64 exec, 0xff")
    k("buffer_store_dword %s, %s, %s, %s offen" % (v(Bs), v(t[3]), s(WS, 4), s(sC)))
    if stamp:
        k("s_mov_b64 exec, -1")
        stamp(k, 3, final=True)
    k.label("PREP_END")
    k("s_endpgm")
    return k
```

```python
import sys, argparse
import layout as L
import k_prep, k_main
from asmlib import v, s

HEADER = open("interleave_layers__spectral_gfnet__mixer_channel_mlp__prompt.s.ref").read().split("; Override launch")[0]


def make_stamp(kidx, base=60):
    names = []

    def stamp(k, name, final=False):
        if name not in names:
            names.append(name)
        i = names.index(name)
        assert base + 2 * i < 99
        k("s_memrealtime %s" % s(base + 2 * i, 2))
        if i == 0:
            if kidx is not None:
                k("s_mov_b32 s101, %d" % kidx)
            k("s_waitcnt lgkmcnt(0)")
            stamp(k, "karg")
        if final:
            k("s_waitcnt vmcnt(0)")
            stamp(k, "drain")
            k("v_lshrrev_b32 v255, 6, v0")
            k("v_lshlrev_b32 v254, 7, v255")
            k("s_lshl_b32 s101, s101, 17")
            k("s_lshl_b32 s100, s2, 9")
            k("s_add_u32 s101, s101, s100")
            k("s_add_u32 s101, s101, 0x%x" % L.STAMP)
            k("s_mov_b64 exec, 1")
            k("s_getreg_b32 s100, hwreg(HW_REG_XCC_ID)")
            k("v_mov_b32 v255, s100")
            k("buffer_store_dword v255, v254, s[4:7], s101 offen offset:124")
            for j in range(len(names)):
                k("v_mov_b32 v255, %s" % s(base + 2 * j))
                k("buffer_store_dword v255, v254, s[4:7], s101 offen offset:%d" % (4 * j))
            k.comment("STAMPS %s: %s" % (kidx, " ".join(str(n) for n in names)))
    return stamp


def generate(stamps=False, upto=99, opts=None):
    opts = opts or {}
    launches, bodies, descs = [], [], []
    kp = k_prep.build("prep_kernel", code_bytes=opts.get("cpf", 1), stamp=make_stamp(0) if stamps else None)
    km = k_main.build("main_kernel", stamp=make_stamp(1, 48) if stamps else None, opts=opts)
    bodies += [kp, km]
    descs += [kp.descriptor("prep_kernel"), km.descriptor("main_kernel")]
    seq = [("prep_kernel", k_prep.LDS_BYTES), ("main_kernel", k_main.LDS_BYTES)]
    seq = seq[:upto]
    out = HEADER
    for nm, lds in seq:
        out += "; @launch kernel=%s grid=(256,1,1) block=(256,1,1) lds=%d\n" % (nm, lds)
    out += '.amdgcn_target "amdgcn-amd-amdhsa--gfx950"\n.text\n'
    for b in bodies:
        out += b.text()
        sys.stderr.write("%s: v%d a%d s%d nops=%d %s\n" % (b.name, b.max["v"] + 1, b.max["a"] + 1, b.max["s"] + 1, b.nops, b.count))
    out += "CODE_END:\n"
    out += '.section .rodata,"a"\n' + "".join(descs)
    return out


if __name__ == "__main__":
    ap = argparse.ArgumentParser()
    ap.add_argument("-o", default="out.s")
    ap.add_argument("--stamps", action="store_true")
    ap.add_argument("--upto", type=int, default=99)
    ap.add_argument("--opt", action="append", default=[])
    args = ap.parse_args()
    opts = {}
    for o in args.opt:
        kk, _, vv = o.partition("=")
        opts[kk] = int(vv) if vv else 1
    open(args.o, "w").write(generate(args.stamps, args.upto, opts))
```

```python
from asmlib import Kernel, Alloc, v, a, s, fbits
import layout as L

MF = "v_mfma_f32_16x16x32_bf16"
LDS_BYTES = 163840
WB = 65536
PRIV = 114688
WS = "s[4:7]"
C0 = -2 * 0.7978845608028654 * 1.4426950408889634
C1 = C0 * 0.044715
EPS = 1e-5
TILE = 57344

vrA, vP = 1, 2
sWv, sP, sI, sPhi, sCt, sRB, sX, sW1, sT, sU, sW2, sHst, sFl, sPl, sV = 3, 12, 13, 14, 15, 16, 17, 18, 19, 20, 21, 22, 23, 24, 25
sHA, sHB, sH6, sHt, sQ, sG = 26, 27, 28, 30, 34, 35


class Main:
    def __init__(self, name, stamp, opts):
        self.o = opts or {}
        self.k = Kernel(name)
        self.name = name
        self.stamp = stamp
        self.queue = []
        self.issued = {}
        self.nlab = 0

    def st(self, n, **kw):
        pr = self.o.get("probe")
        if pr:
            k, key = self.k, "%s%d" % (n, self.layer)
            if key == pr[0]:
                k("s_memrealtime s[90:91]")
            if key == pr[1]:
                k("s_memrealtime s[92:93]")
            if n == "end":
                k("s_waitcnt vmcnt(0) lgkmcnt(0)")
                k("s_memrealtime s[94:95]")
                k("s_sub_u32 s90, s92, s90")
                k("s_min_u32 s90, s90, 20000")
                k("s_lshl_b32 s90, s90, 3")
                k("s_cmp_lg_u32 s2, %d" % self.o.get("pwg", 0))
                k("s_cbranch_scc1 MAIN_END")
                k.label("SPIN")
                k("s_memrealtime s[96:97]")
                k("s_waitcnt lgkmcnt(0)")
                k("s_sub_u32 s96, s96, s94")
                k("s_cmp_lt_u32 s96, s90")
                k("s_cbranch_scc1 SPIN")
        if self.stamp and (n in ("start", "end") or self.o.get("stl", 0) == self.layer):
            self.stamp(self.k, n, **kw)

    def dma(self, vv, ss, off, tag, sc=""):
        def op():
            self.issued[tag] = self.issued.get(tag, 0) + 1
            self.k("buffer_load_dwordx4 %s, %s, %s offen offset:%d%s lds" % (v(vv), WS, s(ss), off, sc), tag=tag)
        return op

    def setup(self, m0base, m0off, sd, sbase, off):
        def op():
            self.k("s_add_u32 m0, %s, %d" % (s(m0base), m0off))
            self.k("s_add_u32 %s, %s, %d" % (s(sd), s(sbase), off))
        return op

    def issue(self, ops):
        for su, ld in ops:
            if su:
                su()
            ld()

    def side(self, n=1):
        for _ in range(n):
            if self.queue:
                self.issue([self.queue.pop(0)])

    def w2_ops(self):
        k, ops = self.k, []
        for kf in range(14):
            for c in range(4):
                su = None
                if c == 0:
                    su = lambda kf=kf: k("s_add_u32 %s, %s, %d" % (s(sU), s(sW2), kf * 4096))
                if c == 2:
                    su = lambda: k("s_xor_b32 %s, %s, 0x800" % (s(sU), s(sU)))
                ops.append((su, lambda kf=kf, c=c: k("buffer_load_dwordx4 %s, %s, %s, %s offen offset:%d"
                                                     % (a(16 * kf + 4 * c, 4), v(vrA), WS, s(sU), (c & 1) * 1024))))
        return ops

    def publish(self, tag, vval, sflag):
        k = self.k
        k.wait_tag(tag)
        k("s_mov_b64 exec, 1")
        k("buffer_store_dword %s, %s, %s, %s offen sc1" % (v(vval), v(vrA), WS, s(sflag)))
        k("s_mov_b64 exec, -1")

    def poll_issue(self, voff, sbase, n=1):
        self.k("buffer_load_dword%s %s, %s, %s, %s offen sc1" % ("x4" if n == 4 else "", v(vP, n), v(voff), WS, s(sbase)))

    def poll_check(self, voff, sbase, n=1):
        k = self.k
        self.nlab += 1
        go, again = "GO%d" % self.nlab, "POLL%d" % self.nlab

        def test():
            if n == 4:
                k("v_min3_u32 %s, %s, %s, %s" % (v(vP), v(vP), v(vP + 1), v(vP + 2)))
                k("v_min_u32 %s, %s, %s" % (v(vP), v(vP), v(vP + 3)))
            k("v_cmp_eq_u32 vcc, 0, %s" % v(vP))
        test()
        k("s_cbranch_vccz " + go)
        k("s_mov_b32 %s, 0" % s(sV))
        k.label(again)
        k("s_mov_b64 exec, vcc")
        self.poll_issue(voff, sbase, n)
        k("s_add_u32 %s, %s, 1" % (s(sV), s(sV)))
        k("s_waitcnt vmcnt(0)")
        test()
        k("s_cmp_lt_u32 %s, 0x8000" % s(sV))
        k("s_cselect_b64 vcc, vcc, 0")
        k("s_cbranch_vccnz " + again)
        k("s_mov_b64 exec, -1")
        k.label(go)

    def col_alloc(self):
        va = Alloc(6, 256)
        r = self.c = type("R", (), {})()
        r.voff, r.vwr, r.vrd, r.vfg4, r.vfk, r.vfn, r.vsn, r.veps = (va() for _ in range(8))
        r.t = [va() for _ in range(5)]
        r.XR, r.SQ, r.WR = va(8, 4), va(8, 4), va(8, 4)
        r.C64, r.C32 = va(32, 4), va(32, 4)
        r.T1C, r.T1S, r.T2C, r.T2S, r.WC, r.WS = (va(8, 4) for _ in range(6))
        r.XF, r.FR, r.AC, r.PK, r.tmp = va(16, 4), va(32, 4), va(16, 4), va(8, 4), va(16, 4)

    def col_addr(self):
        k, r = self.k, self.c
        k("v_lshrrev_b32 %s, 6, v0" % v(r.t[0]))
        k("v_lshl_add_u32 %s, %s, 11, %s" % (v(r.voff), v(r.t[0]), v(vrA)))

    def col_load_w(self):
        k, r = self.k, self.c
        k("s_add_u32 %s, %s, 0x%x" % (s(sT), s(sQ), L.WT))
        for b in range(2):
            k("buffer_load_dwordx4 %s, %s, %s, %s offen offset:%d" % (v(r.WR + 4 * b, 4), v(r.voff), WS, s(sT), 1024 * b))

    def col_load_x(self):
        k, r, li = self.k, self.c, self.layer
        sc = " sc1" if li else ""
        k("s_mov_b32 %s, 0x%x" % (s(sV), (L.SSQ0, L.SSQ2)[li]))
        k("s_add_u32 %s, %s, 0x%x" % (s(sT), s(sQ), (L.X0, L.X2)[li]))
        for b in range(2):
            k("buffer_load_dwordx4 %s, %s, %s, %s offen offset:%d%s" % (v(r.SQ + 4 * b, 4), v(r.voff), WS, s(sV), 1024 * b, sc))
            k("buffer_load_dwordx4 %s, %s, %s, %s offen offset:%d%s" % (v(r.XR + 4 * b, 4), v(r.voff), WS, s(sT), 1024 * b, sc))

    def col_consts(self):
        r, out = self.c, []
        k, t, tmp = out.append, r.t, r.tmp
        k("v_add_u32 %s, %s, %s" % (v(r.vwr), s(sRB), v(vrA)))
        k("v_add_u32 %s, %d, %s" % (v(r.vrd), PRIV, v(vrA)))
        k("v_bfe_u32 %s, v0, 4, 2" % v(t[1]))
        k("v_lshlrev_b32 %s, 2, %s" % (v(t[1]), v(t[1])))
        k("v_cvt_f32_u32 %s, %s" % (v(r.vfg4), v(t[1])))
        k("v_and_b32 %s, 15, v0" % v(t[2]))
        k("v_cvt_f32_u32 %s, %s" % (v(r.vfn), v(t[2])))
        k("v_lshl_add_u32 %s, %s, 4, %s" % (v(t[2]), v(t[0]), v(t[2])))
        k("v_cvt_f32_u32 %s, %s" % (v(r.vfk), v(t[2])))
        k("v_lshl_add_u32 %s, %s, 4, %s" % (v(t[2]), v(t[0]), v(t[1])))
        k("v_cvt_f32_u32 %s, %s" % (v(t[2]), v(t[2])))
        k("v_and_b32 %s, 1, v0" % v(r.vsn))
        k("v_mul_u32_u24 %s, 0x8000, %s" % (v(r.vsn), v(r.vsn)))
        k("v_lshl_or_b32 %s, %s, 16, %s" % (v(r.vsn), v(r.vsn), v(r.vsn)))
        k("v_mov_b32 %s, %s" % (v(r.veps), fbits(EPS * 2.0 ** 22)))
        f, b0 = t[3], t[4]
        k("v_mul_f32 %s, %s, %s" % (v(f), fbits(1 / 64), v(r.vfk)))
        k("v_mul_f32 %s, %s, %s" % (v(b0), v(f), v(r.vfg4)))
        for i in range(8):
            k("v_fmamk_f32 %s, %s, %s, %s" % (v(r.T1C + i), v(f), fbits(16 * (i >> 2) + (i & 3)), v(b0)))
        for i in range(8):
            k("v_sin_f32 %s, %s" % (v(tmp + 8 + i), v(r.T1C + i)))
            k("v_cos_f32 %s, %s" % (v(tmp + i), v(r.T1C + i)))
        for i in range(8):
            ks, rr = i >> 2, i & 3
            k("v_cvt_pk_bf16_f32 %s, %s, %s" % (v(r.C64 + 8 * ks + rr), v(tmp + i), v(tmp + 8 + i)))
            k("v_cvt_pk_bf16_f32 %s, -%s, %s" % (v(r.C64 + 8 * ks + 4 + rr), v(tmp + 8 + i), v(tmp + i)))
        for i in range(16):
            k("v_xor_b32 %s, %s, %s" % (v(r.C64 + 16 + i), v(r.vsn), v(r.C64 + i)))
        self.n_first = len(out)
        for i in range(8):
            k("v_mul_f32 %s, %s, %s" % (v(r.T1C + i), fbits(1 / 32), v(r.T1C + i)))
        for i in range(8):
            k("v_sin_f32 %s, %s" % (v(r.T1S + i), v(r.T1C + i)))
            k("v_cos_f32 %s, %s" % (v(r.T1C + i), v(r.T1C + i)))
        k("v_mul_f32 %s, %s, %s" % (v(f), fbits(1 / 32), v(r.vfn)))
        k("v_mul_f32 %s, %s, %s" % (v(b0), v(f), v(r.vfg4)))
        for rr in range(4):
            k("v_fmamk_f32 %s, %s, %s, %s" % (v(r.T2C + rr), v(f), fbits(rr), v(b0)))
        for rr in range(4):
            k("v_sin_f32 %s, %s" % (v(r.T2S + rr), v(r.T2C + rr)))
            k("v_cos_f32 %s, %s" % (v(r.T2C + rr), v(r.T2C + rr)))
        for rr in range(4):
            k("v_cvt_pk_bf16_f32 %s, %s, %s" % (v(r.C32 + rr), v(r.T2C + rr), v(r.T2S + rr)))
            k("v_cvt_pk_bf16_f32 %s, -%s, %s" % (v(r.C32 + 4 + rr), v(r.T2S + rr), v(r.T2C + rr)))
        for i in range(8):
            k("v_xor_b32 %s, %s, %s" % (v(r.C32 + 8 + i), v(r.vsn), v(r.C32 + i)))
        for i in range(16):
            if i & 1:
                k("v_xor_b32 %s, 0x80008000, %s" % (v(r.C32 + 16 + i), v(r.C32 + i)))
            else:
                k("v_mov_b32 %s, %s" % (v(r.C32 + 16 + i), v(r.C32 + i)))
        for bt in range(2):
            if bt == 0:
                k("v_mul_f32 %s, %s, %s" % (v(f), fbits(1 / 2048), v(r.vfn)))
            else:
                k("v_add_f32 %s, %s, %s" % (v(f), fbits(16 / 2048), v(f)))
            k("v_mul_f32 %s, %s, %s" % (v(b0), v(f), v(t[2])))
            for rr in range(4):
                k("v_fmamk_f32 %s, %s, %s, %s" % (v(r.T2C + 4 * bt + rr), v(f), fbits(rr), v(b0)))
        for i in range(8):
            k("v_sin_f32 %s, %s" % (v(r.T2S + i), v(r.T2C + i)))
            k("v_cos_f32 %s, %s" % (v(r.T2C + i), v(r.T2C + i)))
        return out

    def col_unpack_w(self):
        r = self.c
        return [x for i in range(8) for x in ("v_lshlrev_b32 %s, 16, %s" % (v(r.WC + i), v(r.WR + i)),
                                              "v_and_b32 %s, 0xffff0000, %s" % (v(r.WS + i), v(r.WR + i)))]

    def cmul(self, re, im, c, sn, conj):
        k, tmp = self.k, self.c.tmp
        for h in (0, 2):
            k("v_pk_mul_f32 %s, %s, %s" % (v(tmp + h, 2), v(im + h, 2), v(sn + h, 2)))
            k("v_pk_mul_f32 %s, %s, %s" % (v(tmp + 4 + h, 2), v(re + h, 2), v(sn + h, 2)))
        neg = " neg_lo:[0,0,1] neg_hi:[0,0,1]"
        for h in (0, 2):
            k("v_pk_fma_f32 %s, %s, %s, %s%s" % (v(tmp + h, 2), v(re + h, 2), v(c + h, 2), v(tmp + h, 2), neg if conj else ""))
            k("v_pk_fma_f32 %s, %s, %s, %s%s" % (v(tmp + 4 + h, 2), v(im + h, 2), v(c + h, 2), v(tmp + 4 + h, 2), "" if conj else neg))

    def col_compute(self, late):
        k, r, li = self.k, self.c, self.layer
        tmp, late = r.tmp, list(late)

        def fill(n):
            for _ in range(n):
                if late:
                    k(late.pop(0))
        for b in range(2):
            for rr in range(4):
                k("v_fmamk_f32 %s, %s, %s, %s" % (v(r.SQ + 4 * b + rr), v(r.SQ + 4 * b + rr), fbits(2.0 ** 13), v(r.veps)))
            for rr in range(4):
                k("v_rsq_f32 %s, %s" % (v(r.SQ + 4 * b + rr), v(r.SQ + 4 * b + rr)))
            for rr in range(4):
                k("v_lshlrev_b32 %s, 16, %s" % (v(r.XF + 8 * b + rr), v(r.XR + 4 * b + rr)))
                k("v_and_b32 %s, 0xffff0000, %s" % (v(r.XF + 8 * b + 4 + rr), v(r.XR + 4 * b + rr)))
            for h in (0, 2):
                k("v_pk_mul_f32 %s, %s, %s" % (v(tmp + h, 2), v(r.XF + 8 * b + h, 2), v(r.SQ + 4 * b + h, 2)))
                k("v_pk_mul_f32 %s, %s, %s" % (v(tmp + 4 + h, 2), v(r.XF + 8 * b + 4 + h, 2), v(r.SQ + 4 * b + h, 2)))
            for rr in range(4):
                k("v_cvt_pk_bf16_f32 %s, %s, %s" % (v(r.PK + 4 * b + rr), v(tmp + rr), v(tmp + 4 + rr)))
        k("s_cmp_lg_u32 s2, 0")
        k("s_cbranch_scc1 COL_A%d" % li)
        for i in range(8):
            k("v_and_b32 %s, 0xffff, %s" % (v(r.PK + i), v(r.PK + i)))
        k.label("COL_A%d" % li)
        for b in range(2):
            k("ds_write_b128 %s, %s offset:%d" % (v(r.vwr), v(r.PK + 4 * b, 4), 1024 * b))
        fill(12)
        k("s_waitcnt lgkmcnt(0)")
        k("s_barrier")
        for bt in range(2):
            for ks in range(4):
                k("ds_read_b128 %s, %s offset:%d" % (v(r.FR + 16 * bt + 4 * ks, 4), v(r.vrd), 12288 * ks + 1024 * bt))
        fill(max(12, len(late) - 24))
        self.st("c_x1")
        for bt in range(2):
            for ri in range(2):
                for ks in range(4):
                    d = v(r.AC + 8 * bt + 4 * ri, 4)
                    k("%s %s, %s, %s, %s" % (MF, d, v(r.FR + 16 * bt + 4 * ks, 4), v(r.C64 + 8 * ks + 4 * ri, 4), d if ks else "0"))
                    fill(1 if late and "_sin" in late[0] or late and "_cos" in late[0] else 2)
        fill(len(late))
        for bt in range(2):
            self.cmul(r.AC + 8 * bt, r.AC + 8 * bt + 4, r.T1C + 4 * bt, r.T1S + 4 * bt, False)
            for rr in range(4):
                k("v_cvt_pk_bf16_f32 %s, %s, %s" % (v(r.PK + 4 * bt + rr), v(tmp + rr), v(tmp + 4 + rr)))
        for kt in range(2):
            for ri in range(2):
                for ks in range(2):
                    d = v(r.FR + 8 * kt + 4 * ri, 4)
                    k("%s %s, %s, %s, %s" % (MF, d, v(r.C32 + 16 * kt + 8 * ks + 4 * ri, 4), v(r.PK + 4 * ks, 4), d if ks else "0"))
        P2 = r.FR + 16
        for kt in range(2):
            self.cmul(r.FR + 8 * kt, r.FR + 8 * kt + 4, r.WC + 4 * kt, r.WS + 4 * kt, True)
            for rr in range(4):
                k("v_cvt_pk_bf16_f32 %s, %s, %s" % (v(P2 + 4 * kt + rr), v(tmp + 4 + rr), v(tmp + rr)))
        for bt in range(2):
            for ri in range(2):
                for ks in range(2):
                    d = v(r.AC + 8 * bt + 4 * (1 - ri), 4)
                    k("%s %s, %s, %s, %s" % (MF, d, v(P2 + 4 * ks, 4), v(r.C32 + 16 * bt + 8 * ks + 4 * ri, 4), d if ks else "0"))
        for bt in range(2):
            self.cmul(r.AC + 8 * bt, r.AC + 8 * bt + 4, r.T2C + 4 * bt, r.T2S + 4 * bt, True)
            for rr in range(4):
                k("v_cvt_pk_bf16_f32 %s, %s, %s" % (v(r.PK + 4 * bt + rr), v(tmp + 4 + rr), v(tmp + rr)))
            k("ds_write_b128 %s, %s offset:%d" % (v(r.vwr), v(r.PK + 4 * bt, 4), 2048 + 1024 * bt))
        k("s_add_u32 %s, %s, 0x%x" % (s(sT), s(sQ), (L.X1, L.X3)[li]))
        k("s_waitcnt lgkmcnt(0)")
        k("s_barrier")
        for bt in range(2):
            for ks in range(4):
                k("ds_read_b128 %s, %s offset:%d" % (v(r.FR + 16 * bt + 4 * ks, 4), v(r.vrd), 2048 + 12288 * ks + 1024 * bt))
        self.st("c_x2")
        for bt in range(2):
            for ri in range(2):
                for ks in range(4):
                    d = v(r.XF + 8 * bt + 4 * (1 - ri), 4)
                    k("%s %s, %s, %s, %s" % (MF, d, v(r.C64 + 8 * ks + 4 * ri, 4), v(r.FR + 16 * bt + 4 * ks, 4), d))
        k("s_cmp_lg_u32 s2, 0")
        for bt in range(2):
            for rr in range(4):
                k("v_cvt_pk_bf16_f32 %s, %s, %s" % (v(r.PK + 4 * bt + rr), v(r.XF + 8 * bt + rr), v(r.XF + 8 * bt + 4 + rr)))
            k("s_cbranch_scc1 COL_B%d%d" % (li, bt))
            k("s_mov_b32 %s, 0xffff" % s(sV))
            for rr in range(4):
                k("v_bfi_b32 %s, %s, %s, %s" % (v(r.PK + 4 * bt + rr), s(sV), v(r.PK + 4 * bt + rr), v(r.XR + 4 * bt + rr)))
            k.label("COL_B%d%d" % (li, bt))
            k("buffer_store_dwordx4 %s, %s, %s, %s offen offset:%d sc1" % (v(r.PK + 4 * bt, 4), v(r.voff), WS, s(sT), 1024 * bt), tag="xs")
        self.st("c_end")

    def mlp(self):
        k, o, li = self.k, self.o, self.layer
        D, PD, CH = o.get("D", 6), o.get("PD", 14), o.get("CH", 2)
        FS = o.get("FS", 64)
        XIN, H = (L.X1, L.X3)[li], (L.H1, L.H2)[li]
        TS = TILE if li == 0 else 4 * TILE
        va = Alloc(3, 256)
        vX, vX2, vrX, vH6, vB1, vA2, vF = (va() for _ in range(7))
        vS, vC = va(2), va(2)
        tmp = va(16, 4)
        t = [tmp + i for i in range(8)]
        XB, ACC, AF = va(128, 4), va(64, 4), va(32, 4)
        SSQ = ACC + 56
        acc1 = lambda ft, tt: ACC + 16 * (ft >> 1) + 8 * tt + 4 * (ft & 1) if ft < 6 else ACC + 48 + 4 * tt
        queue, side = self.queue, self.side

        side(o.get("N1", 14))
        k("s_lshl_b32 %s, %s, 8" % (s(sV), s(sWv)))
        k("s_add_u32 %s, %s, s2" % (s(sV), s(sV)))
        k("s_mul_i32 %s, %s, %d" % (s(sV), s(sV), FS))
        k("s_add_u32 %s, %s, 0x%x" % (s(sV), s(sV), L.GFLAGS + 131072 * li))
        k("v_mov_b32 %s, %s" % (v(vC), fbits(C1)))
        self.publish("xs", vC, sV)
        self.st("s_pub")
        pre = []
        P = pre.append
        P("v_mov_b32 %s, %s" % (v(vC + 1), fbits(C0)))
        P("v_lshrrev_b32 %s, 6, v0" % v(t[0]))
        P("v_bfe_u32 %s, v0, 3, 2" % v(t[1]))
        P("v_lshlrev_b32 %s, 19, %s" % (v(vX), v(t[1])))
        P("v_bfe_u32 %s, v0, 5, 1" % v(t[1]))
        P("v_lshl_add_u32 %s, %s, 17, %s" % (v(vX), v(t[1]), v(vX)))
        P("v_and_b32 %s, 7, v0" % v(t[1]))
        P("v_lshl_add_u32 %s, %s, 4, %s" % (v(vX), v(t[1]), v(vX)))
        P("v_lshl_add_u32 %s, %s, 7, %s" % (v(vX), v(t[0]), v(vX)))
        P("v_add_u32 %s, %d, %s" % (v(vX2), 32 * 8192 - 1024, v(vX)))
        P("v_lshrrev_b32 %s, 1, %s" % (v(t[1]), v(vrA)))
        P("v_add_u32 %s, %s, %s" % (v(vrX), s(sRB), v(t[1])))
        P("v_and_b32 %s, 48, v0" % v(t[1]))
        P("v_add_u32 %s, %s, %s" % (v(vB1), s(sRB), v(t[1])))
        P("v_add_u32 %s, %d, %s" % (v(vA2), WB, v(vrA)))
        P("v_bfe_u32 %s, v0, 4, 1" % v(t[1]))
        P("v_mul_u32_u24 %s, %d, %s" % (v(vH6), TS, v(t[1])))
        P("v_bfe_u32 %s, v0, 5, 1" % v(t[1]))
        P("v_lshl_add_u32 %s, %s, 8, %s" % (v(vH6), v(t[1]), v(vH6)))
        P("v_and_b32 %s, 15, v0" % v(t[1]))
        P("v_lshl_add_u32 %s, %s, 4, %s" % (v(vH6), v(t[1]), v(vH6)))
        P("v_mul_u32_u24 %s, %d, v0" % (v(vF), FS))
        P("v_mov_b32 %s, 0xffff" % v(t[4]))
        P("v_cmp_gt_u32 vcc, 256, %s" % v(vrA))
        P("v_cndmask_b32 %s, -1, %s, vcc" % (v(vS), v(t[4])))
        P("s_lshl_b32 %s, %s, 9" % (s(sX), s(sP)))
        P("s_add_u32 %s, %s, 0x%x" % (s(sX), s(sX), XIN))
        P("s_lshr_b32 %s, %s, 2" % (s(sG), s(sP)))
        P("s_mul_i32 %s, %s, %d" % (s(sG), s(sG), 256 * FS))
        P("s_add_u32 %s, %s, 0x%x" % (s(sG), s(sG), L.GFLAGS + 131072 * li))
        P("s_mul_i32 %s, %s, %d" % (s(sHst), s(sP), 8 * TILE))
        P("s_add_u32 %s, %s, 0x%x" % (s(sHst), s(sHst), H))
        P("s_mul_i32 %s, %s, %d" % (s(sHA), s(sWv), 2 * TILE if li == 0 else TILE))
        P("s_add_u32 %s, %s, %s" % (s(sHA), s(sHA), s(sHst)))
        P("s_lshr_b32 %s, %s, 2" % (s(sV), s(sI)))
        P("s_mul_i32 %s, %s, 14336" % (s(sV), s(sV)))
        P("s_add_u32 %s, %s, %s" % (s(sHA), s(sHA), s(sV)))
        P("s_and_b32 %s, %s, 3" % (s(sV), s(sI)))
        P("s_lshl_b32 %s, %s, 9" % (s(sV), s(sV)))
        P("s_add_u32 %s, %s, %s" % (s(sH6), s(sHA), s(sV)))
        P("s_add_u32 %s, %s, %s" % (s(sHB), s(sH6), s(sV)))
        P("s_lshl_b32 %s, %s, 2" % (s(sV), s(sV)))
        P("s_add_u32 %s, %s, %s" % (s(sHA), s(sHA), s(sV)))
        P("s_add_u32 %s, %s, %d" % (s(sH6), s(sH6), 12 * 1024))
        P("s_add_u32 %s, %s, %d" % (s(sHB), s(sHB), 8 * 1024))
        P("s_mul_i32 %s, %s, %d" % (s(sV), s(sPhi), 4 * TILE))
        P("s_add_u32 %s, %s, %s" % (s(sHst), s(sHst), s(sV)))
        P("s_mul_i32 %s, %s, 14336" % (s(sV), s(sWv)))
        P("s_add_u32 %s, %s, %s" % (s(sHst), s(sHst), s(sV)))
        P("s_and_b32 %s, %s, %d" % (s(sPl), s(sWv), 2 if li == 0 else 3))
        for kt in range(4):
            P("s_xor_b32 %s, %s, %d" % (s(sV), s(sPl), kt ^ (2 if li == 0 else 3)))
            P("s_mul_i32 %s, %s, %d" % (s(sV), s(sV), TILE))
            P("s_add_u32 %s, %s, %s" % (s(sHt + kt), s(sHst), s(sV)))
        P("s_lshl_b32 %s, %s, 4" % (s(sPl), s(sP)))
        P("s_add_u32 %s, %s, %s" % (s(sFl), s(sPl), s(sI)))
        P("s_lshl_b32 %s, %s, 2" % (s(sFl), s(sFl)))
        P("s_add_u32 %s, %s, %s" % (s(sFl), s(sFl), s(sWv)))
        P("s_lshl_b32 %s, %s, 6" % (s(sFl), s(sFl)))
        P("s_add_u32 %s, %s, 0x%x" % (s(sFl), s(sFl), L.FLAGS + li * 131072))
        P("s_lshl_b32 %s, %s, 8" % (s(sPl), s(sPl)))
        P("s_lshl_b32 %s, %s, 10" % (s(sV), s(sWv)))
        P("s_add_u32 %s, %s, %s" % (s(sPl), s(sPl), s(sV)))
        P("s_add_u32 %s, %s, 0x%x" % (s(sPl), s(sPl), L.FLAGS + li * 131072))
        for m, c in ((8, 0x22222222), (9, 0x22222222), (10, 0x44444444), (11, 0x44444444), (36, 0x88888888), (37, 0x88888888)):
            P("s_mov_b32 %s, 0x%x" % (s(m), c))
        n2 = o.get("N2", 16)
        per = -(-len(pre) // max(1, n2))
        for j in range(n2):
            side()
            for txt in pre[:per]:
                k(txt)
            del pre[:per]
        for txt in pre:
            k(txt)
        assert li or self.issued["w1"] == 28
        k("s_mul_i32 %s, %s, 448" % (s(sW1), s(sI)))
        k("s_add_u32 %s, %s, 0x%x" % (s(sW1), s(sW1), L.B1X))
        self.poll_issue(vF, sG)
        side(o.get("N3", 10))
        self.poll_check(vF, sG)
        k("s_barrier")
        self.st("s_go")

        def bundle(ks):
            tg = ("b", ks)
            if ks == 16:
                return [(lambda: k("s_add_u32 m0, %s, %d" % (s(sRB), 4 * 2048)), self.dma(vrA, sW1, 0, tg))]
            return [(self.setup(sRB, (ks % 6) * 2048, sT, sX, ks * 8192), self.dma(vX, sT, 0, tg, " sc1")),
                    (None, self.dma(vX2, sT, 1024, tg, " sc1"))]

        def x_read(ks, n):
            i, ro = ((0, 0), (1, 4), (2, 2), (3, 6))[n]
            return lambda: k("ds_read_b64 %s, %s offset:%d" % (v(XB + 8 * ks + ro, 2), v(vrX), (ks % 6) * 2048 + 512 * i))

        def x_swap(ks, n):
            return lambda: k("v_swap_b32 %s, %s" % (v(XB + 8 * ks + 1 + 2 * n), v(XB + 8 * ks + 4 + 2 * n)))

        def a_read(ks, ft):
            return lambda: k("ds_read_b128 %s, %s offset:%d" % (v(AF + 16 * (ks & 1) + 4 * ft, 4), v(vrA), (4 * ks + ft) * 1024))

        def b1_read(reg, ft):
            return lambda: k("ds_read_b128 %s, %s offset:%d" % (v(reg, 4), v(vB1), 4 * 2048 + 64 * ft))

        def diag(tt):
            def op():
                k("v_cndmask_b32 %s, %s, %s, s[8:9]" % (v(t[tt]), v(SSQ + 4 * tt), v(SSQ + 4 * tt + 1)))
                k("v_cndmask_b32 %s, %s, %s, s[10:11]" % (v(t[tt]), v(t[tt]), v(SSQ + 4 * tt + 2)))
                k("v_cndmask_b32 %s, %s, %s, s[36:37]" % (v(t[tt]), v(t[tt]), v(SSQ + 4 * tt + 3)))
                k("ds_bpermute_b32 %s, %s, %s" % (v(vS + tt), v(t[2]), v(t[tt])))
            return op

        for ks in range(D):
            self.issue(bundle(ks))
        for ft in range(4):
            a_read(0, ft)()
        k("v_and_b32 %s, 12, v0" % v(t[2]))
        k("v_and_b32 %s, 15, v0" % v(t[3]))
        k("v_lshlrev_b32 %s, 6, %s" % (v(vF), v(t[3])))
        k("v_lshl_add_u32 %s, %s, 2, %s" % (v(t[2]), v(t[2]), v(t[3])))
        k("v_lshlrev_b32 %s, 2, %s" % (v(t[2]), v(t[2])))
        k("v_mov_b32 %s, %s" % (v(t[3]), fbits(EPS * EPS)))
        k.wait_tag(("b", 0))
        self.st("first")
        for n in range(4):
            x_read(0, n)()
        x_swap(0, 0)()
        x_swap(0, 1)()
        for ks in range(16):
            k.wait_tag(("b", ks + 1))
            fill = [[] for _ in range(10)]
            ops = bundle(ks + D) if ks + D <= 16 else []
            while len(ops) < (2 if ks < 15 else 0) and queue:
                ops.append(queue.pop(0))
            for n, (su, ld) in enumerate(ops):
                if su:
                    fill[(2, 7)[n]].append(su)
                fill[(3, 8)[n]].append(ld)
            if ks < 15:
                for n in range(4):
                    fill[n >> 1].append(x_read(ks + 1, n))
                    fill[(3, 4, 4, 5)[n]].append(a_read(ks + 1, n))
                fill[6].insert(0, x_swap(ks + 1, 0))
                fill[9].insert(0, x_swap(ks + 1, 1))
            else:
                for n in range(4):
                    fill[n >> 1].append(b1_read(AF + 4 * n, n))
                fill[4].append(diag(0))
                fill[6].append(diag(1))
            order = list(range(10))
            if ks == 0:
                order = order[2:] + order[:2]
                for tt in range(2):
                    fill[2 + 3 * tt].append(lambda tt=tt: k("v_and_b32 %s, %s, %s\nv_mov_b32 %s, %s" % (
                        v(tmp + 8 + 4 * tt), v(vS), v(XB + 4 * tt), v(tmp + 9 + 4 * tt), v(XB + 4 * tt + 1))))
                    fill[4 + 2 * tt].append(lambda tt=tt: k("v_mov_b32 %s, %s\nv_mov_b32 %s, %s" % (
                        v(tmp + 10 + 4 * tt), v(XB + 4 * tt + 2), v(tmp + 11 + 4 * tt), v(XB + 4 * tt + 3))))
            for pos, m in enumerate(order):
                tt = m & 1
                bb = v(XB + 8 * ks + 4 * tt, 4)
                if m < 2:
                    d = v(SSQ + 4 * tt, 4)
                    k("%s %s, %s, %s, %s" % (MF, d, v(tmp + 8 + 4 * tt, 4) if ks == 0 else bb, bb, d if ks else "0"))
                else:
                    ft = (m - 2) >> 1
                    d = v(acc1(ft, tt), 4)
                    k("%s %s, %s, %s, %s" % (MF, d, v(AF + 16 * (ks & 1) + 4 * ft, 4), bb, d if ks else "0"))
                for op in fill[pos]:
                    op()
        self.st("passA")

        def b_slot(j):
            return AF + 4 * ((j + 4) % 8)

        def b_read(j):
            k("ds_read_b128 %s, %s offset:%d" % (v(b_slot(j), 4), v(vA2), j * 1024))

        for j in range(4):
            b_read(j)
        for tt in range(2):
            k("v_fmamk_f32 %s, %s, %s, %s" % (v(vS + tt), v(vS + tt), fbits((1 + EPS) / 512), v(t[3])))
        for tt in range(2):
            k("v_rsq_f32 %s, %s" % (v(vS + tt), v(vS + tt)))

        nunit = [0]

        def gelu(x, tts, bias, store):
            ob = tmp + 8 + 4 * (nunit[0] & 1)
            nunit[0] += 1
            for h in range(4):
                k("v_pk_fma_f32 %s, %s, %s, %s op_sel:[0,%d,0] op_sel_hi:[1,%d,1]"
                  % (v(x + 2 * h, 2), v(x + 2 * h, 2), v(vS, 2), v(bias[h], 2), tts[h], tts[h]))
            for h in range(4):
                k("v_pk_mul_f32 %s, %s, %s" % (v(tmp + 2 * h, 2), v(x + 2 * h, 2), v(x + 2 * h, 2)))
            for h in range(4):
                k("v_pk_fma_f32 %s, %s, %s, %s op_sel:[0,0,1] op_sel_hi:[1,0,1]" % (v(tmp + 2 * h, 2), v(tmp + 2 * h, 2), v(vC, 2), v(vC, 2)))
            for h in range(4):
                k("v_pk_mul_f32 %s, %s, %s" % (v(tmp + 2 * h, 2), v(x + 2 * h, 2), v(tmp + 2 * h, 2)))
            for i in range(8):
                k("v_exp_f32 %s, %s" % (v(tmp + i), v(tmp + i)))
            for h in range(4):
                k("v_pk_add_f32 %s, %s, 1.0 op_sel_hi:[1,0]" % (v(tmp + 2 * h, 2), v(tmp + 2 * h, 2)))
            for i in range(8):
                k("v_rcp_f32 %s, %s" % (v(tmp + i), v(tmp + i)))
            side(o.get("GS", 0))
            for h in range(4):
                k("v_pk_mul_f32 %s, %s, %s" % (v(tmp + 2 * h, 2), v(x + 2 * h, 2), v(tmp + 2 * h, 2)))
            for h in (0, 2, 1, 3):
                k("v_cvt_pk_bf16_f32 %s, %s, %s" % (v(ob + h), v(tmp + 2 * h), v(tmp + 2 * h + 1)))
            store(ob)

        def st_pair(sb, off, tag):
            return lambda ob: k("buffer_store_dwordx4 %s, %s, %s, %s offen offset:%d sc1" % (v(ob, 4), v(vrA), WS, s(sb), off), tag=tag)

        def st_six(ob):
            k("v_permlane16_swap_b32 %s, %s" % (v(ob), v(ob + 2)))
            k("v_permlane16_swap_b32 %s, %s" % (v(ob + 1), v(ob + 3)))
            k("buffer_store_dwordx4 %s, %s, %s, %s offen sc1" % (v(ob, 4), v(vH6), WS, s(sH6)), tag="hB")

        for tt in range(2):
            for pr in range(2):
                gelu(acc1(2 * pr, tt), [tt] * 4, [AF + 8 * pr + 2 * h for h in range(4)], st_pair(sHA, pr * 1024, "hA"))
            if tt == 0:
                k("s_add_u32 %s, %s, %d" % (s(sHA), s(sHA), TS))
                if li == 1:
                    k("s_barrier")
        if li == 1:
            k("s_lshl_b32 %s, %s, 14" % (s(sG), s(sWv)))
            k("s_lshl_b32 %s, %s, 16" % (s(sX), s(sCt)))
            k("s_add_u32 %s, %s, %s" % (s(sX), s(sX), s(sG)))
            k("s_add_u32 %s, %s, 0x%x" % (s(sX), s(sX), L.FT))
            queue[0:0] = [(self.setup(sG, (j >> 2) * 4096, sT, sX, (j >> 2) * 4096) if j & 3 == 0 else None,
                           self.dma(vrA, sT, (j & 3) * 1024, "ft")) for j in range(16)]
        self.st("geluA")

        FA = o.get("FA", 60)
        for j in range(4, 7):
            b_read(j)
        for j in range(48):
            ks, ft = j // 3, 4 + j % 3
            pend = None
            for tt in range(2):
                d = v(acc1(ft, tt), 4)
                k("%s %s, %s, %s, %s" % (MF, d, v(b_slot(j), 4), v(XB + 8 * ks + 4 * tt, 4), d if ks else "0"))
                if tt == 0:
                    if j + 7 < 48:
                        b_read(j + 7)
                    elif j + 7 < 51:
                        b1_read(b_slot(j + 7), j + 7 - 44)()
                    if j & 1 and queue:
                        su, pend = queue.pop(0)
                        if su:
                            su()
                elif pend:
                    pend()
                if 2 * j + tt == FA:
                    self.publish("hA", vC, sFl)
                    k("s_add_u32 %s, %s, 65536" % (s(sFl), s(sFl)))
        self.st("passB")
        RES, BIAS, vRes = AF, AF + 8, vX
        if li == 0:
            k("v_bfe_u32 %s, v0, 4, 2" % v(vX2))
            k("v_lshrrev_b32 %s, 3, %s" % (v(vRes), v(vF)))
            k("v_lshl_add_u32 %s, %s, 15, %s" % (v(vRes), v(vX2), v(vRes)))
            k("v_lshlrev_b32 %s, 4, %s" % (v(vX2), v(vX2)))
            k("s_lshl_b32 %s, %s, 1" % (s(sG), s(sCt)))
            k("s_and_b32 %s, %s, 1" % (s(sV), s(sWv)))
            k("s_add_u32 %s, %s, %s" % (s(sG), s(sG), s(sV)))
            k("s_lshl_b32 %s, %s, 17" % (s(sV), s(sG)))
            k("s_add_u32 %s, %s, %s" % (s(sX), s(sX), s(sV)))
            k("s_lshl_b32 %s, %s, 6" % (s(sG), s(sG)))
            k("s_add_u32 %s, %s, 0x%x" % (s(sG), s(sG), L.B2F))
            k("s_lshl_b32 %s, %s, 1" % (s(sT), s(sPhi)))
            k("s_lshr_b32 %s, %s, 1" % (s(sV), s(sWv)))
            k("s_add_u32 %s, %s, %s" % (s(sT), s(sT), s(sV)))
            k("s_lshl_b32 %s, %s, 7" % (s(sHA), s(sT)))
            k("s_add_u32 %s, %s, %s" % (s(sX), s(sX), s(sHA)))
            for r in range(4):
                queue.append((lambda r=r: k("s_add_u32 %s, %s, %d" % (s(sT), s(sX), r * 8192)),
                              lambda r=r: k("buffer_load_dwordx2 %s, %s, %s, %s offen sc1" % (v(RES + 2 * r, 2), v(vRes), WS, s(sT)))))
            for ri in range(2):
                queue.append((None, lambda ri=ri: k("buffer_load_dwordx4 %s, %s, %s, %s offen offset:%d" % (v(BIAS + 4 * ri, 4), v(vX2), WS, s(sG), ri * 1024))))
        else:
            assert self.issued["ft"] == 16
            k("v_and_b32 %s, 48, v0" % v(vX2))
            k("v_lshlrev_b32 %s, 1, %s" % (v(vX2), v(vX2)))
            k("s_lshl_b32 %s, %s, 7" % (s(sG), s(sCt)))
            for e in range(2):
                k("buffer_load_dwordx4 %s, %s, s[40:43], %s offen offset:%d" % (v(RES + 4 * e, 4), v(vX2), s(sG), e * 16))
        PA = o.get("PA", 1)
        bb = b_slot(48)
        for u in range(3):
            if u == PA:
                self.poll_issue(vF, sPl)
            if u < 2:
                gelu(acc1(4, u), [u] * 4, [bb + 2 * h for h in range(4)], st_pair(sHB, 0, "hB"))
                if u == 0:
                    k("s_add_u32 %s, %s, %d" % (s(sHB), s(sHB), TS))
            else:
                gelu(acc1(6, 0), [0, 0, 1, 1], [bb + 8, bb + 10, bb + 8, bb + 10], st_six)
        if PA == 3:
            self.poll_issue(vF, sPl)
        self.st("geluB")

        loads = [(kt, kf) for kt in range(4) for kf in range(8)] + [(kt, kf) for kt in range(4) for kf in range(8, 14)]
        slot = {x: XB + 4 * (j % 32) for j, x in enumerate(loads)}
        acc2 = lambda kt, c: ACC + 16 * kt + 4 * c
        own = [acc2(2 + (g >> 1), 2 + (g & 1)) for g in range(4)] if li == 0 else [acc2(3, g) for g in range(4)]

        def h_load(j):
            kt, kf = loads[j]
            if kf % 4 == 0:
                k("s_add_u32 %s, %s, %d" % (s(sHst), s(sHt + kt), kf * 1024))
            k("buffer_load_dwordx4 %s, %s, %s, %s offen offset:%d sc1" % (v(slot[loads[j]], 4), v(vrA), WS, s(sHst), (kf & 3) * 1024))

        FB = min(PD - 1, o.get("FB", 10))
        if li == 0:
            side(len(queue))
            self.poll_check(vF, sPl)
            self.st("pollA")
            for j in range(PD):
                h_load(j)
                if j == FB:
                    self.publish("hB", vC, sFl)
            for tt in range(2):
                for r in range(4):
                    k("v_lshlrev_b32 %s, 16, %s" % (v(own[2 * tt] + r), v(RES + 2 * r + tt)))
                    k("v_and_b32 %s, 0xffff0000, %s" % (v(own[2 * tt + 1] + r), v(RES + 2 * r + tt)))
            for g in range(4):
                for h in (0, 2):
                    k("v_pk_add_f32 %s, %s, %s" % (v(own[g] + h, 2), v(own[g] + h, 2), v(BIAS + 4 * (g & 1) + h, 2)))
        else:
            side(len(queue))
            for c in range(4):
                for h in range(2):
                    k("v_lshlrev_b32 %s, 16, %s" % (v(own[c] + 2 * h), v(RES + 2 * c + h)))
                    k("v_and_b32 %s, 0xffff0000, %s" % (v(own[c] + 2 * h + 1), v(RES + 2 * c + h)))
            k.wait_tag("ft")
            k("s_barrier")
            k("s_cmp_eq_u32 %s, 1" % s(sPhi))
            k("s_cbranch_scc1 X3B")
            for tt in range(2):
                if tt == 1:
                    k.label("X3B")
                for j in range(7):
                    k("ds_read_b128 %s, %s offset:%d" % (v(AF + 4 * j, 4), v(vrA), j * 1024))
                nh = 0
                for j in range(64):
                    ks, c = j >> 2, j & 3
                    d = v(own[c], 4)
                    k("%s %s, %s, %s, %s" % (MF, d, v(AF + 4 * (j % 8), 4), v(XB + 8 * ks + 4 * tt, 4), d))
                    if j + 7 < 64:
                        k("ds_read_b128 %s, %s offset:%d" % (v(AF + 4 * ((j + 7) % 8), 4), v(vrA), (j + 7) * 1024))
                    if c == 1 and ks >= o.get("XH", 1) and nh < PD:
                        if nh == 0:
                            self.poll_check(vF, sPl)
                        assert nh < 2 * ks
                        h_load(nh)
                        nh += 1
                    if j == o.get("FBX", 44):
                        self.publish("hB", vC, sFl)
                for j in range(nh, PD):
                    h_load(j)
                if tt == 0:
                    k("s_branch X3E")
            k.label("X3E")
            self.st("pollA")
        k("s_add_u32 %s, %s, 65536" % (s(sPl), s(sPl)))

        vRW, vRd, vO, vI = vrX, [AF + 16, AF + 17, AF + 18], vX, AF + 19
        late = []
        Q = late.append
        Q("v_add_u32 %s, %s, %s" % (v(vRW), s(sRB), v(vrA)))
        for dl in range(1, 4):
            Q("s_xor_b32 %s, %s, %d\ns_mul_i32 %s, %s, 12288" % (s(sV), s(sWv), dl, s(sV), s(sV)))
            Q("s_add_u32 %s, %s, %d\nv_add_u32 %s, %s, %s" % (s(sV), s(sV), PRIV + (3 ^ dl) * 4096, v(vRd[dl - 1]), s(sV), v(vrA)))
        if li == 1:
            Q("v_and_b32 %s, 15, v0\nv_lshl_add_u32 %s, %s, 1, %s" % (v(t[0]), v(t[2]), v(t[0]), s(sPhi)))
            Q("v_and_b32 %s, 3, %s\nv_lshrrev_b32 %s, 1, %s" % (v(t[2]), v(t[2]), v(t[0]), v(t[0])))
            Q("v_lshl_add_u32 %s, %s, 5, %s\nv_lshl_add_u32 %s, %s, 10, %s" % (v(t[0]), v(t[2]), v(t[0]), v(vO), v(t[0]), v(vX2)))
            Q("s_lshr_b32 %s, %s, 2\ns_lshl_b32 %s, %s, 9" % (s(sV), s(sP), s(sX), s(sV)))
            Q("s_and_b32 %s, %s, 1\ns_lshl_b32 %s, %s, 8" % (s(sV), s(sP), s(sV), s(sV)))
            Q("s_add_u32 %s, %s, %s\ns_lshr_b32 %s, %s, 1" % (s(sX), s(sX), s(sV), s(sV), s(sWv)))
            Q("s_lshl_b32 %s, %s, 7\ns_add_u32 %s, %s, %s" % (s(sV), s(sV), s(sX), s(sX), s(sV)))
            Q("s_bfe_u32 %s, %s, 0x10001\ns_lshl_b32 %s, %s, 4" % (s(sV), s(sP), s(sV), s(sV)))
            Q("s_add_u32 %s, %s, %s\ns_and_b32 %s, %s, 1" % (s(sX), s(sX), s(sV), s(sV), s(sWv)))
            Q("s_lshl_b32 %s, %s, 3\ns_add_u32 %s, %s, %s" % (s(sV), s(sV), s(sX), s(sX), s(sV)))
            Q("s_lshl_b32 %s, %s, 10\ns_add_u32 %s, %s, %s" % (s(sX), s(sX), s(sX), s(sX), s(sG)))
        else:
            Q("s_add_u32 %s, %s, 0x%x\ns_cmp_eq_u32 %s, 0x%x" % (s(sX), s(sX), L.X2 - XIN, s(sG), L.B2F) +
              "\ns_cselect_b32 s8, 0xffff, 0")
            Q("s_mov_b32 s9, 0\nv_bfe_u32 %s, v0, 4, 1" % v(t[0]))
            Q("v_lshrrev_b32 %s, 3, %s\nv_lshl_add_u32 %s, %s, 2, %s" % (v(vI), v(vF), v(vI), v(t[0]), v(vI)))
            Q("s_lshl_b32 %s, %s, 9\ns_add_u32 %s, %s, %s" % (s(sV), s(sP), s(sHA), s(sHA), s(sV)))
            Q("s_add_u32 %s, %s, 0x%x" % (s(sHA), s(sHA), L.SSQ2))

        def quarter(kap):
            return [acc2(2 * (kap >> 1) + (g >> 1), 2 * (kap & 1) + (g & 1)) for g in range(4)] if li == 0 else [acc2(kap, g) for g in range(4)]

        def block(kts, kfs, cs):
            return [(kt, kf, c) for kt in kts for g0 in range(0, len(kfs), CH) for c in cs for kf in kfs[g0:g0 + CH]]
        A8, B6, ALL = list(range(8)), list(range(8, 14)), list(range(4))
        seq = block(ALL, A8, ALL)
        if li == 0:
            seq += block([0, 1], B6, ALL) + block([2, 3], B6, [0, 1]) + block([2, 3], B6, [2, 3])
            wr = {176 + 6 + 2 * n: (n >> 2, n & 3) for n in range(8)}
        else:
            seq += block(ALL, B6, ALL)
            wr = {152 + 24 * (n >> 2) + 6 + 2 * (n & 3): (n >> 2, n & 3) for n in range(8)}
        wr.update({200 + 5 + n: (2, n) for n in range(4)})
        seen, nld = set(), PD
        RB = o.get("RB", 213)
        for m, (kt, kf, c) in enumerate(seq):
            d = acc2(kt, c)
            first = d not in seen and d not in own
            seen.add(d)
            k("%s %s, %s, %s, %s" % (MF, v(d, 4), a(16 * kf + 4 * c, 4), v(slot[(kt, kf)], 4), "0" if first else v(d, 4)))
            if m == 0:
                self.st("h0")
            if m % 4 == 1 and nld < 56:
                if nld == 32:
                    self.st("preB")
                    self.poll_check(vF, sPl)
                    self.st("pollB")
                h_load(nld)
                nld += 1
            elif m == 4 * o.get("PB", 8) + 3:
                self.poll_issue(vF, sPl)
            elif m % 4 == 3 and nld > 33 and late:
                k(late.pop(0))
            if m in wr:
                kap, g = wr[m]
                assert not late
                k("ds_write_b128 %s, %s offset:%d" % (v(vRW), v(quarter(kap)[g], 4), kap * 4096 + g * 1024))
            if m == RB:
                k("s_waitcnt lgkmcnt(0)")
                k("s_barrier")
            if RB <= m < RB + 6:
                for n in (2 * (m - RB), 2 * (m - RB) + 1):
                    k("ds_read_b128 %s, %s offset:%d" % (v(XB + 4 * n, 4), v(vRd[n >> 2]), (n & 3) * 1024))
        self.st("gemm2")
        for n in range(8):
            k("v_pk_add_f32 %s, %s, %s" % (v(XB + 2 * n, 2), v(XB + 2 * n, 2), v(XB + 16 + 2 * n, 2)))
        for n in range(8):
            k("v_pk_add_f32 %s, %s, %s" % (v(XB + 2 * n, 2), v(XB + 2 * n, 2), v(XB + 32 + 2 * n, 2)))
        for n in range(8):
            d = v(own[n >> 1] + 2 * (n & 1), 2)
            k("v_pk_add_f32 %s, %s, %s" % (d, d, v(XB + 2 * n, 2)))
        if li == 0:
            for r in range(4):
                for tt in range(2):
                    k("v_cvt_pk_bf16_f32 %s, %s, %s" % (v(tmp + 2 * r + tt), v(own[2 * tt] + r), v(own[2 * tt + 1] + r)))
                k("s_add_u32 %s, %s, %d" % (s(sT), s(sX), r * 8192))
                k("buffer_store_dwordx2 %s, %s, %s, %s offen sc1" % (v(tmp + 2 * r, 2), v(vRes), WS, s(sT)), tag="xs")
            q = tmp + 8
            for tt in range(2):
                k("v_cndmask_b32 %s, %s, 0, s[8:9]" % (v(own[2 * tt + 1]), v(own[2 * tt + 1])))
            for tt in range(2):
                k("v_pk_mul_f32 %s, %s, %s" % (v(q + 2 * tt, 2), v(own[2 * tt], 2), v(own[2 * tt], 2)))
            for h in (2, 4, 6):
                for tt in range(2):
                    k("v_pk_fma_f32 %s, %s, %s, %s" % (v(q + 2 * tt, 2), v(own[2 * tt] + h, 2), v(own[2 * tt] + h, 2), v(q + 2 * tt, 2)))
            k("v_add_f32 %s, %s, %s" % (v(q), v(q), v(q + 1)))
            k("v_add_f32 %s, %s, %s" % (v(q + 2), v(q + 2), v(q + 3)))
            k("v_permlane16_swap_b32 %s, %s" % (v(q), v(q + 2)))
            k("v_add_f32 %s, %s, %s" % (v(q), v(q), v(q + 2)))
            k("v_mov_b32 %s, %s" % (v(q + 1), v(q)))
            k("v_permlane32_swap_b32 %s, %s" % (v(q), v(q + 1)))
            k("v_add_f32 %s, %s, %s" % (v(q), v(q), v(q + 1)))
            k("s_mov_b32 exec_hi, 0")
            k("buffer_atomic_add_f32 %s, %s, %s, %s offen" % (v(q), v(vI), WS, s(sHA)), tag="xs")
            k("s_mov_b32 exec_hi, -1")
        else:
            for e in range(2):
                for i in range(4):
                    k("v_cvt_pk_bf16_f32 %s, %s, %s" % (v(tmp + 4 * e + i), v(own[0] + 8 * e + 2 * i), v(own[0] + 8 * e + 2 * i + 1)))
                k("buffer_store_dwordx4 %s, %s, s[44:47], %s offen offset:%d" % (v(tmp + 4 * e, 4), v(vO), s(sX), 16 * e))
        self.st("epi")

    def build(self):
        k, o = self.k, self.o
        k.entry(self.name)
        self.layer = 0
        self.col_alloc()
        r = self.c
        k("s_cmp_ge_u32 s2, 256")
        k("s_cbranch_scc1 MAIN_END")
        k("s_load_dwordx2 s[4:5], s[0:1], 80")
        k("s_load_dwordx2 s[40:41], s[0:1], 56")
        k("s_load_dwordx2 s[44:45], s[0:1], 64")
        self.st("start")
        k("v_and_b32 %s, 63, v0" % v(vrA))
        k("v_lshlrev_b32 %s, 4, %s" % (v(vrA), v(vrA)))
        self.col_addr()
        k("v_readfirstlane_b32 %s, %s" % (s(sWv), v(r.t[0])))
        k("s_mov_b32 s6, 0x%x" % L.WS_USED)
        k("s_mov_b32 s7, 0x20000")
        k("s_mov_b32 s42, 0x400")
        k("s_mov_b32 s43, 0x20000")
        k("s_mov_b32 s46, 0x200000")
        k("s_mov_b32 s47, 0x20000")
        k("s_lshl_b32 %s, s2, 13" % s(sQ))
        k("s_mul_i32 %s, %s, 12288" % (s(sRB), s(sWv)))
        k("s_add_u32 %s, %s, %d" % (s(sRB), s(sRB), PRIV))
        if o.get("map", 1):
            k("s_and_b32 %s, s2, 6" % s(sP))
            k("s_lshl_b32 %s, %s, 1" % (s(sP), s(sP)))
            k("s_lshr_b32 %s, s2, 6" % s(sT))
            k("s_add_u32 %s, %s, %s" % (s(sP), s(sP), s(sT)))
            k("s_bfe_u32 %s, s2, 0x30003" % s(sI))
            k("s_and_b32 %s, s2, 1" % s(sCt))
            k("s_lshl_b32 %s, %s, 3" % (s(sT), s(sCt)))
            k("s_add_u32 %s, %s, %s" % (s(sI), s(sI), s(sT)))
            k("s_bfe_u32 %s, s2, 0x10005" % s(sPhi))
            k("s_lshl_b32 %s, %s, 2" % (s(sCt), s(sCt)))
            k("s_bfe_u32 %s, s2, 0x20003" % s(sT))
            k("s_add_u32 %s, %s, %s" % (s(sCt), s(sCt), s(sT)))
        else:
            k("s_and_b32 %s, s2, 7" % s(sP))
            k("s_lshl_b32 %s, %s, 1" % (s(sP), s(sP)))
            k("s_lshr_b32 %s, s2, 7" % s(sT))
            k("s_add_u32 %s, %s, %s" % (s(sP), s(sP), s(sT)))
            k("s_bfe_u32 %s, s2, 0x40003" % s(sI))
            k("s_lshr_b32 %s, %s, 3" % (s(sPhi), s(sI)))
            k("s_and_b32 %s, %s, 7" % (s(sCt), s(sI)))
        k("s_lshl_b32 s38, %s, 12" % s(sWv))
        k("s_mul_i32 %s, %s, 114688" % (s(sW1), s(sI)))
        k("s_add_u32 %s, %s, s38" % (s(sW1), s(sW1)))
        k("s_add_u32 %s, %s, 0x%x" % (s(sW1), s(sW1), L.W1F))
        k("s_mul_i32 s39, %s, 229376" % s(sCt))
        k("s_mul_i32 %s, %s, 57344" % (s(sV), s(sWv)))
        k("s_add_u32 s39, s39, %s" % s(sV))
        k("s_and_b32 %s, %s, 1" % (s(sV), s(sWv)))
        k("s_xor_b32 %s, %s, 1" % (s(sV), s(sV)))
        k("s_lshl_b32 %s, %s, 11" % (s(sV), s(sV)))
        k("s_add_u32 %s, s39, %s" % (s(sW2), s(sV)))
        k("s_add_u32 %s, %s, 0x%x" % (s(sW2), s(sW2), L.W2F))
        self.col_load_x()
        self.col_load_w()
        self.queue += [(self.setup(38, (j >> 2) * 16384, sU, sW1, (j >> 2) * 16384) if j & 3 == 0 else None,
                        self.dma(vrA, sU, (j & 3) * 1024, "w1")) for j in range(28)] + self.w2_ops()
        consts = self.col_consts()
        n0 = max(self.n_first, o.get("C0", 130))
        for j, txt in enumerate(consts[:n0]):
            k(txt)
            if j % 16 == 8 and j // 16 < o.get("N0", 0):
                self.side()
        self.st("c_const")
        self.col_compute(consts[n0:] + self.col_unpack_w())
        self.mlp()

        self.layer = 1
        self.st("l2")
        self.col_addr()
        self.col_load_w()
        k("s_add_u32 %s, s39, 0x%x" % (s(sW2), L.W2T))
        self.queue += self.w2_ops()
        consts = self.col_consts() + self.col_unpack_w()
        n1 = o.get("C1", 150)
        for txt in consts[:n1]:
            k(txt)
        k("s_lshl_b32 %s, %s, 4" % (s(sV), s(sP)))
        k("s_add_u32 %s, %s, %s" % (s(sV), s(sV), s(sI)))
        k("s_lshl_b32 %s, %s, 4" % (s(sV), s(sV)))
        k("s_add_u32 %s, %s, %s" % (s(sV), s(sV), s(sWv)))
        k("s_lshl_b32 %s, %s, 2" % (s(sV), s(sV)))
        k("s_add_u32 %s, %s, 0x%x" % (s(sV), s(sV), L.GFLAGS + 65536))
        self.publish("xs", r.veps, sV)
        k("s_barrier")
        self.st("s2_pub")
        rest, n4 = consts[n1:], o.get("N4", 14)
        per = -(-len(rest) // max(1, n4))
        for j in range(n4):
            self.side()
            for txt in rest[:per]:
                k(txt)
            del rest[:per]
        for txt in rest:
            k(txt)
        k("v_lshlrev_b32 %s, 6, v0" % v(r.t[1]))
        k("s_mov_b32 %s, 0x%x" % (s(sG), L.GFLAGS + 65536))
        self.poll_issue(r.t[1], sG, 4)
        self.side(o.get("N5", 2))
        self.poll_check(r.t[1], sG, 4)
        self.st("s2_go")
        self.col_load_x()
        self.col_compute([])
        self.mlp()
        self.st("end", final=True)
        k.label("MAIN_END")
        k("s_endpgm")
        return k


def build(name, stamp=None, opts=None):
    return Main(name, stamp, opts).build()
```

```python
import sys, io, contextlib, gen, check_asm
base = dict((a.partition("=")[0], int(a.partition("=")[2] or 1)) for a in sys.argv[2:])
pts = sys.argv[1].split(",")
for i in range(len(pts) - 1):
    o = dict(base); o["probe"] = (pts[i], pts[i + 1])
    with contextlib.redirect_stderr(io.StringIO()):
        open("q%d.s" % i, "w").write(gen.generate(False, 99, o))
    check_asm.build("q%d.s" % i); print("q%d" % i, o["probe"])
```

```python
from asmlib import Kernel, Alloc, v, a, s, fbits
import layout as L
import k_pre

MF = "v_mfma_f32_16x16x32_bf16"
LDS_BYTES = 163840
WB = 65536
PRIV = 114688
WS = "s[4:7]"
C0 = -2 * 0.7978845608028654 * 1.4426950408889634
C1 = C0 * 0.044715
EPS = 1e-5
TILE = 57344

vrA, vP, vV, vL4 = 1, 2, 3, 4
sE, sRec = 48, 49
sWv, sP, sI, sPhi, sCt, sRB, sX, sW1, sT, sU, sW2, sHst, sFl, sPl, sV = 3, 12, 13, 14, 15, 16, 17, 18, 19, 20, 21, 22, 23, 24, 25
sHA, sHB, sH6, sHt, sQ, sG = 26, 27, 28, 30, 34, 35


class Main:
    def __init__(self, name, stamp, opts):
        self.o = opts or {}
        self.k = Kernel(name)
        self.name = name
        self.stamp = stamp
        self.queue = []
        self.issued = {}
        self.nlab = 0

    def st(self, n, **kw):
        pr = self.o.get("probe")
        if pr:
            k, key = self.k, "%s%d" % (n, self.layer)
            if key == pr[0]:
                k("s_memrealtime s[90:91]")
            if key == pr[1]:
                k("s_memrealtime s[92:93]")
            if n == "end":
                k("s_waitcnt vmcnt(0) lgkmcnt(0)")
                k("s_memrealtime s[94:95]")
                k("s_sub_u32 s90, s92, s90")
                k("s_min_u32 s90, s90, 20000")
                k("s_lshl_b32 s90, s90, 3")
                k("s_cmp_lg_u32 s2, %d" % self.o.get("pwg", 0))
                k("s_cbranch_scc1 MAIN_END")
                k.label("SPIN")
                k("s_memrealtime s[96:97]")
                k("s_waitcnt lgkmcnt(0)")
                k("s_sub_u32 s96, s96, s94")
                k("s_cmp_lt_u32 s96, s90")
                k("s_cbranch_scc1 SPIN")
        if self.o.get("stp") and n in ("geluA", "passB", "geluB", "pollA", "h0", "preB", "pollB", "gemm2"):
            return
        if not self.o.get("stp") and n in ("p_in", "p_core", "p_out", "p_pub", "c_const"):
            return
        if self.stamp and (n in ("start", "end") or self.o.get("stl", 0) == self.layer):
            self.stamp(self.k, n, **kw)

    def dma(self, vv, ss, off, tag, sc=" sc1"):
        def op():
            self.issued[tag] = self.issued.get(tag, 0) + 1
            self.k("buffer_load_dwordx4 %s, %s, %s offen offset:%d%s lds" % (v(vv), WS, s(ss), off, sc), tag=tag)
        return op

    def setup(self, m0base, m0off, sd, sbase, off):
        def op():
            self.k("s_add_u32 m0, %s, %d" % (s(m0base), m0off))
            self.k("s_add_u32 %s, %s, %d" % (s(sd), s(sbase), off))
        return op

    def issue(self, ops):
        for su, ld in ops:
            if su:
                su()
            ld()

    def side(self, n=1):
        for _ in range(n):
            if self.queue:
                self.issue([self.queue.pop(0)])

    def w2_ops(self):
        k, ops = self.k, []
        for kf in range(14):
            for c in range(4):
                su = None
                if c == 0:
                    su = lambda kf=kf: k("s_add_u32 %s, %s, %d" % (s(sU), s(sW2), kf * 4096))
                if c == 2:
                    su = lambda: k("s_xor_b32 %s, %s, 0x800" % (s(sU), s(sU)))
                ops.append((su, lambda kf=kf, c=c: k("buffer_load_dwordx4 %s, %s, %s, %s offen offset:%d sc1"
                                                     % (a(16 * kf + 4 * c, 4), v(vrA), WS, s(sU), (c & 1) * 1024))))
        return ops

    def flag_store(self, sflag):
        k = self.k
        k("s_mov_b64 exec, 0x%x" % ((1 << self.o["FW"]) - 1) if "FW" in self.o else "s_mov_b32 exec_hi, 0")
        k("buffer_store_dword %s, %s, %s, %s offen sc1" % (v(vV), v(vL4), WS, s(sflag)))
        k("s_mov_b64 exec, -1")

    def publish(self, tag, sflag):
        self.k.wait_tag(tag)
        self.flag_store(sflag)

    def publish_wg(self, sflag):
        k = self.k
        self.nlab += 1
        k("s_barrier")
        k("s_cmp_lg_u32 %s, 0" % s(sWv))
        k("s_cbranch_scc1 PUB%d" % self.nlab)
        self.flag_store(sflag)
        k.label("PUB%d" % self.nlab)

    def poll_issue(self, voff, sbase, dst=vP):
        self.k("buffer_load_dword %s, %s, %s, %s offen sc1" % (v(dst), v(voff), WS, s(sbase)))

    def poll_check(self, voff, sbase, dst=vP, sleep=0):
        k = self.k
        self.nlab += 1
        go, again = "GO%d" % self.nlab, "POLL%d" % self.nlab
        k("v_cmp_ne_u32 vcc, %s, %s" % (s(sE), v(dst)))
        k("s_cbranch_vccz " + go)
        k("s_mov_b32 %s, 0" % s(sV))
        k.label(again)
        k("s_mov_b64 exec, vcc")
        if sleep:
            k("s_sleep %d" % sleep)
        self.poll_issue(voff, sbase, dst)
        k("s_add_u32 %s, %s, 1" % (s(sV), s(sV)))
        k("s_waitcnt vmcnt(0)")
        k("v_cmp_ne_u32 vcc, %s, %s" % (s(sE), v(dst)))
        k("s_cmp_lt_u32 %s, 0x8000" % s(sV))
        k("s_cselect_b64 vcc, vcc, 0")
        k("s_cbranch_vccnz " + again)
        k("s_mov_b64 exec, -1")
        k.label(go)

    def col_alloc(self):
        va = Alloc(6, 256)
        r = self.c = type("R", (), {})()
        r.voff, r.vwr, r.vrd, r.vfg4, r.vfk, r.vfn, r.vsn, r.veps = (va() for _ in range(8))
        r.t = [va() for _ in range(5)]
        r.XR, r.SQ, r.WR = va(8, 4), va(8, 4), va(8, 4)
        r.C64, r.C32 = va(32, 4), va(32, 4)
        r.T1C, r.T1S, r.T2C, r.T2S, r.WC, r.WS = (va(8, 4) for _ in range(6))
        r.XF, r.FR, r.AC, r.PK, r.tmp = va(16, 4), va(32, 4), va(16, 4), va(8, 4), va(16, 4)

    def col_addr(self):
        k, r = self.k, self.c
        k("v_lshrrev_b32 %s, 6, v0" % v(r.t[0]))
        k("v_lshl_add_u32 %s, %s, 11, %s" % (v(r.voff), v(r.t[0]), v(vrA)))

    def col_load_w(self):
        k, r = self.k, self.c
        k("s_add_u32 %s, %s, 0x%x" % (s(sT), s(sQ), L.WT))
        for b in range(2):
            k("buffer_load_dwordx4 %s, %s, %s, %s offen offset:%d sc1" % (v(r.WR + 4 * b, 4), v(r.voff), WS, s(sT), 1024 * b))

    def col_load_x(self):
        k, r, li = self.k, self.c, self.layer
        sc = " sc1"
        k("s_mov_b32 %s, 0x%x" % (s(sV), (L.SSQ0, L.SSQ2)[li]))
        k("s_add_u32 %s, %s, 0x%x" % (s(sT), s(sQ), (L.X0, L.X2)[li]))
        for b in range(2):
            k("buffer_load_dwordx4 %s, %s, %s, %s offen offset:%d%s" % (v(r.SQ + 4 * b, 4), v(r.voff), WS, s(sV), 1024 * b, sc))
            k("buffer_load_dwordx4 %s, %s, %s, %s offen offset:%d%s" % (v(r.XR + 4 * b, 4), v(r.voff), WS, s(sT), 1024 * b, sc))

    def col_consts(self):
        r, out = self.c, []
        k, t, tmp = out.append, r.t, r.tmp
        k("v_add_u32 %s, %s, %s" % (v(r.vwr), s(sRB), v(vrA)))
        k("v_add_u32 %s, %d, %s" % (v(r.vrd), PRIV, v(vrA)))
        k("v_bfe_u32 %s, v0, 4, 2" % v(t[1]))
        k("v_lshlrev_b32 %s, 2, %s" % (v(t[1]), v(t[1])))
        k("v_cvt_f32_u32 %s, %s" % (v(r.vfg4), v(t[1])))
        k("v_and_b32 %s, 15, v0" % v(t[2]))
        k("v_cvt_f32_u32 %s, %s" % (v(r.vfn), v(t[2])))
        k("v_lshl_add_u32 %s, %s, 4, %s" % (v(t[2]), v(t[0]), v(t[2])))
        k("v_cvt_f32_u32 %s, %s" % (v(r.vfk), v(t[2])))
        k("v_lshl_add_u32 %s, %s, 4, %s" % (v(t[2]), v(t[0]), v(t[1])))
        k("v_cvt_f32_u32 %s, %s" % (v(t[2]), v(t[2])))
        k("v_and_b32 %s, 1, v0" % v(r.vsn))
        k("v_mul_u32_u24 %s, 0x8000, %s" % (v(r.vsn), v(r.vsn)))
        k("v_lshl_or_b32 %s, %s, 16, %s" % (v(r.vsn), v(r.vsn), v(r.vsn)))
        k("v_mov_b32 %s, %s" % (v(r.veps), fbits(EPS * 2.0 ** 22)))
        f, b0 = t[3], t[4]
        k("v_mul_f32 %s, %s, %s" % (v(f), fbits(1 / 64), v(r.vfk)))
        k("v_mul_f32 %s, %s, %s" % (v(b0), v(f), v(r.vfg4)))
        for i in range(8):
            k("v_fmamk_f32 %s, %s, %s, %s" % (v(r.T1C + i), v(f), fbits(16 * (i >> 2) + (i & 3)), v(b0)))
        for i in range(8):
            k("v_sin_f32 %s, %s" % (v(tmp + 8 + i), v(r.T1C + i)))
            k("v_cos_f32 %s, %s" % (v(tmp + i), v(r.T1C + i)))
        for i in range(8):
            ks, rr = i >> 2, i & 3
            k("v_cvt_pk_bf16_f32 %s, %s, %s" % (v(r.C64 + 8 * ks + rr), v(tmp + i), v(tmp + 8 + i)))
            k("v_cvt_pk_bf16_f32 %s, -%s, %s" % (v(r.C64 + 8 * ks + 4 + rr), v(tmp + 8 + i), v(tmp + i)))
        for i in range(16):
            k("v_xor_b32 %s, %s, %s" % (v(r.C64 + 16 + i), v(r.vsn), v(r.C64 + i)))
        self.n_first = len(out)
        for i in range(8):
            k("v_mul_f32 %s, %s, %s" % (v(r.T1C + i), fbits(1 / 32), v(r.T1C + i)))
        for i in range(8):
            k("v_sin_f32 %s, %s" % (v(r.T1S + i), v(r.T1C + i)))
            k("v_cos_f32 %s, %s" % (v(r.T1C + i), v(r.T1C + i)))
        k("v_mul_f32 %s, %s, %s" % (v(f), fbits(1 / 32), v(r.vfn)))
        k("v_mul_f32 %s, %s, %s" % (v(b0), v(f), v(r.vfg4)))
        for rr in range(4):
            k("v_fmamk_f32 %s, %s, %s, %s" % (v(r.T2C + rr), v(f), fbits(rr), v(b0)))
        for rr in range(4):
            k("v_sin_f32 %s, %s" % (v(r.T2S + rr), v(r.T2C + rr)))
            k("v_cos_f32 %s, %s" % (v(r.T2C + rr), v(r.T2C + rr)))
        for rr in range(4):
            k("v_cvt_pk_bf16_f32 %s, %s, %s" % (v(r.C32 + rr), v(r.T2C + rr), v(r.T2S + rr)))
            k("v_cvt_pk_bf16_f32 %s, -%s, %s" % (v(r.C32 + 4 + rr), v(r.T2S + rr), v(r.T2C + rr)))
        for i in range(8):
            k("v_xor_b32 %s, %s, %s" % (v(r.C32 + 8 + i), v(r.vsn), v(r.C32 + i)))
        for i in range(16):
            if i & 1:
                k("v_xor_b32 %s, 0x80008000, %s" % (v(r.C32 + 16 + i), v(r.C32 + i)))
            else:
                k("v_mov_b32 %s, %s" % (v(r.C32 + 16 + i), v(r.C32 + i)))
        for bt in range(2):
            if bt == 0:
                k("v_mul_f32 %s, %s, %s" % (v(f), fbits(1 / 2048), v(r.vfn)))
            else:
                k("v_add_f32 %s, %s, %s" % (v(f), fbits(16 / 2048), v(f)))
            k("v_mul_f32 %s, %s, %s" % (v(b0), v(f), v(t[2])))
            for rr in range(4):
                k("v_fmamk_f32 %s, %s, %s, %s" % (v(r.T2C + 4 * bt + rr), v(f), fbits(rr), v(b0)))
        for i in range(8):
            k("v_sin_f32 %s, %s" % (v(r.T2S + i), v(r.T2C + i)))
            k("v_cos_f32 %s, %s" % (v(r.T2C + i), v(r.T2C + i)))
        return out

    def col_unpack_w(self):
        r = self.c
        return [x for i in range(8) for x in ("v_lshlrev_b32 %s, 16, %s" % (v(r.WC + i), v(r.WR + i)),
                                              "v_and_b32 %s, 0xffff0000, %s" % (v(r.WS + i), v(r.WR + i)))]

    def cmul(self, re, im, c, sn, conj):
        k, tmp = self.k, self.c.tmp
        for h in (0, 2):
            k("v_pk_mul_f32 %s, %s, %s" % (v(tmp + h, 2), v(im + h, 2), v(sn + h, 2)))
            k("v_pk_mul_f32 %s, %s, %s" % (v(tmp + 4 + h, 2), v(re + h, 2), v(sn + h, 2)))
        neg = " neg_lo:[0,0,1] neg_hi:[0,0,1]"
        for h in (0, 2):
            k("v_pk_fma_f32 %s, %s, %s, %s%s" % (v(tmp + h, 2), v(re + h, 2), v(c + h, 2), v(tmp + h, 2), neg if conj else ""))
            k("v_pk_fma_f32 %s, %s, %s, %s%s" % (v(tmp + 4 + h, 2), v(im + h, 2), v(c + h, 2), v(tmp + 4 + h, 2), "" if conj else neg))

    def col_compute(self, late, before_bar1=None):
        k, r, li = self.k, self.c, self.layer
        tmp, late = r.tmp, list(late)
        NC = self.o.get("NC", 1)

        def fill(n):
            for _ in range(n):
                if late:
                    k(late.pop(0))
        for b in range(2):
            for rr in range(4):
                k("v_fmamk_f32 %s, %s, %s, %s" % (v(r.SQ + 4 * b + rr), v(r.SQ + 4 * b + rr), fbits(2.0 ** 13), v(r.veps)))
            for rr in range(4):
                k("v_rsq_f32 %s, %s" % (v(r.SQ + 4 * b + rr), v(r.SQ + 4 * b + rr)))
            for rr in range(4):
                k("v_lshlrev_b32 %s, 16, %s" % (v(r.XF + 8 * b + rr), v(r.XR + 4 * b + rr)))
                k("v_and_b32 %s, 0xffff0000, %s" % (v(r.XF + 8 * b + 4 + rr), v(r.XR + 4 * b + rr)))
            for h in (0, 2):
                k("v_pk_mul_f32 %s, %s, %s" % (v(tmp + h, 2), v(r.XF + 8 * b + h, 2), v(r.SQ + 4 * b + h, 2)))
                k("v_pk_mul_f32 %s, %s, %s" % (v(tmp + 4 + h, 2), v(r.XF + 8 * b + 4 + h, 2), v(r.SQ + 4 * b + h, 2)))
            for rr in range(4):
                k("v_cvt_pk_bf16_f32 %s, %s, %s" % (v(r.PK + 4 * b + rr), v(tmp + rr), v(tmp + 4 + rr)))
        k("s_cmp_lg_u32 s2, 0")
        k("s_cbranch_scc1 COL_A%d" % li)
        for i in range(8):
            k("v_and_b32 %s, 0xffff, %s" % (v(r.PK + i), v(r.PK + i)))
        k.label("COL_A%d" % li)
        for b in range(2):
            k("ds_write_b128 %s, %s offset:%d" % (v(r.vwr), v(r.PK + 4 * b, 4), 1024 * b))
        fill(12)
        if before_bar1:
            before_bar1()
        k("s_waitcnt lgkmcnt(0)")
        k("s_barrier")
        for bt in range(2):
            for ks in range(4):
                k("ds_read_b128 %s, %s offset:%d" % (v(r.FR + 16 * bt + 4 * ks, 4), v(r.vrd), 12288 * ks + 1024 * bt))
        fill(max(12, len(late) - 24))
        self.st("c_x1")
        for bt in range(2):
            for ri in range(2):
                for ks in range(4):
                    d = v(r.AC + 8 * bt + 4 * ri, 4)
                    k("%s %s, %s, %s, %s" % (MF, d, v(r.FR + 16 * bt + 4 * ks, 4), v(r.C64 + 8 * ks + 4 * ri, 4), d if ks else "0"))
                    fill(1 if late and "_sin" in late[0] or late and "_cos" in late[0] else 2)
                    if ks == 1:
                        self.side(NC)
        fill(len(late))
        for bt in range(2):
            self.cmul(r.AC + 8 * bt, r.AC + 8 * bt + 4, r.T1C + 4 * bt, r.T1S + 4 * bt, False)
            for rr in range(4):
                k("v_cvt_pk_bf16_f32 %s, %s, %s" % (v(r.PK + 4 * bt + rr), v(tmp + rr), v(tmp + 4 + rr)))
        for kt in range(2):
            for ri in range(2):
                for ks in range(2):
                    d = v(r.FR + 8 * kt + 4 * ri, 4)
                    k("%s %s, %s, %s, %s" % (MF, d, v(r.C32 + 16 * kt + 8 * ks + 4 * ri, 4), v(r.PK + 4 * ks, 4), d if ks else "0"))
                    if ks == 1 and ri == 0:
                        self.side(NC)
        P2 = r.FR + 16
        for kt in range(2):
            self.cmul(r.FR + 8 * kt, r.FR + 8 * kt + 4, r.WC + 4 * kt, r.WS + 4 * kt, True)
            for rr in range(4):
                k("v_cvt_pk_bf16_f32 %s, %s, %s" % (v(P2 + 4 * kt + rr), v(tmp + 4 + rr), v(tmp + rr)))
        for bt in range(2):
            for ri in range(2):
                for ks in range(2):
                    d = v(r.AC + 8 * bt + 4 * (1 - ri), 4)
                    k("%s %s, %s, %s, %s" % (MF, d, v(P2 + 4 * ks, 4), v(r.C32 + 16 * bt + 8 * ks + 4 * ri, 4), d if ks else "0"))
                    if ks == 1 and ri == 0:
                        self.side(NC)
        for bt in range(2):
            self.cmul(r.AC + 8 * bt, r.AC + 8 * bt + 4, r.T2C + 4 * bt, r.T2S + 4 * bt, True)
            for rr in range(4):
                k("v_cvt_pk_bf16_f32 %s, %s, %s" % (v(r.PK + 4 * bt + rr), v(tmp + 4 + rr), v(tmp + rr)))
            k("ds_write_b128 %s, %s offset:%d" % (v(r.vwr), v(r.PK + 4 * bt, 4), 2048 + 1024 * bt))
        k("s_add_u32 %s, %s, 0x%x" % (s(sT), s(sQ), (L.X1, L.X3)[li]))
        k.wait_tag("w2t")
        self.side(2 * NC)
        k("s_waitcnt lgkmcnt(0)")
        k("s_barrier")
        for bt in range(2):
            for ks in range(4):
                k("ds_read_b128 %s, %s offset:%d" % (v(r.FR + 16 * bt + 4 * ks, 4), v(r.vrd), 2048 + 12288 * ks + 1024 * bt))
        self.st("c_x2")
        for bt in range(2):
            for ri in range(2):
                for ks in range(4):
                    d = v(r.XF + 8 * bt + 4 * (1 - ri), 4)
                    k("%s %s, %s, %s, %s" % (MF, d, v(r.C64 + 8 * ks + 4 * ri, 4), v(r.FR + 16 * bt + 4 * ks, 4), d))
        k("s_cmp_lg_u32 s2, 0")
        for bt in range(2):
            for rr in range(4):
                k("v_cvt_pk_bf16_f32 %s, %s, %s" % (v(r.PK + 4 * bt + rr), v(r.XF + 8 * bt + rr), v(r.XF + 8 * bt + 4 + rr)))
            k("s_cbranch_scc1 COL_B%d%d" % (li, bt))
            k("s_mov_b32 %s, 0xffff" % s(sV))
            for rr in range(4):
                k("v_bfi_b32 %s, %s, %s, %s" % (v(r.PK + 4 * bt + rr), s(sV), v(r.PK + 4 * bt + rr), v(r.XR + 4 * bt + rr)))
            k.label("COL_B%d%d" % (li, bt))
            k("buffer_store_dwordx4 %s, %s, %s, %s offen offset:%d sc1" % (v(r.PK + 4 * bt, 4), v(r.voff), WS, s(sT), 1024 * bt), tag="xs")
        self.st("c_end")

    def mlp(self):
        k, li = self.k, self.layer
        o = dict(self.o)
        o.update({n[:-2]: x for n, x in self.o.items() if isinstance(n, str) and n.endswith("_%d" % li)})
        D, PD, CH = o.get("D", 6), o.get("PD", 14), o.get("CH", 2)
        FS = 128
        XIN, H = (L.X1, L.X3)[li], (L.H1, L.H2)[li]
        TS = TILE if li == 0 else 4 * TILE
        va = Alloc(5, 256)
        vX, vX2, vrX, vH6, vB1, vA2, vF = (va() for _ in range(7))
        vS, vC = va(2), va(2)
        tmp = va(16, 4)
        t = [tmp + i for i in range(8)]
        XB, ACC, AF = va(128, 4), va(64, 4), va(32, 4)
        SSQ = ACC + 56
        acc1 = lambda ft, tt: ACC + 16 * (ft >> 1) + 8 * tt + 4 * (ft & 1) if ft < 6 else ACC + 48 + 4 * tt
        queue, side = self.queue, self.side

        side(o.get("N1", 8))
        k("s_lshl_b32 %s, %s, 8" % (s(sV), s(sWv)))
        k("s_add_u32 %s, %s, s2" % (s(sV), s(sV)))
        k("s_mul_i32 %s, %s, %d" % (s(sV), s(sV), FS))
        k("s_add_u32 %s, %s, 0x%x" % (s(sV), s(sV), L.GFLAGS + 262144 * li))
        self.publish("xs", sV)
        self.st("s_pub")
        pre = []
        P = pre.append
        P("v_mov_b32 %s, %s" % (v(vC), fbits(C1)))
        P("v_mov_b32 %s, %s" % (v(vC + 1), fbits(C0)))
        P("v_lshrrev_b32 %s, 6, v0" % v(t[0]))
        P("v_bfe_u32 %s, v0, 3, 2" % v(t[1]))
        P("v_lshlrev_b32 %s, 19, %s" % (v(vX), v(t[1])))
        P("v_bfe_u32 %s, v0, 5, 1" % v(t[1]))
        P("v_lshl_add_u32 %s, %s, 17, %s" % (v(vX), v(t[1]), v(vX)))
        P("v_and_b32 %s, 7, v0" % v(t[1]))
        P("v_lshl_add_u32 %s, %s, 4, %s" % (v(vX), v(t[1]), v(vX)))
        P("v_lshl_add_u32 %s, %s, 7, %s" % (v(vX), v(t[0]), v(vX)))
        P("v_add_u32 %s, %d, %s" % (v(vX2), 32 * 8192 - 1024, v(vX)))
        P("v_lshrrev_b32 %s, 1, %s" % (v(t[1]), v(vrA)))
        P("v_add_u32 %s, %s, %s" % (v(vrX), s(sRB), v(t[1])))
        P("v_and_b32 %s, 48, v0" % v(t[1]))
        P("v_add_u32 %s, %s, %s" % (v(vB1), s(sRB), v(t[1])))
        P("v_add_u32 %s, %d, %s" % (v(vA2), WB, v(vrA)))
        P("v_bfe_u32 %s, v0, 4, 1" % v(t[1]))
        P("v_mul_u32_u24 %s, %d, %s" % (v(vH6), TS, v(t[1])))
        P("v_bfe_u32 %s, v0, 5, 1" % v(t[1]))
        P("v_lshl_add_u32 %s, %s, 8, %s" % (v(vH6), v(t[1]), v(vH6)))
        P("v_and_b32 %s, 15, v0" % v(t[1]))
        P("v_lshl_add_u32 %s, %s, 4, %s" % (v(vH6), v(t[1]), v(vH6)))
        P("v_mul_u32_u24 %s, %d, v0" % (v(vF), FS))
        P("v_mov_b32 %s, 0xffff" % v(t[4]))
        P("v_cmp_gt_u32 vcc, 256, %s" % v(vrA))
        P("v_cndmask_b32 %s, -1, %s, vcc" % (v(vS), v(t[4])))
        P("s_lshl_b32 %s, %s, 9" % (s(sX), s(sP)))
        P("s_add_u32 %s, %s, 0x%x" % (s(sX), s(sX), XIN))
        P("s_lshr_b32 %s, %s, 2" % (s(sG), s(sP)))
        P("s_mul_i32 %s, %s, %d" % (s(sG), s(sG), 256 * FS))
        P("s_add_u32 %s, %s, 0x%x" % (s(sG), s(sG), L.GFLAGS + 262144 * li))
        P("s_mul_i32 %s, %s, %d" % (s(sHst), s(sP), 8 * TILE))
        P("s_add_u32 %s, %s, 0x%x" % (s(sHst), s(sHst), H))
        P("s_mul_i32 %s, %s, %d" % (s(sHA), s(sWv), 2 * TILE if li == 0 else TILE))
        P("s_add_u32 %s, %s, %s" % (s(sHA), s(sHA), s(sHst)))
        P("s_lshr_b32 %s, %s, 2" % (s(sV), s(sI)))
        P("s_mul_i32 %s, %s, 14336" % (s(sV), s(sV)))
        P("s_add_u32 %s, %s, %s" % (s(sHA), s(sHA), s(sV)))
        P("s_and_b32 %s, %s, 3" % (s(sV), s(sI)))
        P("s_lshl_b32 %s, %s, 9" % (s(sV), s(sV)))
        P("s_add_u32 %s, %s, %s" % (s(sH6), s(sHA), s(sV)))
        P("s_add_u32 %s, %s, %s" % (s(sHB), s(sH6), s(sV)))
        P("s_lshl_b32 %s, %s, 2" % (s(sV), s(sV)))
        P("s_add_u32 %s, %s, %s" % (s(sHA), s(sHA), s(sV)))
        P("s_add_u32 %s, %s, %d" % (s(sH6), s(sH6), 12 * 1024))
        P("s_add_u32 %s, %s, %d" % (s(sHB), s(sHB), 8 * 1024))
        P("s_mul_i32 %s, %s, %d" % (s(sV), s(sPhi), 4 * TILE))
        P("s_add_u32 %s, %s, %s" % (s(sHst), s(sHst), s(sV)))
        P("s_mul_i32 %s, %s, 14336" % (s(sV), s(sWv)))
        P("s_add_u32 %s, %s, %s" % (s(sHst), s(sHst), s(sV)))
        P("s_and_b32 %s, %s, %d" % (s(sPl), s(sWv), 2 if li == 0 else 3))
        for kt in range(4):
            P("s_xor_b32 %s, %s, %d" % (s(sV), s(sPl), kt ^ (2 if li == 0 else 3)))
            P("s_mul_i32 %s, %s, %d" % (s(sV), s(sV), TILE))
            P("s_add_u32 %s, %s, %s" % (s(sHt + kt), s(sHst), s(sV)))
        P("s_lshl_b32 %s, %s, 4" % (s(sPl), s(sP)))
        P("s_add_u32 %s, %s, %s" % (s(sFl), s(sPl), s(sI)))
        P("s_lshl_b32 %s, %s, 2" % (s(sFl), s(sFl)))
        P("s_add_u32 %s, %s, %s" % (s(sFl), s(sFl), s(sWv)))
        P("s_lshl_b32 %s, %s, 7" % (s(sFl), s(sFl)))
        P("s_add_u32 %s, %s, 0x%x" % (s(sFl), s(sFl), L.FLAGS + li * 262144))
        P("s_lshl_b32 %s, %s, 9" % (s(sPl), s(sPl)))
        P("s_lshl_b32 %s, %s, 11" % (s(sV), s(sWv)))
        P("s_add_u32 %s, %s, %s" % (s(sPl), s(sPl), s(sV)))
        P("s_add_u32 %s, %s, 0x%x" % (s(sPl), s(sPl), L.FLAGS + li * 262144))
        for m, c in ((8, 0x22222222), (9, 0x22222222), (10, 0x44444444), (11, 0x44444444), (36, 0x88888888), (37, 0x88888888)):
            P("s_mov_b32 %s, 0x%x" % (s(m), c))
        n2 = o.get("N2", 10)
        per = -(-len(pre) // max(1, n2))
        for j in range(n2):
            side()
            for txt in pre[:per]:
                k(txt)
            del pre[:per]
        for txt in pre:
            k(txt)
        assert li or self.issued["w1"] == 28
        k("s_mul_i32 %s, %s, 448" % (s(sW1), s(sI)))
        k("s_add_u32 %s, %s, 0x%x" % (s(sW1), s(sW1), L.B1X))
        self.poll_issue(vF, sG)
        side(o.get("N3", 10))
        self.poll_check(vF, sG)
        k("s_barrier")
        self.st("s_go")
        if li == 0:
            k("s_or_b32 %s, s2, %s" % (s(sV), s(sWv)))
            k("s_cbranch_scc1 NO_EPOCH")
            k("s_mov_b32 %s, 0x%x" % (s(sV), L.EPOCH))
            self.flag_store(sV)
            k.label("NO_EPOCH")

        def bundle(ks):
            tg = ("b", ks)
            if ks == 16:
                return [(lambda: k("s_add_u32 m0, %s, %d" % (s(sRB), 4 * 2048)), self.dma(vrA, sW1, 0, tg))]
            return [(self.setup(sRB, (ks % 6) * 2048, sT, sX, ks * 8192), self.dma(vX, sT, 0, tg, " sc1")),
                    (None, self.dma(vX2, sT, 1024, tg, " sc1"))]

        def x_read(ks, n):
            i, ro = ((0, 0), (1, 4), (2, 2), (3, 6))[n]
            return lambda: k("ds_read_b64 %s, %s offset:%d" % (v(XB + 8 * ks + ro, 2), v(vrX), (ks % 6) * 2048 + 512 * i))

        def x_swap(ks, n):
            return lambda: k("v_swap_b32 %s, %s" % (v(XB + 8 * ks + 1 + 2 * n), v(XB + 8 * ks + 4 + 2 * n)))

        def a_read(ks, ft):
            return lambda: k("ds_read_b128 %s, %s offset:%d" % (v(AF + 16 * (ks & 1) + 4 * ft, 4), v(vrA), (4 * ks + ft) * 1024))

        def b1_read(reg, ft):
            return lambda: k("ds_read_b128 %s, %s offset:%d" % (v(reg, 4), v(vB1), 4 * 2048 + 64 * ft))

        def diag(tt):
            def op():
                k("v_cndmask_b32 %s, %s, %s, s[8:9]" % (v(t[tt]), v(SSQ + 4 * tt), v(SSQ + 4 * tt + 1)))
                k("v_cndmask_b32 %s, %s, %s, s[10:11]" % (v(t[tt]), v(t[tt]), v(SSQ + 4 * tt + 2)))
                k("v_cndmask_b32 %s, %s, %s, s[36:37]" % (v(t[tt]), v(t[tt]), v(SSQ + 4 * tt + 3)))
                k("ds_bpermute_b32 %s, %s, %s" % (v(vS + tt), v(t[2]), v(t[tt])))
            return op

        for ks in range(D):
            self.issue(bundle(ks))
        for ft in range(4):
            a_read(0, ft)()
        k("v_and_b32 %s, 12, v0" % v(t[2]))
        k("v_and_b32 %s, 15, v0" % v(t[3]))
        k("v_lshlrev_b32 %s, 7, %s" % (v(vF), v(t[3])))
        k("v_lshl_add_u32 %s, %s, 2, %s" % (v(t[2]), v(t[2]), v(t[3])))
        k("v_lshlrev_b32 %s, 2, %s" % (v(t[2]), v(t[2])))
        k("v_mov_b32 %s, %s" % (v(t[3]), fbits(EPS * EPS)))
        k.wait_tag(("b", 0))
        self.st("first")
        for n in range(4):
            x_read(0, n)()
        x_swap(0, 0)()
        x_swap(0, 1)()
        for ks in range(16):
            k.wait_tag(("b", ks + 1))
            fill = [[] for _ in range(10)]
            ops = bundle(ks + D) if ks + D <= 16 else []
            while len(ops) < (2 if ks < 15 else 0) and queue:
                ops.append(queue.pop(0))
            for n, (su, ld) in enumerate(ops):
                if su:
                    fill[(2, 7)[n]].append(su)
                fill[(3, 8)[n]].append(ld)
            if ks < 15:
                for n in range(4):
                    fill[n >> 1].append(x_read(ks + 1, n))
                    fill[(3, 4, 4, 5)[n]].append(a_read(ks + 1, n))
                fill[6].insert(0, x_swap(ks + 1, 0))
                fill[9].insert(0, x_swap(ks + 1, 1))
            else:
                for n in range(4):
                    fill[n >> 1].append(b1_read(AF + 4 * n, n))
                fill[4].append(diag(0))
                fill[6].append(diag(1))
            order = list(range(10))
            if ks == 0:
                order = order[2:] + order[:2]
                for tt in range(2):
                    fill[2 + 3 * tt].append(lambda tt=tt: k("v_and_b32 %s, %s, %s\nv_mov_b32 %s, %s" % (
                        v(tmp + 8 + 4 * tt), v(vS), v(XB + 4 * tt), v(tmp + 9 + 4 * tt), v(XB + 4 * tt + 1))))
                    fill[4 + 2 * tt].append(lambda tt=tt: k("v_mov_b32 %s, %s\nv_mov_b32 %s, %s" % (
                        v(tmp + 10 + 4 * tt), v(XB + 4 * tt + 2), v(tmp + 11 + 4 * tt), v(XB + 4 * tt + 3))))
            for pos, m in enumerate(order):
                tt = m & 1
                bb = v(XB + 8 * ks + 4 * tt, 4)
                if m < 2:
                    d = v(SSQ + 4 * tt, 4)
                    k("%s %s, %s, %s, %s" % (MF, d, v(tmp + 8 + 4 * tt, 4) if ks == 0 else bb, bb, d if ks else "0"))
                else:
                    ft = (m - 2) >> 1
                    d = v(acc1(ft, tt), 4)
                    k("%s %s, %s, %s, %s" % (MF, d, v(AF + 16 * (ks & 1) + 4 * ft, 4), bb, d if ks else "0"))
                for op in fill[pos]:
                    op()
        self.st("passA")

        def b_slot(j):
            return AF + 4 * ((j + 4) % 8)

        def b_read(j):
            k("ds_read_b128 %s, %s offset:%d" % (v(b_slot(j), 4), v(vA2), j * 1024))

        for j in range(4):
            b_read(j)
        for tt in range(2):
            k("v_fmamk_f32 %s, %s, %s, %s" % (v(vS + tt), v(vS + tt), fbits((1 + EPS) / 512), v(t[3])))
        for tt in range(2):
            k("v_rsq_f32 %s, %s" % (v(vS + tt), v(vS + tt)))

        nunit = [0]

        def gelu(x, tts, bias, store):
            ob = tmp + 8 + 4 * (nunit[0] & 1)
            nunit[0] += 1
            for h in range(4):
                k("v_pk_fma_f32 %s, %s, %s, %s op_sel:[0,%d,0] op_sel_hi:[1,%d,1]"
                  % (v(x + 2 * h, 2), v(x + 2 * h, 2), v(vS, 2), v(bias[h], 2), tts[h], tts[h]))
            for h in range(4):
                k("v_pk_mul_f32 %s, %s, %s" % (v(tmp + 2 * h, 2), v(x + 2 * h, 2), v(x + 2 * h, 2)))
            for h in range(4):
                k("v_pk_fma_f32 %s, %s, %s, %s op_sel:[0,0,1] op_sel_hi:[1,0,1]" % (v(tmp + 2 * h, 2), v(tmp + 2 * h, 2), v(vC, 2), v(vC, 2)))
            for h in range(4):
                k("v_pk_mul_f32 %s, %s, %s" % (v(tmp + 2 * h, 2), v(x + 2 * h, 2), v(tmp + 2 * h, 2)))
            for i in range(8):
                k("v_exp_f32 %s, %s" % (v(tmp + i), v(tmp + i)))
            for h in range(4):
                k("v_pk_add_f32 %s, %s, 1.0 op_sel_hi:[1,0]" % (v(tmp + 2 * h, 2), v(tmp + 2 * h, 2)))
            for i in range(8):
                k("v_rcp_f32 %s, %s" % (v(tmp + i), v(tmp + i)))
            side(o.get("GS", 0))
            for h in range(4):
                k("v_pk_mul_f32 %s, %s, %s" % (v(tmp + 2 * h, 2), v(x + 2 * h, 2), v(tmp + 2 * h, 2)))
            for h in (0, 2, 1, 3):
                k("v_cvt_pk_bf16_f32 %s, %s, %s" % (v(ob + h), v(tmp + 2 * h), v(tmp + 2 * h + 1)))
            store(ob)

        def st_pair(sb, off, tag):
            return lambda ob: k("buffer_store_dwordx4 %s, %s, %s, %s offen offset:%d sc1" % (v(ob, 4), v(vrA), WS, s(sb), off), tag=tag)

        def st_six(ob):
            k("v_permlane16_swap_b32 %s, %s" % (v(ob), v(ob + 2)))
            k("v_permlane16_swap_b32 %s, %s" % (v(ob + 1), v(ob + 3)))
            k("buffer_store_dwordx4 %s, %s, %s, %s offen sc1" % (v(ob, 4), v(vH6), WS, s(sH6)), tag="hB")

        for tt in range(2):
            for pr in range(2):
                gelu(acc1(2 * pr, tt), [tt] * 4, [AF + 8 * pr + 2 * h for h in range(4)], st_pair(sHA, pr * 1024, "hA"))
            if tt == 0:
                k("s_add_u32 %s, %s, %d" % (s(sHA), s(sHA), TS))
                if li == 1:
                    k("s_barrier")
        if li == 1:
            k("s_lshl_b32 %s, %s, 14" % (s(sG), s(sWv)))
            k("s_lshl_b32 %s, %s, 16" % (s(sX), s(sCt)))
            k("s_add_u32 %s, %s, %s" % (s(sX), s(sX), s(sG)))
            k("s_add_u32 %s, %s, 0x%x" % (s(sX), s(sX), L.FT))
            queue[0:0] = [(self.setup(sG, (j >> 2) * 4096, sT, sX, (j >> 2) * 4096) if j & 3 == 0 else None,
                           self.dma(vrA, sT, (j & 3) * 1024, "ft")) for j in range(16)]
        self.st("geluA")

        FA = o.get("FA", 60)
        for j in range(4, 7):
            b_read(j)
        for j in range(48):
            ks, ft = j // 3, 4 + j % 3
            pend = None
            for tt in range(2):
                d = v(acc1(ft, tt), 4)
                k("%s %s, %s, %s, %s" % (MF, d, v(b_slot(j), 4), v(XB + 8 * ks + 4 * tt, 4), d if ks else "0"))
                if tt == 0:
                    if j + 7 < 48:
                        b_read(j + 7)
                    elif j + 7 < 51:
                        b1_read(b_slot(j + 7), j + 7 - 44)()
                    if j & 1 and queue:
                        su, pend = queue.pop(0)
                        if su:
                            su()
                elif pend:
                    pend()
                if 2 * j + tt == FA:
                    self.publish("hA", sFl)
                    k("s_add_u32 %s, %s, 131072" % (s(sFl), s(sFl)))
        self.st("passB")
        RES, BIAS, vRes = AF, AF + 8, vX
        if li == 0:
            k("v_bfe_u32 %s, v0, 4, 2" % v(vX2))
            k("v_lshrrev_b32 %s, 4, %s" % (v(vRes), v(vF)))
            k("v_lshl_add_u32 %s, %s, 15, %s" % (v(vRes), v(vX2), v(vRes)))
            k("v_lshlrev_b32 %s, 4, %s" % (v(vX2), v(vX2)))
            k("s_lshl_b32 %s, %s, 1" % (s(sG), s(sCt)))
            k("s_and_b32 %s, %s, 1" % (s(sV), s(sWv)))
            k("s_add_u32 %s, %s, %s" % (s(sG), s(sG), s(sV)))
            k("s_lshl_b32 %s, %s, 17" % (s(sV), s(sG)))
            k("s_add_u32 %s, %s, %s" % (s(sX), s(sX), s(sV)))
            k("s_lshl_b32 %s, %s, 6" % (s(sG), s(sG)))
            k("s_add_u32 %s, %s, 0x%x" % (s(sG), s(sG), L.B2F))
            k("s_lshl_b32 %s, %s, 1" % (s(sT), s(sPhi)))
            k("s_lshr_b32 %s, %s, 1" % (s(sV), s(sWv)))
            k("s_add_u32 %s, %s, %s" % (s(sT), s(sT), s(sV)))
            k("s_lshl_b32 %s, %s, 7" % (s(sHA), s(sT)))
            k("s_add_u32 %s, %s, %s" % (s(sX), s(sX), s(sHA)))
            for r in range(4):
                queue.append((lambda r=r: k("s_add_u32 %s, %s, %d" % (s(sT), s(sX), r * 8192)),
                              lambda r=r: k("buffer_load_dwordx2 %s, %s, %s, %s offen sc1" % (v(RES + 2 * r, 2), v(vRes), WS, s(sT)))))
            for ri in range(2):
                queue.append((None, lambda ri=ri: k("buffer_load_dwordx4 %s, %s, %s, %s offen offset:%d sc1" % (v(BIAS + 4 * ri, 4), v(vX2), WS, s(sG), ri * 1024))))
        else:
            assert self.issued["ft"] == 16
            k("v_and_b32 %s, 48, v0" % v(vX2))
            k("v_lshlrev_b32 %s, 1, %s" % (v(vX2), v(vX2)))
            k("s_lshl_b32 %s, %s, 7" % (s(sG), s(sCt)))
            for e in range(2):
                k("buffer_load_dwordx4 %s, %s, s[40:43], %s offen offset:%d" % (v(RES + 4 * e, 4), v(vX2), s(sG), e * 16))
        PA = o.get("PA", 1)
        bb = b_slot(48)
        for u in range(3):
            if u == PA:
                self.poll_issue(vF, sPl)
            if u < 2:
                gelu(acc1(4, u), [u] * 4, [bb + 2 * h for h in range(4)], st_pair(sHB, 0, "hB"))
                if u == 0:
                    k("s_add_u32 %s, %s, %d" % (s(sHB), s(sHB), TS))
            else:
                gelu(acc1(6, 0), [0, 0, 1, 1], [bb + 8, bb + 10, bb + 8, bb + 10], st_six)
        if PA == 3:
            self.poll_issue(vF, sPl)
        self.st("geluB")

        loads = [(kt, kf) for kt in range(4) for kf in range(8)] + [(kt, kf) for kt in range(4) for kf in range(8, 14)]
        slot = {x: XB + 4 * (j % 32) for j, x in enumerate(loads)}
        acc2 = lambda kt, c: ACC + 16 * kt + 4 * c
        own = [acc2(2 + (g >> 1), 2 + (g & 1)) for g in range(4)] if li == 0 else [acc2(3, g) for g in range(4)]

        def h_load(j):
            kt, kf = loads[j]
            if kf % 4 == 0:
                k("s_add_u32 %s, %s, %d" % (s(sHst), s(sHt + kt), kf * 1024))
            k("buffer_load_dwordx4 %s, %s, %s, %s offen offset:%d sc1" % (v(slot[loads[j]], 4), v(vrA), WS, s(sHst), (kf & 3) * 1024))

        FB = min(PD - 1, o.get("FB", 10))
        if li == 0:
            side(len(queue))
            self.poll_check(vF, sPl)
            self.st("pollA")
            for j in range(PD):
                h_load(j)
                if j == FB:
                    self.publish("hB", sFl)
            for tt in range(2):
                for r in range(4):
                    k("v_lshlrev_b32 %s, 16, %s" % (v(own[2 * tt] + r), v(RES + 2 * r + tt)))
                    k("v_and_b32 %s, 0xffff0000, %s" % (v(own[2 * tt + 1] + r), v(RES + 2 * r + tt)))
            for g in range(4):
                for h in (0, 2):
                    k("v_pk_add_f32 %s, %s, %s" % (v(own[g] + h, 2), v(own[g] + h, 2), v(BIAS + 4 * (g & 1) + h, 2)))
        else:
            side(len(queue))
            for c in range(4):
                for h in range(2):
                    k("v_lshlrev_b32 %s, 16, %s" % (v(own[c] + 2 * h), v(RES + 2 * c + h)))
                    k("v_and_b32 %s, 0xffff0000, %s" % (v(own[c] + 2 * h + 1), v(RES + 2 * c + h)))
            k.wait_tag("ft")
            k("s_barrier")
            k("s_cmp_eq_u32 %s, 1" % s(sPhi))
            k("s_cbranch_scc1 X3B")
            for tt in range(2):
                if tt == 1:
                    k.label("X3B")
                for j in range(7):
                    k("ds_read_b128 %s, %s offset:%d" % (v(AF + 4 * j, 4), v(vrA), j * 1024))
                nh = 0
                for j in range(64):
                    ks, c = j >> 2, j & 3
                    d = v(own[c], 4)
                    k("%s %s, %s, %s, %s" % (MF, d, v(AF + 4 * (j % 8), 4), v(XB + 8 * ks + 4 * tt, 4), d))
                    if j + 7 < 64:
                        k("ds_read_b128 %s, %s offset:%d" % (v(AF + 4 * ((j + 7) % 8), 4), v(vrA), (j + 7) * 1024))
                    if c == 1 and ks >= o.get("XH", 1) and nh < PD:
                        if nh == 0:
                            self.poll_check(vF, sPl)
                        assert nh < 2 * ks
                        h_load(nh)
                        nh += 1
                    if j == o.get("FBX", 44):
                        self.publish("hB", sFl)
                for j in range(nh, PD):
                    h_load(j)
                if tt == 0:
                    k("s_branch X3E")
            k.label("X3E")
            self.st("pollA")
        k("s_add_u32 %s, %s, 131072" % (s(sPl), s(sPl)))

        vRW, vRd, vO, vI = vrX, [AF + 16, AF + 17, AF + 18], vX, AF + 19
        late = []
        Q = late.append
        Q("v_add_u32 %s, %s, %s" % (v(vRW), s(sRB), v(vrA)))
        for dl in range(1, 4):
            Q("s_xor_b32 %s, %s, %d\ns_mul_i32 %s, %s, 12288" % (s(sV), s(sWv), dl, s(sV), s(sV)))
            Q("s_add_u32 %s, %s, %d\nv_add_u32 %s, %s, %s" % (s(sV), s(sV), PRIV + (3 ^ dl) * 4096, v(vRd[dl - 1]), s(sV), v(vrA)))
        if li == 1:
            Q("v_and_b32 %s, 15, v0\nv_lshl_add_u32 %s, %s, 1, %s" % (v(t[0]), v(t[2]), v(t[0]), s(sPhi)))
            Q("v_and_b32 %s, 3, %s\nv_lshrrev_b32 %s, 1, %s" % (v(t[2]), v(t[2]), v(t[0]), v(t[0])))
            Q("v_lshl_add_u32 %s, %s, 5, %s\nv_lshl_add_u32 %s, %s, 10, %s" % (v(t[0]), v(t[2]), v(t[0]), v(vO), v(t[0]), v(vX2)))
            Q("s_lshr_b32 %s, %s, 2\ns_lshl_b32 %s, %s, 9" % (s(sV), s(sP), s(sX), s(sV)))
            Q("s_and_b32 %s, %s, 1\ns_lshl_b32 %s, %s, 8" % (s(sV), s(sP), s(sV), s(sV)))
            Q("s_add_u32 %s, %s, %s\ns_lshr_b32 %s, %s, 1" % (s(sX), s(sX), s(sV), s(sV), s(sWv)))
            Q("s_lshl_b32 %s, %s, 7\ns_add_u32 %s, %s, %s" % (s(sV), s(sV), s(sX), s(sX), s(sV)))
            Q("s_bfe_u32 %s, %s, 0x10001\ns_lshl_b32 %s, %s, 4" % (s(sV), s(sP), s(sV), s(sV)))
            Q("s_add_u32 %s, %s, %s\ns_and_b32 %s, %s, 1" % (s(sX), s(sX), s(sV), s(sV), s(sWv)))
            Q("s_lshl_b32 %s, %s, 3\ns_add_u32 %s, %s, %s" % (s(sV), s(sV), s(sX), s(sX), s(sV)))
            Q("s_lshl_b32 %s, %s, 10\ns_add_u32 %s, %s, %s" % (s(sX), s(sX), s(sX), s(sX), s(sG)))
        else:
            Q("s_add_u32 %s, %s, 0x%x\ns_cmp_eq_u32 %s, 0x%x" % (s(sX), s(sX), L.X2 - XIN, s(sG), L.B2F) +
              "\ns_cselect_b32 s8, 0xffff, 0")
            Q("s_mov_b32 s9, 0\nv_bfe_u32 %s, v0, 4, 1" % v(t[0]))
            Q("v_lshrrev_b32 %s, 4, %s\nv_lshl_add_u32 %s, %s, 2, %s" % (v(vI), v(vF), v(vI), v(t[0]), v(vI)))
            Q("s_lshl_b32 %s, %s, 9\ns_add_u32 %s, %s, %s" % (s(sV), s(sP), s(sHA), s(sHA), s(sV)))
            Q("s_add_u32 %s, %s, 0x%x" % (s(sHA), s(sHA), L.SSQ2))

        def quarter(kap):
            return [acc2(2 * (kap >> 1) + (g >> 1), 2 * (kap & 1) + (g & 1)) for g in range(4)] if li == 0 else [acc2(kap, g) for g in range(4)]

        def block(kts, kfs, cs):
            return [(kt, kf, c) for kt in kts for g0 in range(0, len(kfs), CH) for c in cs for kf in kfs[g0:g0 + CH]]
        A8, B6, ALL = list(range(8)), list(range(8, 14)), list(range(4))
        seq = block(ALL, A8, ALL)
        if li == 0:
            seq += block([0, 1], B6, ALL) + block([2, 3], B6, [0, 1]) + block([2, 3], B6, [2, 3])
            wr = {176 + 6 + 2 * n: (n >> 2, n & 3) for n in range(8)}
        else:
            seq += block(ALL, B6, ALL)
            wr = {152 + 24 * (n >> 2) + 6 + 2 * (n & 3): (n >> 2, n & 3) for n in range(8)}
        wr.update({200 + 5 + n: (2, n) for n in range(4)})
        seen, nld = set(), PD
        RB = o.get("RB", 213)
        for m, (kt, kf, c) in enumerate(seq):
            d = acc2(kt, c)
            first = d not in seen and d not in own
            seen.add(d)
            k("%s %s, %s, %s, %s" % (MF, v(d, 4), a(16 * kf + 4 * c, 4), v(slot[(kt, kf)], 4), "0" if first else v(d, 4)))
            if m == 0:
                self.st("h0")
            if m % 4 == 1 and nld < 56:
                if nld == 32:
                    self.st("preB")
                    self.poll_check(vF, sPl)
                    self.st("pollB")
                h_load(nld)
                nld += 1
            elif m == 4 * o.get("PB", 8) + 3:
                self.poll_issue(vF, sPl)
            elif m % 4 == 3 and nld > 33 and late:
                k(late.pop(0))
            if m in wr:
                kap, g = wr[m]
                assert not late
                k("ds_write_b128 %s, %s offset:%d" % (v(vRW), v(quarter(kap)[g], 4), kap * 4096 + g * 1024))
            if m == RB:
                k("s_waitcnt lgkmcnt(0)")
                k("s_barrier")
            if RB <= m < RB + 6:
                for n in (2 * (m - RB), 2 * (m - RB) + 1):
                    k("ds_read_b128 %s, %s offset:%d" % (v(XB + 4 * n, 4), v(vRd[n >> 2]), (n & 3) * 1024))
        self.st("gemm2")
        for n in range(8):
            k("v_pk_add_f32 %s, %s, %s" % (v(XB + 2 * n, 2), v(XB + 2 * n, 2), v(XB + 16 + 2 * n, 2)))
        for n in range(8):
            k("v_pk_add_f32 %s, %s, %s" % (v(XB + 2 * n, 2), v(XB + 2 * n, 2), v(XB + 32 + 2 * n, 2)))
        for n in range(8):
            d = v(own[n >> 1] + 2 * (n & 1), 2)
            k("v_pk_add_f32 %s, %s, %s" % (d, d, v(XB + 2 * n, 2)))
        if li == 0:
            for r in range(4):
                for tt in range(2):
                    k("v_cvt_pk_bf16_f32 %s, %s, %s" % (v(tmp + 2 * r + tt), v(own[2 * tt] + r), v(own[2 * tt + 1] + r)))
                k("s_add_u32 %s, %s, %d" % (s(sT), s(sX), r * 8192))
                k("buffer_store_dwordx2 %s, %s, %s, %s offen sc1" % (v(tmp + 2 * r, 2), v(vRes), WS, s(sT)), tag="xs")
            q = tmp + 8
            for tt in range(2):
                k("v_cndmask_b32 %s, %s, 0, s[8:9]" % (v(own[2 * tt + 1]), v(own[2 * tt + 1])))
            for tt in range(2):
                k("v_pk_mul_f32 %s, %s, %s" % (v(q + 2 * tt, 2), v(own[2 * tt], 2), v(own[2 * tt], 2)))
            for h in (2, 4, 6):
                for tt in range(2):
                    k("v_pk_fma_f32 %s, %s, %s, %s" % (v(q + 2 * tt, 2), v(own[2 * tt] + h, 2), v(own[2 * tt] + h, 2), v(q + 2 * tt, 2)))
            k("v_add_f32 %s, %s, %s" % (v(q), v(q), v(q + 1)))
            k("v_add_f32 %s, %s, %s" % (v(q + 2), v(q + 2), v(q + 3)))
            k("v_permlane16_swap_b32 %s, %s" % (v(q), v(q + 2)))
            k("v_add_f32 %s, %s, %s" % (v(q), v(q), v(q + 2)))
            k("v_mov_b32 %s, %s" % (v(q + 1), v(q)))
            k("v_permlane32_swap_b32 %s, %s" % (v(q), v(q + 1)))
            k("v_add_f32 %s, %s, %s" % (v(q), v(q), v(q + 1)))
            k("s_mov_b32 exec_hi, 0")
            k("buffer_atomic_add_f32 %s, %s, %s, %s offen" % (v(q), v(vI), WS, s(sHA)), tag="xs")
            k("s_mov_b32 exec_hi, -1")
        else:
            for e in range(2):
                for i in range(4):
                    k("v_cvt_pk_bf16_f32 %s, %s, %s" % (v(tmp + 4 * e + i), v(own[0] + 8 * e + 2 * i), v(own[0] + 8 * e + 2 * i + 1)))
                k("buffer_store_dwordx4 %s, %s, s[44:47], %s offen offset:%d" % (v(tmp + 4 * e, 4), v(vO), s(sX), 16 * e))
        self.st("epi")

    def build(self):
        k, o = self.k, self.o
        k.entry(self.name)
        self.layer = 0
        self.col_alloc()
        r = self.c
        k("s_cmp_ge_u32 s2, 256")
        k("s_cbranch_scc1 MAIN_END")
        deferred = k_pre.emit(self)
        self.st("p_out")
        k("s_add_u32 %s, %s, 1" % (s(sE), s(sE)))
        k("v_mov_b32 %s, %s" % (v(vV), s(sE)))
        k("s_waitcnt vmcnt(0)")
        self.publish_wg(sRec)
        self.st("p_pub")
        deferred()
        self.col_addr()
        k("s_mov_b32 s42, 0x400")
        k("s_mov_b32 s43, 0x20000")
        k("s_mov_b32 s46, 0x200000")
        k("s_mov_b32 s47, 0x20000")
        k("s_lshl_b32 %s, s2, 13" % s(sQ))
        k("s_mul_i32 %s, %s, 12288" % (s(sRB), s(sWv)))
        k("s_add_u32 %s, %s, %d" % (s(sRB), s(sRB), PRIV))
        if o.get("map", 1):
            k("s_and_b32 %s, s2, 6" % s(sP))
            k("s_lshl_b32 %s, %s, 1" % (s(sP), s(sP)))
            k("s_lshr_b32 %s, s2, 6" % s(sT))
            k("s_add_u32 %s, %s, %s" % (s(sP), s(sP), s(sT)))
            k("s_bfe_u32 %s, s2, 0x30003" % s(sI))
            k("s_and_b32 %s, s2, 1" % s(sCt))
            k("s_lshl_b32 %s, %s, 3" % (s(sT), s(sCt)))
            k("s_add_u32 %s, %s, %s" % (s(sI), s(sI), s(sT)))
            k("s_bfe_u32 %s, s2, 0x10005" % s(sPhi))
            k("s_lshl_b32 %s, %s, 2" % (s(sCt), s(sCt)))
            k("s_bfe_u32 %s, s2, 0x20003" % s(sT))
            k("s_add_u32 %s, %s, %s" % (s(sCt), s(sCt), s(sT)))
        else:
            k("s_and_b32 %s, s2, 7" % s(sP))
            k("s_lshl_b32 %s, %s, 1" % (s(sP), s(sP)))
            k("s_lshr_b32 %s, s2, 7" % s(sT))
            k("s_add_u32 %s, %s, %s" % (s(sP), s(sP), s(sT)))
            k("s_bfe_u32 %s, s2, 0x40003" % s(sI))
            k("s_lshr_b32 %s, %s, 3" % (s(sPhi), s(sI)))
            k("s_and_b32 %s, %s, 7" % (s(sCt), s(sI)))
        k("s_lshl_b32 s38, %s, 12" % s(sWv))
        k("s_mul_i32 %s, %s, 114688" % (s(sW1), s(sI)))
        k("s_add_u32 %s, %s, s38" % (s(sW1), s(sW1)))
        k("s_add_u32 %s, %s, 0x%x" % (s(sW1), s(sW1), L.W1F))
        k("s_mul_i32 s39, %s, 229376" % s(sCt))
        k("s_mul_i32 %s, %s, 57344" % (s(sV), s(sWv)))
        k("s_add_u32 s39, s39, %s" % s(sV))
        k("s_and_b32 %s, %s, 1" % (s(sV), s(sWv)))
        k("s_xor_b32 %s, %s, 1" % (s(sV), s(sV)))
        k("s_lshl_b32 %s, %s, 11" % (s(sV), s(sV)))
        k("s_add_u32 %s, s39, %s" % (s(sW2), s(sV)))
        k("s_add_u32 %s, %s, 0x%x" % (s(sW2), s(sW2), L.W2F))
        self.queue += [(self.setup(38, (j >> 2) * 16384, sU, sW1, (j >> 2) * 16384) if j & 3 == 0 else None,
                        self.dma(vrA, sU, (j & 3) * 1024, "w1")) for j in range(28)] + self.w2_ops()
        consts = self.col_consts()
        n0 = o.get("C0", 110)
        for txt in consts[:n0]:
            k(txt)
        vF1, vF2 = r.PK, 5
        k("v_and_b32 %s, 15, v0" % v(vF1))
        k("v_and_b32 %s, 16, v0" % v(vF2))
        k("v_lshl_add_u32 %s, %s, 2, %s" % (v(vF1), v(vF2), v(vF1)))
        k("v_lshl_add_u32 %s, %s, 4, %s" % (v(vF1), v(r.t[0]), v(vF1)))
        k("v_lshlrev_b32 %s, 7, %s" % (v(vF1), v(vF1)))
        k("v_and_b32 %s, 31, v0" % v(vF2))
        k("v_lshl_add_u32 %s, %s, 5, %s" % (v(vF2), v(r.t[0]), v(vF2)))
        k("v_lshlrev_b32 %s, 7, %s" % (v(vF2), v(vF2)))
        k("s_mov_b32 %s, 0x%x" % (s(sG), L.PFLAGS))
        self.poll_issue(vF1, sG)
        for txt in consts[n0:]:
            k(txt)
        self.st("c_const")
        self.poll_check(vF1, sG, sleep=o.get("SL0", 0))
        self.st("p_go")
        self.col_load_x()
        self.col_load_w()
        k("s_add_u32 %s, %s, %d" % (s(sG), s(sG), 128 * 128))
        self.poll_issue(vF2, sG)
        self.col_compute(self.col_unpack_w(), lambda: self.poll_check(vF2, sG))
        self.mlp()

        self.layer = 1
        self.st("l2")
        self.col_addr()
        self.col_load_w()
        k("s_add_u32 %s, s39, 0x%x" % (s(sW2), L.W2T))
        self.queue += self.w2_ops()
        consts = self.col_consts() + self.col_unpack_w()
        n1 = o.get("C1", 150)
        for txt in consts[:n1]:
            k(txt)
        k("s_lshl_b32 %s, %s, 4" % (s(sV), s(sP)))
        k("s_add_u32 %s, %s, %s" % (s(sV), s(sV), s(sI)))
        k("s_lshl_b32 %s, %s, 7" % (s(sV), s(sV)))
        k("s_add_u32 %s, %s, 0x%x" % (s(sV), s(sV), L.GFLAGS + 131072))
        k.wait_tag("xs")
        self.publish_wg(sV)
        self.st("s2_pub")
        rest, n4 = consts[n1:], o.get("N4", 14)
        per = -(-len(rest) // max(1, n4))
        for j in range(n4):
            self.side()
            for txt in rest[:per]:
                k(txt)
            del rest[:per]
        for txt in rest:
            k(txt)
        k("v_lshlrev_b32 %s, 7, v0" % v(r.t[1]))
        k("s_mov_b32 %s, 0x%x" % (s(sG), L.GFLAGS + 131072))
        self.poll_issue(r.t[1], sG)
        self.side(o.get("N5", 2))
        self.poll_check(r.t[1], sG)
        self.st("s2_go")
        self.col_load_x()
        self.col_compute([])
        self.mlp()
        self.st("end", final=True)
        k.label("MAIN_END")
        k("s_endpgm")
        return k


def build(name, stamp=None, opts=None):
    return Main(name, stamp, opts).build()
```

```python
import math
from asmlib import Alloc, v, s, fbits
import layout as L

MF = "v_mfma_f32_16x16x32_bf16"
WS = "s[4:7]"
IN, IN2 = 8, 12
PITCH = 1088
IMG = 40960
vrA = 1
sWv, sE, sRec = 3, 48, 49
ST = "buffer_store_dwordx4 %s, %s, " + WS + ", %s offen offset:%d sc1"


def split14(k, sS, sU, sT):
    k("s_mul_i32 %s, %s, 4682" % (s(sS), s(sT)))
    k("s_lshr_b32 %s, %s, 16" % (s(sS), s(sS)))
    k("s_mul_i32 %s, %s, 14" % (s(sU), s(sS)))
    k("s_sub_u32 %s, %s, %s" % (s(sU), s(sT), s(sU)))


def emit(M):
    k, st = M.k, M.st
    va = Alloc(6, 256)
    vn, vg, vfn, vfg4 = va(), va(), va(), va()
    t = [va() for _ in range(8)]
    A = va(32, 4)
    D = va(64, 4)
    RAW = D
    B1re, B1im, A2re, A2im, S2re, S2im, TC, TS = (va(4, 4) for _ in range(8))
    tmp = va(16, 4)
    O = va(32, 4)
    BS = va(32, 4)
    sM0, sM8, sDC, sT, sA, sB, sC, sLds, sSelLo, sSelHi = 32, 34, 36, 37, 38, 39, 42, 43, 46, 47
    sS, sU, sG, sRole = 16, 17, 18, 19

    k("s_load_dwordx16 s[16:31], s[0:1], 0")
    k("s_load_dwordx2 s[4:5], s[0:1], 80")
    k("s_load_dwordx2 s[44:45], s[0:1], 64")
    if M.o.get("cpf", 1):
        k("s_getpc_b64 s[12:13]")
        k.raw("PRE_PC:")
        k("s_sub_u32 s12, s12, PRE_PC-%s" % M.name)
        k("s_subb_u32 s13, s13, 0")
        k("s_mov_b32 s14, CODE_END-%s" % M.name)
        k("s_mov_b32 s15, 0x20000")
        k("v_lshlrev_b32 %s, 7, v0" % v(t[0]))
        k("s_bfe_u32 %s, s2, 0x10003" % s(sC))
        k("s_lshl_b32 %s, %s, 15" % (s(sC), s(sC)))
        k("s_cmp_lt_u32 s2, %d" % M.o.get("cpw", 240))
        k("s_cbranch_scc1 PRE_NOPF")
        k("buffer_load_dword v2, %s, s[12:15], %s offen" % (v(t[0]), s(sC)))
        k.label("PRE_NOPF")
    st("start")
    k("v_lshrrev_b32 %s, 6, v0" % v(t[0]))
    k("v_and_b32 %s, 63, v0" % v(vrA))
    k("v_readfirstlane_b32 %s, %s" % (s(sWv), v(t[0])))
    k("v_and_b32 %s, 15, v0" % v(vn))
    k("v_lshrrev_b32 %s, 4, %s" % (v(vg), v(vrA)))
    k("v_lshlrev_b32 %s, 4, %s" % (v(vrA), v(vrA)))
    k("s_mov_b32 s6, 0x%x" % L.WS_USED)
    k("s_mov_b32 s7, 0x20000")
    k("s_mov_b32 %s, 0x20000" % s(IN + 3))
    k("s_mov_b32 %s, 0x05040100" % s(sSelLo))
    k("s_mov_b32 %s, 0x07060302" % s(sSelHi))
    k("s_mov_b32 %s, 0x00010001" % s(sM0))
    k("s_mov_b32 %s, 0x00010001" % s(sM0 + 1))
    k("s_mov_b32 %s, 0xff00ff00" % s(sM8))
    k("s_mov_b32 %s, 0xff00ff00" % s(sM8 + 1))
    k("s_mov_b32 %s, %s" % (s(sDC), fbits(1 / (16 * math.sqrt(2)))))
    k("v_cvt_f32_u32 %s, %s" % (v(vfn), v(vn)))
    k("v_lshlrev_b32 %s, 2, %s" % (v(t[1]), v(vg)))
    k("v_cvt_f32_u32 %s, %s" % (v(vfg4), v(t[1])))
    k("s_mov_b32 %s, s2" % s(sRec))
    k("s_mul_i32 %s, %s, %d" % (s(sLds), s(sWv), 8 * PITCH))
    k("s_mov_b32 %s, 0x%x" % (s(sC), L.EPOCH))
    k("s_mov_b64 s[40:41], s[30:31]")
    k("s_buffer_load_dword %s, %s, %s" % (s(sE), WS, s(sC)))
    k("s_cmp_ge_u32 s2, 240")
    k("s_cbranch_scc1 PRE_MISC")
    k("s_cmp_ge_u32 s2, 184")
    k("s_cbranch_scc1 PRE_IN_W2")
    k("s_cmp_ge_u32 s2, 128")
    k("s_cbranch_scc1 PRE_IN_W1")
    k("s_cmp_ge_u32 s2, 64")
    k("s_cbranch_scc1 PRE_FILT")

    nwarm = [0]

    def warm(q, sx):
        nwarm[0] += 1
        k("s_lshl_b32 %s, %s, 7" % (s(sRec), s(sRec)))
        k("s_add_u32 %s, %s, 0x%x" % (s(sRec), s(sRec), L.PFLAGS))
        k("v_lshrrev_b32 v4, 2, %s" % v(vrA))
        if not M.o.get("warm", 1):
            return
        for i in range(4):
            k("v_mov_b32 %s, %s" % (v(q + i), s(sE)))
        k("s_lshl_b32 %s, s2, 2" % s(sx))
        k("s_add_u32 %s, %s, %s" % (s(sx), s(sx), s(sWv)))
        k("s_lshl_b32 %s, %s, 10" % (s(sx), s(sx)))
        k("s_add_u32 %s, %s, 0x%x" % (s(sx), s(sx), L.FLAGS))
        k(ST % (v(q, 4), v(vrA), s(sx), 0), tag="p0")
        k("s_cmp_lg_u32 %s, 0" % s(sWv))
        k("s_cbranch_scc1 PRE_WARM%d" % nwarm[0])
        k("s_mov_b64 exec, 0xff")
        k(ST % (v(q, 4), v(vrA), s(sRec), 0), tag="p0")
        k("s_mov_b64 exec, -1")
        k.label("PRE_WARM%d" % nwarm[0])

    def dma_rows(soff_of_row):
        for j in range(8):
            k("s_add_u32 m0, %s, %d" % (s(sLds), j * PITCH))
            soff_of_row(j)
            k("buffer_load_dwordx4 %s, %s, %s offen lds" % (v(vrA), s(IN, 4), s(sC)), tag="in")

    k("s_mov_b32 %s, 0x200000" % s(IN + 2))
    k("s_mov_b64 %s, s[16:17]" % s(IN, 2))
    k("s_lshr_b32 %s, s2, 4" % s(sA))
    k("s_lshl_b32 %s, %s, 9" % (s(sA), s(sA)))
    k("s_bfe_u32 %s, s2, 0x10003" % s(sC))
    k("s_lshl_b32 %s, %s, 4" % (s(sC), s(sC)))
    k("s_add_u32 %s, %s, %s" % (s(sA), s(sA), s(sC)))
    k("s_bfe_u32 %s, s2, 0x20001" % s(sC))
    k("s_lshl_b32 %s, %s, 7" % (s(sC), s(sC)))
    k("s_add_u32 %s, %s, %s" % (s(sA), s(sA), s(sC)))
    k("s_and_b32 %s, s2, 1" % s(sC))
    k("s_lshl_b32 %s, %s, 2" % (s(sC), s(sC)))
    k("s_add_u32 %s, %s, %s" % (s(sC), s(sC), s(sWv)))
    k("s_lshl_b32 %s, %s, 1" % (s(sC), s(sC)))
    k("s_add_u32 %s, %s, %s" % (s(sA), s(sA), s(sC)))
    k("s_lshl_b32 %s, %s, 10" % (s(sA), s(sA)))
    dma_rows(lambda j: k("s_add_u32 %s, %s, %d" % (s(sC), s(sA), (32 * (j & 3) + (j >> 2)) * 1024)))
    k("s_mov_b32 %s, 0" % s(sRole))
    k("s_branch PRE_CONST")

    k.label("PRE_IN_W2")
    k("s_mov_b32 %s, 0x1c0000" % s(IN + 2))
    k("s_mov_b64 %s, s[28:29]" % s(IN, 2))
    k("s_sub_u32 %s, s2, 184" % s(sT))
    k("s_lshl_b32 %s, %s, 2" % (s(sT), s(sT)))
    k("s_add_u32 %s, %s, %s" % (s(sT), s(sT), s(sWv)))
    split14(k, sS, sU, sT)
    k("s_lshr_b32 %s, %s, 2" % (s(sG), s(sU)))
    k("s_mul_i32 %s, %s, 112" % (s(sA), s(sS)))
    k("s_lshl_b32 %s, %s, 5" % (s(sC), s(sG)))
    k("s_add_u32 %s, %s, %s" % (s(sA), s(sA), s(sC)))
    k("s_and_b32 %s, %s, 3" % (s(sC), s(sU)))
    k("s_cmp_eq_u32 %s, 3" % s(sG))
    k("s_cselect_b32 %s, 3, 2" % s(sB))
    k("s_cselect_b32 %s, 4, 16" % s(sRole))
    k("s_lshl_b32 %s, %s, %s" % (s(sC), s(sC), s(sB)))
    k("s_add_u32 %s, %s, %s" % (s(sA), s(sA), s(sC)))
    k("s_add_u32 %s, %s, %s" % (s(sB), s(sA), s(sRole)))
    k("s_lshl_b32 %s, %s, 10" % (s(sA), s(sA)))
    k("s_lshl_b32 %s, %s, 10" % (s(sB), s(sB)))
    dma_rows(lambda j: k("s_add_u32 %s, %s, %d" % (s(sC), s(sB if j >= 4 else sA), (j & 3) * 1024)))
    k("s_mov_b32 %s, 1" % s(sRole))
    k("s_branch PRE_CONST")

    k.label("PRE_MISC")
    k("s_lshl_b32 %s, s2, 2" % s(sC))
    k("s_add_u32 %s, %s, %s" % (s(sC), s(sC), s(sWv)))
    k("s_cmp_eq_u32 %s, 960" % s(sC))
    k("s_cbranch_scc1 PRE_IN_B2")
    warm(BS, sC)
    k("s_cmp_lg_u32 s2, 240")
    k("s_cbranch_scc1 PRE_FT")
    k("s_cmp_eq_u32 %s, 1" % s(sWv))
    k("s_cbranch_scc1 PRE_B1")
    k("s_cmp_eq_u32 %s, 2" % s(sWv))
    k("s_cbranch_scc1 PRE_ZERO")
    k("s_branch PRE_FT")
    k.label("PRE_IN_B2")
    k("s_mov_b32 %s, 0x400" % s(IN + 2))
    k("s_mov_b64 %s, s[30:31]" % s(IN, 2))
    dma_rows(lambda j: k("s_mov_b32 %s, %d" % (s(sC), j * 1024)))
    k("s_mov_b32 %s, 3" % s(sRole))
    k("s_branch PRE_CONST")
    k.label("PRE_B1")
    k("s_mov_b32 %s, 3584" % s(IN + 2))
    k("s_mov_b64 %s, s[26:27]" % s(IN, 2))
    k("v_lshrrev_b32 %s, 1, %s" % (v(t[1]), v(vrA)))
    for j in range(7):
        k("buffer_load_dwordx2 %s, %s, %s, 0 offen offset:%d" % (v(RAW + 2 * j, 2), v(t[1]), s(IN, 4), j * 512))
    for j in range(7):
        for h in range(2):
            k("v_lshlrev_b32 %s, 16, %s" % (v(O + 4 * j + 2 * h), v(RAW + 2 * j + h)))
            k("v_and_b32 %s, 0xffff0000, %s" % (v(O + 4 * j + 2 * h + 1), v(RAW + 2 * j + h)))
        k("s_mov_b32 %s, 0x%x" % (s(sC), L.B1X + j * 1024))
        k(ST % (v(O + 4 * j, 4), v(vrA), s(sC), 0), tag="p0")
    k("s_branch PRE_FT")
    k.label("PRE_ZERO")
    for i in range(4):
        k("v_mov_b32 %s, 0" % v(O + i))
    for j in range(8):
        k("s_mov_b32 %s, 0x%x" % (s(sC), L.SSQ2 + j * 1024))
        k(ST % (v(O, 4), v(vrA), s(sC), 0), tag="p0")
    k.label("PRE_FT")
    k("s_sub_u32 %s, s2, 240" % s(sT))
    k("s_lshl_b32 %s, %s, 2" % (s(sT), s(sT)))
    k("s_add_u32 %s, %s, %s" % (s(sT), s(sT), s(sWv)))
    k("s_lshr_b32 %s, %s, 3" % (s(sA), s(sT)))
    k("s_lshl_b32 %s, %s, 6" % (s(sA), s(sA)))
    k("s_and_b32 %s, %s, 7" % (s(sB), s(sT)))
    k("s_lshl_b32 %s, %s, 1" % (s(sB), s(sB)))
    k("s_lshl_b32 %s, %s, 13" % (s(sC), s(sT)))
    k("s_add_u32 %s, %s, 0x%x" % (s(sC), s(sC), L.FT))
    k("v_and_b32 %s, 12, %s" % (v(t[5]), v(vn)))
    k("v_and_b32 %s, 3, %s" % (v(t[4]), v(vn)))
    k("v_lshl_add_u32 %s, %s, 2, %s" % (v(t[4]), v(t[5]), v(t[4])))
    k("v_add_u32 %s, %s, %s" % (v(t[4]), s(sA), v(t[4])))
    k("s_mov_b32 s12, 0")
    k("s_mov_b32 s13, -1")
    k("v_mov_b32 %s, %s" % (v(t[6]), fbits(1 / 16)))
    k("v_mov_b32 %s, %s" % (v(t[7]), fbits(1 / (16 * math.sqrt(2)))))
    k("s_mov_b32 %s, 0" % s(sT))
    k.label("PRE_FT_LOOP")
    for i in range(4):
        kk = tmp + i
        k("v_lshl_add_u32 %s, %s, 7, %s" % (v(kk), v(vg), s(sB)))
        k("v_add_u32 %s, %d, %s" % (v(kk), 32 * i, v(kk)))
        k("v_sub_u32 %s, 512, %s" % (v(t[5]), v(kk)))
        k("v_add_u32 %s, %d, %s" % (v(t[1]), -240, v(kk)))
        k("s_cmp_eq_u32 %s, 0" % s(sB))
        k("s_cselect_b64 vcc, -1, 0")
        k("v_cndmask_b32 %s, %s, %s, vcc" % (v(t[5]), v(t[5]), v(t[1])))
        k("v_cndmask_b32 %s, %s, %s, s[12:13]" % (v(kk), v(kk), v(t[5])))
    k("v_cmp_eq_u32 vcc, 0, %s" % v(tmp))
    k("v_mov_b32 %s, 256" % v(t[5]))
    k("v_cndmask_b32 %s, %s, %s, vcc" % (v(tmp), v(tmp), v(t[5])))
    k("v_cndmask_b32 %s, %s, %s, vcc" % (v(t[5]), v(t[6]), v(t[7])))
    for c in range(4):
        k("v_add_u32 %s, %d, %s" % (v(t[1]), 4 * c, v(t[4])))
        for i in range(4):
            an, cs, sn = tmp + 4 + i, tmp + 8 + i, tmp + 12 + i
            k("v_mul_u32_u24 %s, %s, %s" % (v(an), v(tmp + i), v(t[1])))
            k("v_and_b32 %s, 511, %s" % (v(an), v(an)))
            k("v_cvt_f32_u32 %s, %s" % (v(an), v(an)))
            k("v_mul_f32 %s, %s, %s" % (v(an), fbits(1 / 512), v(an)))
            k("v_cos_f32 %s, %s" % (v(cs), v(an)))
            k("v_sin_f32 %s, %s" % (v(sn), v(an)))
        for i in range(4):
            cs, sn = tmp + 8 + i, tmp + 12 + i
            k("v_mul_f32 %s, %s, %s" % (v(cs), v(t[5] if i == 0 else t[6]), v(cs)))
            k("v_mul_f32 %s, %s, %s" % (v(sn), fbits(-1 / 16), v(sn)))
            if i == 0:
                k("v_cndmask_b32 %s, %s, %s, vcc" % (v(sn), v(sn), v(t[7])))
            k("v_cvt_pk_bf16_f32 %s, %s, %s" % (v(A + 4 * c + i), v(cs), v(sn)))
        k(ST % (v(A + 4 * c, 4), v(vrA), s(sC), c * 1024), tag="p0")
    k("s_add_u32 %s, %s, 4096" % (s(sC), s(sC)))
    k("s_add_u32 %s, %s, 1" % (s(sB), s(sB)))
    k("s_add_u32 %s, %s, 1" % (s(sT), s(sT)))
    k("s_cmp_lt_u32 %s, 2" % s(sT))
    k("s_cbranch_scc1 PRE_FT_LOOP")
    k("s_branch PRE_DONE")

    k.label("PRE_FILT")
    k("s_mov_b32 %s, %d" % (s(IN + 2), 2048 * 514))
    k("s_mov_b32 %s, %d" % (s(IN2 + 2), 2048 * 514))
    k("s_mov_b32 %s, 0x20000" % s(IN2 + 3))
    k("s_mov_b64 %s, s[18:19]" % s(IN, 2))
    k("s_mov_b64 %s, s[20:21]" % s(IN2, 2))
    sCb, sRb = sS, sU
    k("s_and_b32 %s, s2, 7" % s(sRb))
    k("s_lshl_b32 %s, %s, 2" % (s(sRb), s(sRb)))
    k("s_bfe_u32 %s, s2, 0x20004" % s(sC))
    k("s_add_u32 %s, %s, %s" % (s(sRb), s(sRb), s(sC)))
    k("s_bfe_u32 %s, s2, 0x10003" % s(sC))
    k("s_lshl_b32 %s, %s, 1" % (s(sRec), s(sRb)))
    k("s_add_u32 %s, %s, %s" % (s(sRec), s(sRec), s(sC)))
    k("s_add_u32 %s, %s, 64" % (s(sRec), s(sRec)))
    k("s_lshl_b32 %s, %s, 2" % (s(sCb), s(sC)))
    k("s_add_u32 %s, %s, %s" % (s(sCb), s(sCb), s(sWv)))
    k("s_lshr_b32 %s, %s, 3" % (s(sA), s(sRb)))
    k("s_lshl_b32 %s, %s, 4" % (s(sA), s(sA)))
    k("s_and_b32 %s, %s, 7" % (s(sC), s(sRb)))
    k("s_lshl_b32 %s, %s, 8" % (s(sC), s(sC)))
    k("s_add_u32 %s, %s, %s" % (s(sA), s(sA), s(sC)))
    k("s_mul_i32 %s, %s, 514" % (s(sA), s(sA)))
    k("s_lshl_b32 %s, %s, 6" % (s(sC), s(sCb)))
    k("s_add_u32 %s, %s, %s" % (s(sA), s(sA), s(sC)))
    k("v_bfe_u32 %s, v0, 2, 4" % v(t[1]))
    k("v_mul_u32_u24 %s, 514, %s" % (v(t[0]), v(t[1])))
    k("v_and_b32 %s, 48, %s" % (v(t[2]), v(vrA)))
    k("v_add_u32 %s, %s, %s" % (v(t[0]), v(t[2]), v(t[0])))
    for r in range(4):
        k("s_add_u32 %s, %s, %d" % (s(sC), s(sA), r * 64 * 514 + 2))
        k("buffer_load_dwordx4 %s, %s, %s, %s offen" % (v(A + 8 * r, 4), v(t[0]), s(IN, 4), s(sC)))
        k("buffer_load_dwordx4 %s, %s, %s, %s offen" % (v(A + 8 * r + 4, 4), v(t[0]), s(IN2, 4), s(sC)))
    k("v_mul_u32_u24 %s, 17, %s" % (v(t[2]), v(t[2])))
    k("v_lshl_add_u32 %s, %s, 4, %s" % (v(t[2]), v(t[1]), v(t[2])))
    k("v_add_u32 %s, %s, %s" % (v(t[2]), s(sLds), v(t[2])))
    k("v_lshl_add_u32 %s, %s, 4, %s" % (v(t[3]), v(vg), v(vrA)))
    k("v_add_u32 %s, %s, %s" % (v(t[3]), s(sLds), v(t[3])))
    q0, qs, q7 = t[4], t[5], t[6]
    k("s_lshl_b32 %s, %s, 4" % (s(sA), s(sCb)))
    k("s_add_u32 %s, %s, 1" % (s(sB), s(sA)))
    k("v_lshl_add_u32 %s, %s, 3, %s" % (v(q0), v(vg), s(sB)))
    k("s_sub_u32 %s, 271, %s" % (s(sB), s(sA)))
    k("v_lshlrev_b32 %s, 3, %s" % (v(t[7]), v(vg)))
    k("v_sub_u32 %s, %s, %s" % (v(t[7]), s(sB), v(t[7])))
    k("s_mov_b32 vcc_lo, 0")
    k("s_mov_b32 vcc_hi, -1")
    k("v_cndmask_b32 %s, %s, %s, vcc" % (v(q0), v(q0), v(t[7])))
    k("v_cndmask_b32 %s, 1, -1, vcc" % v(qs))
    k("s_add_u32 %s, %s, 128" % (s(sB), s(sA)))
    k("s_add_u32 %s, %s, 16" % (s(sC), s(sA)))
    k("s_and_b32 %s, %s, 127" % (s(sC), s(sC)))
    k("v_mov_b32 %s, %s" % (v(q7), s(sB)))
    k("v_mov_b32 %s, %s" % (v(t[7]), s(sC)))
    k("v_cndmask_b32 %s, %s, %s, vcc" % (v(q7), v(q7), v(t[7])))
    k("v_mad_i32_i24 %s, %s, 7, %s" % (v(t[7]), v(qs), v(q0)))
    k("s_mov_b32 vcc_lo, 0xffff0000")
    k("s_mov_b32 vcc_hi, 0xffff0000")
    k("v_cndmask_b32 %s, %s, %s, vcc" % (v(q7), v(t[7]), v(q7)))
    k("v_lshlrev_b32 %s, 4, %s" % (v(t[7]), v(vn)))
    k("v_lshl_add_u32 %s, %s, 13, %s" % (v(q0), v(q0), v(t[7])))
    k("v_lshl_add_u32 %s, %s, 13, %s" % (v(q7), v(q7), v(t[7])))
    k("v_lshlrev_b32 %s, 13, %s" % (v(qs), v(qs)))
    k("s_lshl_b32 %s, %s, 8" % (s(sC), s(sRb)))
    k("s_add_u32 %s, %s, 0x%x" % (s(sC), s(sC), L.WT))
    warm(BS, sB)
    for j in range(8):
        k("ds_write_b128 %s, %s offset:%d" % (v(t[2]), v(A + 4 * j, 4), j * PITCH))
    for j in range(8):
        k("ds_read_b128 %s, %s offset:%d" % (v(RAW + 4 * j, 4), v(t[3]), j * PITCH))
    for e in range(8):
        for r in range(4):
            k("v_perm_b32 %s, %s, %s, %s" % (v(O + 4 * e + r), v(RAW + 8 * r + 4 + (e >> 1)), v(RAW + 8 * r + (e >> 1)),
                                            s(sSelHi if e & 1 else sSelLo)))
        k(ST % (v(O + 4 * e, 4), v(q7 if e == 7 else q0), s(sC), 0), tag="p0")
        if e < 6:
            k("v_add_u32 %s, %s, %s" % (v(q0), v(q0), v(qs)))
    k("s_branch PRE_DONE")

    k.label("PRE_IN_W1")
    k("s_mov_b32 %s, 0x1c0000" % s(IN + 2))
    k("s_mov_b64 %s, s[24:25]" % s(IN, 2))
    k("s_and_b32 %s, s2, 7" % s(sT))
    k("s_mul_i32 %s, %s, 7" % (s(sT), s(sT)))
    k("s_bfe_u32 %s, s2, 0x30003" % s(sC))
    k("s_add_u32 %s, %s, %s" % (s(sT), s(sT), s(sC)))
    k("s_mul_i32 %s, %s, %d" % (s(sA), s(sWv), 128 * 3584))
    k("s_lshl_b32 %s, %s, 6" % (s(sC), s(sT)))
    k("s_add_u32 %s, %s, %s" % (s(sA), s(sA), s(sC)))
    k("v_bfe_u32 %s, v0, 2, 4" % v(t[0]))
    k("v_mul_u32_u24 %s, 3584, %s" % (v(t[0]), v(t[0])))
    k("v_xor_b32 %s, v0, %s" % (v(t[1]), v(vg)))
    k("v_and_b32 %s, 3, %s" % (v(t[1]), v(t[1])))
    k("v_lshl_add_u32 %s, %s, 4, %s" % (v(t[0]), v(t[1]), v(t[0])))
    k("s_lshl_b32 %s, %s, 13" % (s(sB), s(sWv)))
    for j in range(8):
        k("s_add_u32 m0, %s, %d" % (s(sB), j * 1024))
        k("s_add_u32 %s, %s, %d" % (s(sC), s(sA), j * 16 * 3584))
        k("buffer_load_dwordx4 %s, %s, %s offen lds" % (v(t[0]), s(IN, 4), s(sC)), tag="in")
    k("s_lshl_b32 %s, %s, 2" % (s(sT), s(sT)))
    k("s_add_u32 %s, %s, %s" % (s(sT), s(sT), s(sWv)))
    k("s_mov_b32 %s, 0" % s(sDC))
    k("s_mov_b32 %s, 2" % s(sRole))

    k.label("PRE_CONST")
    f1, b1, f2, b2 = t[0], t[1], t[2], t[3]
    k("v_mul_f32 %s, %s, %s" % (v(f1), fbits(1 / 32), v(vfn)))
    k("v_mul_f32 %s, %s, %s" % (v(b1), v(f1), v(vfg4)))
    k("v_cndmask_b32 %s, %s, 0.5, %s" % (v(f2), v(f1), s(sM0, 2)))
    k("v_mov_b32 %s, %s" % (v(t[4]), fbits(0.25)))
    k("v_cndmask_b32 %s, %s, 0, %s" % (v(t[4]), v(t[4]), s(sM0, 2)))
    k("v_fma_f32 %s, %s, %s, %s" % (v(b2), v(f2), v(vfg4), v(t[4])))
    for jj in range(8):
        c = fbits(16 * (jj >> 2) + (jj & 3))
        k("v_fmamk_f32 %s, %s, %s, %s" % (v(tmp + jj), v(f1), c, v(b1)))
        k("v_fmamk_f32 %s, %s, %s, %s" % (v(tmp + 8 + jj), v(f2), c, v(b2)))
    for i in range(16):
        k("v_cos_f32 %s, %s" % (v(tmp + i), v(tmp + i)))
    for i in range(4):
        k("v_cvt_pk_bf16_f32 %s, %s, %s" % (v(B1re + i), v(tmp + 2 * i), v(tmp + 2 * i + 1)))
        k("v_cvt_pk_bf16_f32 %s, %s, %s" % (v(B1im + i), v(tmp + 8 + 2 * i), v(tmp + 8 + 2 * i + 1)))
    ftw, fa2, fs2, sctw, scs, vsh, vsg = t[0], t[1], t[2], t[3], t[4], t[5], t[6]
    k("v_mul_f32 %s, %s, %s" % (v(ftw), fbits(1 / 512), v(vfn)))
    k("v_mul_f32 %s, %s, %s" % (v(fa2), fbits(1 / 16), v(vfn)))
    k("v_add_f32 %s, %s, %s" % (v(fs2), fbits(-15 / 32), v(fa2)))
    k("v_cndmask_b32 %s, %s, %s, %s" % (v(fs2), v(fa2), v(fs2), s(sM8, 2)))
    k("v_cndmask_b32 %s, %s, 0.5, %s" % (v(fs2), v(fs2), s(sM0, 2)))
    k("v_mov_b32 %s, %s" % (v(scs), fbits(1 / 16)))
    k("v_cndmask_b32 %s, %s, 0, %s" % (v(sctw), v(scs), s(sM0, 2)))
    k("v_mov_b32 %s, %s" % (v(t[7]), fbits(1 / (16 * math.sqrt(2)))))
    k("v_cndmask_b32 %s, %s, %s, %s" % (v(scs), v(scs), v(t[7]), s(sM0, 2)))
    k("v_cndmask_b32 %s, 0, 16, %s" % (v(vsh), s(sM8, 2)))
    k("v_mov_b32 %s, 0x80008000" % v(vsg))
    k("v_cndmask_b32 %s, 0, %s, %s" % (v(vsg), v(vsg), s(sM8, 2)))
    k("v_mov_b32 %s, %s" % (v(t[7]), s(sDC)))
    for r in range(4):
        fb = tmp + 12 + r
        k("v_add_f32 %s, %s, %s" % (v(fb), fbits(r), v(vfg4)))
        k("v_mul_f32 %s, %s, %s" % (v(tmp + r), v(fb), v(ftw)))
        k("v_mul_f32 %s, %s, %s" % (v(tmp + 4 + r), v(fb), v(fa2)))
        k("v_mul_f32 %s, %s, %s" % (v(tmp + 8 + r), v(fb), v(fs2)))
    for r in range(4):
        k("v_cos_f32 %s, %s" % (v(TC + r), v(tmp + r)))
        k("v_sin_f32 %s, %s" % (v(TS + r), v(tmp + r)))
        k("v_cos_f32 %s, %s" % (v(O + r), v(tmp + 4 + r)))
        k("v_sin_f32 %s, %s" % (v(O + 4 + r), v(tmp + 4 + r)))
        k("v_cos_f32 %s, %s" % (v(S2re + r), v(tmp + 8 + r)))
        k("v_sin_f32 %s, %s" % (v(S2im + r), v(tmp + 8 + r)))
    for r in range(4):
        k("v_mul_f32 %s, %s, %s" % (v(TC + r), v(TC + r), v(sctw)))
        k("v_mul_f32 %s, %s, %s" % (v(TS + r), v(TS + r), v(sctw)))
        k("v_cvt_pk_bf16_f32 %s, %s, %s" % (v(A2re + r), v(O + r), v(O + 4 + r)))
        k("v_cvt_pk_bf16_f32 %s, -%s, %s" % (v(A2im + r), v(O + 4 + r), v(O + r)))
        k("v_xor_b32 %s, %s, %s" % (v(A2im + r), v(A2im + r), v(vsg)))
        k("v_mul_f32 %s, %s, %s" % (v(S2re + r), v(S2re + r), v(scs)))
        k("v_mul_f32 %s, %s, %s" % (v(S2im + r), fbits(-1 / 16), v(S2im + r)))
        k("v_cndmask_b32 %s, %s, %s, %s" % (v(S2im + r), v(S2im + r), v(t[7]), s(sM0, 2)))
        k("v_cvt_pk_bf16_f32 %s, %s, 0" % (v(S2re + r), v(S2re + r)))
        k("v_cvt_pk_bf16_f32 %s, %s, 0" % (v(S2im + r), v(S2im + r)))
        k("v_lshlrev_b32 %s, %s, %s" % (v(S2re + r), v(vsh), v(S2re + r)))
        k("v_lshlrev_b32 %s, %s, %s" % (v(S2im + r), v(vsh), v(S2im + r)))
    for i in range(32):
        k("v_mov_b32 %s, 0" % v(BS + i))

    warm(O, sC)
    k("s_cmp_eq_u32 %s, 2" % s(sRole))
    k("s_cbranch_scc1 PRE_A_W1")
    k("v_lshrrev_b32 %s, 1, %s" % (v(t[0]), v(vrA)))
    k("v_add_u32 %s, %s, %s" % (v(t[0]), s(sLds), v(t[0])))
    k("s_waitcnt lgkmcnt(0)")
    k.wait_tag("in")
    for j in range(8):
        k("ds_read_b64_tr_b16 %s, %s offset:%d" % (v(A + 4 * j, 2), v(t[0]), j * PITCH))
        k("ds_read_b64_tr_b16 %s, %s offset:%d" % (v(A + 4 * j + 2, 2), v(t[0]), j * PITCH + 512))
    k("s_branch PRE_CORE")
    k.label("PRE_A_W1")
    k("v_lshrrev_b32 %s, 2, %s" % (v(t[1]), v(vn)))
    k("v_xor_b32 %s, %s, %s" % (v(t[1]), s(sWv), v(t[1])))
    k("v_lshlrev_b32 %s, 4, %s" % (v(t[1]), v(t[1])))
    k("v_lshl_add_u32 %s, %s, 6, %s" % (v(t[0]), v(vn), v(t[1])))
    k("v_lshl_add_u32 %s, %s, 12, %s" % (v(t[0]), v(vg), v(t[0])))
    k("s_waitcnt lgkmcnt(0)")
    k.wait_tag("in")
    k("s_barrier")
    for jj in range(8):
        k("ds_read_b128 %s, %s offset:%d" % (v(RAW + 4 * jj, 4), v(t[0]), (16 * (jj >> 2) + (jj & 3)) * 1024))
    for j in range(8):
        for i in range(4):
            k("v_perm_b32 %s, %s, %s, %s" % (v(A + 4 * j + i), v(RAW + 4 * (2 * i + 1) + (j >> 1)),
                                            v(RAW + 4 * (2 * i) + (j >> 1)), s(sSelHi if j & 1 else sSelLo)))

    k.label("PRE_CORE")
    st("p_in")
    for j in range(8):
        k("%s %s, %s, %s, 0" % (MF, v(D + 8 * j, 4), v(A + 4 * j, 4), v(B1re, 4)))
        k("%s %s, %s, %s, 0" % (MF, v(D + 8 * j + 4, 4), v(A + 4 * j, 4), v(B1im, 4)))
    k("s_mov_b64 exec, %s" % s(sM0, 2))
    for j in range(8):
        for r in range(4):
            k("v_cvt_pk_bf16_f32 %s, %s, %s" % (v(BS + 4 * j + r), v(D + 8 * j + r), v(D + 8 * j + 4 + r)))
    k("s_mov_b64 exec, -1")
    for j in range(8):
        re, im, tt = D + 8 * j, D + 8 * j + 4, tmp + 8 * (j & 1)
        for h in (0, 2):
            k("v_pk_mul_f32 %s, %s, %s" % (v(tt + h, 2), v(im + h, 2), v(TS + h, 2)))
            k("v_pk_mul_f32 %s, %s, %s" % (v(tt + 4 + h, 2), v(re + h, 2), v(TS + h, 2)))
        for h in (0, 2):
            k("v_pk_fma_f32 %s, %s, %s, %s" % (v(tt + h, 2), v(re + h, 2), v(TC + h, 2), v(tt + h, 2)))
            k("v_pk_fma_f32 %s, %s, %s, %s neg_lo:[0,0,1] neg_hi:[0,0,1]"
              % (v(tt + 4 + h, 2), v(im + h, 2), v(TC + h, 2), v(tt + 4 + h, 2)))
        for r in range(4):
            k("v_cvt_pk_bf16_f32 %s, %s, %s" % (v(A + 4 * j + r), v(tt + r), v(tt + 4 + r)))

    def stage2(fill):
        for j in range(8):
            for n, (d, am, bm) in enumerate(((D + 8 * j, A2re, A), (D + 8 * j, S2re, BS), (D + 8 * j + 4, A2im, A), (D + 8 * j + 4, S2im, BS))):
                k("%s %s, %s, %s, %s" % (MF, v(d, 4), v(am, 4), v(bm + 4 * j, 4), v(d, 4) if n & 1 else "0"))
                for txt in fill.get(4 * j + n, []):
                    k(txt)

    def spread(items, first):
        fill = {}
        for m in range(first, 32):
            fill[m], items = items[:2], items[2:]
        return fill, items

    k("s_cmp_eq_u32 %s, 0" % s(sRole))
    k("s_cbranch_scc0 PRE_OUT_W")

    pre = ["v_lshl_add_u32 %s, %s, 6, %s" % (v(t[0]), v(vg), v(vn)),
           "v_mul_u32_u24 %s, 144, %s" % (v(t[0]), v(t[0])),
           "s_lshl_b32 %s, %s, 5" % (s(sA), s(sWv)),
           "s_add_u32 %s, %s, %d" % (s(sC), s(sA), IMG),
           "v_add_u32 %s, %s, %s" % (v(t[0]), s(sC), v(t[0])),
           "v_lshrrev_b32 %s, 3, v0" % v(t[2]),
           "v_and_b32 %s, 7, %s" % (v(t[3]), v(t[2])),
           "v_and_b32 %s, 0xc0, v0" % v(t[2]),
           "v_add_u32 %s, %s, %s" % (v(t[2]), v(t[2]), v(t[3])),
           "v_and_b32 %s, 0x70, %s" % (v(t[3]), v(vrA)),
           "v_mul_u32_u24 %s, 144, %s" % (v(t[1]), v(t[2])),
           "v_add_u32 %s, %s, %s" % (v(t[1]), v(t[1]), v(t[3])),
           "v_lshl_add_u32 %s, %s, 13, %s" % (v(t[2]), v(t[2]), v(t[3])),
           "s_lshl_b32 %s, s2, 7" % s(sB)]
    fill, _ = spread(pre, 0)
    cv = lambda j: ["v_cvt_pk_bf16_f32 %s, %s, %s" % (v(O + 8 * r + j), v(D + 8 * j + r), v(D + 8 * j + 4 + r)) for r in range(4)]
    for j in range(6):
        fill[4 * j + 9], fill[4 * j + 10] = cv(j)[:2], cv(j)[2:]
    for r in range(4):
        fill[24 + 2 * r - (r > 1)] = fill.get(24 + 2 * r - (r > 1), []) + \
            ["ds_write_b128 %s, %s offset:%d" % (v(t[0]), v(O + 8 * r, 4), 16 * 144 * r)]
    stage2(fill)
    st("p_core")
    for txt in cv(6) + cv(7):
        k(txt)
    for r in range(4):
        k("ds_write_b128 %s, %s offset:%d" % (v(t[0]), v(O + 8 * r + 4, 4), 16 * 144 * r + 16))
    k("s_mov_b64 exec, 1")
    for j in range(8):
        k("v_mov_b32 %s, 0" % v(D + 8 * j + 4))
    k("s_mov_b64 exec, -1")
    for j in range(8):
        k("v_pk_mul_f32 %s, %s, %s" % (v(tmp + 2 * j, 2), v(D + 8 * j, 2), v(D + 8 * j, 2)))
    k("s_waitcnt lgkmcnt(0)")
    k("s_barrier")
    for i in range(8):
        k("ds_read_b128 %s, %s offset:%d" % (v(O + 4 * i, 4), v(t[1]), IMG + 8 * 144 * i))
    for h in (2, 4, 6):
        for j in range(8):
            k("v_pk_fma_f32 %s, %s, %s, %s" % (v(tmp + 2 * j, 2), v(D + 8 * j + h, 2), v(D + 8 * j + h, 2), v(tmp + 2 * j, 2)))
    red = ["v_add_f32 %s, %s, %s" % (v(A + j), v(tmp + 2 * j), v(tmp + 2 * j + 1)) for j in range(8)]
    red += ["v_permlane32_swap_b32 %s, %s" % (v(A + j), v(A + j + 4)) for j in range(4)]
    red += ["v_add_f32 %s, %s, %s" % (v(A + j), v(A + j), v(A + j + 4)) for j in range(4)]
    red += ["v_permlane16_swap_b32 %s, %s" % (v(A + e), v(A + e + 2)) for e in range(2)]
    red += ["v_add_f32 %s, %s, %s" % (v(A + e), v(A + e), v(A + e + 2)) for e in range(2)]
    red += ["v_add_f32_dpp %s, %s, %s row_ror:%d row_mask:0xf bank_mask:0xf" % (v(A + e), v(A + e), v(A + e), sh)
            for sh in (8, 4, 2, 1) for e in range(2)]
    for i in range(8):
        k("s_add_u32 %s, %s, 0x%x" % (s(sC), s(sB), L.X0 + i * 8 * 8192))
        k(ST % (v(O + 4 * i, 4), v(t[2]), s(sC), 0), tag="p0")
        for txt in red[4 * i:4 * i + 4]:
            k(txt)
    k("v_lshlrev_b32 %s, 3, %s" % (v(t[0]), v(vg)))
    k("s_add_u32 %s, %s, %s" % (s(sC), s(sA), s(sB)))
    k("s_add_u32 %s, %s, 0x%x" % (s(sC), s(sC), L.SSQ0))
    k("s_mov_b64 exec, %s" % s(sM0, 2))
    k("buffer_store_dwordx2 %s, %s, %s, %s offen sc1" % (v(A, 2), v(t[0]), WS, s(sC)), tag="p0")
    k("s_mov_b64 exec, -1")
    k("s_branch PRE_DONE")

    k.label("PRE_OUT_W")
    stage2({})
    st("p_core")
    k("s_cmp_eq_u32 %s, 2" % s(sRole))
    k("s_cbranch_scc1 PRE_OUT_W1")
    k("s_cmp_eq_u32 %s, 3" % s(sRole))
    k("s_cbranch_scc1 PRE_OUT_B2")

    k("v_lshrrev_b32 %s, 2, %s" % (v(t[1]), v(vn)))
    k("v_mul_u32_u24 %s, %d, %s" % (v(t[1]), PITCH, v(t[1])))
    k("v_and_b32 %s, 3, %s" % (v(t[2]), v(vn)))
    k("v_lshl_add_u32 %s, %s, 5, %s" % (v(t[1]), v(t[2]), v(t[1])))
    k("v_lshl_add_u32 %s, %s, 3, %s" % (v(t[1]), v(vg), v(t[1])))
    k("v_add_u32 %s, %s, %s" % (v(t[1]), s(sLds), v(t[1])))
    for dt in range(8):
        k("ds_read_b64_tr_b16 %s, %s offset:%d" % (v(A + 4 * dt, 2), v(t[1]), dt * 128))
        k("ds_read_b64_tr_b16 %s, %s offset:%d" % (v(A + 4 * dt + 2, 2), v(t[1]), dt * 128 + 4 * PITCH))
    k("s_and_b32 %s, %s, 3" % (s(sB), s(sS)))
    k("s_lshr_b32 %s, %s, 2" % (s(sC), s(sU)))
    k("s_lshl_b32 %s, %s, 1" % (s(sA), s(sB)))
    k("s_add_u32 %s, %s, %s" % (s(sA), s(sA), s(sC)))
    k("s_add_u32 %s, %s, 8" % (s(sG), s(sB)))
    k("s_cmp_eq_u32 %s, 2" % s(sC))
    k("s_cselect_b32 %s, %s, %s" % (s(sA), s(sG), s(sA)))
    k("s_lshr_b32 %s, %s, 1" % (s(sG), s(sB)))
    k("s_add_u32 %s, %s, 12" % (s(sG), s(sG)))
    k("s_and_b32 %s, %s, 1" % (s(sB), s(sB)))
    k("s_lshl_b32 %s, %s, 1" % (s(sB), s(sB)))
    k("s_cmp_eq_u32 %s, 3" % s(sC))
    k("s_cselect_b32 %s, %s, %s" % (s(sA), s(sG), s(sA)))
    k("s_cselect_b32 %s, %s, 0" % (s(sB), s(sB)))
    k("s_and_b32 %s, %s, 3" % (s(sG), s(sU)))
    k("s_add_u32 %s, %s, %s" % (s(sG), s(sG), s(sB)))
    k("s_lshr_b32 %s, %s, 2" % (s(sB), s(sS)))
    k("s_mul_i32 %s, %s, 14" % (s(sB), s(sB)))
    k("s_add_u32 %s, %s, %s" % (s(sA), s(sA), s(sB)))
    k("s_lshl_b32 %s, %s, 12" % (s(sA), s(sA)))
    k("s_lshl_b32 %s, %s, 8" % (s(sG), s(sG)))
    k("s_add_u32 %s, %s, %s" % (s(sA), s(sA), s(sG)))
    k("v_mul_u32_u24 %s, %d, %s" % (v(t[0]), 2 * 229376, v(vg)))
    k("v_lshl_add_u32 %s, %s, 4, %s" % (v(t[0]), v(vn), v(t[0])))
    for r in range(4):
        k("s_add_u32 %s, %s, 0x%x" % (s(sC), s(sA), L.W2F + (r >> 1) * 229376 + (r & 1) * 2048))
        for ri in range(2):
            o = O + 8 * r + 4 * ri
            for i in range(4):
                k("v_cvt_pk_bf16_f32 %s, %s, %s" % (v(o + i), v(D + 16 * i + 4 * ri + r), v(D + 16 * i + 8 + 4 * ri + r)))
            k(ST % (v(o, 4), v(t[0]), s(sC), ri * 1024), tag="p0")
    k("v_lshlrev_b32 %s, 10, %s" % (v(t[0]), v(vg)))
    k("v_lshl_add_u32 %s, %s, 4, %s" % (v(t[0]), v(vn), v(t[0])))
    k("s_branch PRE_DONE")

    def deferred():
        k("s_sub_u32 %s, s2, 184" % s(sC))
        k("s_cmp_ge_u32 %s, 56" % s(sC))
        k("s_cbranch_scc1 PRE_NOW2T")
        for dt in range(8):
            k("s_add_u32 %s, %s, 0x%x" % (s(sC), s(sA), L.W2T + dt * 229376))
            k(ST % (v(A + 4 * dt, 4), v(t[0]), s(sC), 0), tag="w2t")
        k.label("PRE_NOW2T")

    k.label("PRE_OUT_B2")
    k("v_lshl_add_u32 %s, %s, 6, %s" % (v(t[0]), v(vg), v(vn)))
    k("v_lshlrev_b32 %s, 2, %s" % (v(t[0]), v(t[0])))
    k("s_mov_b32 %s, 0x%x" % (s(sC), L.B2F))
    for r in range(4):
        for ri in range(2):
            k("buffer_store_dword %s, %s, %s, %s offen offset:%d sc1" % (v(D + 4 * ri + r), v(t[0]), WS, s(sC), r * 64 + ri * 1024), tag="p0")
    k("s_nop 7")
    k("s_branch PRE_FT")

    k.label("PRE_OUT_W1")
    k("s_mul_i32 %s, %s, 9216" % (s(sLds), s(sWv)))
    k("s_add_u32 %s, %s, %d" % (s(sLds), s(sLds), IMG))
    k("v_mul_u32_u24 %s, 9, %s" % (v(t[0]), v(vrA)))
    k("v_add_u32 %s, %s, %s" % (v(t[0]), s(sLds), v(t[0])))
    for j in range(8):
        for r in range(4):
            k("v_cvt_pk_bf16_f32 %s, %s, %s" % (v(O + 4 * j + r), v(D + 8 * j + r), v(D + 8 * j + 4 + r)))
        k("ds_write_b128 %s, %s offset:%d" % (v(t[0]), v(O + 4 * j, 4), 16 * j))
    k("v_bfe_u32 %s, v0, 3, 3" % v(t[2]))
    k("v_and_b32 %s, 0x70, %s" % (v(t[3]), v(vrA)))
    k("v_mul_u32_u24 %s, 144, %s" % (v(t[1]), v(t[2])))
    k("v_add3_u32 %s, %s, %s, %s" % (v(t[1]), v(t[1]), v(t[3]), s(sLds)))
    for i in range(8):
        k("ds_read_b128 %s, %s offset:%d" % (v(A + 4 * i, 4), v(t[1]), 8 * 144 * i))
    split14(k, sS, sU, sT)
    k("s_lshr_b32 %s, %s, 1" % (s(sA), s(sU)))
    k("s_mul_i32 %s, %s, 112" % (s(sB), s(sS)))
    k("s_add_u32 %s, %s, %s" % (s(sB), s(sB), s(sA)))
    k("s_cmp_lt_u32 %s, 4" % s(sA))
    k("s_cselect_b32 %s, 0, 60" % s(sA))
    k("s_movk_i32 %s, 0x1000" % s(sG))
    k("s_cselect_b32 %s, %s, 0xc00" % (s(sG), s(sG)))
    k("s_add_u32 %s, %s, %s" % (s(sA), s(sA), s(sB)))
    k("s_lshl_b32 %s, %s, 10" % (s(sA), s(sA)))
    k("s_and_b32 %s, %s, 1" % (s(sU), s(sU)))
    k("s_lshl_b32 %s, %s, 7" % (s(sU), s(sU)))
    k("s_add_u32 %s, %s, %s" % (s(sA), s(sA), s(sU)))
    k("s_add_u32 %s, %s, 0x%x" % (s(sA), s(sA), L.W1F))
    k("s_lshl_b32 %s, %s, 3" % (s(sC), s(sG)))
    k("s_add_u32 %s, %s, %s" % (s(sC), s(sC), s(sA)))
    k("v_mad_u32_u24 %s, %s, %s, %s" % (v(t[0]), v(t[2]), s(sG), v(t[3])))
    for i in range(8):
        k(ST % (v(A + 4 * i, 4), v(t[0]), s(sC if i & 1 else sA), (i >> 1) * 256), tag="p0")
    k.label("PRE_DONE")
    return deferred
```

```python
MB = 1 << 20
X0 = 0 * MB
X1 = 2 * MB
X2 = 4 * MB
X3 = 6 * MB
WT = 8 * MB
W1F = 10 * MB
SMALL = W1F + 0x1C0000
SSQ0 = SMALL
SSQ2 = SMALL + 0x2000
B2F = SMALL + 0x4000
B1X = SMALL + 0x5000
EPOCH = SMALL + 0x8000
W2F = 12 * MB
W2T = 14 * MB
FT = 16 * MB
PFLAGS = FT + 0x80000
WFLAGS = FT + 0x90000
GFLAGS = FT + 0x100000
FLAGS = GFLAGS + 0x60000
H1 = 18 * MB
H2 = 26 * MB
STAMP = 34 * MB
WS_USED = 36 * MB
```

```python
import sys, argparse
import layout as L
import k_main
NAME = 'interleave_layers__spectral_gfnet__mixer_channel_mlp__prompt_kernel'
from asmlib import v, s

HEADER = open("interleave_layers__spectral_gfnet__mixer_channel_mlp__prompt.s.ref").read().split("; Override launch")[0]


def make_stamp(kidx, base=60):
    names = []

    def stamp(k, name, final=False):
        if name not in names:
            names.append(name)
        i = names.index(name)
        assert base + 2 * i < 99
        k("s_memrealtime %s" % s(base + 2 * i, 2))
        if i == 0:
            if kidx is not None:
                k("s_mov_b32 s101, %d" % kidx)
            stamp(k, "karg")
        if final:
            k("s_waitcnt vmcnt(0)")
            stamp(k, "drain")
            k("v_lshrrev_b32 v255, 6, v0")
            k("v_lshlrev_b32 v254, 7, v255")
            k("s_lshl_b32 s101, s101, 17")
            k("s_lshl_b32 s100, s2, 9")
            k("s_add_u32 s101, s101, s100")
            k("s_add_u32 s101, s101, 0x%x" % L.STAMP)
            k("s_mov_b64 exec, 1")
            k("s_getreg_b32 s100, hwreg(HW_REG_XCC_ID)")
            k("v_mov_b32 v255, s100")
            k("buffer_store_dword v255, v254, s[4:7], s101 offen offset:124")
            for j in range(len(names)):
                k("v_mov_b32 v255, %s" % s(base + 2 * j))
                k("buffer_store_dword v255, v254, s[4:7], s101 offen offset:%d" % (4 * j))
            k.comment("STAMPS %s: %s" % (kidx, " ".join(str(n) for n in names)))
    return stamp


def generate(stamps=False, upto=99, opts=None):
    opts = opts or {}
    L.configure(opts)
    launches, bodies, descs = [], [], []
    km = k_main.build(NAME, stamp=make_stamp(1, 52) if stamps else None, opts=opts)
    bodies, descs = [km], [km.descriptor(NAME)]
    out = HEADER
    out += "; @launch %sgrid=(256,1,1) block=(256,1,1) lds=%d\n" % ("" if opts.get("single") else "kernel=%s " % NAME, k_main.LDS_BYTES)
    out += '.amdgcn_target "amdgcn-amd-amdhsa--gfx950"\n.text\n'
    for b in bodies:
        out += b.text()
        sys.stderr.write("%s: v%d a%d s%d nops=%d %s\n" % (b.name, b.max["v"] + 1, b.max["a"] + 1, b.max["s"] + 1, b.nops, b.count))
    out += "CODE_END:\n"
    out += '.section .rodata,"a"\n' + "".join(descs)
    return out


if __name__ == "__main__":
    ap = argparse.ArgumentParser()
    ap.add_argument("-o", default="out.s")
    ap.add_argument("--stamps", action="store_true")
    ap.add_argument("--upto", type=int, default=99)
    ap.add_argument("--opt", action="append", default=[])
    args = ap.parse_args()
    opts = {}
    for o in args.opt:
        kk, _, vv = o.partition("=")
        opts[kk] = int(vv) if vv else 1
    open(args.o, "w").write(generate(args.stamps, args.upto, opts))
```

```python
import sys, io, contextlib, gen, check_asm
base = dict((a.partition("=")[0], int(a.partition("=")[2] or 1)) for a in sys.argv[2:])
for i, p in enumerate(sys.argv[1].split()):
    a, b, wg = p.split(",")
    o = dict(base); o["probe"] = (a, b); o["pwg"] = int(wg)
    with contextlib.redirect_stderr(io.StringIO()):
        open("q%d.s" % i, "w").write(gen.generate(False, 99, o))
    check_asm.build("q%d.s" % i); print("q%d" % i, p)
```

```python
from asmlib import Kernel, Alloc, v, a, s, fbits
import layout as L
import k_pre

MF = "v_mfma_f32_16x16x32_bf16"
LDS_BYTES = 163840
WB = 65536
PRIV = 114688
WS = "s[4:7]"
C0 = -2 * 0.7978845608028654 * 1.4426950408889634
C1 = C0 * 0.044715
EPS = 1e-5
TILE = 57344

vrA, vP, vV, vL4 = 1, 2, 3, 4
sE, sRec = 48, 49
sWv, sP, sI, sPhi, sCt, sRB, sX, sW1, sT, sU, sW2, sHst, sFl, sPl, sV = 3, 12, 13, 14, 15, 16, 17, 18, 19, 20, 21, 22, 23, 24, 25
sHA, sHB, sH6, sHt, sQ, sG = 26, 27, 28, 30, 34, 35


class Main:
    def __init__(self, name, stamp, opts):
        self.o = opts or {}
        self.k = Kernel(name)
        self.name = name
        self.stamp = stamp
        self.queue = []
        self.issued = {}
        self.nlab = 0

    def st(self, n, **kw):
        pr = self.o.get("probe")
        if pr:
            k, key = self.k, "%s%d" % (n, self.layer)
            if key == pr[0]:
                k("s_memrealtime s[90:91]")
            if key == pr[1]:
                k("s_memrealtime s[92:93]")
            if n == "end":
                k("s_waitcnt vmcnt(0) lgkmcnt(0)")
                k("s_memrealtime s[94:95]")
                k("s_sub_u32 s90, s92, s90")
                k("s_min_u32 s90, s90, 20000")
                k("s_lshl_b32 s90, s90, 3")
                k("s_cmp_lg_u32 s2, %d" % self.o.get("pwg", 0))
                k("s_cbranch_scc1 MAIN_END")
                k.label("SPIN")
                k("s_memrealtime s[96:97]")
                k("s_waitcnt lgkmcnt(0)")
                k("s_sub_u32 s96, s96, s94")
                k("s_cmp_lt_u32 s96, s90")
                k("s_cbranch_scc1 SPIN")
        if self.o.get("stp") and n in ("geluA", "passB", "geluB", "pollA", "h0", "preB", "pollB", "gemm2"):
            return
        if n.startswith("g_") and not self.o.get("stg"):
            return
        if self.o.get("stg") and n in ("p_go", "c_x1", "c_x2", "c_end", "s_pub", "s_go", "first", "l2", "s2_pub", "s2_go", "passA"):
            return
        if not self.o.get("stp") and n in ("p_in", "p_core", "p_out", "p_pub", "c_const"):
            return
        if self.stamp and (n in ("start", "end") or self.o.get("stl", 0) == self.layer):
            self.stamp(self.k, n, **kw)

    def dma(self, vv, ss, off, tag, sc=" sc1"):
        def op():
            self.issued[tag] = self.issued.get(tag, 0) + 1
            self.k("buffer_load_dwordx4 %s, %s, %s offen offset:%d%s lds" % (v(vv), WS, s(ss), off, sc), tag=tag)
        return op

    def setup(self, m0base, m0off, sd, sbase, off):
        def op():
            self.k("s_add_u32 m0, %s, %d" % (s(m0base), m0off))
            self.k("s_add_u32 %s, %s, %d" % (s(sd), s(sbase), off))
        return op

    def issue(self, ops):
        for su, ld in ops:
            if su:
                su()
            ld()

    def side(self, n=1):
        for _ in range(n):
            if self.queue:
                self.issue([self.queue.pop(0)])

    def w2_ops(self):
        k, ops = self.k, []
        for kf in range(14):
            for c in range(4):
                su = None
                if c == 0:
                    su = lambda kf=kf: k("s_add_u32 %s, %s, %d" % (s(sU), s(sW2), kf * 4096))
                if c == 2:
                    su = lambda: k("s_xor_b32 %s, %s, 0x800" % (s(sU), s(sU)))
                ld = lambda kf=kf, c=c: k("buffer_load_dwordx4 %s, %s, %s, %s offen offset:%d sc1"
                                          % (a(16 * kf + 4 * c, 4), v(vrA), WS, s(sU), (c & 1) * 1024))
                ld.head = c == 0
                ops.append((su, ld))
        return ops

    def flag_store(self, sflag):
        k = self.k
        k("s_mov_b64 exec, 0x%x" % ((1 << self.o["FW"]) - 1) if "FW" in self.o else "s_mov_b32 exec_hi, 0")
        k("buffer_store_dword %s, %s, %s, %s offen sc1" % (v(vV), v(vL4), WS, s(sflag)))
        k("s_mov_b64 exec, -1")

    def publish(self, tag, sflag):
        self.k.wait_tag(tag)
        self.flag_store(sflag)

    def publish_wg(self, sflag):
        k = self.k
        self.nlab += 1
        k("s_barrier")
        k("s_cmp_lg_u32 %s, 0" % s(sWv))
        k("s_cbranch_scc1 PUB%d" % self.nlab)
        self.flag_store(sflag)
        k.label("PUB%d" % self.nlab)

    def poll_issue(self, voff, sbase, dst=vP):
        self.k("buffer_load_dword %s, %s, %s, %s offen sc1" % (v(dst), v(voff), WS, s(sbase)))

    def poll_check(self, voff, sbase, dst=vP, sleep=0, data=False):
        k = self.k
        self.nlab += 1
        go, again = "GO%d" % self.nlab, "POLL%d" % self.nlab
        test = "v_cmp_eq_u32 vcc, -1, %s" % v(dst) if data else "v_cmp_ne_u32 vcc, %s, %s" % (s(sE), v(dst))
        k(test)
        k("s_cbranch_vccz " + go)
        k("s_mov_b32 %s, 0" % s(sV))
        k.label(again)
        k("s_mov_b64 exec, vcc")
        if sleep:
            k("s_sleep %d" % sleep)
        self.poll_issue(voff, sbase, dst)
        k("s_add_u32 %s, %s, 1" % (s(sV), s(sV)))
        k("s_waitcnt vmcnt(0)")
        k(test)
        k("s_cmp_lt_u32 %s, 0x8000" % s(sV))
        k("s_cselect_b64 vcc, vcc, 0")
        k("s_cbranch_vccnz " + again)
        k("s_mov_b64 exec, -1")
        k.label(go)

    def col_alloc(self):
        va = Alloc(6, 256)
        r = self.c = type("R", (), {})()
        r.voff, r.vwr, r.vrd, r.vfg4, r.vfk, r.vfn, r.vsn, r.veps = (va() for _ in range(8))
        r.t = [va() for _ in range(5)]
        r.XR, r.SQ, r.WR = va(8, 4), va(8, 4), va(8, 4)
        r.C64, r.C32 = va(32, 4), va(32, 4)
        r.T1C, r.T1S, r.T2C, r.T2S, r.WC, r.WS = (va(8, 4) for _ in range(6))
        r.XF, r.FR, r.AC, r.PK, r.tmp = va(16, 4), va(32, 4), va(16, 4), va(8, 4), va(16, 4)

    def col_addr(self):
        k, r = self.k, self.c
        k("v_lshrrev_b32 %s, 6, v0" % v(r.t[0]))
        k("v_lshl_add_u32 %s, %s, 11, %s" % (v(r.voff), v(r.t[0]), v(vrA)))

    def col_load_w(self):
        k, r = self.k, self.c
        k("s_add_u32 %s, %s, 0x%x" % (s(sT), s(sQ), L.WT))
        for b in range(2):
            k("buffer_load_dwordx4 %s, %s, %s, %s offen offset:%d sc1" % (v(r.WR + 4 * b, 4), v(r.voff), WS, s(sT), 1024 * b))

    def col_load_x(self):
        k, r, li = self.k, self.c, self.layer
        sc = " sc1"
        k("s_mov_b32 %s, 0x%x" % (s(sV), (L.SSQ0, L.SSQ2)[li]))
        k("s_add_u32 %s, %s, 0x%x" % (s(sT), s(sQ), (L.X0, L.X2)[li]))
        for b in range(2):
            k("buffer_load_dwordx4 %s, %s, %s, %s offen offset:%d%s" % (v(r.SQ + 4 * b, 4), v(r.voff), WS, s(sV), 1024 * b, sc))
            k("buffer_load_dwordx4 %s, %s, %s, %s offen offset:%d%s" % (v(r.XR + 4 * b, 4), v(r.voff), WS, s(sT), 1024 * b, sc))

    def col_consts(self):
        r, out = self.c, []
        k, t, tmp = out.append, r.t, r.tmp
        k("v_add_u32 %s, %s, %s" % (v(r.vwr), s(sRB), v(vrA)))
        k("v_add_u32 %s, %d, %s" % (v(r.vrd), PRIV, v(vrA)))
        k("v_bfe_u32 %s, v0, 4, 2" % v(t[1]))
        k("v_lshlrev_b32 %s, 2, %s" % (v(t[1]), v(t[1])))
        k("v_cvt_f32_u32 %s, %s" % (v(r.vfg4), v(t[1])))
        k("v_and_b32 %s, 15, v0" % v(t[2]))
        k("v_cvt_f32_u32 %s, %s" % (v(r.vfn), v(t[2])))
        k("v_lshl_add_u32 %s, %s, 4, %s" % (v(t[2]), v(t[0]), v(t[2])))
        k("v_cvt_f32_u32 %s, %s" % (v(r.vfk), v(t[2])))
        k("v_lshl_add_u32 %s, %s, 4, %s" % (v(t[2]), v(t[0]), v(t[1])))
        k("v_cvt_f32_u32 %s, %s" % (v(t[2]), v(t[2])))
        k("v_and_b32 %s, 1, v0" % v(r.vsn))
        k("v_mul_u32_u24 %s, 0x8000, %s" % (v(r.vsn), v(r.vsn)))
        k("v_lshl_or_b32 %s, %s, 16, %s" % (v(r.vsn), v(r.vsn), v(r.vsn)))
        k("v_mov_b32 %s, %s" % (v(r.veps), fbits(EPS * 2.0 ** 22)))
        f, b0 = t[3], t[4]
        k("v_mul_f32 %s, %s, %s" % (v(f), fbits(1 / 64), v(r.vfk)))
        k("v_mul_f32 %s, %s, %s" % (v(b0), v(f), v(r.vfg4)))
        for i in range(8):
            k("v_fmamk_f32 %s, %s, %s, %s" % (v(r.T1C + i), v(f), fbits(16 * (i >> 2) + (i & 3)), v(b0)))
        for i in range(8):
            k("v_sin_f32 %s, %s" % (v(tmp + 8 + i), v(r.T1C + i)))
            k("v_cos_f32 %s, %s" % (v(tmp + i), v(r.T1C + i)))
        for i in range(8):
            ks, rr = i >> 2, i & 3
            k("v_cvt_pk_bf16_f32 %s, %s, %s" % (v(r.C64 + 8 * ks + rr), v(tmp + i), v(tmp + 8 + i)))
            k("v_cvt_pk_bf16_f32 %s, -%s, %s" % (v(r.C64 + 8 * ks + 4 + rr), v(tmp + 8 + i), v(tmp + i)))
        for i in range(16):
            k("v_xor_b32 %s, %s, %s" % (v(r.C64 + 16 + i), v(r.vsn), v(r.C64 + i)))
        self.n_first = len(out)
        for i in range(8):
            k("v_mul_f32 %s, %s, %s" % (v(r.T1C + i), fbits(1 / 32), v(r.T1C + i)))
        for i in range(8):
            k("v_sin_f32 %s, %s" % (v(r.T1S + i), v(r.T1C + i)))
            k("v_cos_f32 %s, %s" % (v(r.T1C + i), v(r.T1C + i)))
        k("v_mul_f32 %s, %s, %s" % (v(f), fbits(1 / 32), v(r.vfn)))
        k("v_mul_f32 %s, %s, %s" % (v(b0), v(f), v(r.vfg4)))
        for rr in range(4):
            k("v_fmamk_f32 %s, %s, %s, %s" % (v(r.T2C + rr), v(f), fbits(rr), v(b0)))
        for rr in range(4):
            k("v_sin_f32 %s, %s" % (v(r.T2S + rr), v(r.T2C + rr)))
            k("v_cos_f32 %s, %s" % (v(r.T2C + rr), v(r.T2C + rr)))
        for rr in range(4):
            k("v_cvt_pk_bf16_f32 %s, %s, %s" % (v(r.C32 + rr), v(r.T2C + rr), v(r.T2S + rr)))
            k("v_cvt_pk_bf16_f32 %s, -%s, %s" % (v(r.C32 + 4 + rr), v(r.T2S + rr), v(r.T2C + rr)))
        for i in range(8):
            k("v_xor_b32 %s, %s, %s" % (v(r.C32 + 8 + i), v(r.vsn), v(r.C32 + i)))
        for i in range(16):
            if i & 1:
                k("v_xor_b32 %s, 0x80008000, %s" % (v(r.C32 + 16 + i), v(r.C32 + i)))
            else:
                k("v_mov_b32 %s, %s" % (v(r.C32 + 16 + i), v(r.C32 + i)))
        for bt in range(2):
            if bt == 0:
                k("v_mul_f32 %s, %s, %s" % (v(f), fbits(1 / 2048), v(r.vfn)))
            else:
                k("v_add_f32 %s, %s, %s" % (v(f), fbits(16 / 2048), v(f)))
            k("v_mul_f32 %s, %s, %s" % (v(b0), v(f), v(t[2])))
            for rr in range(4):
                k("v_fmamk_f32 %s, %s, %s, %s" % (v(r.T2C + 4 * bt + rr), v(f), fbits(rr), v(b0)))
        for i in range(8):
            k("v_sin_f32 %s, %s" % (v(r.T2S + i), v(r.T2C + i)))
            k("v_cos_f32 %s, %s" % (v(r.T2C + i), v(r.T2C + i)))
        return out

    def col_unpack_w(self):
        r = self.c
        return [x for i in range(8) for x in ("v_lshlrev_b32 %s, 16, %s" % (v(r.WC + i), v(r.WR + i)),
                                              "v_and_b32 %s, 0xffff0000, %s" % (v(r.WS + i), v(r.WR + i)))]

    def cmul(self, re, im, c, sn, conj):
        k, tmp = self.k, self.c.tmp
        for h in (0, 2):
            k("v_pk_mul_f32 %s, %s, %s" % (v(tmp + h, 2), v(im + h, 2), v(sn + h, 2)))
            k("v_pk_mul_f32 %s, %s, %s" % (v(tmp + 4 + h, 2), v(re + h, 2), v(sn + h, 2)))
        neg = " neg_lo:[0,0,1] neg_hi:[0,0,1]"
        for h in (0, 2):
            k("v_pk_fma_f32 %s, %s, %s, %s%s" % (v(tmp + h, 2), v(re + h, 2), v(c + h, 2), v(tmp + h, 2), neg if conj else ""))
            k("v_pk_fma_f32 %s, %s, %s, %s%s" % (v(tmp + 4 + h, 2), v(im + h, 2), v(c + h, 2), v(tmp + 4 + h, 2), "" if conj else neg))

    def col_compute(self, late, before_bar1=None, before_bar2=None, after_bar1=None):
        k, r, li = self.k, self.c, self.layer
        tmp, late = r.tmp, list(late)
        NC = 0 if before_bar2 else self.o.get("NC", 0)

        def fill(n):
            for _ in range(n):
                if late:
                    k(late.pop(0))
        for b in range(2):
            for rr in range(4):
                k("v_fmamk_f32 %s, %s, %s, %s" % (v(r.SQ + 4 * b + rr), v(r.SQ + 4 * b + rr), fbits(2.0 ** 13), v(r.veps)))
            for rr in range(4):
                k("v_rsq_f32 %s, %s" % (v(r.SQ + 4 * b + rr), v(r.SQ + 4 * b + rr)))
            for rr in range(4):
                k("v_lshlrev_b32 %s, 16, %s" % (v(r.XF + 8 * b + rr), v(r.XR + 4 * b + rr)))
                k("v_and_b32 %s, 0xffff0000, %s" % (v(r.XF + 8 * b + 4 + rr), v(r.XR + 4 * b + rr)))
            for h in (0, 2):
                k("v_pk_mul_f32 %s, %s, %s" % (v(tmp + h, 2), v(r.XF + 8 * b + h, 2), v(r.SQ + 4 * b + h, 2)))
                k("v_pk_mul_f32 %s, %s, %s" % (v(tmp + 4 + h, 2), v(r.XF + 8 * b + 4 + h, 2), v(r.SQ + 4 * b + h, 2)))
            for rr in range(4):
                k("v_cvt_pk_bf16_f32 %s, %s, %s" % (v(r.PK + 4 * b + rr), v(tmp + rr), v(tmp + 4 + rr)))
        k("s_cmp_lg_u32 s2, 0")
        k("s_cbranch_scc1 COL_A%d" % li)
        for i in range(8):
            k("v_and_b32 %s, 0xffff, %s" % (v(r.PK + i), v(r.PK + i)))
        k.label("COL_A%d" % li)
        for b in range(2):
            k("ds_write_b128 %s, %s offset:%d" % (v(r.vwr), v(r.PK + 4 * b, 4), 1024 * b))
        fill(12)
        if before_bar1:
            before_bar1()
        k("s_waitcnt lgkmcnt(0)")
        k("s_barrier")
        for bt in range(2):
            for ks in range(4):
                k("ds_read_b128 %s, %s offset:%d" % (v(r.FR + 16 * bt + 4 * ks, 4), v(r.vrd), 12288 * ks + 1024 * bt))
        if after_bar1:
            after_bar1()
        fill(max(12, len(late) - 24))
        self.st("c_x1")
        for bt in range(2):
            for ri in range(2):
                for ks in range(4):
                    d = v(r.AC + 8 * bt + 4 * ri, 4)
                    k("%s %s, %s, %s, %s" % (MF, d, v(r.FR + 16 * bt + 4 * ks, 4), v(r.C64 + 8 * ks + 4 * ri, 4), d if ks else "0"))
                    fill(1 if late and "_sin" in late[0] or late and "_cos" in late[0] else 2)
                    if ks == 1:
                        self.side(NC)
        fill(len(late))
        for bt in range(2):
            self.cmul(r.AC + 8 * bt, r.AC + 8 * bt + 4, r.T1C + 4 * bt, r.T1S + 4 * bt, False)
            for rr in range(4):
                k("v_cvt_pk_bf16_f32 %s, %s, %s" % (v(r.PK + 4 * bt + rr), v(tmp + rr), v(tmp + 4 + rr)))
        for kt in range(2):
            for ri in range(2):
                for ks in range(2):
                    d = v(r.FR + 8 * kt + 4 * ri, 4)
                    k("%s %s, %s, %s, %s" % (MF, d, v(r.C32 + 16 * kt + 8 * ks + 4 * ri, 4), v(r.PK + 4 * ks, 4), d if ks else "0"))
                    if ks == 1 and ri == 0:
                        self.side(NC)
        P2 = r.FR + 16
        for kt in range(2):
            self.cmul(r.FR + 8 * kt, r.FR + 8 * kt + 4, r.WC + 4 * kt, r.WS + 4 * kt, True)
            for rr in range(4):
                k("v_cvt_pk_bf16_f32 %s, %s, %s" % (v(P2 + 4 * kt + rr), v(tmp + 4 + rr), v(tmp + rr)))
        for bt in range(2):
            for ri in range(2):
                for ks in range(2):
                    d = v(r.AC + 8 * bt + 4 * (1 - ri), 4)
                    k("%s %s, %s, %s, %s" % (MF, d, v(P2 + 4 * ks, 4), v(r.C32 + 16 * bt + 8 * ks + 4 * ri, 4), d if ks else "0"))
                    if ks == 1 and ri == 0:
                        self.side(NC)
        for bt in range(2):
            self.cmul(r.AC + 8 * bt, r.AC + 8 * bt + 4, r.T2C + 4 * bt, r.T2S + 4 * bt, True)
            for rr in range(4):
                k("v_cvt_pk_bf16_f32 %s, %s, %s" % (v(r.PK + 4 * bt + rr), v(tmp + 4 + rr), v(tmp + rr)))
            k("ds_write_b128 %s, %s offset:%d" % (v(r.vwr), v(r.PK + 4 * bt, 4), 2048 + 1024 * bt))
        k("s_add_u32 %s, %s, 0x%x" % (s(sT), s(sQ), (L.X1, L.X3)[li]))
        self.side(2 * NC)
        if before_bar2:
            before_bar2()
        k("s_waitcnt lgkmcnt(0)")
        k("s_barrier")
        for bt in range(2):
            for ks in range(4):
                k("ds_read_b128 %s, %s offset:%d" % (v(r.FR + 16 * bt + 4 * ks, 4), v(r.vrd), 2048 + 12288 * ks + 1024 * bt))
        self.st("c_x2")
        for bt in range(2):
            for ri in range(2):
                for ks in range(4):
                    d = v(r.XF + 8 * bt + 4 * (1 - ri), 4)
                    k("%s %s, %s, %s, %s" % (MF, d, v(r.C64 + 8 * ks + 4 * ri, 4), v(r.FR + 16 * bt + 4 * ks, 4), d))
        k("s_cmp_lg_u32 s2, 0")
        for bt in range(2):
            for rr in range(4):
                k("v_cvt_pk_bf16_f32 %s, %s, %s" % (v(r.PK + 4 * bt + rr), v(r.XF + 8 * bt + rr), v(r.XF + 8 * bt + 4 + rr)))
            k("s_cbranch_scc1 COL_B%d%d" % (li, bt))
            k("s_mov_b32 %s, 0xffff" % s(sV))
            for rr in range(4):
                k("v_bfi_b32 %s, %s, %s, %s" % (v(r.PK + 4 * bt + rr), s(sV), v(r.PK + 4 * bt + rr), v(r.XR + 4 * bt + rr)))
            k.label("COL_B%d%d" % (li, bt))
            k("buffer_store_dwordx4 %s, %s, %s, %s offen offset:%d sc1" % (v(r.PK + 4 * bt, 4), v(r.voff), WS, s(sT), 1024 * bt), tag="xs")
        self.st("c_end")

    def mlp(self):
        k, li = self.k, self.layer
        o = dict(self.o)
        o.update({n[:-2]: x for n, x in self.o.items() if isinstance(n, str) and n.endswith("_%d" % li)})
        D, PD, CH = o.get("D", 6), o.get("PD", 14), o.get("CH", 2)
        FS = 128
        XIN, H = (L.X1, L.X3)[li], (L.H1, L.H2)[li]
        TS = TILE if li == 0 else 4 * TILE
        va = Alloc(5, 256)
        vX, vX2, vrX, vH6, vB1, vA2, vF = (va() for _ in range(7))
        vS, vC = va(2), va(2)
        tmp = va(16, 4)
        t = [tmp + i for i in range(8)]
        XB, ACC, AF = va(128, 4), va(64, 4), va(32, 4)
        SSQ = ACC + 56
        acc1 = lambda ft, tt: ACC + 16 * (ft >> 1) + 8 * tt + 4 * (ft & 1) if ft < 6 else ACC + 48 + 4 * tt
        queue, side = self.queue, self.side

        DG = o.get("DG", li)
        side(o.get("N1", 10 if li == 0 else 0))
        if not DG:
            k("s_lshl_b32 %s, %s, 8" % (s(sV), s(sWv)))
            k("s_add_u32 %s, %s, s2" % (s(sV), s(sV)))
            k("s_mul_i32 %s, %s, %d" % (s(sV), s(sV), FS))
            k("s_add_u32 %s, %s, 0x%x" % (s(sV), s(sV), L.GFLAGS + 262144 * li))
            self.publish("xs", sV)
        self.st("s_pub")
        if li == 0:
            self.deferred(t[0], t[1], sV)
        pre = []
        P = pre.append
        P("v_mov_b32 %s, %s" % (v(vC), fbits(C1)))
        P("v_mov_b32 %s, %s" % (v(vC + 1), fbits(C0)))
        P("v_lshrrev_b32 %s, 6, v0" % v(t[0]))
        P("v_bfe_u32 %s, v0, 3, 2" % v(t[1]))
        P("v_lshlrev_b32 %s, 19, %s" % (v(vX), v(t[1])))
        P("v_bfe_u32 %s, v0, 5, 1" % v(t[1]))
        P("v_lshl_add_u32 %s, %s, 17, %s" % (v(vX), v(t[1]), v(vX)))
        P("v_and_b32 %s, 7, v0" % v(t[1]))
        P("v_lshl_add_u32 %s, %s, 4, %s" % (v(vX), v(t[1]), v(vX)))
        P("v_lshl_add_u32 %s, %s, 7, %s" % (v(vX), v(t[0]), v(vX)))
        P("v_add_u32 %s, %d, %s" % (v(vX2), 32 * 8192 - 1024, v(vX)))
        P("v_lshrrev_b32 %s, 1, %s" % (v(t[1]), v(vrA)))
        P("v_add_u32 %s, %s, %s" % (v(vrX), s(sRB), v(t[1])))
        P("v_and_b32 %s, 48, v0" % v(t[1]))
        P("v_add_u32 %s, %s, %s" % (v(vB1), s(sRB), v(t[1])))
        P("v_add_u32 %s, %d, %s" % (v(vA2), WB, v(vrA)))
        P("v_bfe_u32 %s, v0, 4, 1" % v(t[1]))
        P("v_mul_u32_u24 %s, %d, %s" % (v(vH6), TS, v(t[1])))
        P("v_bfe_u32 %s, v0, 5, 1" % v(t[1]))
        P("v_lshl_add_u32 %s, %s, 8, %s" % (v(vH6), v(t[1]), v(vH6)))
        P("v_and_b32 %s, 15, v0" % v(t[1]))
        P("v_lshl_add_u32 %s, %s, 4, %s" % (v(vH6), v(t[1]), v(vH6)))
        P("v_mul_u32_u24 %s, %d, v0" % (v(vF), 8192 if DG else FS))
        P("s_lshl_b32 %s, %s, 9" % (s(sX), s(sP)))
        P("s_add_u32 %s, %s, 0x%x" % (s(sX), s(sX), XIN))
        if DG:
            P("s_and_b32 %s, %s, 3" % (s(sG), s(sI)))
            P("s_lshl_b32 %s, %s, 7" % (s(sG), s(sG)))
            P("s_add_u32 %s, %s, %s" % (s(sG), s(sG), s(sX)))
        else:
            P("s_lshr_b32 %s, %s, 2" % (s(sG), s(sP)))
            P("s_mul_i32 %s, %s, %d" % (s(sG), s(sG), 256 * FS))
            P("s_add_u32 %s, %s, 0x%x" % (s(sG), s(sG), L.GFLAGS + 262144 * li))
        P("s_mul_i32 %s, %s, %d" % (s(sHst), s(sP), 8 * TILE))
        P("s_add_u32 %s, %s, 0x%x" % (s(sHst), s(sHst), H))
        P("s_mul_i32 %s, %s, %d" % (s(sHA), s(sWv), 2 * TILE if li == 0 else TILE))
        P("s_add_u32 %s, %s, %s" % (s(sHA), s(sHA), s(sHst)))
        P("s_lshr_b32 %s, %s, 2" % (s(sV), s(sI)))
        P("s_mul_i32 %s, %s, 14336" % (s(sV), s(sV)))
        P("s_add_u32 %s, %s, %s" % (s(sHA), s(sHA), s(sV)))
        P("s_and_b32 %s, %s, 3" % (s(sV), s(sI)))
        P("s_lshl_b32 %s, %s, 9" % (s(sV), s(sV)))
        P("s_add_u32 %s, %s, %s" % (s(sH6), s(sHA), s(sV)))
        P("s_add_u32 %s, %s, %s" % (s(sHB), s(sH6), s(sV)))
        P("s_lshl_b32 %s, %s, 2" % (s(sV), s(sV)))
        P("s_add_u32 %s, %s, %s" % (s(sHA), s(sHA), s(sV)))
        P("s_add_u32 %s, %s, %d" % (s(sH6), s(sH6), 12 * 1024))
        P("s_add_u32 %s, %s, %d" % (s(sHB), s(sHB), 8 * 1024))
        P("s_mul_i32 %s, %s, %d" % (s(sV), s(sPhi), 4 * TILE))
        P("s_add_u32 %s, %s, %s" % (s(sHst), s(sHst), s(sV)))
        P("s_mul_i32 %s, %s, 14336" % (s(sV), s(sWv)))
        P("s_add_u32 %s, %s, %s" % (s(sHst), s(sHst), s(sV)))
        P("s_and_b32 %s, %s, %d" % (s(sPl), s(sWv), 2 if li == 0 else 3))
        for kt in range(4):
            P("s_xor_b32 %s, %s, %d" % (s(sV), s(sPl), kt ^ (2 if li == 0 else 3)))
            P("s_mul_i32 %s, %s, %d" % (s(sV), s(sV), TILE))
            P("s_add_u32 %s, %s, %s" % (s(sHt + kt), s(sHst), s(sV)))
        P("s_lshl_b32 %s, %s, 4" % (s(sPl), s(sP)))
        P("s_add_u32 %s, %s, %s" % (s(sFl), s(sPl), s(sI)))
        P("s_lshl_b32 %s, %s, 2" % (s(sFl), s(sFl)))
        P("s_add_u32 %s, %s, %s" % (s(sFl), s(sFl), s(sWv)))
        P("s_lshl_b32 %s, %s, 7" % (s(sFl), s(sFl)))
        P("s_add_u32 %s, %s, 0x%x" % (s(sFl), s(sFl), L.FLAGS + li * 262144))
        P("s_lshl_b32 %s, %s, 9" % (s(sPl), s(sPl)))
        P("s_lshl_b32 %s, %s, 11" % (s(sV), s(sWv)))
        P("s_add_u32 %s, %s, %s" % (s(sPl), s(sPl), s(sV)))
        P("s_add_u32 %s, %s, 0x%x" % (s(sPl), s(sPl), L.FLAGS + li * 262144))
        for m, c in ((8, 0x22222222), (9, 0x22222222), (10, 0x44444444), (11, 0x44444444), (36, 0x88888888), (37, 0x88888888)):
            P("s_mov_b32 %s, 0x%x" % (s(m), c))
        n2 = o.get("N2", 18 if li == 0 else 6)
        per = -(-len(pre) // max(1, n2))
        for j in range(n2):
            side()
            for txt in pre[:per]:
                k(txt)
            del pre[:per]
        for txt in pre:
            k(txt)
        assert li or self.issued["w1"] == 28
        k("s_mul_i32 %s, %s, 448" % (s(sW1), s(sI)))
        k("s_add_u32 %s, %s, 0x%x" % (s(sW1), s(sW1), L.B1X))
        self.poll_issue(vF, sG)
        if li == 0:
            k("s_sub_u32 %s, %s, 1" % (s(sV), s(sE)))
            for i in range(4):
                k("v_mov_b32 %s, %s" % (v(tmp + 4 + i), s(sV)))
            k("s_lshl_b32 %s, %s, 8" % (s(sV), s(sWv)))
            k("s_add_u32 %s, %s, s2" % (s(sV), s(sV)))
            k("s_lshl_b32 %s, %s, 7" % (s(sV), s(sV)))
            k("s_sub_u32 %s, %s, 0x%x" % (s(sT), s(sFl), L.FLAGS))
            k("v_mov_b32 %s, %s" % (v(t[0]), s(sT)))
            k("v_mov_b32 %s, %s" % (v(t[1]), s(sV)))
            k("s_mov_b64 vcc, 0xff00")
            k("v_cndmask_b32 %s, %s, %s, vcc" % (v(t[0]), v(t[0]), v(t[1])))
            k("s_lshr_b32 %s, %s, 2" % (s(sT), s(sT)))
            k("v_mov_b32 %s, %s" % (v(t[1]), s(sT)))
            k("s_mov_b64 vcc, 0xff")
            k("v_cndmask_b32 %s, %s, %s, vcc" % (v(t[0]), v(t[0]), v(t[1])))
            k("v_bfe_u32 %s, v0, 3, 3" % v(t[1]))
            k("v_lshl_add_u32 %s, %s, 17, %s" % (v(t[0]), v(t[1]), v(t[0])))
            k("v_and_b32 %s, 0x70, %s" % (v(t[1]), v(vrA)))
            k("v_add_u32 %s, %s, %s" % (v(t[0]), v(t[0]), v(t[1])))
            k("s_cmp_eq_u32 %s, 0" % s(sWv))
            k("s_cselect_b32 exec_lo, -1, 0xffffff00")
            k("s_mov_b32 exec_hi, 0xffff")
            k("s_mov_b32 %s, 0x%x" % (s(sT), L.GFLAGS + 131072))
            k("buffer_store_dwordx4 %s, %s, %s, %s offen sc1" % (v(tmp + 4, 4), v(t[0]), WS, s(sT)))
            k("s_mov_b64 exec, -1")
            if self.o.get("DG_1", 1):
                for i in range(4):
                    k("v_mov_b32 %s, -1" % v(tmp + 8 + i))
                k("s_lshl_b32 %s, %s, 11" % (s(sT), s(sWv)))
                k("s_add_u32 %s, %s, %s" % (s(sT), s(sT), s(sQ)))
                k("s_add_u32 %s, %s, 0x%x" % (s(sT), s(sT), L.X3))
                for b in range(2):
                    k("buffer_store_dwordx4 %s, %s, %s, %s offen offset:%d sc1" % (v(tmp + 8, 4), v(vrA), WS, s(sT), 1024 * b))
        side(o.get("N3", 4 if li == 0 else 0))
        while queue and not getattr(queue[0][1], "head", False):
            side()
        if o.get("nogate"):
            k("v_mov_b32 %s, %s" % (v(vP), v(vP)))
        else:
            self.poll_check(vF, sG, data=DG)
        k("s_barrier")
        self.st("s_go")
        if li == 0:
            k("s_or_b32 %s, s2, %s" % (s(sV), s(sWv)))
            k("s_cbranch_scc1 NO_EPOCH")
            k("s_mov_b32 %s, 0x%x" % (s(sV), L.EPOCH))
            self.flag_store(sV)
            k.label("NO_EPOCH")

        def bundle(ks):
            tg = ("b", ks)
            if ks == 16:
                return [(lambda: k("s_add_u32 m0, %s, %d" % (s(sRB), 4 * 2048)), self.dma(vrA, sW1, 0, tg))]
            return [(self.setup(sRB, (ks % 6) * 2048, sT, sX, 0 if o.get("xfix") else ks * 8192), self.dma(vX, sT, 0, tg, " sc1")),
                    (None, self.dma(vX2, sT, 1024, tg, " sc1"))]

        def x_read(ks, n):
            i, ro = ((0, 0), (1, 4), (2, 2), (3, 6))[n]
            return lambda: k("ds_read_b64 %s, %s offset:%d" % (v(XB + 8 * ks + ro, 2), v(vrX), (ks % 6) * 2048 + 512 * i))

        def x_swap(ks, n):
            return lambda: k("v_swap_b32 %s, %s" % (v(XB + 8 * ks + 1 + 2 * n), v(XB + 8 * ks + 4 + 2 * n)))

        def a_read(ks, ft):
            return lambda: k("ds_read_b128 %s, %s offset:%d" % (v(AF + 16 * (ks & 1) + 4 * ft, 4), v(vrA), (4 * ks + ft) * 1024))

        def b1_read(reg, ft):
            return lambda: k("ds_read_b128 %s, %s offset:%d" % (v(reg, 4), v(vB1), 4 * 2048 + 64 * ft))

        def diag(tt):
            def op():
                k("v_cndmask_b32 %s, %s, %s, s[8:9]" % (v(t[tt]), v(SSQ + 4 * tt), v(SSQ + 4 * tt + 1)))
                k("v_cndmask_b32 %s, %s, %s, s[10:11]" % (v(t[tt]), v(t[tt]), v(SSQ + 4 * tt + 2)))
                k("v_cndmask_b32 %s, %s, %s, s[36:37]" % (v(t[tt]), v(t[tt]), v(SSQ + 4 * tt + 3)))
                k("ds_bpermute_b32 %s, %s, %s" % (v(vS + tt), v(t[2]), v(t[tt])))
            return op

        k("s_mov_b32 %s, 0" % s(sG))
        k.label("PASS_A%d" % li)
        for ks in range(D):
            self.issue(bundle(ks))
        for ft in range(4):
            a_read(0, ft)()
        k("v_mov_b32 %s, 0xffff" % v(t[4]))
        k("v_cmp_gt_u32 vcc, 256, %s" % v(vrA))
        k("v_cndmask_b32 %s, -1, %s, vcc" % (v(vS), v(t[4])))
        k("v_and_b32 %s, 12, v0" % v(t[2]))
        k("v_and_b32 %s, 15, v0" % v(t[3]))
        k("v_lshlrev_b32 %s, 7, %s" % (v(vF), v(t[3])))
        k("v_lshl_add_u32 %s, %s, 2, %s" % (v(t[2]), v(t[2]), v(t[3])))
        k("v_lshlrev_b32 %s, 2, %s" % (v(t[2]), v(t[2])))
        k("v_mov_b32 %s, %s" % (v(t[3]), fbits(EPS * EPS)))
        k.wait_tag(("b", 0))
        self.st("first")
        for n in range(4):
            x_read(0, n)()
        x_swap(0, 0)()
        x_swap(0, 1)()
        for ks in range(16):
            k.wait_tag(("b", ks + 1))
            fill = [[] for _ in range(10)]
            ops = bundle(ks + D) if ks + D <= 16 else []
            while len(ops) < (2 if ks < 15 else 0) and queue:
                ops.append(queue.pop(0))
            if 2 <= ks < 16 - D and ks % o.get("XS", 2) == 0 and queue:
                ops.append(queue.pop(0))
            for n, (su, ld) in enumerate(ops):
                if su:
                    fill[(4, 8, 2)[n]].append(su)
                fill[(5, 9, 2)[n]].append(ld)
            if ks < 15:
                for n in range(4):
                    fill[n >> 1].append(x_read(ks + 1, n))
                    fill[(2, 3, 3, 4)[n]].append(a_read(ks + 1, n))
                if ks:
                    fill[1].append(lambda: k.wait(lg=4))
                fill[6].insert(0, lambda: k.wait(lg=4))
                fill[6].append(x_swap(ks + 1, 0))
                fill[7].append(x_swap(ks + 1, 1))
            else:
                for n in range(4):
                    fill[n >> 1].append(b1_read(AF + 4 * n, n))
                fill[4].append(diag(0))
                fill[6].append(diag(1))
            order = list(range(10))
            if ks == 0:
                order = order[2:] + order[:2]
                for tt in range(2):
                    fill[2 + 3 * tt].append(lambda tt=tt: k("v_and_b32 %s, %s, %s\nv_mov_b32 %s, %s" % (
                        v(tmp + 8 + 4 * tt), v(vS), v(XB + 4 * tt), v(tmp + 9 + 4 * tt), v(XB + 4 * tt + 1))))
                    fill[4 + 2 * tt].append(lambda tt=tt: k("v_mov_b32 %s, %s\nv_mov_b32 %s, %s" % (
                        v(tmp + 10 + 4 * tt), v(XB + 4 * tt + 2), v(tmp + 11 + 4 * tt), v(XB + 4 * tt + 3))))
            for pos, m in enumerate(order):
                tt = m & 1
                bb = v(XB + 8 * ks + 4 * tt, 4)
                if m < 2:
                    d = v(SSQ + 4 * tt, 4)
                    k("%s %s, %s, %s, %s" % (MF, d, v(tmp + 8 + 4 * tt, 4) if ks == 0 else bb, bb, d if ks else "0"))
                else:
                    ft = (m - 2) >> 1
                    d = v(acc1(ft, tt), 4)
                    k("%s %s, %s, %s, %s" % (MF, d, v(AF + 16 * (ks & 1) + 4 * ft, 4), bb, d if ks else "0"))
                for op in fill[pos]:
                    op()
        self.st("passA")

        def b_slot(j):
            return AF + 4 * ((j + 4) % 8)

        def b_read(j):
            k("ds_read_b128 %s, %s offset:%d" % (v(b_slot(j), 4), v(vA2), j * 1024))

        if DG:
            k("v_cmp_u_f32 vcc, %s, %s" % (v(vS), v(vS + 1)))
            k("s_cbranch_vccz A_OK%d" % li)
            k("s_add_u32 %s, %s, 1" % (s(sG), s(sG)))
            k("s_waitcnt vmcnt(0) lgkmcnt(0)")
            k("s_nop 7")
            k("s_cmp_lt_u32 %s, 64" % s(sG))
            k("s_cbranch_scc1 PASS_A%d" % li)
            k.label("A_OK%d" % li)
        for j in range(4):
            b_read(j)
        for tt in range(2):
            k("v_fmamk_f32 %s, %s, %s, %s" % (v(vS + tt), v(vS + tt), fbits((1 + EPS) / 512), v(t[3])))
        for tt in range(2):
            k("v_rsq_f32 %s, %s" % (v(vS + tt), v(vS + tt)))

        nunit = [0]

        def gelu(x, tts, bias, store):
            ob = tmp + 8 + 4 * (nunit[0] & 1)
            nunit[0] += 1
            for h in range(4):
                k("v_pk_fma_f32 %s, %s, %s, %s op_sel:[0,%d,0] op_sel_hi:[1,%d,1]"
                  % (v(x + 2 * h, 2), v(x + 2 * h, 2), v(vS, 2), v(bias[h], 2), tts[h], tts[h]))
            for h in range(4):
                k("v_pk_mul_f32 %s, %s, %s" % (v(tmp + 2 * h, 2), v(x + 2 * h, 2), v(x + 2 * h, 2)))
            for h in range(4):
                k("v_pk_fma_f32 %s, %s, %s, %s op_sel:[0,0,1] op_sel_hi:[1,0,1]" % (v(tmp + 2 * h, 2), v(tmp + 2 * h, 2), v(vC, 2), v(vC, 2)))
            for h in range(4):
                k("v_pk_mul_f32 %s, %s, %s" % (v(tmp + 2 * h, 2), v(x + 2 * h, 2), v(tmp + 2 * h, 2)))
            GS = o.get("GS", 3 if li == 0 else 0)
            side(GS // 3)
            for i in range(8):
                k("v_exp_f32 %s, %s" % (v(tmp + i), v(tmp + i)))
            side((GS + 2) // 3)
            for h in range(4):
                k("v_pk_add_f32 %s, %s, 1.0 op_sel_hi:[1,0]" % (v(tmp + 2 * h, 2), v(tmp + 2 * h, 2)))
            for i in range(8):
                k("v_rcp_f32 %s, %s" % (v(tmp + i), v(tmp + i)))
            side((GS + 1) // 3)
            for h in range(4):
                k("v_pk_mul_f32 %s, %s, %s" % (v(tmp + 2 * h, 2), v(x + 2 * h, 2), v(tmp + 2 * h, 2)))
            for h in (0, 2, 1, 3):
                k("v_cvt_pk_bf16_f32 %s, %s, %s" % (v(ob + h), v(tmp + 2 * h), v(tmp + 2 * h + 1)))
            store(ob)

        def st_pair(sb, off, tag):
            return lambda ob: k("buffer_store_dwordx4 %s, %s, %s, %s offen offset:%d sc1" % (v(ob, 4), v(vrA), WS, s(sb), off), tag=tag)

        def st_six(ob):
            k("v_permlane16_swap_b32 %s, %s" % (v(ob), v(ob + 2)))
            k("v_permlane16_swap_b32 %s, %s" % (v(ob + 1), v(ob + 3)))
            k("buffer_store_dwordx4 %s, %s, %s, %s offen sc1" % (v(ob, 4), v(vH6), WS, s(sH6)), tag="hB")

        for tt in range(2):
            for pr in range(2):
                gelu(acc1(2 * pr, tt), [tt] * 4, [AF + 8 * pr + 2 * h for h in range(4)], st_pair(sHA, pr * 1024, "hA"))
            if tt == 0:
                k("s_add_u32 %s, %s, %d" % (s(sHA), s(sHA), TS))
                if li == 1:
                    k("s_barrier")
        if li == 1:
            k("s_lshl_b32 %s, %s, 14" % (s(sG), s(sWv)))
            k("s_lshl_b32 %s, %s, 16" % (s(sX), s(sCt)))
            k("s_add_u32 %s, %s, %s" % (s(sX), s(sX), s(sG)))
            k("s_add_u32 %s, %s, 0x%x" % (s(sX), s(sX), L.FT))
            queue[0:0] = [(self.setup(sG, (j >> 2) * 4096, sT, sX, (j >> 2) * 4096) if j & 3 == 0 else None,
                           self.dma(vrA, sT, (j & 3) * 1024, "ft")) for j in range(16)]
        self.st("geluA")

        FA = o.get("FA", 60)
        for j in range(4, 7):
            b_read(j)
        for j in range(48):
            ks, ft = j // 3, 4 + j % 3
            pend = None
            for tt in range(2):
                d = v(acc1(ft, tt), 4)
                k("%s %s, %s, %s, %s" % (MF, d, v(b_slot(j), 4), v(XB + 8 * ks + 4 * tt, 4), d if ks else "0"))
                if tt == 0:
                    if j + 7 < 48:
                        b_read(j + 7)
                    elif j + 7 < 51:
                        b1_read(b_slot(j + 7), j + 7 - 44)()
                    if j & 1 and queue:
                        su, pend = queue.pop(0)
                        if su:
                            su()
                elif pend:
                    pend()
                if 2 * j + tt == FA:
                    self.publish("hA", sFl)
                    k("s_add_u32 %s, %s, 131072" % (s(sFl), s(sFl)))
        self.st("passB")
        RES, BIAS, vRes = AF, AF + 8, vX
        if li == 0:
            k("v_bfe_u32 %s, v0, 4, 2" % v(vX2))
            k("v_lshrrev_b32 %s, 4, %s" % (v(vRes), v(vF)))
            k("v_lshl_add_u32 %s, %s, 15, %s" % (v(vRes), v(vX2), v(vRes)))
            k("v_lshlrev_b32 %s, 4, %s" % (v(vX2), v(vX2)))
            k("s_lshl_b32 %s, %s, 1" % (s(sG), s(sCt)))
            k("s_and_b32 %s, %s, 1" % (s(sV), s(sWv)))
            k("s_add_u32 %s, %s, %s" % (s(sG), s(sG), s(sV)))
            k("s_lshl_b32 %s, %s, 17" % (s(sV), s(sG)))
            k("s_add_u32 %s, %s, %s" % (s(sX), s(sX), s(sV)))
            k("s_lshl_b32 %s, %s, 6" % (s(sG), s(sG)))
            k("s_add_u32 %s, %s, 0x%x" % (s(sG), s(sG), L.B2F))
            k("s_lshl_b32 %s, %s, 1" % (s(sT), s(sPhi)))
            k("s_lshr_b32 %s, %s, 1" % (s(sV), s(sWv)))
            k("s_add_u32 %s, %s, %s" % (s(sT), s(sT), s(sV)))
            k("s_lshl_b32 %s, %s, 7" % (s(sHA), s(sT)))
            k("s_add_u32 %s, %s, %s" % (s(sX), s(sX), s(sHA)))
            for r in range(4):
                queue.append((lambda r=r: k("s_add_u32 %s, %s, %d" % (s(sT), s(sX), r * 8192)),
                              lambda r=r: k("buffer_load_dwordx2 %s, %s, %s, %s offen sc1" % (v(RES + 2 * r, 2), v(vRes), WS, s(sT)))))
            for ri in range(2):
                queue.append((None, lambda ri=ri: k("buffer_load_dwordx4 %s, %s, %s, %s offen offset:%d sc1" % (v(BIAS + 4 * ri, 4), v(vX2), WS, s(sG), ri * 1024))))
        else:
            assert self.issued["ft"] == 16
            k("v_and_b32 %s, 48, v0" % v(vX2))
            k("v_lshlrev_b32 %s, 1, %s" % (v(vX2), v(vX2)))
            k("s_lshl_b32 %s, %s, 7" % (s(sG), s(sCt)))
            for e in range(2):
                k("buffer_load_dwordx4 %s, %s, s[40:43], %s offen offset:%d" % (v(RES + 4 * e, 4), v(vX2), s(sG), e * 16))
        PA = o.get("PA", 1)
        bb = b_slot(48)
        for u in range(3):
            if u == PA:
                self.poll_issue(vF, sPl)
            if u < 2:
                gelu(acc1(4, u), [u] * 4, [bb + 2 * h for h in range(4)], st_pair(sHB, 0, "hB"))
                if u == 0:
                    k("s_add_u32 %s, %s, %d" % (s(sHB), s(sHB), TS))
            else:
                gelu(acc1(6, 0), [0, 0, 1, 1], [bb + 8, bb + 10, bb + 8, bb + 10], st_six)
        if PA == 3:
            self.poll_issue(vF, sPl)
        self.st("geluB")

        loads = [(kt, kf) for kt in range(4) for kf in range(8)] + [(kt, kf) for kt in range(4) for kf in range(8, 14)]
        slot = {x: XB + 4 * (j % 32) for j, x in enumerate(loads)}
        acc2 = lambda kt, c: ACC + 16 * kt + 4 * c
        own = [acc2(2 + (g >> 1), 2 + (g & 1)) for g in range(4)] if li == 0 else [acc2(3, g) for g in range(4)]

        def h_load(j):
            kt, kf = loads[j]
            if kf % 4 == 0:
                k("s_add_u32 %s, %s, %d" % ((s(sHst), s(sHt), 0) if o.get("hfix") else (s(sHst), s(sHt + kt), kf * 1024)))
            k("buffer_load_dwordx4 %s, %s, %s, %s offen offset:%d sc1" % (v(slot[loads[j]], 4), v(vrA), WS, s(sHst), (kf & 3) * 1024))

        FB = min(PD - 1, o.get("FB", 10))
        if li == 0:
            side(len(queue))
            self.poll_check(vF, sPl)
            self.st("pollA")
            for j in range(PD):
                h_load(j)
                if j == FB:
                    self.st("g_pre")
                    self.publish("hB", sFl)
                    k("s_sub_u32 %s, s2, 184" % s(sV))
                    k("s_cmp_ge_u32 %s, 56" % s(sV))
                    k("s_cbranch_scc1 NO_WFLAG")
                    k("s_lshl_b32 %s, %s, 2" % (s(sV), s(sV)))
                    k("s_add_u32 %s, %s, %s" % (s(sV), s(sV), s(sWv)))
                    k("s_lshl_b32 %s, %s, 7" % (s(sV), s(sV)))
                    k("s_add_u32 %s, %s, 0x%x" % (s(sV), s(sV), L.WFLAGS))
                    self.flag_store(sV)
                    k.label("NO_WFLAG")
                    self.st("g_pub")
            for tt in range(2):
                for r in range(4):
                    k("v_lshlrev_b32 %s, 16, %s" % (v(own[2 * tt] + r), v(RES + 2 * r + tt)))
                    k("v_and_b32 %s, 0xffff0000, %s" % (v(own[2 * tt + 1] + r), v(RES + 2 * r + tt)))
            for g in range(4):
                for h in (0, 2):
                    k("v_pk_add_f32 %s, %s, %s" % (v(own[g] + h, 2), v(own[g] + h, 2), v(BIAS + 4 * (g & 1) + h, 2)))
        else:
            side(len(queue))
            for c in range(4):
                for h in range(2):
                    k("v_lshlrev_b32 %s, 16, %s" % (v(own[c] + 2 * h), v(RES + 2 * c + h)))
                    k("v_and_b32 %s, 0xffff0000, %s" % (v(own[c] + 2 * h + 1), v(RES + 2 * c + h)))
            k.wait_tag("ft")
            k("s_barrier")
            k("s_cmp_eq_u32 %s, 1" % s(sPhi))
            k("s_cbranch_scc1 X3B")
            for tt in range(2):
                if tt == 1:
                    k.label("X3B")
                for j in range(7):
                    k("ds_read_b128 %s, %s offset:%d" % (v(AF + 4 * j, 4), v(vrA), j * 1024))
                nh = 0
                for j in range(64):
                    ks, c = j >> 2, j & 3
                    d = v(own[c], 4)
                    k("%s %s, %s, %s, %s" % (MF, d, v(AF + 4 * (j % 8), 4), v(XB + 8 * ks + 4 * tt, 4), d))
                    if j + 7 < 64:
                        k("ds_read_b128 %s, %s offset:%d" % (v(AF + 4 * ((j + 7) % 8), 4), v(vrA), (j + 7) * 1024))
                    if c == 1 and ks >= o.get("XH", 1) and nh < PD:
                        if nh == 0:
                            self.poll_check(vF, sPl)
                        assert nh < 2 * ks
                        h_load(nh)
                        nh += 1
                    if j == o.get("FBX", 44):
                        self.publish("hB", sFl)
                for j in range(nh, PD):
                    h_load(j)
                if tt == 0:
                    k("s_branch X3E")
            k.label("X3E")
            self.st("pollA")
        k("s_add_u32 %s, %s, 131072" % (s(sPl), s(sPl)))

        vRW, vRd, vO, vI = vrX, [AF + 16, AF + 17, AF + 18], vX, AF + 19
        late = []
        Q = late.append
        Q("v_add_u32 %s, %s, %s" % (v(vRW), s(sRB), v(vrA)))
        for dl in range(1, 4):
            Q("s_xor_b32 %s, %s, %d\ns_mul_i32 %s, %s, 12288" % (s(sV), s(sWv), dl, s(sV), s(sV)))
            Q("s_add_u32 %s, %s, %d\nv_add_u32 %s, %s, %s" % (s(sV), s(sV), PRIV + (3 ^ dl) * 4096, v(vRd[dl - 1]), s(sV), v(vrA)))
        if li == 1:
            Q("v_and_b32 %s, 15, v0\nv_lshl_add_u32 %s, %s, 1, %s" % (v(t[0]), v(t[2]), v(t[0]), s(sPhi)))
            Q("v_and_b32 %s, 3, %s\nv_lshrrev_b32 %s, 1, %s" % (v(t[2]), v(t[2]), v(t[0]), v(t[0])))
            Q("v_lshl_add_u32 %s, %s, 5, %s\nv_lshl_add_u32 %s, %s, 10, %s" % (v(t[0]), v(t[2]), v(t[0]), v(vO), v(t[0]), v(vX2)))
            Q("s_lshr_b32 %s, %s, 2\ns_lshl_b32 %s, %s, 9" % (s(sV), s(sP), s(sX), s(sV)))
            Q("s_and_b32 %s, %s, 1\ns_lshl_b32 %s, %s, 8" % (s(sV), s(sP), s(sV), s(sV)))
            Q("s_add_u32 %s, %s, %s\ns_lshr_b32 %s, %s, 1" % (s(sX), s(sX), s(sV), s(sV), s(sWv)))
            Q("s_lshl_b32 %s, %s, 7\ns_add_u32 %s, %s, %s" % (s(sV), s(sV), s(sX), s(sX), s(sV)))
            Q("s_bfe_u32 %s, %s, 0x10001\ns_lshl_b32 %s, %s, 4" % (s(sV), s(sP), s(sV), s(sV)))
            Q("s_add_u32 %s, %s, %s\ns_and_b32 %s, %s, 1" % (s(sX), s(sX), s(sV), s(sV), s(sWv)))
            Q("s_lshl_b32 %s, %s, 3\ns_add_u32 %s, %s, %s" % (s(sV), s(sV), s(sX), s(sX), s(sV)))
            Q("s_lshl_b32 %s, %s, 10\ns_add_u32 %s, %s, %s" % (s(sX), s(sX), s(sX), s(sX), s(sG)))
        else:
            Q("s_add_u32 %s, %s, 0x%x\ns_cmp_eq_u32 %s, 0x%x" % (s(sX), s(sX), (L.X2 - XIN) & 0xffffffff, s(sG), L.B2F) +
              "\ns_cselect_b32 s8, 0xffff, 0")
            Q("s_mov_b32 s9, 0\nv_bfe_u32 %s, v0, 4, 1" % v(t[0]))
            Q("v_lshrrev_b32 %s, 4, %s\nv_lshl_add_u32 %s, %s, 2, %s" % (v(vI), v(vF), v(vI), v(t[0]), v(vI)))
            Q("s_lshl_b32 %s, %s, 9\ns_add_u32 %s, %s, %s" % (s(sV), s(sP), s(sHA), s(sHA), s(sV)))
            Q("s_add_u32 %s, %s, 0x%x" % (s(sHA), s(sHA), L.SSQ2))
            Q("v_min_u32 %s, 0x370, %s\nv_lshlrev_b32 %s, 3, %s" % (v(vF), v(vrA), v(vF), v(vF)))
            Q("s_mul_i32 %s, %s, %d\ns_add_u32 %s, %s, 0x%x" % (s(sPl), s(sWv), 56 * 128, s(sPl), s(sPl), L.WFLAGS))

        def quarter(kap):
            return [acc2(2 * (kap >> 1) + (g >> 1), 2 * (kap & 1) + (g & 1)) for g in range(4)] if li == 0 else [acc2(kap, g) for g in range(4)]

        def block(kts, kfs, cs):
            return [(kt, kf, c) for kt in kts for g0 in range(0, len(kfs), CH) for c in cs for kf in kfs[g0:g0 + CH]]
        A8, B6, ALL = list(range(8)), list(range(8, 14)), list(range(4))
        seq = block(ALL, A8, ALL)
        if li == 0:
            seq += block([0, 1], B6, ALL) + block([2, 3], B6, [0, 1]) + block([2, 3], B6, [2, 3])
            wr = {176 + 6 + 2 * n: (n >> 2, n & 3) for n in range(8)}
        else:
            seq += block(ALL, B6, ALL)
            wr = {152 + 24 * (n >> 2) + 6 + 2 * (n & 3): (n >> 2, n & 3) for n in range(8)}
        wr.update({200 + 5 + n: (2, n) for n in range(4)})
        seen, nld = set(), PD
        RB = o.get("RB", 213)
        for m, (kt, kf, c) in enumerate(seq):
            d = acc2(kt, c)
            first = d not in seen and d not in own
            seen.add(d)
            k("%s %s, %s, %s, %s" % (MF, v(d, 4), a(16 * kf + 4 * c, 4), v(slot[(kt, kf)], 4), "0" if first else v(d, 4)))
            if m == 0:
                self.st("h0")
            if m in (32, 64, 96, 128, 160, 192, 212):
                self.st("g_%d" % m)
            if m % 4 == 1 and nld < 56:
                if nld == 32:
                    self.st("preB")
                    self.poll_check(vF, sPl)
                    self.st("pollB")
                h_load(nld)
                nld += 1
            elif m == 4 * o.get("PB", 10) + 3:
                self.poll_issue(vF, sPl)
            elif m % 4 == 3 and nld > 33 and late:
                k(late.pop(0))
            if li == 0 and m == 4 * (56 - PD) + 5:
                assert nld == 56 and not late
                self.poll_issue(vF, sPl)
            if m in wr:
                kap, g = wr[m]
                assert not late
                k("ds_write_b128 %s, %s offset:%d" % (v(vRW), v(quarter(kap)[g], 4), kap * 4096 + g * 1024))
            if m == RB:
                k("s_waitcnt lgkmcnt(0)")
                k("s_barrier")
            if RB <= m < RB + 6:
                for n in (2 * (m - RB), 2 * (m - RB) + 1):
                    k("ds_read_b128 %s, %s offset:%d" % (v(XB + 4 * n, 4), v(vRd[n >> 2]), (n & 3) * 1024))
        self.st("gemm2")
        for n in range(8):
            k("v_pk_add_f32 %s, %s, %s" % (v(XB + 2 * n, 2), v(XB + 2 * n, 2), v(XB + 16 + 2 * n, 2)))
        for n in range(8):
            k("v_pk_add_f32 %s, %s, %s" % (v(XB + 2 * n, 2), v(XB + 2 * n, 2), v(XB + 32 + 2 * n, 2)))
        for n in range(8):
            d = v(own[n >> 1] + 2 * (n & 1), 2)
            k("v_pk_add_f32 %s, %s, %s" % (d, d, v(XB + 2 * n, 2)))
        if li == 0:
            for r in range(4):
                for tt in range(2):
                    k("v_cvt_pk_bf16_f32 %s, %s, %s" % (v(tmp + 2 * r + tt), v(own[2 * tt] + r), v(own[2 * tt + 1] + r)))
                k("s_add_u32 %s, %s, %d" % (s(sT), s(sX), r * 8192))
                k("buffer_store_dwordx2 %s, %s, %s, %s offen sc1" % (v(tmp + 2 * r, 2), v(vRes), WS, s(sT)), tag="xs")
            q = tmp + 8
            for tt in range(2):
                k("v_cndmask_b32 %s, %s, 0, s[8:9]" % (v(own[2 * tt + 1]), v(own[2 * tt + 1])))
            for tt in range(2):
                k("v_pk_mul_f32 %s, %s, %s" % (v(q + 2 * tt, 2), v(own[2 * tt], 2), v(own[2 * tt], 2)))
            for h in (2, 4, 6):
                for tt in range(2):
                    k("v_pk_fma_f32 %s, %s, %s, %s" % (v(q + 2 * tt, 2), v(own[2 * tt] + h, 2), v(own[2 * tt] + h, 2), v(q + 2 * tt, 2)))
            k("v_add_f32 %s, %s, %s" % (v(q), v(q), v(q + 1)))
            k("v_add_f32 %s, %s, %s" % (v(q + 2), v(q + 2), v(q + 3)))
            k("v_permlane16_swap_b32 %s, %s" % (v(q), v(q + 2)))
            k("v_add_f32 %s, %s, %s" % (v(q), v(q), v(q + 2)))
            k("v_mov_b32 %s, %s" % (v(q + 1), v(q)))
            k("v_permlane32_swap_b32 %s, %s" % (v(q), v(q + 1)))
            k("v_add_f32 %s, %s, %s" % (v(q), v(q), v(q + 1)))
            k("s_mov_b32 exec_hi, 0")
            k("buffer_atomic_add_f32 %s, %s, %s, %s offen" % (v(q), v(vI), WS, s(sHA)), tag="xs")
            k("s_mov_b32 exec_hi, -1")
            self.poll_check(vF, sPl)
        else:
            for e in range(2):
                for i in range(4):
                    k("v_cvt_pk_bf16_f32 %s, %s, %s" % (v(tmp + 4 * e + i), v(own[0] + 8 * e + 2 * i), v(own[0] + 8 * e + 2 * i + 1)))
                k("buffer_store_dwordx4 %s, %s, s[44:47], %s offen offset:%d" % (v(tmp + 4 * e, 4), v(vO), s(sX), 16 * e))
        self.st("epi")

    def build(self):
        k, o = self.k, self.o
        k.entry(self.name)
        self.layer = 0
        self.col_alloc()
        r = self.c
        k("s_cmp_ge_u32 s2, 256")
        k("s_cbranch_scc1 MAIN_END")
        self.deferred = k_pre.emit(self)
        self.st("p_out")
        k("s_add_u32 %s, %s, 1" % (s(sE), s(sE)))
        k("v_mov_b32 %s, %s" % (v(vV), s(sE)))
        self.col_addr()
        k("s_mov_b32 s42, 0x400")
        k("s_mov_b32 s43, 0x20000")
        k("s_mov_b32 s46, 0x200000")
        k("s_mov_b32 s47, 0x20000")
        k("s_lshl_b32 %s, s2, 13" % s(sQ))
        k("s_mul_i32 %s, %s, 12288" % (s(sRB), s(sWv)))
        k("s_add_u32 %s, %s, %d" % (s(sRB), s(sRB), PRIV))
        if o.get("map", 1):
            k("s_and_b32 %s, s2, 6" % s(sP))
            k("s_lshl_b32 %s, %s, 1" % (s(sP), s(sP)))
            k("s_lshr_b32 %s, s2, 6" % s(sT))
            k("s_add_u32 %s, %s, %s" % (s(sP), s(sP), s(sT)))
            k("s_bfe_u32 %s, s2, 0x30003" % s(sI))
            k("s_and_b32 %s, s2, 1" % s(sCt))
            k("s_lshl_b32 %s, %s, 3" % (s(sT), s(sCt)))
            k("s_add_u32 %s, %s, %s" % (s(sI), s(sI), s(sT)))
            k("s_bfe_u32 %s, s2, 0x10005" % s(sPhi))
            k("s_lshl_b32 %s, %s, 2" % (s(sCt), s(sCt)))
            k("s_bfe_u32 %s, s2, 0x20003" % s(sT))
            k("s_add_u32 %s, %s, %s" % (s(sCt), s(sCt), s(sT)))
        else:
            k("s_and_b32 %s, s2, 7" % s(sP))
            k("s_lshl_b32 %s, %s, 1" % (s(sP), s(sP)))
            k("s_lshr_b32 %s, s2, 7" % s(sT))
            k("s_add_u32 %s, %s, %s" % (s(sP), s(sP), s(sT)))
            k("s_bfe_u32 %s, s2, 0x40003" % s(sI))
            k("s_lshr_b32 %s, %s, 3" % (s(sPhi), s(sI)))
            k("s_and_b32 %s, %s, 7" % (s(sCt), s(sI)))
        k("s_lshl_b32 s38, %s, 12" % s(sWv))
        k("s_mul_i32 %s, %s, 114688" % (s(sW1), s(sI)))
        k("s_add_u32 %s, %s, s38" % (s(sW1), s(sW1)))
        k("s_add_u32 %s, %s, 0x%x" % (s(sW1), s(sW1), L.W1F))
        k("s_mul_i32 s39, %s, 229376" % s(sCt))
        k("s_mul_i32 %s, %s, 57344" % (s(sV), s(sWv)))
        k("s_add_u32 s39, s39, %s" % s(sV))
        k("s_and_b32 %s, %s, 1" % (s(sV), s(sWv)))
        k("s_xor_b32 %s, %s, 1" % (s(sV), s(sV)))
        k("s_lshl_b32 %s, %s, 11" % (s(sV), s(sV)))
        k("s_add_u32 %s, s39, %s" % (s(sW2), s(sV)))
        k("s_add_u32 %s, %s, 0x%x" % (s(sW2), s(sW2), L.W2F))
        self.queue += [(self.setup(38, (j >> 2) * 16384, sU, sW1, (j >> 2) * 16384) if j & 3 == 0 else None,
                        self.dma(vrA, sU, (j & 3) * 1024, "w1")) for j in range(28)] + self.w2_ops()
        consts = self.col_consts()
        np_, n0 = o.get("CP", 90), o.get("C0", 170)
        for txt in consts[:np_]:
            k(txt)
        k("s_waitcnt vmcnt(0)")
        self.publish_wg(sRec)
        self.st("p_pub")
        for txt in consts[np_:n0]:
            k(txt)
        vF1, vF2 = r.XF, 5
        k("v_and_b32 %s, 15, v0" % v(vF1))
        k("v_and_b32 %s, 16, v0" % v(vF2))
        k("v_lshl_add_u32 %s, %s, 2, %s" % (v(vF1), v(vF2), v(vF1)))
        k("v_lshl_add_u32 %s, %s, 4, %s" % (v(vF1), v(r.t[0]), v(vF1)))
        k("v_lshlrev_b32 %s, 7, %s" % (v(vF1), v(vF1)))
        k("v_and_b32 %s, 31, v0" % v(vF2))
        k("v_lshl_add_u32 %s, %s, 5, %s" % (v(vF2), v(r.t[0]), v(vF2)))
        k("v_lshlrev_b32 %s, 7, %s" % (v(vF2), v(vF2)))
        k("s_mov_b32 %s, 0x%x" % (s(sG), L.PFLAGS))
        self.poll_issue(vF1, sG)
        for txt in consts[n0:]:
            k(txt)
        self.st("c_const")
        self.poll_check(vF1, sG, sleep=o.get("SL0", 0))
        self.st("p_go")
        self.col_load_x()
        self.col_load_w()
        k("s_add_u32 %s, %s, %d" % (s(sG), s(sG), 128 * 128))
        chk = lambda: self.poll_check(vF2, sG)
        if o.get("W2B", 1):
            self.col_compute(self.col_unpack_w(), None, chk, lambda: self.poll_issue(vF2, sG))
        else:
            self.poll_issue(vF2, sG)
            self.col_compute(self.col_unpack_w(), chk)
        self.mlp()

        self.layer = 1
        self.st("l2")
        self.col_addr()
        self.col_load_w()
        if o.get("cp2", 1):
            k("s_getpc_b64 s[8:9]")
            k.raw("L2_PC:")
            k("s_mov_b32 s10, CODE_END-L2_PC")
            k("s_mov_b32 s11, 0x20000")
            k("v_lshlrev_b32 %s, 7, v0" % v(r.XF))
            k("s_cmp_ge_u32 s2, %d" % o.get("cp2w", 16))
            k("s_cbranch_scc1 NO_CP2")
            k("buffer_load_dword v5, %s, s[8:11], 0 offen" % v(r.XF))
            k.label("NO_CP2")
        k("s_add_u32 %s, s39, 0x%x" % (s(sW2), L.W2T))
        self.queue += self.w2_ops()
        consts = self.col_consts() + self.col_unpack_w()
        n1, n7 = o.get("C1", 120), o.get("N7", 8)
        for j, txt in enumerate(consts[:n1]):
            k(txt)
            if j % 14 == 8 and j // 14 < n7:
                self.side()
        k("s_lshl_b32 %s, %s, 4" % (s(sV), s(sP)))
        k("s_add_u32 %s, %s, %s" % (s(sV), s(sV), s(sI)))
        k("s_lshl_b32 %s, %s, 7" % (s(sV), s(sV)))
        k("s_add_u32 %s, %s, 0x%x" % (s(sV), s(sV), L.GFLAGS + 131072))
        k.wait_tag("xs")
        self.publish_wg(sV)
        self.st("s2_pub")
        rest, n4 = consts[n1:], o.get("N4", 14)
        per = -(-len(rest) // max(1, n4))
        for j in range(n4):
            self.side()
            for txt in rest[:per]:
                k(txt)
            del rest[:per]
        for txt in rest:
            k(txt)
        if o.get("S2D"):
            k("s_sleep %d" % o["S2D"])
        k("v_lshlrev_b32 %s, 7, v0" % v(r.t[1]))
        k("s_mov_b32 %s, 0x%x" % (s(sG), L.GFLAGS + 131072))
        self.st("s2_pi")
        self.poll_issue(r.t[1], sG)
        self.side(o.get("N5", 0))
        self.poll_check(r.t[1], sG)
        self.st("s2_go")
        self.col_load_x()
        self.side(o.get("N6", 8))
        self.col_compute([])
        self.mlp()
        self.st("end", final=True)
        k.label("MAIN_END")
        k("s_endpgm")
        return k


def build(name, stamp=None, opts=None):
    return Main(name, stamp, opts).build()
```

```python
import math
from asmlib import Alloc, v, a, s, fbits
import layout as L

MF = "v_mfma_f32_16x16x32_bf16"
WS = "s[4:7]"
IN, IN2 = 8, 12
PITCH = 1088
IMG = 40960
vrA = 1
sWv, sE, sRec = 3, 48, 49
ST = "buffer_store_dwordx4 %s, %s, " + WS + ", %s offen offset:%d sc1"


def split14(k, sS, sU, sT):
    k("s_mul_i32 %s, %s, 4682" % (s(sS), s(sT)))
    k("s_lshr_b32 %s, %s, 16" % (s(sS), s(sS)))
    k("s_mul_i32 %s, %s, 14" % (s(sU), s(sS)))
    k("s_sub_u32 %s, %s, %s" % (s(sU), s(sT), s(sU)))


def emit(M):
    k, st = M.k, M.st
    va = Alloc(6, 256)
    vn, vg, vfn, vfg4 = va(), va(), va(), va()
    t = [va() for _ in range(8)]
    A = va(32, 4)
    D = va(64, 4)
    RAW = D
    B1re, B1im, A2re, A2im, S2re, S2im, TC, TS = (va(4, 4) for _ in range(8))
    tmp = va(16, 4)
    O = va(32, 4)
    BS = va(32, 4)
    sM0, sM8, sDC, sT, sA, sB, sC, sLds, sSelLo, sSelHi = 32, 34, 36, 37, 38, 39, 42, 43, 46, 47
    sS, sU, sG, sRole = 16, 17, 18, 19

    k("s_load_dwordx16 s[16:31], s[0:1], 0")
    k("s_load_dwordx2 s[4:5], s[0:1], 80")
    k("s_load_dwordx2 s[44:45], s[0:1], 64")
    if M.o.get("cpf", 1):
        k("s_getpc_b64 s[12:13]")
        k.raw("PRE_PC:")
        k("s_sub_u32 s12, s12, PRE_PC-%s" % M.name)
        k("s_subb_u32 s13, s13, 0")
        k("s_mov_b32 s14, CODE_END-%s" % M.name)
        k("s_mov_b32 s15, 0x20000")
        k("v_lshlrev_b32 %s, 7, v0" % v(t[0]))
        k("s_bfe_u32 %s, s2, 0x10003" % s(sC))
        k("s_lshl_b32 %s, %s, 15" % (s(sC), s(sC)))
        k("s_cmp_lt_u32 s2, %d" % M.o.get("cpw", 240))
        k("s_cbranch_scc1 PRE_NOPF")
        k("buffer_load_dword v2, %s, s[12:15], %s offen" % (v(t[0]), s(sC)))
        k.label("PRE_NOPF")
    st("start")
    k("v_lshrrev_b32 %s, 6, v0" % v(t[0]))
    k("v_and_b32 %s, 63, v0" % v(vrA))
    k("v_readfirstlane_b32 %s, %s" % (s(sWv), v(t[0])))
    k("v_and_b32 %s, 15, v0" % v(vn))
    k("v_lshrrev_b32 %s, 4, %s" % (v(vg), v(vrA)))
    k("v_lshlrev_b32 %s, 4, %s" % (v(vrA), v(vrA)))
    k("s_mov_b32 s6, 0x%x" % L.WS_USED)
    k("s_mov_b32 s7, 0x20000")
    k("s_mov_b32 %s, 0x20000" % s(IN + 3))
    k("s_mov_b32 %s, 0x05040100" % s(sSelLo))
    k("s_mov_b32 %s, 0x07060302" % s(sSelHi))
    k("s_mov_b32 %s, 0x00010001" % s(sM0))
    k("s_mov_b32 %s, 0x00010001" % s(sM0 + 1))
    k("s_mov_b32 %s, 0xff00ff00" % s(sM8))
    k("s_mov_b32 %s, 0xff00ff00" % s(sM8 + 1))
    k("s_mov_b32 %s, %s" % (s(sDC), fbits(1 / (16 * math.sqrt(2)))))
    k("v_cvt_f32_u32 %s, %s" % (v(vfn), v(vn)))
    k("v_lshlrev_b32 %s, 2, %s" % (v(t[1]), v(vg)))
    k("v_cvt_f32_u32 %s, %s" % (v(vfg4), v(t[1])))
    k("s_mov_b32 %s, s2" % s(sRec))
    k("s_mul_i32 %s, %s, %d" % (s(sLds), s(sWv), 8 * PITCH))
    k("s_mov_b32 %s, 0x%x" % (s(sC), L.EPOCH))
    k("s_mov_b64 s[40:41], s[30:31]")
    k("s_buffer_load_dword %s, %s, %s" % (s(sE), WS, s(sC)))
    k("s_cmp_ge_u32 s2, 240")
    k("s_cbranch_scc1 PRE_MISC")
    k("s_cmp_ge_u32 s2, 184")
    k("s_cbranch_scc1 PRE_IN_W2")
    k("s_cmp_ge_u32 s2, 128")
    k("s_cbranch_scc1 PRE_IN_W1")
    k("s_cmp_ge_u32 s2, 64")
    k("s_cbranch_scc1 PRE_FILT")

    nwarm = [0]

    def warm(q, sx):
        nwarm[0] += 1
        k("s_lshl_b32 %s, %s, 7" % (s(sRec), s(sRec)))
        k("s_add_u32 %s, %s, 0x%x" % (s(sRec), s(sRec), L.PFLAGS))
        k("v_lshrrev_b32 v4, 2, %s" % v(vrA))
        if M.o.get("tlb"):
            k("v_lshlrev_b32 %s, %d, v0" % (v(q), M.o["tlb"]))
            k("buffer_load_dword v5, %s, %s, 0 offen" % (v(q), WS))
        if M.o.get("DG_0", 0):
            for i in range(4):
                k("v_mov_b32 %s, -1" % v(q + i))
            k("s_lshl_b32 %s, s2, 2" % s(sx))
            k("s_add_u32 %s, %s, %s" % (s(sx), s(sx), s(sWv)))
            k("s_lshl_b32 %s, %s, 11" % (s(sx), s(sx)))
            k("s_add_u32 %s, %s, 0x%x" % (s(sx), s(sx), L.X1))
            for b in range(2):
                k(ST % (v(q, 4), v(vrA), s(sx), 1024 * b), tag="p0")
            nwarm[0] += 1
            k("s_cmp_lg_u32 %s, 0" % s(sWv))
            k("s_cbranch_scc1 PRE_WARM%d" % nwarm[0])
            k("v_mov_b32 v3, %s" % s(sE))
            k("s_mov_b32 exec_hi, 0")
            k("buffer_store_dword v3, v4, %s, %s offen sc1" % (WS, s(sRec)), tag="p0")
            k("s_mov_b32 exec_hi, -1")
            k.label("PRE_WARM%d" % nwarm[0])
            return
        k("s_lshl_b32 %s, %s, 8" % (s(sx), s(sWv)))
        k("s_add_u32 %s, %s, s2" % (s(sx), s(sx)))
        k("s_lshl_b32 %s, %s, 7" % (s(sx), s(sx)))
        k("s_add_u32 %s, %s, 0x%x" % (s(sx), s(sx), L.GFLAGS))
        k("v_mov_b32 v3, %s" % s(sE))
        k("s_mov_b32 exec_hi, 0")
        k("buffer_store_dword v3, v4, %s, %s offen sc1" % (WS, s(sx)), tag="p0")
        k("s_cmp_eq_u32 %s, 0" % s(sWv))
        k("s_cselect_b32 %s, %s, %s" % (s(sx), s(sRec), s(sx)))
        k("buffer_store_dword v3, v4, %s, %s offen sc1" % (WS, s(sx)), tag="p0")
        k("s_mov_b32 exec_hi, -1")

    def dma_rows(soff_of_row):
        for j in range(8):
            k("s_add_u32 m0, %s, %d" % (s(sLds), j * PITCH))
            soff_of_row(j)
            k("buffer_load_dwordx4 %s, %s, %s offen lds" % (v(vrA), s(IN, 4), s(sC)), tag="in")

    k("s_mov_b32 %s, 0x200000" % s(IN + 2))
    k("s_mov_b64 %s, s[16:17]" % s(IN, 2))
    k("s_lshr_b32 %s, s2, 4" % s(sA))
    k("s_lshl_b32 %s, %s, 9" % (s(sA), s(sA)))
    k("s_bfe_u32 %s, s2, 0x10003" % s(sC))
    k("s_lshl_b32 %s, %s, 4" % (s(sC), s(sC)))
    k("s_add_u32 %s, %s, %s" % (s(sA), s(sA), s(sC)))
    k("s_bfe_u32 %s, s2, 0x20001" % s(sC))
    k("s_lshl_b32 %s, %s, 7" % (s(sC), s(sC)))
    k("s_add_u32 %s, %s, %s" % (s(sA), s(sA), s(sC)))
    k("s_and_b32 %s, s2, 1" % s(sC))
    k("s_lshl_b32 %s, %s, 2" % (s(sC), s(sC)))
    k("s_add_u32 %s, %s, %s" % (s(sC), s(sC), s(sWv)))
    k("s_lshl_b32 %s, %s, 1" % (s(sC), s(sC)))
    k("s_add_u32 %s, %s, %s" % (s(sA), s(sA), s(sC)))
    k("s_lshl_b32 %s, %s, 10" % (s(sA), s(sA)))
    dma_rows(lambda j: k("s_add_u32 %s, %s, %d" % (s(sC), s(sA), (32 * (j & 3) + (j >> 2)) * 1024)))
    k("s_mov_b32 %s, 0" % s(sRole))
    k("s_branch PRE_CONST")

    k.label("PRE_IN_W2")
    k("s_mov_b32 %s, 0x1c0000" % s(IN + 2))
    k("s_mov_b64 %s, s[28:29]" % s(IN, 2))
    k("s_sub_u32 %s, s2, 184" % s(sT))
    k("s_lshl_b32 %s, %s, 2" % (s(sT), s(sT)))
    k("s_add_u32 %s, %s, %s" % (s(sT), s(sT), s(sWv)))
    split14(k, sS, sU, sT)
    k("s_lshr_b32 %s, %s, 2" % (s(sG), s(sU)))
    k("s_mul_i32 %s, %s, 112" % (s(sA), s(sS)))
    k("s_lshl_b32 %s, %s, 5" % (s(sC), s(sG)))
    k("s_add_u32 %s, %s, %s" % (s(sA), s(sA), s(sC)))
    k("s_and_b32 %s, %s, 3" % (s(sC), s(sU)))
    k("s_cmp_eq_u32 %s, 3" % s(sG))
    k("s_cselect_b32 %s, 3, 2" % s(sB))
    k("s_cselect_b32 %s, 4, 16" % s(sRole))
    k("s_lshl_b32 %s, %s, %s" % (s(sC), s(sC), s(sB)))
    k("s_add_u32 %s, %s, %s" % (s(sA), s(sA), s(sC)))
    k("s_add_u32 %s, %s, %s" % (s(sB), s(sA), s(sRole)))
    k("s_lshl_b32 %s, %s, 10" % (s(sA), s(sA)))
    k("s_lshl_b32 %s, %s, 10" % (s(sB), s(sB)))
    w2_in = lambda: dma_rows(lambda j: k("s_add_u32 %s, %s, %d" % (s(sC), s(sB if j >= 4 else sA), (j & 3) * 1024)))
    late = M.o.get("wl", 3)
    if not late & 1:
        w2_in()
    k("s_mov_b32 %s, 1" % s(sRole))
    k("s_branch PRE_CONST")

    k.label("PRE_MISC")
    k("s_lshl_b32 %s, s2, 2" % s(sC))
    k("s_add_u32 %s, %s, %s" % (s(sC), s(sC), s(sWv)))
    k("s_cmp_eq_u32 %s, 960" % s(sC))
    k("s_cbranch_scc1 PRE_IN_B2")
    warm(BS, sC)
    k("s_cmp_lg_u32 s2, 240")
    k("s_cbranch_scc1 PRE_FT")
    k("s_cmp_eq_u32 %s, 1" % s(sWv))
    k("s_cbranch_scc1 PRE_B1")
    k("s_cmp_eq_u32 %s, 2" % s(sWv))
    k("s_cbranch_scc1 PRE_ZERO")
    k("s_branch PRE_FT")
    k.label("PRE_IN_B2")
    k("s_mov_b32 %s, 0x400" % s(IN + 2))
    k("s_mov_b64 %s, s[30:31]" % s(IN, 2))
    dma_rows(lambda j: k("s_mov_b32 %s, %d" % (s(sC), j * 1024)))
    k("s_mov_b32 %s, 3" % s(sRole))
    k("s_branch PRE_CONST")
    k.label("PRE_B1")
    k("s_mov_b32 %s, 3584" % s(IN + 2))
    k("s_mov_b64 %s, s[26:27]" % s(IN, 2))
    k("v_lshrrev_b32 %s, 1, %s" % (v(t[1]), v(vrA)))
    for j in range(7):
        k("buffer_load_dwordx2 %s, %s, %s, 0 offen offset:%d" % (v(RAW + 2 * j, 2), v(t[1]), s(IN, 4), j * 512))
    for j in range(7):
        for h in range(2):
            k("v_lshlrev_b32 %s, 16, %s" % (v(O + 4 * j + 2 * h), v(RAW + 2 * j + h)))
            k("v_and_b32 %s, 0xffff0000, %s" % (v(O + 4 * j + 2 * h + 1), v(RAW + 2 * j + h)))
        k("s_mov_b32 %s, 0x%x" % (s(sC), L.B1X + j * 1024))
        k(ST % (v(O + 4 * j, 4), v(vrA), s(sC), 0), tag="p0")
    k("s_branch PRE_FT")
    k.label("PRE_ZERO")
    for i in range(4):
        k("v_mov_b32 %s, 0" % v(O + i))
    for j in range(8):
        k("s_mov_b32 %s, 0x%x" % (s(sC), L.SSQ2 + j * 1024))
        k(ST % (v(O, 4), v(vrA), s(sC), 0), tag="p0")
    k.label("PRE_FT")
    k("s_sub_u32 %s, s2, 240" % s(sT))
    k("s_lshl_b32 %s, %s, 2" % (s(sT), s(sT)))
    k("s_add_u32 %s, %s, %s" % (s(sT), s(sT), s(sWv)))
    k("s_lshr_b32 %s, %s, 3" % (s(sA), s(sT)))
    k("s_lshl_b32 %s, %s, 6" % (s(sA), s(sA)))
    k("s_and_b32 %s, %s, 7" % (s(sB), s(sT)))
    k("s_lshl_b32 %s, %s, 1" % (s(sB), s(sB)))
    k("s_lshl_b32 %s, %s, 13" % (s(sC), s(sT)))
    k("s_add_u32 %s, %s, 0x%x" % (s(sC), s(sC), L.FT))
    k("v_and_b32 %s, 12, %s" % (v(t[5]), v(vn)))
    k("v_and_b32 %s, 3, %s" % (v(t[4]), v(vn)))
    k("v_lshl_add_u32 %s, %s, 2, %s" % (v(t[4]), v(t[5]), v(t[4])))
    k("v_add_u32 %s, %s, %s" % (v(t[4]), s(sA), v(t[4])))
    k("s_mov_b32 s12, 0")
    k("s_mov_b32 s13, -1")
    k("v_mov_b32 %s, %s" % (v(t[6]), fbits(1 / 16)))
    k("v_mov_b32 %s, %s" % (v(t[7]), fbits(1 / (16 * math.sqrt(2)))))
    k("s_mov_b32 %s, 0" % s(sT))
    k.label("PRE_FT_LOOP")
    for i in range(4):
        kk = tmp + i
        k("v_lshl_add_u32 %s, %s, 7, %s" % (v(kk), v(vg), s(sB)))
        k("v_add_u32 %s, %d, %s" % (v(kk), 32 * i, v(kk)))
        k("v_sub_u32 %s, 512, %s" % (v(t[5]), v(kk)))
        k("v_add_u32 %s, %d, %s" % (v(t[1]), -240, v(kk)))
        k("s_cmp_eq_u32 %s, 0" % s(sB))
        k("s_cselect_b64 vcc, -1, 0")
        k("v_cndmask_b32 %s, %s, %s, vcc" % (v(t[5]), v(t[5]), v(t[1])))
        k("v_cndmask_b32 %s, %s, %s, s[12:13]" % (v(kk), v(kk), v(t[5])))
    k("v_cmp_eq_u32 vcc, 0, %s" % v(tmp))
    k("v_mov_b32 %s, 256" % v(t[5]))
    k("v_cndmask_b32 %s, %s, %s, vcc" % (v(tmp), v(tmp), v(t[5])))
    k("v_cndmask_b32 %s, %s, %s, vcc" % (v(t[5]), v(t[6]), v(t[7])))
    for c in range(4):
        k("v_add_u32 %s, %d, %s" % (v(t[1]), 4 * c, v(t[4])))
        for i in range(4):
            an, cs, sn = tmp + 4 + i, tmp + 8 + i, tmp + 12 + i
            k("v_mul_u32_u24 %s, %s, %s" % (v(an), v(tmp + i), v(t[1])))
            k("v_and_b32 %s, 511, %s" % (v(an), v(an)))
            k("v_cvt_f32_u32 %s, %s" % (v(an), v(an)))
            k("v_mul_f32 %s, %s, %s" % (v(an), fbits(1 / 512), v(an)))
            k("v_cos_f32 %s, %s" % (v(cs), v(an)))
            k("v_sin_f32 %s, %s" % (v(sn), v(an)))
        for i in range(4):
            cs, sn = tmp + 8 + i, tmp + 12 + i
            k("v_mul_f32 %s, %s, %s" % (v(cs), v(t[5] if i == 0 else t[6]), v(cs)))
            k("v_mul_f32 %s, %s, %s" % (v(sn), fbits(-1 / 16), v(sn)))
            if i == 0:
                k("v_cndmask_b32 %s, %s, %s, vcc" % (v(sn), v(sn), v(t[7])))
            k("v_cvt_pk_bf16_f32 %s, %s, %s" % (v(A + 4 * c + i), v(cs), v(sn)))
        k(ST % (v(A + 4 * c, 4), v(vrA), s(sC), c * 1024), tag="p0")
    k("s_add_u32 %s, %s, 4096" % (s(sC), s(sC)))
    k("s_add_u32 %s, %s, 1" % (s(sB), s(sB)))
    k("s_add_u32 %s, %s, 1" % (s(sT), s(sT)))
    k("s_cmp_lt_u32 %s, 2" % s(sT))
    k("s_cbranch_scc1 PRE_FT_LOOP")
    k("s_branch PRE_DONE")

    k.label("PRE_FILT")
    k("s_mov_b32 %s, %d" % (s(IN + 2), 2048 * 514))
    k("s_mov_b32 %s, %d" % (s(IN2 + 2), 2048 * 514))
    k("s_mov_b32 %s, 0x20000" % s(IN2 + 3))
    k("s_mov_b64 %s, s[18:19]" % s(IN, 2))
    k("s_mov_b64 %s, s[20:21]" % s(IN2, 2))
    sCb, sRb = sS, sU
    k("s_and_b32 %s, s2, 7" % s(sRb))
    k("s_lshl_b32 %s, %s, 2" % (s(sRb), s(sRb)))
    k("s_bfe_u32 %s, s2, 0x20004" % s(sC))
    k("s_add_u32 %s, %s, %s" % (s(sRb), s(sRb), s(sC)))
    k("s_bfe_u32 %s, s2, 0x10003" % s(sC))
    k("s_lshl_b32 %s, %s, 1" % (s(sRec), s(sRb)))
    k("s_add_u32 %s, %s, %s" % (s(sRec), s(sRec), s(sC)))
    k("s_add_u32 %s, %s, 64" % (s(sRec), s(sRec)))
    k("s_lshl_b32 %s, %s, 2" % (s(sCb), s(sC)))
    k("s_add_u32 %s, %s, %s" % (s(sCb), s(sCb), s(sWv)))
    k("s_lshr_b32 %s, %s, 3" % (s(sA), s(sRb)))
    k("s_lshl_b32 %s, %s, 4" % (s(sA), s(sA)))
    k("s_and_b32 %s, %s, 7" % (s(sC), s(sRb)))
    k("s_lshl_b32 %s, %s, 8" % (s(sC), s(sC)))
    k("s_add_u32 %s, %s, %s" % (s(sA), s(sA), s(sC)))
    k("s_mul_i32 %s, %s, 514" % (s(sA), s(sA)))
    k("s_lshl_b32 %s, %s, 6" % (s(sC), s(sCb)))
    k("s_add_u32 %s, %s, %s" % (s(sA), s(sA), s(sC)))
    k("v_bfe_u32 %s, v0, 2, 4" % v(t[1]))
    k("v_mul_u32_u24 %s, 514, %s" % (v(t[0]), v(t[1])))
    k("v_and_b32 %s, 48, %s" % (v(t[2]), v(vrA)))
    k("v_add_u32 %s, %s, %s" % (v(t[0]), v(t[2]), v(t[0])))
    for r in range(4):
        k("s_add_u32 %s, %s, %d" % (s(sC), s(sA), r * 64 * 514 + 2))
        k("buffer_load_dwordx4 %s, %s, %s, %s offen" % (v(A + 8 * r, 4), v(t[0]), s(IN, 4), s(sC)))
        k("buffer_load_dwordx4 %s, %s, %s, %s offen" % (v(A + 8 * r + 4, 4), v(t[0]), s(IN2, 4), s(sC)))
    k("v_mul_u32_u24 %s, 17, %s" % (v(t[2]), v(t[2])))
    k("v_lshl_add_u32 %s, %s, 4, %s" % (v(t[2]), v(t[1]), v(t[2])))
    k("v_add_u32 %s, %s, %s" % (v(t[2]), s(sLds), v(t[2])))
    k("v_lshl_add_u32 %s, %s, 4, %s" % (v(t[3]), v(vg), v(vrA)))
    k("v_add_u32 %s, %s, %s" % (v(t[3]), s(sLds), v(t[3])))
    q0, qs, q7 = t[4], t[5], t[6]
    k("s_lshl_b32 %s, %s, 4" % (s(sA), s(sCb)))
    k("s_add_u32 %s, %s, 1" % (s(sB), s(sA)))
    k("v_lshl_add_u32 %s, %s, 3, %s" % (v(q0), v(vg), s(sB)))
    k("s_sub_u32 %s, 271, %s" % (s(sB), s(sA)))
    k("v_lshlrev_b32 %s, 3, %s" % (v(t[7]), v(vg)))
    k("v_sub_u32 %s, %s, %s" % (v(t[7]), s(sB), v(t[7])))
    k("s_mov_b32 vcc_lo, 0")
    k("s_mov_b32 vcc_hi, -1")
    k("v_cndmask_b32 %s, %s, %s, vcc" % (v(q0), v(q0), v(t[7])))
    k("v_cndmask_b32 %s, 1, -1, vcc" % v(qs))
    k("s_add_u32 %s, %s, 128" % (s(sB), s(sA)))
    k("s_add_u32 %s, %s, 16" % (s(sC), s(sA)))
    k("s_and_b32 %s, %s, 127" % (s(sC), s(sC)))
    k("v_mov_b32 %s, %s" % (v(q7), s(sB)))
    k("v_mov_b32 %s, %s" % (v(t[7]), s(sC)))
    k("v_cndmask_b32 %s, %s, %s, vcc" % (v(q7), v(q7), v(t[7])))
    k("v_mad_i32_i24 %s, %s, 7, %s" % (v(t[7]), v(qs), v(q0)))
    k("s_mov_b32 vcc_lo, 0xffff0000")
    k("s_mov_b32 vcc_hi, 0xffff0000")
    k("v_cndmask_b32 %s, %s, %s, vcc" % (v(q7), v(t[7]), v(q7)))
    k("v_lshlrev_b32 %s, 4, %s" % (v(t[7]), v(vn)))
    k("v_lshl_add_u32 %s, %s, 13, %s" % (v(q0), v(q0), v(t[7])))
    k("v_lshl_add_u32 %s, %s, 13, %s" % (v(q7), v(q7), v(t[7])))
    k("v_lshlrev_b32 %s, 13, %s" % (v(qs), v(qs)))
    k("s_lshl_b32 %s, %s, 8" % (s(sC), s(sRb)))
    k("s_add_u32 %s, %s, 0x%x" % (s(sC), s(sC), L.WT))
    warm(BS, sB)
    for j in range(8):
        k("ds_write_b128 %s, %s offset:%d" % (v(t[2]), v(A + 4 * j, 4), j * PITCH))
    for j in range(8):
        k("ds_read_b128 %s, %s offset:%d" % (v(RAW + 4 * j, 4), v(t[3]), j * PITCH))
    for e in range(8):
        for r in range(4):
            k("v_perm_b32 %s, %s, %s, %s" % (v(O + 4 * e + r), v(RAW + 8 * r + 4 + (e >> 1)), v(RAW + 8 * r + (e >> 1)),
                                            s(sSelHi if e & 1 else sSelLo)))
        k(ST % (v(O + 4 * e, 4), v(q7 if e == 7 else q0), s(sC), 0), tag="p0")
        if e < 6:
            k("v_add_u32 %s, %s, %s" % (v(q0), v(q0), v(qs)))
    k("s_branch PRE_DONE")

    k.label("PRE_IN_W1")
    k("s_mov_b32 %s, 0x1c0000" % s(IN + 2))
    k("s_mov_b64 %s, s[24:25]" % s(IN, 2))
    k("s_and_b32 %s, s2, 7" % s(sT))
    k("s_mul_i32 %s, %s, 7" % (s(sT), s(sT)))
    k("s_bfe_u32 %s, s2, 0x30003" % s(sC))
    k("s_add_u32 %s, %s, %s" % (s(sT), s(sT), s(sC)))
    k("s_mul_i32 %s, %s, %d" % (s(sA), s(sWv), 128 * 3584))
    k("s_lshl_b32 %s, %s, 6" % (s(sC), s(sT)))
    k("s_add_u32 %s, %s, %s" % (s(sA), s(sA), s(sC)))
    k("s_lshl_b32 %s, %s, 13" % (s(sB), s(sWv)))

    def w1_in():
        k("v_bfe_u32 %s, v0, 2, 4" % v(A))
        k("v_mul_u32_u24 %s, 3584, %s" % (v(A), v(A)))
        k("v_xor_b32 %s, v0, %s" % (v(A + 1), v(vg)) if M.o.get("swz", 1) else "v_mov_b32 %s, v0" % v(A + 1))
        k("v_and_b32 %s, 3, %s" % (v(A + 1), v(A + 1)))
        k("v_lshl_add_u32 %s, %s, 4, %s" % (v(A), v(A + 1), v(A)))
        for j in range(8):
            k("s_add_u32 m0, %s, %d" % (s(sB), j * 1024))
            k("s_add_u32 %s, %s, %d" % (s(sC), s(sA), j * 16 * 3584))
            k("buffer_load_dwordx4 %s, %s, %s offen lds" % (v(A), s(IN, 4), s(sC)), tag="in")
    if not late & 2:
        w1_in()
    k("s_lshl_b32 %s, %s, 2" % (s(sT), s(sT)))
    k("s_add_u32 %s, %s, %s" % (s(sT), s(sT), s(sWv)))
    k("s_mov_b32 %s, 0" % s(sDC))
    k("s_mov_b32 %s, 2" % s(sRole))

    k.label("PRE_CONST")
    f1, b1, f2, b2 = t[0], t[1], t[2], t[3]
    k("v_mul_f32 %s, %s, %s" % (v(f1), fbits(1 / 32), v(vfn)))
    k("v_mul_f32 %s, %s, %s" % (v(b1), v(f1), v(vfg4)))
    k("v_cndmask_b32 %s, %s, 0.5, %s" % (v(f2), v(f1), s(sM0, 2)))
    k("v_mov_b32 %s, %s" % (v(t[4]), fbits(0.25)))
    k("v_cndmask_b32 %s, %s, 0, %s" % (v(t[4]), v(t[4]), s(sM0, 2)))
    k("v_fma_f32 %s, %s, %s, %s" % (v(b2), v(f2), v(vfg4), v(t[4])))
    for jj in range(8):
        c = fbits(16 * (jj >> 2) + (jj & 3))
        k("v_fmamk_f32 %s, %s, %s, %s" % (v(tmp + jj), v(f1), c, v(b1)))
        k("v_fmamk_f32 %s, %s, %s, %s" % (v(tmp + 8 + jj), v(f2), c, v(b2)))
    for i in range(16):
        k("v_cos_f32 %s, %s" % (v(tmp + i), v(tmp + i)))
    for i in range(4):
        k("v_cvt_pk_bf16_f32 %s, %s, %s" % (v(B1re + i), v(tmp + 2 * i), v(tmp + 2 * i + 1)))
        k("v_cvt_pk_bf16_f32 %s, %s, %s" % (v(B1im + i), v(tmp + 8 + 2 * i), v(tmp + 8 + 2 * i + 1)))
    def late_loads():
        if late & 1:
            k("s_cmp_eq_u32 %s, 1" % s(sRole))
            k("s_cbranch_scc0 PRE_L1")
            w2_in()
            k.label("PRE_L1")
        if late & 2:
            k("s_cmp_eq_u32 %s, 2" % s(sRole))
            k("s_cbranch_scc0 PRE_L2")
            w1_in()
            k.label("PRE_L2")
    if M.o.get("wp", 0) == 0:
        late_loads()
    ftw, fa2, fs2, sctw, scs, vsh, vsg = t[0], t[1], t[2], t[3], t[4], t[5], t[6]
    k("v_mul_f32 %s, %s, %s" % (v(ftw), fbits(1 / 512), v(vfn)))
    k("v_mul_f32 %s, %s, %s" % (v(fa2), fbits(1 / 16), v(vfn)))
    k("v_add_f32 %s, %s, %s" % (v(fs2), fbits(-15 / 32), v(fa2)))
    k("v_cndmask_b32 %s, %s, %s, %s" % (v(fs2), v(fa2), v(fs2), s(sM8, 2)))
    k("v_cndmask_b32 %s, %s, 0.5, %s" % (v(fs2), v(fs2), s(sM0, 2)))
    k("v_mov_b32 %s, %s" % (v(scs), fbits(1 / 16)))
    k("v_cndmask_b32 %s, %s, 0, %s" % (v(sctw), v(scs), s(sM0, 2)))
    k("v_mov_b32 %s, %s" % (v(t[7]), fbits(1 / (16 * math.sqrt(2)))))
    k("v_cndmask_b32 %s, %s, %s, %s" % (v(scs), v(scs), v(t[7]), s(sM0, 2)))
    k("v_cndmask_b32 %s, 0, 16, %s" % (v(vsh), s(sM8, 2)))
    k("v_mov_b32 %s, 0x80008000" % v(vsg))
    k("v_cndmask_b32 %s, 0, %s, %s" % (v(vsg), v(vsg), s(sM8, 2)))
    k("v_mov_b32 %s, %s" % (v(t[7]), s(sDC)))
    for r in range(4):
        fb = tmp + 12 + r
        k("v_add_f32 %s, %s, %s" % (v(fb), fbits(r), v(vfg4)))
        k("v_mul_f32 %s, %s, %s" % (v(tmp + r), v(fb), v(ftw)))
        k("v_mul_f32 %s, %s, %s" % (v(tmp + 4 + r), v(fb), v(fa2)))
        k("v_mul_f32 %s, %s, %s" % (v(tmp + 8 + r), v(fb), v(fs2)))
    for r in range(4):
        k("v_cos_f32 %s, %s" % (v(TC + r), v(tmp + r)))
        k("v_sin_f32 %s, %s" % (v(TS + r), v(tmp + r)))
        k("v_cos_f32 %s, %s" % (v(O + r), v(tmp + 4 + r)))
        k("v_sin_f32 %s, %s" % (v(O + 4 + r), v(tmp + 4 + r)))
        k("v_cos_f32 %s, %s" % (v(S2re + r), v(tmp + 8 + r)))
        k("v_sin_f32 %s, %s" % (v(S2im + r), v(tmp + 8 + r)))
    if M.o.get("wp", 0) == 1:
        late_loads()
    for r in range(4):
        k("v_mul_f32 %s, %s, %s" % (v(TC + r), v(TC + r), v(sctw)))
        k("v_mul_f32 %s, %s, %s" % (v(TS + r), v(TS + r), v(sctw)))
        k("v_cvt_pk_bf16_f32 %s, %s, %s" % (v(A2re + r), v(O + r), v(O + 4 + r)))
        k("v_cvt_pk_bf16_f32 %s, -%s, %s" % (v(A2im + r), v(O + 4 + r), v(O + r)))
        k("v_xor_b32 %s, %s, %s" % (v(A2im + r), v(A2im + r), v(vsg)))
        k("v_mul_f32 %s, %s, %s" % (v(S2re + r), v(S2re + r), v(scs)))
        k("v_mul_f32 %s, %s, %s" % (v(S2im + r), fbits(-1 / 16), v(S2im + r)))
        k("v_cndmask_b32 %s, %s, %s, %s" % (v(S2im + r), v(S2im + r), v(t[7]), s(sM0, 2)))
        k("v_cvt_pk_bf16_f32 %s, %s, 0" % (v(S2re + r), v(S2re + r)))
        k("v_cvt_pk_bf16_f32 %s, %s, 0" % (v(S2im + r), v(S2im + r)))
        k("v_lshlrev_b32 %s, %s, %s" % (v(S2re + r), v(vsh), v(S2re + r)))
        k("v_lshlrev_b32 %s, %s, %s" % (v(S2im + r), v(vsh), v(S2im + r)))
    for i in range(32):
        k("v_mov_b32 %s, 0" % v(BS + i))

    warm(O, sC)
    k("s_cmp_eq_u32 %s, 2" % s(sRole))
    k("s_cbranch_scc1 PRE_A_W1")
    k("v_lshrrev_b32 %s, 1, %s" % (v(t[0]), v(vrA)))
    k("v_add_u32 %s, %s, %s" % (v(t[0]), s(sLds), v(t[0])))
    k("s_waitcnt lgkmcnt(0)")
    k.wait_tag("in")
    for j in range(8):
        k("ds_read_b64_tr_b16 %s, %s offset:%d" % (v(A + 4 * j, 2), v(t[0]), j * PITCH))
        k("ds_read_b64_tr_b16 %s, %s offset:%d" % (v(A + 4 * j + 2, 2), v(t[0]), j * PITCH + 512))
    k("s_branch PRE_CORE")
    k.label("PRE_A_W1")
    k("v_lshrrev_b32 %s, 2, %s" % (v(t[1]), v(vn)))
    k("v_xor_b32 %s, %s, %s" % (v(t[1]), s(sWv), v(t[1])) if M.o.get("swz", 1) else "v_mov_b32 %s, %s" % (v(t[1]), s(sWv)))
    k("v_lshlrev_b32 %s, 4, %s" % (v(t[1]), v(t[1])))
    k("v_lshl_add_u32 %s, %s, 6, %s" % (v(t[0]), v(vn), v(t[1])))
    k("v_lshl_add_u32 %s, %s, 12, %s" % (v(t[0]), v(vg), v(t[0])))
    k("s_waitcnt lgkmcnt(0)")
    k.wait_tag("in")
    k("s_barrier")
    for jj in range(8):
        k("ds_read_b128 %s, %s offset:%d" % (v(RAW + 4 * jj, 4), v(t[0]), (16 * (jj >> 2) + (jj & 3)) * 1024))
    for j in range(8):
        for i in range(4):
            k("v_perm_b32 %s, %s, %s, %s" % (v(A + 4 * j + i), v(RAW + 4 * (2 * i + 1) + (j >> 1)),
                                            v(RAW + 4 * (2 * i) + (j >> 1)), s(sSelHi if j & 1 else sSelLo)))

    k.label("PRE_CORE")
    st("p_in")
    for j in range(8):
        k("%s %s, %s, %s, 0" % (MF, v(D + 8 * j, 4), v(A + 4 * j, 4), v(B1re, 4)))
        k("%s %s, %s, %s, 0" % (MF, v(D + 8 * j + 4, 4), v(A + 4 * j, 4), v(B1im, 4)))
    k("s_mov_b64 exec, %s" % s(sM0, 2))
    for j in range(8):
        for r in range(4):
            k("v_cvt_pk_bf16_f32 %s, %s, %s" % (v(BS + 4 * j + r), v(D + 8 * j + r), v(D + 8 * j + 4 + r)))
    k("s_mov_b64 exec, -1")
    for j in range(8):
        re, im, tt = D + 8 * j, D + 8 * j + 4, tmp + 8 * (j & 1)
        for h in (0, 2):
            k("v_pk_mul_f32 %s, %s, %s" % (v(tt + h, 2), v(im + h, 2), v(TS + h, 2)))
            k("v_pk_mul_f32 %s, %s, %s" % (v(tt + 4 + h, 2), v(re + h, 2), v(TS + h, 2)))
        for h in (0, 2):
            k("v_pk_fma_f32 %s, %s, %s, %s" % (v(tt + h, 2), v(re + h, 2), v(TC + h, 2), v(tt + h, 2)))
            k("v_pk_fma_f32 %s, %s, %s, %s neg_lo:[0,0,1] neg_hi:[0,0,1]"
              % (v(tt + 4 + h, 2), v(im + h, 2), v(TC + h, 2), v(tt + 4 + h, 2)))
        for r in range(4):
            k("v_cvt_pk_bf16_f32 %s, %s, %s" % (v(A + 4 * j + r), v(tt + r), v(tt + 4 + r)))

    def stage2(fill):
        for j in range(8):
            for n, (d, am, bm) in enumerate(((D + 8 * j, A2re, A), (D + 8 * j, S2re, BS), (D + 8 * j + 4, A2im, A), (D + 8 * j + 4, S2im, BS))):
                k("%s %s, %s, %s, %s" % (MF, v(d, 4), v(am, 4), v(bm + 4 * j, 4), v(d, 4) if n & 1 else "0"))
                for txt in fill.get(4 * j + n, []):
                    k(txt)

    def spread(items, first):
        fill = {}
        for m in range(first, 32):
            fill[m], items = items[:2], items[2:]
        return fill, items

    k("s_cmp_eq_u32 %s, 0" % s(sRole))
    k("s_cbranch_scc0 PRE_OUT_W")

    pre = ["v_lshl_add_u32 %s, %s, 6, %s" % (v(t[0]), v(vg), v(vn)),
           "v_mul_u32_u24 %s, 144, %s" % (v(t[0]), v(t[0])),
           "s_lshl_b32 %s, %s, 5" % (s(sA), s(sWv)),
           "s_add_u32 %s, %s, %d" % (s(sC), s(sA), IMG),
           "v_add_u32 %s, %s, %s" % (v(t[0]), s(sC), v(t[0])),
           "v_lshrrev_b32 %s, 3, v0" % v(t[2]),
           "v_and_b32 %s, 7, %s" % (v(t[3]), v(t[2])),
           "v_and_b32 %s, 0xc0, v0" % v(t[2]),
           "v_add_u32 %s, %s, %s" % (v(t[2]), v(t[2]), v(t[3])),
           "v_and_b32 %s, 0x70, %s" % (v(t[3]), v(vrA)),
           "v_mul_u32_u24 %s, 144, %s" % (v(t[1]), v(t[2])),
           "v_add_u32 %s, %s, %s" % (v(t[1]), v(t[1]), v(t[3])),
           "v_lshl_add_u32 %s, %s, 13, %s" % (v(t[2]), v(t[2]), v(t[3])),
           "s_lshl_b32 %s, s2, 7" % s(sB)]
    fill, _ = spread(pre, 0)
    cv = lambda j: ["v_cvt_pk_bf16_f32 %s, %s, %s" % (v(O + 8 * r + j), v(D + 8 * j + r), v(D + 8 * j + 4 + r)) for r in range(4)]
    for j in range(6):
        fill[4 * j + 9], fill[4 * j + 10] = cv(j)[:2], cv(j)[2:]
    for r in range(4):
        fill[24 + 2 * r - (r > 1)] = fill.get(24 + 2 * r - (r > 1), []) + \
            ["ds_write_b128 %s, %s offset:%d" % (v(t[0]), v(O + 8 * r, 4), 16 * 144 * r)]
    stage2(fill)
    st("p_core")
    for txt in cv(6) + cv(7):
        k(txt)
    for r in range(4):
        k("ds_write_b128 %s, %s offset:%d" % (v(t[0]), v(O + 8 * r + 4, 4), 16 * 144 * r + 16))
    k("s_mov_b64 exec, 1")
    for j in range(8):
        k("v_mov_b32 %s, 0" % v(D + 8 * j + 4))
    k("s_mov_b64 exec, -1")
    for j in range(8):
        k("v_pk_mul_f32 %s, %s, %s" % (v(tmp + 2 * j, 2), v(D + 8 * j, 2), v(D + 8 * j, 2)))
    k("s_waitcnt lgkmcnt(0)")
    k("s_barrier")
    for i in range(8):
        k("ds_read_b128 %s, %s offset:%d" % (v(O + 4 * i, 4), v(t[1]), IMG + 8 * 144 * i))
    red = ["v_pk_fma_f32 %s, %s, %s, %s" % (v(tmp + 2 * j, 2), v(D + 8 * j + h, 2), v(D + 8 * j + h, 2), v(tmp + 2 * j, 2))
           for h in (2, 4, 6) for j in range(8)]
    for txt in red[:10]:
        k(txt)
    red = red[10:] + ["v_add_f32 %s, %s, %s" % (v(A + j), v(tmp + 2 * j), v(tmp + 2 * j + 1)) for j in range(8)]
    red += ["v_permlane32_swap_b32 %s, %s" % (v(A + j), v(A + j + 4)) for j in range(4)]
    red += ["v_add_f32 %s, %s, %s" % (v(A + j), v(A + j), v(A + j + 4)) for j in range(4)]
    red += ["v_permlane16_swap_b32 %s, %s" % (v(A + e), v(A + e + 2)) for e in range(2)]
    red += ["v_add_f32 %s, %s, %s" % (v(A + e), v(A + e), v(A + e + 2)) for e in range(2)]
    red += ["v_add_f32_dpp %s, %s, %s row_ror:%d row_mask:0xf bank_mask:0xf" % (v(A + e), v(A + e), v(A + e), sh)
            for sh in (8, 4, 2, 1) for e in range(2)]
    for i in range(8):
        k("s_add_u32 %s, %s, 0x%x" % (s(sC), s(sB), L.X0 + i * 8 * 8192))
        k(ST % (v(O + 4 * i, 4), v(t[2]), s(sC), 0), tag="p0")
        for txt in red[6 * i:6 * i + 6]:
            k(txt)
    k("v_lshlrev_b32 %s, 3, %s" % (v(t[0]), v(vg)))
    k("s_add_u32 %s, %s, %s" % (s(sC), s(sA), s(sB)))
    k("s_add_u32 %s, %s, 0x%x" % (s(sC), s(sC), L.SSQ0))
    k("s_mov_b64 exec, %s" % s(sM0, 2))
    k("buffer_store_dwordx2 %s, %s, %s, %s offen sc1" % (v(A, 2), v(t[0]), WS, s(sC)), tag="p0")
    k("s_mov_b64 exec, -1")
    k("s_branch PRE_DONE")

    k.label("PRE_OUT_W")
    stage2({})
    st("p_core")
    k("s_cmp_eq_u32 %s, 2" % s(sRole))
    k("s_cbranch_scc1 PRE_OUT_W1")
    k("s_cmp_eq_u32 %s, 3" % s(sRole))
    k("s_cbranch_scc1 PRE_OUT_B2")

    k("v_lshrrev_b32 %s, 2, %s" % (v(t[1]), v(vn)))
    k("v_mul_u32_u24 %s, %d, %s" % (v(t[1]), PITCH, v(t[1])))
    k("v_and_b32 %s, 3, %s" % (v(t[2]), v(vn)))
    k("v_lshl_add_u32 %s, %s, 5, %s" % (v(t[1]), v(t[2]), v(t[1])))
    k("v_lshl_add_u32 %s, %s, 3, %s" % (v(t[1]), v(vg), v(t[1])))
    k("v_add_u32 %s, %s, %s" % (v(t[1]), s(sLds), v(t[1])))
    for dt in range(8):
        k("ds_read_b64_tr_b16 %s, %s offset:%d" % (a(224 + 4 * dt, 2), v(t[1]), dt * 128))
        k("ds_read_b64_tr_b16 %s, %s offset:%d" % (a(226 + 4 * dt, 2), v(t[1]), dt * 128 + 4 * PITCH))
    k("s_and_b32 %s, %s, 3" % (s(sB), s(sS)))
    k("s_lshr_b32 %s, %s, 2" % (s(sC), s(sU)))
    k("s_lshl_b32 %s, %s, 1" % (s(sA), s(sB)))
    k("s_add_u32 %s, %s, %s" % (s(sA), s(sA), s(sC)))
    k("s_add_u32 %s, %s, 8" % (s(sG), s(sB)))
    k("s_cmp_eq_u32 %s, 2" % s(sC))
    k("s_cselect_b32 %s, %s, %s" % (s(sA), s(sG), s(sA)))
    k("s_lshr_b32 %s, %s, 1" % (s(sG), s(sB)))
    k("s_add_u32 %s, %s, 12" % (s(sG), s(sG)))
    k("s_and_b32 %s, %s, 1" % (s(sB), s(sB)))
    k("s_lshl_b32 %s, %s, 1" % (s(sB), s(sB)))
    k("s_cmp_eq_u32 %s, 3" % s(sC))
    k("s_cselect_b32 %s, %s, %s" % (s(sA), s(sG), s(sA)))
    k("s_cselect_b32 %s, %s, 0" % (s(sB), s(sB)))
    k("s_and_b32 %s, %s, 3" % (s(sG), s(sU)))
    k("s_add_u32 %s, %s, %s" % (s(sG), s(sG), s(sB)))
    k("s_lshr_b32 %s, %s, 2" % (s(sB), s(sS)))
    k("s_mul_i32 %s, %s, 14" % (s(sB), s(sB)))
    k("s_add_u32 %s, %s, %s" % (s(sA), s(sA), s(sB)))
    k("s_lshl_b32 %s, %s, 12" % (s(sA), s(sA)))
    k("s_lshl_b32 %s, %s, 8" % (s(sG), s(sG)))
    k("s_add_u32 %s, %s, %s" % (s(sA), s(sA), s(sG)))
    k("v_mul_u32_u24 %s, %d, %s" % (v(t[0]), 2 * 229376, v(vg)))
    k("v_lshl_add_u32 %s, %s, 4, %s" % (v(t[0]), v(vn), v(t[0])))
    for r in range(4):
        k("s_add_u32 %s, %s, 0x%x" % (s(sC), s(sA), L.W2F + (r >> 1) * 229376 + (r & 1) * 2048))
        for ri in range(2):
            o = O + 8 * r + 4 * ri
            for i in range(4):
                k("v_cvt_pk_bf16_f32 %s, %s, %s" % (v(o + i), v(D + 16 * i + 4 * ri + r), v(D + 16 * i + 8 + 4 * ri + r)))
            k(ST % (v(o, 4), v(t[0]), s(sC), ri * 1024), tag="p0")
    k("s_mov_b32 s29, %s" % s(sA))
    k("s_branch PRE_DONE")

    def deferred(v0_, v1_, sx, tag=None):
        k("s_sub_u32 %s, s2, 184" % s(sx))
        k("s_cmp_ge_u32 %s, 56" % s(sx))
        k("s_cbranch_scc1 PRE_NOW2T")
        k("v_and_b32 %s, 0xf0, %s" % (v(v0_), v(vrA)))
        k("v_and_b32 %s, 48, v0" % v(v1_))
        k("v_lshl_add_u32 %s, %s, 6, %s" % (v(v0_), v(v1_), v(v0_)))
        for dt in range(8):
            k("s_add_u32 %s, s29, 0x%x" % (s(sx), L.W2T + dt * 229376))
            k(ST % (a(224 + 4 * dt, 4), v(v0_), s(sx), 0), tag=tag)
        k.label("PRE_NOW2T")

    k.label("PRE_OUT_B2")
    k("v_lshl_add_u32 %s, %s, 6, %s" % (v(t[0]), v(vg), v(vn)))
    k("v_lshlrev_b32 %s, 2, %s" % (v(t[0]), v(t[0])))
    k("s_mov_b32 %s, 0x%x" % (s(sC), L.B2F))
    for r in range(4):
        for ri in range(2):
            k("buffer_store_dword %s, %s, %s, %s offen offset:%d sc1" % (v(D + 4 * ri + r), v(t[0]), WS, s(sC), r * 64 + ri * 1024), tag="p0")
    k("s_nop 7")
    k("s_branch PRE_FT")

    k.label("PRE_OUT_W1")
    k("s_mul_i32 %s, %s, 9216" % (s(sLds), s(sWv)))
    k("s_add_u32 %s, %s, %d" % (s(sLds), s(sLds), IMG))
    k("v_mul_u32_u24 %s, 9, %s" % (v(t[0]), v(vrA)))
    k("v_add_u32 %s, %s, %s" % (v(t[0]), s(sLds), v(t[0])))
    for j in range(8):
        for r in range(4):
            k("v_cvt_pk_bf16_f32 %s, %s, %s" % (v(O + 4 * j + r), v(D + 8 * j + r), v(D + 8 * j + 4 + r)))
        k("ds_write_b128 %s, %s offset:%d" % (v(t[0]), v(O + 4 * j, 4), 16 * j))
    k("v_bfe_u32 %s, v0, 3, 3" % v(t[2]))
    k("v_and_b32 %s, 0x70, %s" % (v(t[3]), v(vrA)))
    k("v_mul_u32_u24 %s, 144, %s" % (v(t[1]), v(t[2])))
    k("v_add3_u32 %s, %s, %s, %s" % (v(t[1]), v(t[1]), v(t[3]), s(sLds)))
    for i in range(8):
        k("ds_read_b128 %s, %s offset:%d" % (v(A + 4 * i, 4), v(t[1]), 8 * 144 * i))
    split14(k, sS, sU, sT)
    k("s_lshr_b32 %s, %s, 1" % (s(sA), s(sU)))
    k("s_mul_i32 %s, %s, 112" % (s(sB), s(sS)))
    k("s_add_u32 %s, %s, %s" % (s(sB), s(sB), s(sA)))
    k("s_cmp_lt_u32 %s, 4" % s(sA))
    k("s_cselect_b32 %s, 0, 60" % s(sA))
    k("s_movk_i32 %s, 0x1000" % s(sG))
    k("s_cselect_b32 %s, %s, 0xc00" % (s(sG), s(sG)))
    k("s_add_u32 %s, %s, %s" % (s(sA), s(sA), s(sB)))
    k("s_lshl_b32 %s, %s, 10" % (s(sA), s(sA)))
    k("s_and_b32 %s, %s, 1" % (s(sU), s(sU)))
    k("s_lshl_b32 %s, %s, 7" % (s(sU), s(sU)))
    k("s_add_u32 %s, %s, %s" % (s(sA), s(sA), s(sU)))
    k("s_add_u32 %s, %s, 0x%x" % (s(sA), s(sA), L.W1F))
    k("s_lshl_b32 %s, %s, 3" % (s(sC), s(sG)))
    k("s_add_u32 %s, %s, %s" % (s(sC), s(sC), s(sA)))
    k("v_mad_u32_u24 %s, %s, %s, %s" % (v(t[0]), v(t[2]), s(sG), v(t[3])))
    for i in range(8):
        k(ST % (v(A + 4 * i, 4), v(t[0]), s(sC if i & 1 else sA), (i >> 1) * 256), tag="p0")
    k.label("PRE_DONE")
    return deferred
```

```python
MB = 1 << 20
X0 = 0 * MB
X1 = 2 * MB
X2 = 4 * MB
X3 = 6 * MB
WT = 8 * MB
W1F = 10 * MB
SMALL = W1F + 0x1C0000
SSQ0 = SMALL
SSQ2 = SMALL + 0xC000
B2F = SMALL + 0x4000
B1X = SMALL + 0x5000
EPOCH = SMALL + 0x8000
W2F = 12 * MB
W2T = 14 * MB
FT = 16 * MB
PFLAGS = FT + 0x80000
WFLAGS = FT + 0x90000
GFLAGS = FT + 0x100000
FLAGS = GFLAGS + 0x60000
H1 = 18 * MB
H2 = 26 * MB
STAMP = 34 * MB
WS_USED = 36 * MB

_NAMES = [n for n in list(globals()) if n.isupper() and n != "MB"]
_DEFAULT = {n: globals()[n] for n in _NAMES}


def configure(opts):
    g = globals()
    for n in _NAMES:
        g[n] = _DEFAULT[n] + opts.get("base", 0) * MB
    if opts.get("rh"):
        g["H2"] = g["H1"]
    if opts.get("rx"):
        g["X2"] = g["X0"]
```

```python
from asmlib import Kernel, Alloc, v, a, s, fbits
import layout as L
import k_pre

MF = "v_mfma_f32_16x16x32_bf16"
LDS_BYTES = 163840
WB = 65536
PRIV = 114688
WS = "s[4:7]"
C0 = -2 * 0.7978845608028654 * 1.4426950408889634
C1 = C0 * 0.044715
EPS = 1e-5
TILE = 57344

vrA, vP, vV, vL4 = 1, 2, 3, 4
sE, sRec = 48, 49
sWv, sP, sI, sPhi, sCt, sRB, sX, sW1, sT, sU, sW2, sHst, sFl, sPl, sV = 3, 12, 13, 14, 15, 16, 17, 18, 19, 20, 21, 22, 23, 24, 25
sHA, sHB, sH6, sHt, sQ, sG = 26, 27, 28, 30, 34, 35


class Main:
    def __init__(self, name, stamp, opts):
        self.o = opts or {}
        self.k = Kernel(name)
        self.name = name
        self.stamp = stamp
        self.queue = []
        self.issued = {}
        self.nlab = 0

    def st(self, n, **kw):
        pr = self.o.get("probe")
        if pr:
            k, key = self.k, "%s%d" % (n, self.layer)
            if key == pr[0]:
                k("s_memrealtime s[90:91]")
            if key == pr[1]:
                k("s_memrealtime s[92:93]")
            if n == "end":
                k("s_waitcnt vmcnt(0) lgkmcnt(0)")
                k("s_memrealtime s[94:95]")
                k("s_sub_u32 s90, s92, s90")
                k("s_min_u32 s90, s90, 20000")
                k("s_lshl_b32 s90, s90, 3")
                k("s_cmp_lg_u32 s2, %d" % self.o.get("pwg", 0))
                k("s_cbranch_scc1 MAIN_END")
                k.label("SPIN")
                k("s_memrealtime s[96:97]")
                k("s_waitcnt lgkmcnt(0)")
                k("s_sub_u32 s96, s96, s94")
                k("s_cmp_lt_u32 s96, s90")
                k("s_cbranch_scc1 SPIN")
        if self.o.get("stp") and n in ("geluA", "passB", "geluB", "pollA", "h0", "preB", "pollB", "gemm2"):
            return
        if n.startswith("g_") and not self.o.get("stg"):
            return
        if self.o.get("stg") and n in ("p_go", "c_x1", "c_x2", "c_end", "s_pub", "s_go", "first", "l2", "s2_pub", "s2_go", "passA"):
            return
        if not self.o.get("stp") and n in ("p_in", "p_core", "p_out", "p_pub", "c_const"):
            return
        if self.stamp and (n in ("start", "end") or self.o.get("stl", 0) == self.layer):
            self.stamp(self.k, n, **kw)

    def dma(self, vv, ss, off, tag, sc=" sc1"):
        def op():
            self.issued[tag] = self.issued.get(tag, 0) + 1
            self.k("buffer_load_dwordx4 %s, %s, %s offen offset:%d%s lds" % (v(vv), WS, s(ss), off, sc), tag=tag)
        return op

    def setup(self, m0base, m0off, sd, sbase, off):
        def op():
            self.k("s_add_u32 m0, %s, %d" % (s(m0base), m0off))
            self.k("s_add_u32 %s, %s, %d" % (s(sd), s(sbase), off))
        return op

    def issue(self, ops):
        for su, ld in ops:
            if su:
                su()
            ld()

    def side(self, n=1):
        for _ in range(n):
            if self.queue:
                self.issue([self.queue.pop(0)])

    def w2_ops(self):
        k, ops = self.k, []
        for kf in range(14):
            for c in range(4):
                su = None
                if c == 0:
                    su = lambda kf=kf: k("s_add_u32 %s, %s, %d" % (s(sU), s(sW2), kf * 4096))
                if c == 2:
                    su = lambda: k("s_xor_b32 %s, %s, 0x800" % (s(sU), s(sU)))
                ld = lambda kf=kf, c=c: k("buffer_load_dwordx4 %s, %s, %s, %s offen offset:%d sc1"
                                          % (a(16 * kf + 4 * c, 4), v(vrA), WS, s(sU), (c & 1) * 1024))
                ld.head = c == 0
                ops.append((su, ld))
        return ops

    def flag_store(self, sflag):
        k = self.k
        k("s_mov_b64 exec, 0x%x" % ((1 << self.o["FW"]) - 1) if "FW" in self.o else "s_mov_b32 exec_hi, 0")
        k("buffer_store_dword %s, %s, %s, %s offen sc1" % (v(vV), v(vL4), WS, s(sflag)))
        k("s_mov_b64 exec, -1")

    def publish(self, tag, sflag):
        self.k.wait_tag(tag)
        self.flag_store(sflag)

    def publish_wg(self, sflag):
        k = self.k
        self.nlab += 1
        k("s_barrier")
        k("s_cmp_lg_u32 %s, 0" % s(sWv))
        k("s_cbranch_scc1 PUB%d" % self.nlab)
        self.flag_store(sflag)
        k.label("PUB%d" % self.nlab)

    def poll_issue(self, voff, sbase, dst=vP):
        self.k("buffer_load_dword %s, %s, %s, %s offen sc1" % (v(dst), v(voff), WS, s(sbase)))

    def poll_check(self, voff, sbase, dst=vP, sleep=0, data=False):
        k = self.k
        self.nlab += 1
        go, again = "GO%d" % self.nlab, "POLL%d" % self.nlab
        test = "v_cmp_eq_u32 vcc, -1, %s" % v(dst) if data else "v_cmp_ne_u32 vcc, %s, %s" % (s(sE), v(dst))
        k(test)
        k("s_cbranch_vccz " + go)
        k("s_mov_b32 %s, 0" % s(sV))
        k.label(again)
        k("s_mov_b64 exec, vcc")
        if sleep:
            k("s_sleep %d" % sleep)
        self.poll_issue(voff, sbase, dst)
        k("s_add_u32 %s, %s, 1" % (s(sV), s(sV)))
        k("s_waitcnt vmcnt(0)")
        k(test)
        k("s_cmp_lt_u32 %s, 0x8000" % s(sV))
        k("s_cselect_b64 vcc, vcc, 0")
        k("s_cbranch_vccnz " + again)
        k("s_mov_b64 exec, -1")
        k.label(go)

    def col_alloc(self):
        va = Alloc(6, 256)
        r = self.c = type("R", (), {})()
        r.voff, r.vwr, r.vrd, r.vfg4, r.vfk, r.vfn, r.vsn, r.veps = (va() for _ in range(8))
        r.t = [va() for _ in range(5)]
        r.XR, r.SQ, r.WR = va(8, 4), va(8, 4), va(8, 4)
        r.C64, r.C32 = va(32, 4), va(32, 4)
        r.T1C, r.T1S, r.T2C, r.T2S, r.WC, r.WS = (va(8, 4) for _ in range(6))
        r.XF, r.FR, r.AC, r.PK, r.tmp = va(16, 4), va(32, 4), va(16, 4), va(8, 4), va(16, 4)

    def col_addr(self):
        k, r = self.k, self.c
        k("v_lshrrev_b32 %s, 6, v0" % v(r.t[0]))
        k("v_lshl_add_u32 %s, %s, 11, %s" % (v(r.voff), v(r.t[0]), v(vrA)))

    def col_load_w(self):
        k, r = self.k, self.c
        k("s_add_u32 %s, %s, 0x%x" % (s(sT), s(sQ), L.WT))
        for b in range(2):
            k("buffer_load_dwordx4 %s, %s, %s, %s offen offset:%d sc1" % (v(r.WR + 4 * b, 4), v(r.voff), WS, s(sT), 1024 * b))

    def col_load_x(self):
        k, r, li = self.k, self.c, self.layer
        sc = " sc1"
        k("s_mov_b32 %s, 0x%x" % (s(sV), (L.SSQ0, L.SSQ2)[li]))
        k("s_add_u32 %s, %s, 0x%x" % (s(sT), s(sQ), (L.X0, L.X2)[li]))
        for b in range(2):
            k("buffer_load_dwordx4 %s, %s, %s, %s offen offset:%d%s" % (v(r.SQ + 4 * b, 4), v(r.voff), WS, s(sV), 1024 * b, sc))
            k("buffer_load_dwordx4 %s, %s, %s, %s offen offset:%d%s" % (v(r.XR + 4 * b, 4), v(r.voff), WS, s(sT), 1024 * b, sc))

    def col_consts(self):
        r, out = self.c, []
        k, t, tmp = out.append, r.t, r.tmp
        k("v_add_u32 %s, %s, %s" % (v(r.vwr), s(sRB), v(vrA)))
        k("v_add_u32 %s, %d, %s" % (v(r.vrd), PRIV, v(vrA)))
        k("v_bfe_u32 %s, v0, 4, 2" % v(t[1]))
        k("v_lshlrev_b32 %s, 2, %s" % (v(t[1]), v(t[1])))
        k("v_cvt_f32_u32 %s, %s" % (v(r.vfg4), v(t[1])))
        k("v_and_b32 %s, 15, v0" % v(t[2]))
        k("v_cvt_f32_u32 %s, %s" % (v(r.vfn), v(t[2])))
        k("v_lshl_add_u32 %s, %s, 4, %s" % (v(t[2]), v(t[0]), v(t[2])))
        k("v_cvt_f32_u32 %s, %s" % (v(r.vfk), v(t[2])))
        k("v_lshl_add_u32 %s, %s, 4, %s" % (v(t[2]), v(t[0]), v(t[1])))
        k("v_cvt_f32_u32 %s, %s" % (v(t[2]), v(t[2])))
        k("v_and_b32 %s, 1, v0" % v(r.vsn))
        k("v_mul_u32_u24 %s, 0x8000, %s" % (v(r.vsn), v(r.vsn)))
        k("v_lshl_or_b32 %s, %s, 16, %s" % (v(r.vsn), v(r.vsn), v(r.vsn)))
        k("v_mov_b32 %s, %s" % (v(r.veps), fbits(EPS * 2.0 ** 22)))
        f, b0 = t[3], t[4]
        k("v_mul_f32 %s, %s, %s" % (v(f), fbits(1 / 64), v(r.vfk)))
        k("v_mul_f32 %s, %s, %s" % (v(b0), v(f), v(r.vfg4)))
        for i in range(8):
            k("v_fmamk_f32 %s, %s, %s, %s" % (v(r.T1C + i), v(f), fbits(16 * (i >> 2) + (i & 3)), v(b0)))
        for i in range(8):
            k("v_sin_f32 %s, %s" % (v(tmp + 8 + i), v(r.T1C + i)))
            k("v_cos_f32 %s, %s" % (v(tmp + i), v(r.T1C + i)))
        for i in range(8):
            ks, rr = i >> 2, i & 3
            k("v_cvt_pk_bf16_f32 %s, %s, %s" % (v(r.C64 + 8 * ks + rr), v(tmp + i), v(tmp + 8 + i)))
            k("v_cvt_pk_bf16_f32 %s, -%s, %s" % (v(r.C64 + 8 * ks + 4 + rr), v(tmp + 8 + i), v(tmp + i)))
        for i in range(16):
            k("v_xor_b32 %s, %s, %s" % (v(r.C64 + 16 + i), v(r.vsn), v(r.C64 + i)))
        self.n_first = len(out)
        for i in range(8):
            k("v_mul_f32 %s, %s, %s" % (v(r.T1C + i), fbits(1 / 32), v(r.T1C + i)))
        for i in range(8):
            k("v_sin_f32 %s, %s" % (v(r.T1S + i), v(r.T1C + i)))
            k("v_cos_f32 %s, %s" % (v(r.T1C + i), v(r.T1C + i)))
        k("v_mul_f32 %s, %s, %s" % (v(f), fbits(1 / 32), v(r.vfn)))
        k("v_mul_f32 %s, %s, %s" % (v(b0), v(f), v(r.vfg4)))
        for rr in range(4):
            k("v_fmamk_f32 %s, %s, %s, %s" % (v(r.T2C + rr), v(f), fbits(rr), v(b0)))
        for rr in range(4):
            k("v_sin_f32 %s, %s" % (v(r.T2S + rr), v(r.T2C + rr)))
            k("v_cos_f32 %s, %s" % (v(r.T2C + rr), v(r.T2C + rr)))
        for rr in range(4):
            k("v_cvt_pk_bf16_f32 %s, %s, %s" % (v(r.C32 + rr), v(r.T2C + rr), v(r.T2S + rr)))
            k("v_cvt_pk_bf16_f32 %s, -%s, %s" % (v(r.C32 + 4 + rr), v(r.T2S + rr), v(r.T2C + rr)))
        for i in range(8):
            k("v_xor_b32 %s, %s, %s" % (v(r.C32 + 8 + i), v(r.vsn), v(r.C32 + i)))
        for i in range(16):
            if i & 1:
                k("v_xor_b32 %s, 0x80008000, %s" % (v(r.C32 + 16 + i), v(r.C32 + i)))
            else:
                k("v_mov_b32 %s, %s" % (v(r.C32 + 16 + i), v(r.C32 + i)))
        for bt in range(2):
            if bt == 0:
                k("v_mul_f32 %s, %s, %s" % (v(f), fbits(1 / 2048), v(r.vfn)))
            else:
                k("v_add_f32 %s, %s, %s" % (v(f), fbits(16 / 2048), v(f)))
            k("v_mul_f32 %s, %s, %s" % (v(b0), v(f), v(t[2])))
            for rr in range(4):
                k("v_fmamk_f32 %s, %s, %s, %s" % (v(r.T2C + 4 * bt + rr), v(f), fbits(rr), v(b0)))
        for i in range(8):
            k("v_sin_f32 %s, %s" % (v(r.T2S + i), v(r.T2C + i)))
            k("v_cos_f32 %s, %s" % (v(r.T2C + i), v(r.T2C + i)))
        return out

    def col_unpack_w(self):
        r = self.c
        return [x for i in range(8) for x in ("v_lshlrev_b32 %s, 16, %s" % (v(r.WC + i), v(r.WR + i)),
                                              "v_and_b32 %s, 0xffff0000, %s" % (v(r.WS + i), v(r.WR + i)))]

    def cmul(self, re, im, c, sn, conj):
        k, tmp = self.k, self.c.tmp
        for h in (0, 2):
            k("v_pk_mul_f32 %s, %s, %s" % (v(tmp + h, 2), v(im + h, 2), v(sn + h, 2)))
            k("v_pk_mul_f32 %s, %s, %s" % (v(tmp + 4 + h, 2), v(re + h, 2), v(sn + h, 2)))
        neg = " neg_lo:[0,0,1] neg_hi:[0,0,1]"
        for h in (0, 2):
            k("v_pk_fma_f32 %s, %s, %s, %s%s" % (v(tmp + h, 2), v(re + h, 2), v(c + h, 2), v(tmp + h, 2), neg if conj else ""))
            k("v_pk_fma_f32 %s, %s, %s, %s%s" % (v(tmp + 4 + h, 2), v(im + h, 2), v(c + h, 2), v(tmp + 4 + h, 2), "" if conj else neg))

    def col_compute(self, late, before_bar1=None, before_bar2=None, after_bar1=None, NC=0):
        k, r, li = self.k, self.c, self.layer
        tmp, late = r.tmp, list(late)

        def fill(n):
            for _ in range(n):
                if late:
                    k(late.pop(0))
        for b in range(2):
            for rr in range(4):
                k("v_fmamk_f32 %s, %s, %s, %s" % (v(r.SQ + 4 * b + rr), v(r.SQ + 4 * b + rr), fbits(2.0 ** 13), v(r.veps)))
            for rr in range(4):
                k("v_rsq_f32 %s, %s" % (v(r.SQ + 4 * b + rr), v(r.SQ + 4 * b + rr)))
            for rr in range(4):
                k("v_lshlrev_b32 %s, 16, %s" % (v(r.XF + 8 * b + rr), v(r.XR + 4 * b + rr)))
                k("v_and_b32 %s, 0xffff0000, %s" % (v(r.XF + 8 * b + 4 + rr), v(r.XR + 4 * b + rr)))
            for h in (0, 2):
                k("v_pk_mul_f32 %s, %s, %s" % (v(tmp + h, 2), v(r.XF + 8 * b + h, 2), v(r.SQ + 4 * b + h, 2)))
                k("v_pk_mul_f32 %s, %s, %s" % (v(tmp + 4 + h, 2), v(r.XF + 8 * b + 4 + h, 2), v(r.SQ + 4 * b + h, 2)))
            for rr in range(4):
                k("v_cvt_pk_bf16_f32 %s, %s, %s" % (v(r.PK + 4 * b + rr), v(tmp + rr), v(tmp + 4 + rr)))
        k("s_cmp_lg_u32 s2, 0")
        k("s_cbranch_scc1 COL_A%d" % li)
        for i in range(8):
            k("v_and_b32 %s, 0xffff, %s" % (v(r.PK + i), v(r.PK + i)))
        k.label("COL_A%d" % li)
        for b in range(2):
            k("ds_write_b128 %s, %s offset:%d" % (v(r.vwr), v(r.PK + 4 * b, 4), 1024 * b))
        fill(12)
        if before_bar1:
            before_bar1()
        k("s_waitcnt lgkmcnt(0)")
        k("s_barrier")
        for bt in range(2):
            for ks in range(4):
                k("ds_read_b128 %s, %s offset:%d" % (v(r.FR + 16 * bt + 4 * ks, 4), v(r.vrd), 12288 * ks + 1024 * bt))
        if after_bar1:
            after_bar1()
        fill(max(12, len(late) - 24))
        self.st("c_x1")
        for bt in range(2):
            for ri in range(2):
                for ks in range(4):
                    d = v(r.AC + 8 * bt + 4 * ri, 4)
                    k("%s %s, %s, %s, %s" % (MF, d, v(r.FR + 16 * bt + 4 * ks, 4), v(r.C64 + 8 * ks + 4 * ri, 4), d if ks else "0"))
                    fill(1 if late and "_sin" in late[0] or late and "_cos" in late[0] else 2)
                    if ks == 1:
                        self.side(NC)
        fill(len(late))
        for bt in range(2):
            self.cmul(r.AC + 8 * bt, r.AC + 8 * bt + 4, r.T1C + 4 * bt, r.T1S + 4 * bt, False)
            for rr in range(4):
                k("v_cvt_pk_bf16_f32 %s, %s, %s" % (v(r.PK + 4 * bt + rr), v(tmp + rr), v(tmp + 4 + rr)))
        for kt in range(2):
            for ri in range(2):
                for ks in range(2):
                    d = v(r.FR + 8 * kt + 4 * ri, 4)
                    k("%s %s, %s, %s, %s" % (MF, d, v(r.C32 + 16 * kt + 8 * ks + 4 * ri, 4), v(r.PK + 4 * ks, 4), d if ks else "0"))
                    if ks == 1 and ri == 0:
                        self.side(NC)
        P2 = r.FR + 16
        for kt in range(2):
            self.cmul(r.FR + 8 * kt, r.FR + 8 * kt + 4, r.WC + 4 * kt, r.WS + 4 * kt, True)
            for rr in range(4):
                k("v_cvt_pk_bf16_f32 %s, %s, %s" % (v(P2 + 4 * kt + rr), v(tmp + 4 + rr), v(tmp + rr)))
        for bt in range(2):
            for ri in range(2):
                for ks in range(2):
                    d = v(r.AC + 8 * bt + 4 * (1 - ri), 4)
                    k("%s %s, %s, %s, %s" % (MF, d, v(P2 + 4 * ks, 4), v(r.C32 + 16 * bt + 8 * ks + 4 * ri, 4), d if ks else "0"))
                    if ks == 1 and ri == 0:
                        self.side(NC)
        for bt in range(2):
            self.cmul(r.AC + 8 * bt, r.AC + 8 * bt + 4, r.T2C + 4 * bt, r.T2S + 4 * bt, True)
            for rr in range(4):
                k("v_cvt_pk_bf16_f32 %s, %s, %s" % (v(r.PK + 4 * bt + rr), v(tmp + 4 + rr), v(tmp + rr)))
            k("ds_write_b128 %s, %s offset:%d" % (v(r.vwr), v(r.PK + 4 * bt, 4), 2048 + 1024 * bt))
        k("s_add_u32 %s, %s, 0x%x" % (s(sT), s(sQ), (L.X1, L.X3)[li]))
        self.side(2 * NC)
        if before_bar2:
            before_bar2()
        k("s_waitcnt lgkmcnt(0)")
        k("s_barrier")
        for bt in range(2):
            for ks in range(4):
                k("ds_read_b128 %s, %s offset:%d" % (v(r.FR + 16 * bt + 4 * ks, 4), v(r.vrd), 2048 + 12288 * ks + 1024 * bt))
        self.st("c_x2")
        for bt in range(2):
            for ri in range(2):
                for ks in range(4):
                    d = v(r.XF + 8 * bt + 4 * (1 - ri), 4)
                    k("%s %s, %s, %s, %s" % (MF, d, v(r.C64 + 8 * ks + 4 * ri, 4), v(r.FR + 16 * bt + 4 * ks, 4), d))
        k("s_cmp_lg_u32 s2, 0")
        for bt in range(2):
            for rr in range(4):
                k("v_cvt_pk_bf16_f32 %s, %s, %s" % (v(r.PK + 4 * bt + rr), v(r.XF + 8 * bt + rr), v(r.XF + 8 * bt + 4 + rr)))
            k("s_cbranch_scc1 COL_B%d%d" % (li, bt))
            k("s_mov_b32 %s, 0xffff" % s(sV))
            for rr in range(4):
                k("v_bfi_b32 %s, %s, %s, %s" % (v(r.PK + 4 * bt + rr), s(sV), v(r.PK + 4 * bt + rr), v(r.XR + 4 * bt + rr)))
            k.label("COL_B%d%d" % (li, bt))
            k("buffer_store_dwordx4 %s, %s, %s, %s offen offset:%d sc1" % (v(r.PK + 4 * bt, 4), v(r.voff), WS, s(sT), 1024 * bt), tag="xs")
        self.st("c_end")

    def mlp(self):
        k, li = self.k, self.layer
        o = dict(self.o)
        o.update({n[:-2]: x for n, x in self.o.items() if isinstance(n, str) and n.endswith("_%d" % li)})
        D, PD, CH = o.get("D", 6), o.get("PD", 14), o.get("CH", 2)
        FS = 128
        XIN, H = (L.X1, L.X3)[li], (L.H1, L.H2)[li]
        TS = TILE if li == 0 else 4 * TILE
        va = Alloc(5, 256)
        vX, vX2, vrX, vH6, vB1, vA2, vF = (va() for _ in range(7))
        vS, vC = va(2), va(2)
        tmp = va(16, 4)
        t = [tmp + i for i in range(8)]
        XB, ACC, AF = va(128, 4), va(64, 4), va(32, 4)
        SSQ = ACC + 56
        acc1 = lambda ft, tt: ACC + 16 * (ft >> 1) + 8 * tt + 4 * (ft & 1) if ft < 6 else ACC + 48 + 4 * tt
        queue, side = self.queue, self.side

        DG = o.get("DG", li)
        side(o.get("N1", 10 if li == 0 else 0))
        if not DG:
            k("s_lshl_b32 %s, %s, 8" % (s(sV), s(sWv)))
            k("s_add_u32 %s, %s, s2" % (s(sV), s(sV)))
            k("s_mul_i32 %s, %s, %d" % (s(sV), s(sV), FS))
            k("s_add_u32 %s, %s, 0x%x" % (s(sV), s(sV), L.GFLAGS + 262144 * li))
            self.publish("xs", sV)
        self.st("s_pub")
        pre = []
        P = pre.append
        P("v_mov_b32 %s, %s" % (v(vC), fbits(C1)))
        P("v_mov_b32 %s, %s" % (v(vC + 1), fbits(C0)))
        P("v_lshrrev_b32 %s, 6, v0" % v(t[0]))
        P("v_bfe_u32 %s, v0, 3, 2" % v(t[1]))
        P("v_lshlrev_b32 %s, 19, %s" % (v(vX), v(t[1])))
        P("v_bfe_u32 %s, v0, 5, 1" % v(t[1]))
        P("v_lshl_add_u32 %s, %s, 17, %s" % (v(vX), v(t[1]), v(vX)))
        P("v_and_b32 %s, 7, v0" % v(t[1]))
        P("v_lshl_add_u32 %s, %s, 4, %s" % (v(vX), v(t[1]), v(vX)))
        P("v_lshl_add_u32 %s, %s, 7, %s" % (v(vX), v(t[0]), v(vX)))
        P("v_add_u32 %s, %d, %s" % (v(vX2), 32 * 8192 - 1024, v(vX)))
        P("v_lshrrev_b32 %s, 1, %s" % (v(t[1]), v(vrA)))
        P("v_add_u32 %s, %s, %s" % (v(vrX), s(sRB), v(t[1])))
        P("v_and_b32 %s, 48, v0" % v(t[1]))
        P("v_add_u32 %s, %s, %s" % (v(vB1), s(sRB), v(t[1])))
        P("v_add_u32 %s, %d, %s" % (v(vA2), WB, v(vrA)))
        P("v_bfe_u32 %s, v0, 4, 1" % v(t[1]))
        P("v_mul_u32_u24 %s, %d, %s" % (v(vH6), TS, v(t[1])))
        P("v_bfe_u32 %s, v0, 5, 1" % v(t[1]))
        P("v_lshl_add_u32 %s, %s, 8, %s" % (v(vH6), v(t[1]), v(vH6)))
        P("v_and_b32 %s, 15, v0" % v(t[1]))
        P("v_lshl_add_u32 %s, %s, 4, %s" % (v(vH6), v(t[1]), v(vH6)))
        P("v_mul_u32_u24 %s, %d, v0" % (v(vF), 8192 if DG else FS))
        P("s_lshl_b32 %s, %s, 9" % (s(sX), s(sP)))
        P("s_add_u32 %s, %s, 0x%x" % (s(sX), s(sX), XIN))
        if DG:
            P("s_and_b32 %s, %s, 3" % (s(sG), s(sI)))
            P("s_lshl_b32 %s, %s, 7" % (s(sG), s(sG)))
            P("s_add_u32 %s, %s, %s" % (s(sG), s(sG), s(sX)))
        else:
            P("s_lshr_b32 %s, %s, 2" % (s(sG), s(sP)))
            P("s_mul_i32 %s, %s, %d" % (s(sG), s(sG), 256 * FS))
            P("s_add_u32 %s, %s, 0x%x" % (s(sG), s(sG), L.GFLAGS + 262144 * li))
        P("s_mul_i32 %s, %s, %d" % (s(sHst), s(sP), 8 * TILE))
        P("s_add_u32 %s, %s, 0x%x" % (s(sHst), s(sHst), H))
        P("s_mul_i32 %s, %s, %d" % (s(sHA), s(sWv), 2 * TILE if li == 0 else TILE))
        P("s_add_u32 %s, %s, %s" % (s(sHA), s(sHA), s(sHst)))
        P("s_lshr_b32 %s, %s, 2" % (s(sV), s(sI)))
        P("s_mul_i32 %s, %s, 14336" % (s(sV), s(sV)))
        P("s_add_u32 %s, %s, %s" % (s(sHA), s(sHA), s(sV)))
        P("s_and_b32 %s, %s, 3" % (s(sV), s(sI)))
        P("s_lshl_b32 %s, %s, 9" % (s(sV), s(sV)))
        P("s_add_u32 %s, %s, %s" % (s(sH6), s(sHA), s(sV)))
        P("s_add_u32 %s, %s, %s" % (s(sHB), s(sH6), s(sV)))
        P("s_lshl_b32 %s, %s, 2" % (s(sV), s(sV)))
        P("s_add_u32 %s, %s, %s" % (s(sHA), s(sHA), s(sV)))
        P("s_add_u32 %s, %s, %d" % (s(sH6), s(sH6), 12 * 1024))
        P("s_add_u32 %s, %s, %d" % (s(sHB), s(sHB), 8 * 1024))
        P("s_mul_i32 %s, %s, %d" % (s(sV), s(sPhi), 4 * TILE))
        P("s_add_u32 %s, %s, %s" % (s(sHst), s(sHst), s(sV)))
        P("s_mul_i32 %s, %s, 14336" % (s(sV), s(sWv)))
        P("s_add_u32 %s, %s, %s" % (s(sHst), s(sHst), s(sV)))
        P("s_and_b32 %s, %s, %d" % (s(sPl), s(sWv), 2 if li == 0 else 3))
        for kt in range(4):
            P("s_xor_b32 %s, %s, %d" % (s(sV), s(sPl), kt ^ (2 if li == 0 else 3)))
            P("s_mul_i32 %s, %s, %d" % (s(sV), s(sV), TILE))
            P("s_add_u32 %s, %s, %s" % (s(sHt + kt), s(sHst), s(sV)))
        P("s_lshl_b32 %s, %s, 4" % (s(sPl), s(sP)))
        P("s_add_u32 %s, %s, %s" % (s(sFl), s(sPl), s(sI)))
        P("s_lshl_b32 %s, %s, 2" % (s(sFl), s(sFl)))
        P("s_add_u32 %s, %s, %s" % (s(sFl), s(sFl), s(sWv)))
        P("s_lshl_b32 %s, %s, 7" % (s(sFl), s(sFl)))
        P("s_add_u32 %s, %s, 0x%x" % (s(sFl), s(sFl), L.FLAGS + li * 262144))
        P("s_lshl_b32 %s, %s, 9" % (s(sPl), s(sPl)))
        P("s_lshl_b32 %s, %s, 11" % (s(sV), s(sWv)))
        P("s_add_u32 %s, %s, %s" % (s(sPl), s(sPl), s(sV)))
        P("s_add_u32 %s, %s, 0x%x" % (s(sPl), s(sPl), L.FLAGS + li * 262144))
        for m, c in ((8, 0x22222222), (9, 0x22222222), (10, 0x44444444), (11, 0x44444444), (36, 0x88888888), (37, 0x88888888)):
            P("s_mov_b32 %s, 0x%x" % (s(m), c))
        n2 = o.get("N2", 18 if li == 0 else 6)
        per = -(-len(pre) // max(1, n2))
        for j in range(n2):
            side()
            for txt in pre[:per]:
                k(txt)
            del pre[:per]
        for txt in pre:
            k(txt)
        assert li or self.issued["w1"] == 28
        k("s_mul_i32 %s, %s, 448" % (s(sW1), s(sI)))
        k("s_add_u32 %s, %s, 0x%x" % (s(sW1), s(sW1), L.B1X))
        self.poll_issue(vF, sG)
        if li == 0:
            for i in range(4):
                k("v_mov_b32 %s, 0" % v(tmp + 4 + i))
            k("s_lshl_b32 %s, %s, 8" % (s(sV), s(sWv)))
            k("s_add_u32 %s, %s, s2" % (s(sV), s(sV)))
            k("s_lshl_b32 %s, %s, 7" % (s(sV), s(sV)))
            k("s_sub_u32 %s, %s, 0x%x" % (s(sT), s(sFl), L.FLAGS))
            k("v_mov_b32 %s, %s" % (v(t[0]), s(sT)))
            k("v_mov_b32 %s, %s" % (v(t[1]), s(sV)))
            k("s_mov_b64 vcc, 0xff00")
            k("v_cndmask_b32 %s, %s, %s, vcc" % (v(t[0]), v(t[0]), v(t[1])))
            k("s_lshr_b32 %s, %s, 2" % (s(sT), s(sT)))
            k("v_mov_b32 %s, %s" % (v(t[1]), s(sT)))
            k("s_mov_b64 vcc, 0xff")
            k("v_cndmask_b32 %s, %s, %s, vcc" % (v(t[0]), v(t[0]), v(t[1])))
            k("v_bfe_u32 %s, v0, 3, 3" % v(t[1]))
            k("v_lshl_add_u32 %s, %s, 17, %s" % (v(t[0]), v(t[1]), v(t[0])))
            k("v_and_b32 %s, 0x70, %s" % (v(t[1]), v(vrA)))
            k("v_add_u32 %s, %s, %s" % (v(t[0]), v(t[0]), v(t[1])))
            k("s_cmp_eq_u32 %s, 0" % s(sWv))
            k("s_cselect_b32 exec_lo, -1, 0xffffff00")
            k("s_mov_b32 exec_hi, 0xffff")
            k("s_mov_b32 %s, 0x%x" % (s(sT), L.GFLAGS + 131072))
            k("buffer_store_dwordx4 %s, %s, %s, %s offen sc1" % (v(tmp + 4, 4), v(t[0]), WS, s(sT)))
            k("s_mov_b64 exec, -1")
            if self.o.get("DG_1", 1):
                for i in range(4):
                    k("v_mov_b32 %s, -1" % v(tmp + 8 + i))
                k("s_lshl_b32 %s, %s, 11" % (s(sT), s(sWv)))
                k("s_add_u32 %s, %s, %s" % (s(sT), s(sT), s(sQ)))
                k("s_add_u32 %s, %s, 0x%x" % (s(sT), s(sT), L.X3))
                for b in range(2):
                    k("buffer_store_dwordx4 %s, %s, %s, %s offen offset:%d sc1" % (v(tmp + 8, 4), v(vrA), WS, s(sT), 1024 * b))
        side(o.get("N3", 4 if li == 0 else 0))
        while queue and not getattr(queue[0][1], "head", False):
            side()
        if o.get("nogate"):
            k("v_mov_b32 %s, %s" % (v(vP), v(vP)))
        else:
            self.poll_check(vF, sG, data=DG)
        k("s_barrier")
        self.st("s_go")
        if li == 0:
            k("s_or_b32 %s, s2, %s" % (s(sV), s(sWv)))
            k("s_cbranch_scc1 NO_EPOCH")
            k("s_mov_b32 %s, 0x%x" % (s(sV), L.EPOCH))
            self.flag_store(sV)
            k.label("NO_EPOCH")

        def bundle(ks):
            tg = ("b", ks)
            if ks == 16:
                return [(lambda: k("s_add_u32 m0, %s, %d" % (s(sRB), 4 * 2048)), self.dma(vrA, sW1, 0, tg))]
            return [(self.setup(sRB, (ks % 6) * 2048, sT, sX, 0 if o.get("xfix") else ks * 8192), self.dma(vX, sT, 0, tg, " sc1")),
                    (None, self.dma(vX2, sT, 1024, tg, " sc1"))]

        def x_read(ks, n):
            i, ro = ((0, 0), (1, 4), (2, 2), (3, 6))[n]
            return lambda: k("ds_read_b64 %s, %s offset:%d" % (v(XB + 8 * ks + ro, 2), v(vrX), (ks % 6) * 2048 + 512 * i))

        def x_swap(ks, n):
            return lambda: k("v_swap_b32 %s, %s" % (v(XB + 8 * ks + 1 + 2 * n), v(XB + 8 * ks + 4 + 2 * n)))

        def a_read(ks, ft):
            return lambda: k("ds_read_b128 %s, %s offset:%d" % (v(AF + 16 * (ks & 1) + 4 * ft, 4), v(vrA), (4 * ks + ft) * 1024))

        def b1_read(reg, ft):
            return lambda: k("ds_read_b128 %s, %s offset:%d" % (v(reg, 4), v(vB1), 4 * 2048 + 64 * ft))

        def diag(tt):
            def op():
                k("v_cndmask_b32 %s, %s, %s, s[8:9]" % (v(t[tt]), v(SSQ + 4 * tt), v(SSQ + 4 * tt + 1)))
                k("v_cndmask_b32 %s, %s, %s, s[10:11]" % (v(t[tt]), v(t[tt]), v(SSQ + 4 * tt + 2)))
                k("v_cndmask_b32 %s, %s, %s, s[36:37]" % (v(t[tt]), v(t[tt]), v(SSQ + 4 * tt + 3)))
                k("ds_bpermute_b32 %s, %s, %s" % (v(vS + tt), v(t[2]), v(t[tt])))
            return op

        k("s_mov_b32 %s, 0" % s(sG))
        k.label("PASS_A%d" % li)
        for ks in range(D):
            self.issue(bundle(ks))
        for ft in range(4):
            a_read(0, ft)()
        k("v_mov_b32 %s, 0xffff" % v(t[4]))
        k("v_cmp_gt_u32 vcc, 256, %s" % v(vrA))
        k("v_cndmask_b32 %s, -1, %s, vcc" % (v(vS), v(t[4])))
        k("v_and_b32 %s, 12, v0" % v(t[2]))
        k("v_and_b32 %s, 15, v0" % v(t[3]))
        k("v_lshlrev_b32 %s, 7, %s" % (v(vF), v(t[3])))
        k("v_lshl_add_u32 %s, %s, 2, %s" % (v(t[2]), v(t[2]), v(t[3])))
        k("v_lshlrev_b32 %s, 2, %s" % (v(t[2]), v(t[2])))
        k("v_mov_b32 %s, %s" % (v(t[3]), fbits(EPS * EPS)))
        k.wait_tag(("b", 0))
        self.st("first")
        for n in range(4):
            x_read(0, n)()
        x_swap(0, 0)()
        x_swap(0, 1)()
        for ks in range(16):
            k.wait_tag(("b", ks + 1))
            fill = [[] for _ in range(10)]
            ops = bundle(ks + D) if ks + D <= 16 else []
            while len(ops) < (2 if ks < 15 else 0) and queue:
                ops.append(queue.pop(0))
            if 2 <= ks < 16 - D and ks % o.get("XS", 2) == 0 and queue:
                ops.append(queue.pop(0))
            for n, (su, ld) in enumerate(ops):
                if su:
                    fill[(4, 8, 2)[n]].append(su)
                fill[(5, 9, 2)[n]].append(ld)
            if ks < 15:
                for n in range(4):
                    fill[n >> 1].append(x_read(ks + 1, n))
                    fill[(2, 3, 3, 4)[n]].append(a_read(ks + 1, n))
                if ks:
                    fill[1].append(lambda: k.wait(lg=4))
                fill[6].insert(0, lambda: k.wait(lg=4))
                fill[6].append(x_swap(ks + 1, 0))
                fill[7].append(x_swap(ks + 1, 1))
            else:
                for n in range(4):
                    fill[n >> 1].append(b1_read(AF + 4 * n, n))
                fill[4].append(diag(0))
                fill[6].append(diag(1))
            order = list(range(10))
            if ks == 0:
                order = order[2:] + order[:2]
                for tt in range(2):
                    fill[2 + 3 * tt].append(lambda tt=tt: k("v_and_b32 %s, %s, %s\nv_mov_b32 %s, %s" % (
                        v(tmp + 8 + 4 * tt), v(vS), v(XB + 4 * tt), v(tmp + 9 + 4 * tt), v(XB + 4 * tt + 1))))
                    fill[4 + 2 * tt].append(lambda tt=tt: k("v_mov_b32 %s, %s\nv_mov_b32 %s, %s" % (
                        v(tmp + 10 + 4 * tt), v(XB + 4 * tt + 2), v(tmp + 11 + 4 * tt), v(XB + 4 * tt + 3))))
            for pos, m in enumerate(order):
                tt = m & 1
                bb = v(XB + 8 * ks + 4 * tt, 4)
                if m < 2:
                    d = v(SSQ + 4 * tt, 4)
                    k("%s %s, %s, %s, %s" % (MF, d, v(tmp + 8 + 4 * tt, 4) if ks == 0 else bb, bb, d if ks else "0"))
                else:
                    ft = (m - 2) >> 1
                    d = v(acc1(ft, tt), 4)
                    k("%s %s, %s, %s, %s" % (MF, d, v(AF + 16 * (ks & 1) + 4 * ft, 4), bb, d if ks else "0"))
                for op in fill[pos]:
                    op()
        self.st("passA")

        def b_slot(j):
            return AF + 4 * ((j + 4) % 8)

        def b_read(j):
            k("ds_read_b128 %s, %s offset:%d" % (v(b_slot(j), 4), v(vA2), j * 1024))

        if DG:
            k("v_cmp_u_f32 vcc, %s, %s" % (v(vS), v(vS + 1)))
            k("s_cbranch_vccz A_OK%d" % li)
            k("s_add_u32 %s, %s, 1" % (s(sG), s(sG)))
            k("s_waitcnt vmcnt(0) lgkmcnt(0)")
            k("s_nop 7")
            k("s_cmp_lt_u32 %s, 64" % s(sG))
            k("s_cbranch_scc1 PASS_A%d" % li)
            k.label("A_OK%d" % li)
        for j in range(4):
            b_read(j)
        for tt in range(2):
            k("v_fmamk_f32 %s, %s, %s, %s" % (v(vS + tt), v(vS + tt), fbits((1 + EPS) / 512), v(t[3])))
        for tt in range(2):
            k("v_rsq_f32 %s, %s" % (v(vS + tt), v(vS + tt)))

        nunit = [0]

        def gelu(x, tts, bias, store):
            ob = tmp + 8 + 4 * (nunit[0] & 1)
            nunit[0] += 1
            for h in range(4):
                k("v_pk_fma_f32 %s, %s, %s, %s op_sel:[0,%d,0] op_sel_hi:[1,%d,1]"
                  % (v(x + 2 * h, 2), v(x + 2 * h, 2), v(vS, 2), v(bias[h], 2), tts[h], tts[h]))
            for h in range(4):
                k("v_pk_mul_f32 %s, %s, %s" % (v(tmp + 2 * h, 2), v(x + 2 * h, 2), v(x + 2 * h, 2)))
            for h in range(4):
                k("v_pk_fma_f32 %s, %s, %s, %s op_sel:[0,0,1] op_sel_hi:[1,0,1]" % (v(tmp + 2 * h, 2), v(tmp + 2 * h, 2), v(vC, 2), v(vC, 2)))
            for h in range(4):
                k("v_pk_mul_f32 %s, %s, %s" % (v(tmp + 2 * h, 2), v(x + 2 * h, 2), v(tmp + 2 * h, 2)))
            GS = o.get("GS", 3 if li == 0 else 0)
            side(GS // 3)
            for i in range(8):
                k("v_exp_f32 %s, %s" % (v(tmp + i), v(tmp + i)))
            side((GS + 2) // 3)
            for h in range(4):
                k("v_pk_add_f32 %s, %s, 1.0 op_sel_hi:[1,0]" % (v(tmp + 2 * h, 2), v(tmp + 2 * h, 2)))
            for i in range(8):
                k("v_rcp_f32 %s, %s" % (v(tmp + i), v(tmp + i)))
            side((GS + 1) // 3)
            for h in range(4):
                k("v_pk_mul_f32 %s, %s, %s" % (v(tmp + 2 * h, 2), v(x + 2 * h, 2), v(tmp + 2 * h, 2)))
            for h in (0, 2, 1, 3):
                k("v_cvt_pk_bf16_f32 %s, %s, %s" % (v(ob + h), v(tmp + 2 * h), v(tmp + 2 * h + 1)))
            store(ob)

        def st_pair(sb, off, tag):
            return lambda ob: k("buffer_store_dwordx4 %s, %s, %s, %s offen offset:%d sc1" % (v(ob, 4), v(vrA), WS, s(sb), off), tag=tag)

        def st_six(ob):
            k("v_permlane16_swap_b32 %s, %s" % (v(ob), v(ob + 2)))
            k("v_permlane16_swap_b32 %s, %s" % (v(ob + 1), v(ob + 3)))
            k("buffer_store_dwordx4 %s, %s, %s, %s offen sc1" % (v(ob, 4), v(vH6), WS, s(sH6)), tag="hB")

        for tt in range(2):
            for pr in range(2):
                gelu(acc1(2 * pr, tt), [tt] * 4, [AF + 8 * pr + 2 * h for h in range(4)], st_pair(sHA, pr * 1024, "hA"))
            if tt == 0:
                k("s_add_u32 %s, %s, %d" % (s(sHA), s(sHA), TS))
                if li == 1:
                    k("s_barrier")
        park = li == 0 and o.get("park", 1)
        if park:
            k("v_and_b32 %s, 0xf0, %s" % (v(vX), v(vrA)))
            k("v_and_b32 %s, 48, v0" % v(vX2))
            k("v_lshl_add_u32 %s, %s, 6, %s" % (v(vX), v(vX2), v(vX)))

            def w2t(dt):
                def op():
                    self.issued["w2t"] = self.issued.get("w2t", 0) + 1
                    k("buffer_store_dwordx4 %s, %s, %s, %s offen sc1" % (a(224 + 4 * dt, 4), v(vX), WS, s(sT)))
                return (lambda: k("s_add_u32 %s, s29, %d" % (s(sT), dt * 229376)), op)
            at = o.get("WP", 0)
            queue[at:at] = [w2t(dt) for dt in range(8)]
        if li == 1:
            k("s_lshl_b32 %s, %s, 14" % (s(sG), s(sWv)))
            k("s_lshl_b32 %s, %s, 16" % (s(sX), s(sCt)))
            k("s_add_u32 %s, %s, %s" % (s(sX), s(sX), s(sG)))
            k("s_add_u32 %s, %s, 0x%x" % (s(sX), s(sX), L.FT))
            queue[0:0] = [(self.setup(sG, (j >> 2) * 4096, sT, sX, (j >> 2) * 4096) if j & 3 == 0 else None,
                           self.dma(vrA, sT, (j & 3) * 1024, "ft")) for j in range(16)]
        self.st("geluA")

        FA = o.get("FA", 60)
        for j in range(4, 7):
            b_read(j)
        for j in range(48):
            ks, ft = j // 3, 4 + j % 3
            pend = None
            for tt in range(2):
                d = v(acc1(ft, tt), 4)
                k("%s %s, %s, %s, %s" % (MF, d, v(b_slot(j), 4), v(XB + 8 * ks + 4 * tt, 4), d if ks else "0"))
                if tt == 0:
                    if j + 7 < 48:
                        b_read(j + 7)
                    elif j + 7 < 51:
                        b1_read(b_slot(j + 7), j + 7 - 44)()
                    if j & 1 and queue:
                        su, pend = queue.pop(0)
                        if su:
                            su()
                elif pend:
                    pend()
                if 2 * j + tt == FA:
                    self.publish("hA", sFl)
                    k("s_add_u32 %s, %s, 131072" % (s(sFl), s(sFl)))
        self.st("passB")
        RES, BIAS, vRes = AF, AF + 8, vX
        if li == 0:
            assert not park or self.issued["w2t"] == 8
            k("v_bfe_u32 %s, v0, 4, 2" % v(vX2))
            k("v_lshrrev_b32 %s, 4, %s" % (v(vRes), v(vF)))
            k("v_lshl_add_u32 %s, %s, 15, %s" % (v(vRes), v(vX2), v(vRes)))
            k("v_lshlrev_b32 %s, 4, %s" % (v(vX2), v(vX2)))
            k("s_lshl_b32 %s, %s, 1" % (s(sG), s(sCt)))
            k("s_and_b32 %s, %s, 1" % (s(sV), s(sWv)))
            k("s_add_u32 %s, %s, %s" % (s(sG), s(sG), s(sV)))
            k("s_lshl_b32 %s, %s, 17" % (s(sV), s(sG)))
            k("s_add_u32 %s, %s, %s" % (s(sX), s(sX), s(sV)))
            k("s_lshl_b32 %s, %s, 6" % (s(sG), s(sG)))
            k("s_add_u32 %s, %s, 0x%x" % (s(sG), s(sG), L.B2F))
            k("s_lshl_b32 %s, %s, 1" % (s(sT), s(sPhi)))
            k("s_lshr_b32 %s, %s, 1" % (s(sV), s(sWv)))
            k("s_add_u32 %s, %s, %s" % (s(sT), s(sT), s(sV)))
            k("s_lshl_b32 %s, %s, 7" % (s(sHA), s(sT)))
            k("s_add_u32 %s, %s, %s" % (s(sX), s(sX), s(sHA)))
            for r in range(4):
                queue.append((lambda r=r: k("s_add_u32 %s, %s, %d" % (s(sT), s(sX), r * 8192)),
                              lambda r=r: k("buffer_load_dwordx2 %s, %s, %s, %s offen sc1" % (v(RES + 2 * r, 2), v(vRes), WS, s(sT)))))
            for ri in range(2):
                queue.append((None, lambda ri=ri: k("buffer_load_dwordx4 %s, %s, %s, %s offen offset:%d sc1" % (v(BIAS + 4 * ri, 4), v(vX2), WS, s(sG), ri * 1024))))
        else:
            assert self.issued["ft"] == 16
            k("v_and_b32 %s, 48, v0" % v(vX2))
            k("v_lshlrev_b32 %s, 1, %s" % (v(vX2), v(vX2)))
            k("s_lshl_b32 %s, %s, 7" % (s(sG), s(sCt)))
            for e in range(2):
                k("buffer_load_dwordx4 %s, %s, s[40:43], %s offen offset:%d" % (v(RES + 4 * e, 4), v(vX2), s(sG), e * 16))
        PA = o.get("PA", 1)
        bb = b_slot(48)
        for u in range(3):
            if u == PA:
                self.poll_issue(vF, sPl)
            if u < 2:
                gelu(acc1(4, u), [u] * 4, [bb + 2 * h for h in range(4)], st_pair(sHB, 0, "hB"))
                if u == 0:
                    k("s_add_u32 %s, %s, %d" % (s(sHB), s(sHB), TS))
            else:
                gelu(acc1(6, 0), [0, 0, 1, 1], [bb + 8, bb + 10, bb + 8, bb + 10], st_six)
        if PA == 3:
            self.poll_issue(vF, sPl)
        self.st("geluB")

        loads = [(kt, kf) for kt in range(4) for kf in range(8)] + [(kt, kf) for kt in range(4) for kf in range(8, 14)]
        slot = {x: XB + 4 * (j % 32) for j, x in enumerate(loads)}
        acc2 = lambda kt, c: ACC + 16 * kt + 4 * c
        own = [acc2(2 + (g >> 1), 2 + (g & 1)) for g in range(4)] if li == 0 else [acc2(3, g) for g in range(4)]

        def h_load(j):
            kt, kf = loads[j]
            if kf % 4 == 0:
                k("s_add_u32 %s, %s, %d" % ((s(sHst), s(sHt), 0) if o.get("hfix") else (s(sHst), s(sHt + kt), kf * 1024)))
            k("buffer_load_dwordx4 %s, %s, %s, %s offen offset:%d sc1" % (v(slot[loads[j]], 4), v(vrA), WS, s(sHst), (kf & 3) * 1024))

        FB = min(PD - 1, o.get("FB", 10))
        if li == 0:
            side(len(queue))
            self.poll_check(vF, sPl)
            self.st("pollA")
            for j in range(PD):
                h_load(j)
                if j == FB:
                    self.st("g_pre")
                    self.publish("hB", sFl)
                    if park:
                        k("s_sub_u32 %s, s2, 184" % s(sV))
                        k("s_cmp_ge_u32 %s, 56" % s(sV))
                        k("s_cbranch_scc1 NO_WFLAG")
                        k("s_lshl_b32 %s, %s, 2" % (s(sV), s(sV)))
                        k("s_add_u32 %s, %s, %s" % (s(sV), s(sV), s(sWv)))
                        k("s_lshl_b32 %s, %s, 7" % (s(sV), s(sV)))
                        k("s_add_u32 %s, %s, 0x%x" % (s(sV), s(sV), L.WFLAGS))
                        self.flag_store(sV)
                        k.label("NO_WFLAG")
                    self.st("g_pub")
            for tt in range(2):
                for r in range(4):
                    k("v_lshlrev_b32 %s, 16, %s" % (v(own[2 * tt] + r), v(RES + 2 * r + tt)))
                    k("v_and_b32 %s, 0xffff0000, %s" % (v(own[2 * tt + 1] + r), v(RES + 2 * r + tt)))
            for g in range(4):
                for h in (0, 2):
                    k("v_pk_add_f32 %s, %s, %s" % (v(own[g] + h, 2), v(own[g] + h, 2), v(BIAS + 4 * (g & 1) + h, 2)))
        else:
            side(len(queue))
            for c in range(4):
                for h in range(2):
                    k("v_lshlrev_b32 %s, 16, %s" % (v(own[c] + 2 * h), v(RES + 2 * c + h)))
                    k("v_and_b32 %s, 0xffff0000, %s" % (v(own[c] + 2 * h + 1), v(RES + 2 * c + h)))
            k.wait_tag("ft")
            k("s_barrier")
            k("s_cmp_eq_u32 %s, 1" % s(sPhi))
            k("s_cbranch_scc1 X3B")
            for tt in range(2):
                if tt == 1:
                    k.label("X3B")
                for j in range(7):
                    k("ds_read_b128 %s, %s offset:%d" % (v(AF + 4 * j, 4), v(vrA), j * 1024))
                nh = 0
                for j in range(64):
                    ks, c = j >> 2, j & 3
                    d = v(own[c], 4)
                    k("%s %s, %s, %s, %s" % (MF, d, v(AF + 4 * (j % 8), 4), v(XB + 8 * ks + 4 * tt, 4), d))
                    if j + 7 < 64:
                        k("ds_read_b128 %s, %s offset:%d" % (v(AF + 4 * ((j + 7) % 8), 4), v(vrA), (j + 7) * 1024))
                    if c == 1 and ks >= o.get("XH", 1) and nh < PD:
                        if nh == 0:
                            self.poll_check(vF, sPl)
                        assert nh < 2 * ks
                        h_load(nh)
                        nh += 1
                    if j == o.get("FBX", 44):
                        self.publish("hB", sFl)
                for j in range(nh, PD):
                    h_load(j)
                if tt == 0:
                    k("s_branch X3E")
            k.label("X3E")
            self.st("pollA")
        k("s_add_u32 %s, %s, 131072" % (s(sPl), s(sPl)))

        vRW, vRd, vO, vI = vrX, [AF + 16, AF + 17, AF + 18], vX, AF + 19
        late = []
        Q = late.append
        Q("v_add_u32 %s, %s, %s" % (v(vRW), s(sRB), v(vrA)))
        for dl in range(1, 4):
            Q("s_xor_b32 %s, %s, %d\ns_mul_i32 %s, %s, 12288" % (s(sV), s(sWv), dl, s(sV), s(sV)))
            Q("s_add_u32 %s, %s, %d\nv_add_u32 %s, %s, %s" % (s(sV), s(sV), PRIV + (3 ^ dl) * 4096, v(vRd[dl - 1]), s(sV), v(vrA)))
        if li == 1 and o.get("OC", 1):
            Q("s_mul_i32 %s, %s, 2304\ns_add_u32 %s, %s, %d" % (s(sV), s(sWv), s(sV), s(sV), WB))
            Q("v_and_b32 %s, 15, v0\nv_mul_u32_u24 %s, 144, %s" % (v(t[0]), v(t[0]), v(t[0])))
            Q("v_add3_u32 %s, %s, %s, %s\nv_bfe_u32 %s, v0, 3, 3" % (v(vI), v(t[0]), v(vX2), s(sV), v(t[0])))
            Q("v_and_b32 %s, 0x70, %s\nv_mul_u32_u24 %s, 144, %s" % (v(vX2), v(vrA), v(t[1]), v(t[0])))
            Q("v_add3_u32 %s, %s, %s, %s\nv_lshl_add_u32 %s, %s, 1, %s" % (v(vI + 1), v(t[1]), v(vX2), s(sV), v(t[2]), v(t[0]), s(sPhi)))
        elif li == 1:
            Q("v_and_b32 %s, 15, v0\nv_lshl_add_u32 %s, %s, 1, %s" % (v(t[0]), v(t[2]), v(t[0]), s(sPhi)))
        if li == 1:
            Q("v_and_b32 %s, 3, %s\nv_lshrrev_b32 %s, 1, %s" % (v(t[2]), v(t[2]), v(t[0]), v(t[0])))
            Q("v_lshl_add_u32 %s, %s, 5, %s\nv_lshl_add_u32 %s, %s, 10, %s" % (v(t[0]), v(t[2]), v(t[0]), v(vO), v(t[0]), v(vX2)))
            Q("s_lshr_b32 %s, %s, 2\ns_lshl_b32 %s, %s, 9" % (s(sV), s(sP), s(sX), s(sV)))
            Q("s_and_b32 %s, %s, 1\ns_lshl_b32 %s, %s, 8" % (s(sV), s(sP), s(sV), s(sV)))
            Q("s_add_u32 %s, %s, %s\ns_lshr_b32 %s, %s, 1" % (s(sX), s(sX), s(sV), s(sV), s(sWv)))
            Q("s_lshl_b32 %s, %s, 7\ns_add_u32 %s, %s, %s" % (s(sV), s(sV), s(sX), s(sX), s(sV)))
            Q("s_bfe_u32 %s, %s, 0x10001\ns_lshl_b32 %s, %s, 4" % (s(sV), s(sP), s(sV), s(sV)))
            Q("s_add_u32 %s, %s, %s\ns_and_b32 %s, %s, 1" % (s(sX), s(sX), s(sV), s(sV), s(sWv)))
            Q("s_lshl_b32 %s, %s, 3\ns_add_u32 %s, %s, %s" % (s(sV), s(sV), s(sX), s(sX), s(sV)))
            Q("s_lshl_b32 %s, %s, 10\ns_add_u32 %s, %s, %s" % (s(sX), s(sX), s(sX), s(sX), s(sG)))
        else:
            Q("s_add_u32 %s, %s, 0x%x\ns_cmp_eq_u32 %s, 0x%x" % (s(sX), s(sX), (L.X2 - XIN) & 0xffffffff, s(sG), L.B2F) +
              "\ns_cselect_b32 s8, 0xffff, 0")
            Q("s_mov_b32 s9, 0\nv_bfe_u32 %s, v0, 4, 1" % v(t[0]))
            Q("v_lshrrev_b32 %s, 4, %s\nv_lshl_add_u32 %s, %s, 2, %s" % (v(vI), v(vF), v(vI), v(t[0]), v(vI)))
            Q("s_lshl_b32 %s, %s, 9\ns_add_u32 %s, %s, %s" % (s(sV), s(sP), s(sHA), s(sHA), s(sV)))
            Q("s_add_u32 %s, %s, 0x%x" % (s(sHA), s(sHA), L.SSQ2))
            Q("v_min_u32 %s, 0x370, %s\nv_lshlrev_b32 %s, 3, %s" % (v(vF), v(vrA), v(vF), v(vF)))
            Q("s_mul_i32 %s, %s, %d\ns_add_u32 %s, %s, 0x%x" % (s(sPl), s(sWv), 56 * 128, s(sPl), s(sPl), L.WFLAGS))

        def quarter(kap):
            return [acc2(2 * (kap >> 1) + (g >> 1), 2 * (kap & 1) + (g & 1)) for g in range(4)] if li == 0 else [acc2(kap, g) for g in range(4)]

        def block(kts, kfs, cs):
            return [(kt, kf, c) for kt in kts for g0 in range(0, len(kfs), CH) for c in cs for kf in kfs[g0:g0 + CH]]
        A8, B6, ALL = list(range(8)), list(range(8, 14)), list(range(4))
        seq = block(ALL, A8, ALL)
        if li == 0:
            seq += block([0, 1], B6, ALL) + block([2, 3], B6, [0, 1]) + block([2, 3], B6, [2, 3])
            wr = {176 + 6 + 2 * n: (n >> 2, n & 3) for n in range(8)}
        else:
            seq += block(ALL, B6, ALL)
            wr = {152 + 24 * (n >> 2) + 6 + 2 * (n & 3): (n >> 2, n & 3) for n in range(8)}
        wr.update({200 + 5 + n: (2, n) for n in range(4)})
        seen, nld = set(), PD
        RB = o.get("RB", 213)
        for m, (kt, kf, c) in enumerate(seq):
            d = acc2(kt, c)
            first = d not in seen and d not in own
            seen.add(d)
            k("%s %s, %s, %s, %s" % (MF, v(d, 4), a(16 * kf + 4 * c, 4), v(slot[(kt, kf)], 4), "0" if first else v(d, 4)))
            if m == 0:
                self.st("h0")
            if m in (32, 64, 96, 128, 160, 192, 212):
                self.st("g_%d" % m)
            if m % 4 == 1 and nld < 56:
                if nld == 32:
                    self.st("preB")
                    self.poll_check(vF, sPl)
                    self.st("pollB")
                h_load(nld)
                nld += 1
            elif m == 4 * o.get("PB", 10) + 3:
                self.poll_issue(vF, sPl)
            elif m % 2 == 0 and nld > 33 and late:
                k(late.pop(0))
            if park and m == 4 * (56 - PD) + 5:
                assert nld == 56 and not late
                self.poll_issue(vF, sPl)
            if m in wr:
                kap, g = wr[m]
                assert not late
                k("ds_write_b128 %s, %s offset:%d" % (v(vRW), v(quarter(kap)[g], 4), kap * 4096 + g * 1024))
            if m == RB:
                k("s_waitcnt lgkmcnt(0)")
                k("s_barrier")
            if RB <= m < RB + 6:
                for n in (2 * (m - RB), 2 * (m - RB) + 1):
                    k("ds_read_b128 %s, %s offset:%d" % (v(XB + 4 * n, 4), v(vRd[n >> 2]), (n & 3) * 1024))
        self.st("gemm2")
        for n in range(8):
            k("v_pk_add_f32 %s, %s, %s" % (v(XB + 2 * n, 2), v(XB + 2 * n, 2), v(XB + 16 + 2 * n, 2)))
        for n in range(8):
            k("v_pk_add_f32 %s, %s, %s" % (v(XB + 2 * n, 2), v(XB + 2 * n, 2), v(XB + 32 + 2 * n, 2)))
        for n in range(8):
            d = v(own[n >> 1] + 2 * (n & 1), 2)
            k("v_pk_add_f32 %s, %s, %s" % (d, d, v(XB + 2 * n, 2)))
        if li == 0:
            for r in range(4):
                for tt in range(2):
                    k("v_cvt_pk_bf16_f32 %s, %s, %s" % (v(tmp + 2 * r + tt), v(own[2 * tt] + r), v(own[2 * tt + 1] + r)))
                k("s_add_u32 %s, %s, %d" % (s(sT), s(sX), r * 8192))
                k("buffer_store_dwordx2 %s, %s, %s, %s offen sc1" % (v(tmp + 2 * r, 2), v(vRes), WS, s(sT)), tag="xs")
            q = tmp + 8
            for tt in range(2):
                k("v_cndmask_b32 %s, %s, 0, s[8:9]" % (v(own[2 * tt + 1]), v(own[2 * tt + 1])))
            for tt in range(2):
                k("v_pk_mul_f32 %s, %s, %s" % (v(q + 2 * tt, 2), v(own[2 * tt], 2), v(own[2 * tt], 2)))
            for h in (2, 4, 6):
                for tt in range(2):
                    k("v_pk_fma_f32 %s, %s, %s, %s" % (v(q + 2 * tt, 2), v(own[2 * tt] + h, 2), v(own[2 * tt] + h, 2), v(q + 2 * tt, 2)))
            k("v_add_f32 %s, %s, %s" % (v(q), v(q), v(q + 1)))
            k("v_add_f32 %s, %s, %s" % (v(q + 2), v(q + 2), v(q + 3)))
            k("v_permlane16_swap_b32 %s, %s" % (v(q), v(q + 2)))
            k("v_add_f32 %s, %s, %s" % (v(q), v(q), v(q + 2)))
            k("v_mov_b32 %s, %s" % (v(q + 1), v(q)))
            k("v_permlane32_swap_b32 %s, %s" % (v(q), v(q + 1)))
            k("v_add_f32 %s, %s, %s" % (v(q), v(q), v(q + 1)))
            k("s_mov_b32 exec_hi, 0")
            k("buffer_atomic_add_f32 %s, %s, %s, %s offen" % (v(q), v(vI), WS, s(sHA)), tag="xs")
            k("s_mov_b32 exec_hi, -1")
            if park:
                self.poll_check(vF, sPl)
        elif o.get("OC", 1):
            for e in range(2):
                for i in range(4):
                    k("v_cvt_pk_bf16_f32 %s, %s, %s" % (v(tmp + 4 * e + i), v(own[0] + 8 * e + 2 * i), v(own[0] + 8 * e + 2 * i + 1)))
                k("ds_write_b128 %s, %s offset:%d" % (v(vI), v(tmp + 4 * e, 4), 16 * e))
            for e in range(2):
                k("ds_read_b128 %s, %s offset:%d" % (v(tmp + 8 + 4 * e, 4), v(vI + 1), 8 * 144 * e))
            k("s_add_u32 %s, %s, 4096" % (s(sT), s(sX)))
            for e in range(2):
                k("buffer_store_dwordx4 %s, %s, s[44:47], %s offen%s" % (v(tmp + 8 + 4 * e, 4), v(vO), s((sX, sT)[e]), " sc1" if o.get("OS", 1) else ""))
        else:
            for e in range(2):
                for i in range(4):
                    k("v_cvt_pk_bf16_f32 %s, %s, %s" % (v(tmp + 4 * e + i), v(own[0] + 8 * e + 2 * i), v(own[0] + 8 * e + 2 * i + 1)))
                k("buffer_store_dwordx4 %s, %s, s[44:47], %s offen offset:%d" % (v(tmp + 4 * e, 4), v(vO), s(sX), 16 * e))
        self.st("epi")

    def build(self):
        k, o = self.k, self.o
        k.entry(self.name)
        self.layer = 0
        self.col_alloc()
        r = self.c
        k("s_cmp_ge_u32 s2, 256")
        k("s_cbranch_scc1 MAIN_END")
        k_pre.emit(self)
        self.st("p_out")
        self.col_addr()
        k("s_mov_b32 s42, 0x400")
        k("s_mov_b32 s43, 0x20000")
        k("s_mov_b32 s46, 0x200000")
        k("s_mov_b32 s47, 0x20000")
        k("s_lshl_b32 %s, s2, 13" % s(sQ))
        k("s_mul_i32 %s, %s, 12288" % (s(sRB), s(sWv)))
        k("s_add_u32 %s, %s, %d" % (s(sRB), s(sRB), PRIV))
        if o.get("map", 1):
            k("s_and_b32 %s, s2, 6" % s(sP))
            k("s_lshl_b32 %s, %s, 1" % (s(sP), s(sP)))
            k("s_lshr_b32 %s, s2, 6" % s(sT))
            k("s_add_u32 %s, %s, %s" % (s(sP), s(sP), s(sT)))
            k("s_bfe_u32 %s, s2, 0x30003" % s(sI))
            k("s_and_b32 %s, s2, 1" % s(sCt))
            k("s_lshl_b32 %s, %s, 3" % (s(sT), s(sCt)))
            k("s_add_u32 %s, %s, %s" % (s(sI), s(sI), s(sT)))
            k("s_bfe_u32 %s, s2, 0x10005" % s(sPhi))
            k("s_lshl_b32 %s, %s, 2" % (s(sCt), s(sCt)))
            k("s_bfe_u32 %s, s2, 0x20003" % s(sT))
            k("s_add_u32 %s, %s, %s" % (s(sCt), s(sCt), s(sT)))
        else:
            k("s_and_b32 %s, s2, 7" % s(sP))
            k("s_lshl_b32 %s, %s, 1" % (s(sP), s(sP)))
            k("s_lshr_b32 %s, s2, 7" % s(sT))
            k("s_add_u32 %s, %s, %s" % (s(sP), s(sP), s(sT)))
            k("s_bfe_u32 %s, s2, 0x40003" % s(sI))
            k("s_lshr_b32 %s, %s, 3" % (s(sPhi), s(sI)))
            k("s_and_b32 %s, %s, 7" % (s(sCt), s(sI)))
        k("s_lshl_b32 s38, %s, 12" % s(sWv))
        k("s_mul_i32 %s, %s, 114688" % (s(sW1), s(sI)))
        k("s_add_u32 %s, %s, s38" % (s(sW1), s(sW1)))
        k("s_add_u32 %s, %s, 0x%x" % (s(sW1), s(sW1), L.W1F))
        k("s_mul_i32 s39, %s, 229376" % s(sCt))
        k("s_mul_i32 %s, %s, 57344" % (s(sV), s(sWv)))
        k("s_add_u32 s39, s39, %s" % s(sV))
        k("s_and_b32 %s, %s, 1" % (s(sV), s(sWv)))
        k("s_xor_b32 %s, %s, 1" % (s(sV), s(sV)))
        k("s_lshl_b32 %s, %s, 11" % (s(sV), s(sV)))
        k("s_add_u32 %s, s39, %s" % (s(sW2), s(sV)))
        k("s_add_u32 %s, %s, 0x%x" % (s(sW2), s(sW2), L.W2F))
        self.queue += [(self.setup(38, (j >> 2) * 16384, sU, sW1, (j >> 2) * 16384) if j & 3 == 0 else None,
                        self.dma(vrA, sU, (j & 3) * 1024, "w1")) for j in range(28)] + self.w2_ops()
        consts = self.col_consts()
        np_, n0 = o.get("CP", 90), o.get("C0", 170)
        for txt in consts[:np_]:
            k(txt)
        k("s_waitcnt vmcnt(0)")
        k("v_add_u32 %s, 1, %s" % (v(vV), v(vV)))
        k("v_max_u32 %s, 1, %s" % (v(vV), v(vV)))
        k("v_readfirstlane_b32 %s, %s" % (s(sE), v(vV)))
        self.publish_wg(sRec)
        self.st("p_pub")
        for txt in consts[np_:n0]:
            k(txt)
        vF1, vF2 = r.XF, 5
        k("v_and_b32 %s, 15, v0" % v(vF1))
        k("v_and_b32 %s, 16, v0" % v(vF2))
        k("v_lshl_add_u32 %s, %s, 2, %s" % (v(vF1), v(vF2), v(vF1)))
        k("v_lshl_add_u32 %s, %s, 4, %s" % (v(vF1), v(r.t[0]), v(vF1)))
        k("v_lshlrev_b32 %s, 7, %s" % (v(vF1), v(vF1)))
        k("v_and_b32 %s, 31, v0" % v(vF2))
        k("v_lshl_add_u32 %s, %s, 5, %s" % (v(vF2), v(r.t[0]), v(vF2)))
        k("v_lshlrev_b32 %s, 7, %s" % (v(vF2), v(vF2)))
        k("s_mov_b32 %s, 0x%x" % (s(sG), L.PFLAGS))
        self.poll_issue(vF1, sG)
        for txt in consts[n0:]:
            k(txt)
        self.st("c_const")
        self.poll_check(vF1, sG, sleep=o.get("SL0", 0))
        self.st("p_go")
        self.col_load_x()
        self.col_load_w()
        k("s_add_u32 %s, %s, %d" % (s(sG), s(sG), 128 * 128))
        chk = lambda: self.poll_check(vF2, sG)
        EW = o.get("EW", 0)
        if EW:
            vF3, w1q = r.AC, self.queue[:28]
            del self.queue[:28]
            k("v_min_u32 %s, 208, %s" % (v(vF3), v(vrA)))
            k("v_lshlrev_b32 %s, 3, %s" % (v(vF3), v(vF3)))
            k("s_mul_i32 %s, %s, %d" % (s(sHA), s(sWv), 14 * 128))
            k("s_add_u32 %s, %s, 0x%x" % (s(sHA), s(sHA), L.PFLAGS + 184 * 128))
            self.poll_issue(vF3, sHA)

            def after1():
                self.poll_check(vF3, sHA)
                self.poll_issue(vF2, sG)
            self.col_compute(self.col_unpack_w(), None, chk, after1, EW)
            while not getattr(self.queue[0][1], "head", False):
                self.side()
            self.queue[0:0] = w1q
        else:
            self.col_compute(self.col_unpack_w(), None, chk, lambda: self.poll_issue(vF2, sG), 0)
        self.mlp()

        self.layer = 1
        self.st("l2")
        self.col_addr()
        self.col_load_w()
        if o.get("cp2", 1):
            k("s_getpc_b64 s[8:9]")
            k.raw("L2_PC:")
            k("s_mov_b32 s10, CODE_END-L2_PC")
            k("s_mov_b32 s11, 0x20000")
            k("v_lshlrev_b32 %s, 7, v0" % v(r.XF))
            k("s_cmp_ge_u32 s2, %d" % o.get("cp2w", 16))
            k("s_cbranch_scc1 NO_CP2")
            k("buffer_load_dword v5, %s, s[8:11], 0 offen" % v(r.XF))
            k.label("NO_CP2")
        k("s_add_u32 %s, s39, 0x%x" % (s(sW2), L.W2T))
        self.queue += self.w2_ops()
        consts = self.col_consts() + self.col_unpack_w()
        n1, n7 = o.get("C1", 120), o.get("N7", 8)
        for j, txt in enumerate(consts[:n1]):
            k(txt)
            if j % 14 == 8 and j // 14 < n7:
                self.side()
        k("s_lshl_b32 %s, %s, 4" % (s(sV), s(sP)))
        k("s_add_u32 %s, %s, %s" % (s(sV), s(sV), s(sI)))
        k("s_lshl_b32 %s, %s, 7" % (s(sV), s(sV)))
        k("s_add_u32 %s, %s, 0x%x" % (s(sV), s(sV), L.GFLAGS + 131072))
        k.wait_tag("xs")
        self.publish_wg(sV)
        self.st("s2_pub")
        rest, n4 = consts[n1:], o.get("N4", 14)
        per = -(-len(rest) // max(1, n4))
        for j in range(n4):
            self.side()
            for txt in rest[:per]:
                k(txt)
            del rest[:per]
        for txt in rest:
            k(txt)
        if o.get("S2D"):
            k("s_sleep %d" % o["S2D"])
        k("v_lshlrev_b32 %s, 7, v0" % v(r.t[1]))
        k("s_mov_b32 %s, 0x%x" % (s(sG), L.GFLAGS + 131072))
        self.st("s2_pi")
        self.poll_issue(r.t[1], sG)
        self.side(o.get("N5", 0))
        self.poll_check(r.t[1], sG)
        self.st("s2_go")
        self.col_load_x()
        self.side(o.get("N6", 8))
        self.col_compute([], NC=o.get("NC", 0))
        self.mlp()
        self.st("end", final=True)
        k.label("MAIN_END")
        k("s_endpgm")
        return k


def build(name, stamp=None, opts=None):
    return Main(name, stamp, opts).build()
```

```python
import math
from asmlib import Alloc, v, a, s, fbits
import layout as L

MF = "v_mfma_f32_16x16x32_bf16"
WS = "s[4:7]"
IN, IN2 = 8, 12
PITCH = 1088
IMG = 40960
vrA = 1
sWv, sE, sRec = 3, 48, 49
ST = "buffer_store_dwordx4 %s, %s, " + WS + ", %s offen offset:%d sc1"


def split14(k, sS, sU, sT):
    k("s_mul_i32 %s, %s, 4682" % (s(sS), s(sT)))
    k("s_lshr_b32 %s, %s, 16" % (s(sS), s(sS)))
    k("s_mul_i32 %s, %s, 14" % (s(sU), s(sS)))
    k("s_sub_u32 %s, %s, %s" % (s(sU), s(sT), s(sU)))


def emit(M):
    k, st = M.k, M.st
    va = Alloc(6, 256)
    vn, vg, vfn, vfg4 = va(), va(), va(), va()
    t = [va() for _ in range(8)]
    A = va(32, 4)
    D = va(64, 4)
    RAW = D
    B1re, B1im, A2re, A2im, S2re, S2im, TC, TS = (va(4, 4) for _ in range(8))
    tmp = va(16, 4)
    O = va(32, 4)
    BS = va(32, 4)
    sM0, sM8, sDC, sT, sA, sB, sC, sLds, sSelLo, sSelHi = 32, 34, 36, 37, 38, 39, 42, 43, 46, 47
    sS, sU, sG, sRole = 16, 17, 18, 19

    k("s_load_dwordx16 s[16:31], s[0:1], 0")
    k("s_load_dwordx2 s[4:5], s[0:1], 80")
    k("s_load_dwordx2 s[44:45], s[0:1], 64")
    k("s_load_dwordx2 s[40:41], s[0:1], 56")
    if M.o.get("cpf", 1):
        k("s_getpc_b64 s[12:13]")
        k.raw("PRE_PC:")
        k("s_sub_u32 s12, s12, PRE_PC-%s" % M.name)
        k("s_subb_u32 s13, s13, 0")
        k("s_mov_b32 s14, CODE_END-%s" % M.name)
        k("s_mov_b32 s15, 0x20000")
        k("v_lshlrev_b32 %s, 7, v0" % v(t[0]))
        k("s_bfe_u32 %s, s2, 0x10003" % s(sC))
        k("s_lshl_b32 %s, %s, 15" % (s(sC), s(sC)))
        k("s_cmp_lt_u32 s2, 240")
        k("s_cbranch_scc1 PRE_NOPF")
        k("buffer_load_dword v2, %s, s[12:15], %s offen" % (v(t[0]), s(sC)))
        k.label("PRE_NOPF")
    st("start")
    k("v_lshrrev_b32 %s, 6, v0" % v(t[0]))
    k("v_and_b32 %s, 63, v0" % v(vrA))
    k("v_readfirstlane_b32 %s, %s" % (s(sWv), v(t[0])))
    k("v_and_b32 %s, 15, v0" % v(vn))
    k("v_lshrrev_b32 %s, 4, %s" % (v(vg), v(vrA)))
    k("v_lshlrev_b32 %s, 4, %s" % (v(vrA), v(vrA)))
    k("s_mov_b32 s6, 0x%x" % L.WS_USED)
    k("s_mov_b32 s7, 0x20000")
    k("s_mov_b32 %s, 0x20000" % s(IN + 3))
    k("s_mov_b32 %s, 0x05040100" % s(sSelLo))
    k("s_mov_b32 %s, 0x07060302" % s(sSelHi))
    k("s_mov_b32 %s, 0x00010001" % s(sM0))
    k("s_mov_b32 %s, 0x00010001" % s(sM0 + 1))
    k("s_mov_b32 %s, 0xff00ff00" % s(sM8))
    k("s_mov_b32 %s, 0xff00ff00" % s(sM8 + 1))
    k("s_mov_b32 %s, %s" % (s(sDC), fbits(1 / (16 * math.sqrt(2)))))
    k("v_cvt_f32_u32 %s, %s" % (v(vfn), v(vn)))
    k("v_lshlrev_b32 %s, 2, %s" % (v(t[1]), v(vg)))
    k("v_cvt_f32_u32 %s, %s" % (v(vfg4), v(t[1])))
    k("s_mov_b32 %s, s2" % s(sRec))
    k("s_mul_i32 %s, %s, %d" % (s(sLds), s(sWv), 8 * PITCH))
    k("s_cmp_ge_u32 s2, 240")
    k("s_cbranch_scc1 PRE_MISC")
    k("s_cmp_ge_u32 s2, 184")
    k("s_cbranch_scc1 PRE_IN_W2")
    k("s_cmp_ge_u32 s2, 128")
    k("s_cbranch_scc1 PRE_IN_W1")
    k("s_cmp_ge_u32 s2, 64")
    k("s_cbranch_scc1 PRE_FILT")

    def warm(q, sx):
        k("s_lshl_b32 %s, %s, 7" % (s(sRec), s(sRec)))
        k("s_add_u32 %s, %s, 0x%x" % (s(sRec), s(sRec), L.PFLAGS))
        k("v_lshrrev_b32 v4, 2, %s" % v(vrA))
        k("v_mov_b32 %s, 0" % v(q))
        k("s_mov_b32 %s, 0x%x" % (s(sx), L.EPOCH))
        k("buffer_load_dword v3, %s, %s, %s offen sc1" % (v(q), WS, s(sx)))
        k("s_lshl_b32 %s, %s, 8" % (s(sx), s(sWv)))
        k("s_add_u32 %s, %s, s2" % (s(sx), s(sx)))
        k("s_lshl_b32 %s, %s, 7" % (s(sx), s(sx)))
        k("s_add_u32 %s, %s, 0x%x" % (s(sx), s(sx), L.GFLAGS))
        k("s_mov_b32 exec_hi, 0")
        k("buffer_store_dword %s, v4, %s, %s offen sc1" % (v(q), WS, s(sx)), tag="wm")
        k("s_cmp_eq_u32 %s, 0" % s(sWv))
        k("s_cselect_b32 %s, %s, %s" % (s(sx), s(sRec), s(sx)))
        k("s_lshl_b32 %s, s2, 7" % s(sE))
        k("s_add_u32 %s, %s, 0x%x" % (s(sE), s(sE), L.SSQ0))
        k("s_cmp_lt_u32 s2, 64")
        k("s_cselect_b32 %s, %s, %s" % (s(sE), s(sE), s(sx)))
        k("s_cmp_eq_u32 %s, 1" % s(sWv))
        k("s_cselect_b32 %s, %s, %s" % (s(sx), s(sE), s(sx)))
        k("buffer_store_dword %s, v4, %s, %s offen sc1" % (v(q), WS, s(sx)), tag="wm")
        k("s_mov_b32 exec_hi, -1")

    def w2_rows(sa, sb):
        k("s_lshr_b32 %s, %s, 2" % (s(sG), s(sU)))
        k("s_mul_i32 %s, %s, 112" % (s(sa), s(sS)))
        k("s_lshl_b32 %s, %s, 5" % (s(sC), s(sG)))
        k("s_add_u32 %s, %s, %s" % (s(sa), s(sa), s(sC)))
        k("s_and_b32 %s, %s, 3" % (s(sC), s(sU)))
        k("s_cmp_eq_u32 %s, 3" % s(sG))
        k("s_cselect_b32 %s, 3, 2" % s(sb))
        k("s_cselect_b32 %s, 4, 16" % s(sG))
        k("s_lshl_b32 %s, %s, %s" % (s(sC), s(sC), s(sb)))
        k("s_add_u32 %s, %s, %s" % (s(sa), s(sa), s(sC)))
        k("s_add_u32 %s, %s, %s" % (s(sb), s(sa), s(sG)))
        k("s_lshl_b32 %s, %s, 10" % (s(sa), s(sa)))
        k("s_lshl_b32 %s, %s, 10" % (s(sb), s(sb)))

    def w2_frag(sd):
        k("s_and_b32 %s, %s, 3" % (s(sB), s(sS)))
        k("s_lshr_b32 %s, %s, 2" % (s(sC), s(sU)))
        k("s_lshl_b32 %s, %s, 1" % (s(sd), s(sB)))
        k("s_add_u32 %s, %s, %s" % (s(sd), s(sd), s(sC)))
        k("s_add_u32 %s, %s, 8" % (s(sG), s(sB)))
        k("s_cmp_eq_u32 %s, 2" % s(sC))
        k("s_cselect_b32 %s, %s, %s" % (s(sd), s(sG), s(sd)))
        k("s_lshr_b32 %s, %s, 1" % (s(sG), s(sB)))
        k("s_add_u32 %s, %s, 12" % (s(sG), s(sG)))
        k("s_and_b32 %s, %s, 1" % (s(sB), s(sB)))
        k("s_lshl_b32 %s, %s, 1" % (s(sB), s(sB)))
        k("s_cmp_eq_u32 %s, 3" % s(sC))
        k("s_cselect_b32 %s, %s, %s" % (s(sd), s(sG), s(sd)))
        k("s_cselect_b32 %s, %s, 0" % (s(sB), s(sB)))
        k("s_and_b32 %s, %s, 3" % (s(sG), s(sU)))
        k("s_add_u32 %s, %s, %s" % (s(sG), s(sG), s(sB)))
        k("s_lshr_b32 %s, %s, 2" % (s(sB), s(sS)))
        k("s_mul_i32 %s, %s, 14" % (s(sB), s(sB)))
        k("s_add_u32 %s, %s, %s" % (s(sd), s(sd), s(sB)))
        k("s_lshl_b32 %s, %s, 12" % (s(sd), s(sd)))
        k("s_lshl_b32 %s, %s, 8" % (s(sG), s(sG)))
        k("s_add_u32 %s, %s, %s" % (s(sd), s(sd), s(sG)))

    def dma_rows(soff_of_row):
        for j in range(8):
            k("s_add_u32 m0, %s, %d" % (s(sLds), j * PITCH))
            soff_of_row(j)
            k("buffer_load_dwordx4 %s, %s, %s offen lds" % (v(vrA), s(IN, 4), s(sC)), tag="in")

    k("s_mov_b32 %s, 0x200000" % s(IN + 2))
    k("s_mov_b64 %s, s[16:17]" % s(IN, 2))
    k("s_lshr_b32 %s, s2, 4" % s(sA))
    k("s_lshl_b32 %s, %s, 9" % (s(sA), s(sA)))
    k("s_bfe_u32 %s, s2, 0x10003" % s(sC))
    k("s_lshl_b32 %s, %s, 4" % (s(sC), s(sC)))
    k("s_add_u32 %s, %s, %s" % (s(sA), s(sA), s(sC)))
    k("s_bfe_u32 %s, s2, 0x20001" % s(sC))
    k("s_lshl_b32 %s, %s, 7" % (s(sC), s(sC)))
    k("s_add_u32 %s, %s, %s" % (s(sA), s(sA), s(sC)))
    k("s_and_b32 %s, s2, 1" % s(sC))
    k("s_lshl_b32 %s, %s, 2" % (s(sC), s(sC)))
    k("s_add_u32 %s, %s, %s" % (s(sC), s(sC), s(sWv)))
    k("s_lshl_b32 %s, %s, 1" % (s(sC), s(sC)))
    k("s_add_u32 %s, %s, %s" % (s(sA), s(sA), s(sC)))
    k("s_lshl_b32 %s, %s, 10" % (s(sA), s(sA)))
    dma_rows(lambda j: k("s_add_u32 %s, %s, %d" % (s(sC), s(sA), (32 * (j & 3) + (j >> 2)) * 1024)))
    k("s_mov_b32 %s, 0" % s(sRole))
    k("s_branch PRE_CONST")

    k.label("PRE_IN_W2")
    k("s_mov_b32 %s, 0x1c0000" % s(IN + 2))
    k("s_mov_b64 %s, s[28:29]" % s(IN, 2))
    k("s_sub_u32 %s, s2, 184" % s(sT))
    k("s_lshl_b32 %s, %s, 2" % (s(sT), s(sT)))
    k("s_add_u32 %s, %s, %s" % (s(sT), s(sT), s(sWv)))
    split14(k, sS, sU, sT)
    w2_rows(sA, sB)
    w2_in = lambda: dma_rows(lambda j: k("s_add_u32 %s, %s, %d" % (s(sC), s(sB if j >= 4 else sA), (j & 3) * 1024)))
    late = M.o.get("wl", 1)
    if not late & 1:
        w2_in()
    k("s_mov_b32 %s, 1" % s(sRole))
    k("s_branch PRE_CONST")

    k.label("PRE_MISC")
    k("s_lshl_b32 %s, s2, 2" % s(sT))
    k("s_add_u32 %s, %s, %s" % (s(sT), s(sT), s(sWv)))
    k("s_cmp_eq_u32 %s, 1016" % s(sT))
    k("s_cbranch_scc1 PRE_IN_B2")
    warm(BS, sC)
    k("s_cmp_eq_u32 %s, 1017" % s(sT))
    k("s_cbranch_scc1 PRE_B1")
    k("s_cmp_eq_u32 %s, 1018" % s(sT))
    k("s_cbranch_scc1 PRE_ZERO")
    k("s_branch PRE_FT")
    k.label("PRE_IN_B2")
    k("s_mov_b32 %s, 0x400" % s(IN + 2))
    k("s_mov_b64 %s, s[30:31]" % s(IN, 2))
    dma_rows(lambda j: k("s_mov_b32 %s, %d" % (s(sC), j * 1024)))
    k("s_mov_b32 %s, 3" % s(sRole))
    k("s_branch PRE_CONST")
    k.label("PRE_B1")
    k("s_mov_b32 %s, 3584" % s(IN + 2))
    k("s_mov_b64 %s, s[26:27]" % s(IN, 2))
    k("v_lshrrev_b32 %s, 1, %s" % (v(t[1]), v(vrA)))
    for j in range(7):
        k("buffer_load_dwordx2 %s, %s, %s, 0 offen offset:%d" % (v(RAW + 2 * j, 2), v(t[1]), s(IN, 4), j * 512))
    for j in range(7):
        for h in range(2):
            k("v_lshlrev_b32 %s, 16, %s" % (v(O + 4 * j + 2 * h), v(RAW + 2 * j + h)))
            k("v_and_b32 %s, 0xffff0000, %s" % (v(O + 4 * j + 2 * h + 1), v(RAW + 2 * j + h)))
        k("s_mov_b32 %s, 0x%x" % (s(sC), L.B1X + j * 1024))
        k(ST % (v(O + 4 * j, 4), v(vrA), s(sC), 0), tag="p0")
    k("s_branch PRE_FT")
    k.label("PRE_ZERO")
    for i in range(4):
        k("v_mov_b32 %s, 0" % v(O + i))
    for j in range(8):
        k("s_mov_b32 %s, 0x%x" % (s(sC), L.SSQ2 + j * 1024))
        k(ST % (v(O, 4), v(vrA), s(sC), 0), tag="p0")

    def inv_table():
        k("s_lshr_b32 %s, %s, 5" % (s(sA), s(sRole)))
        k("s_lshl_b32 %s, %s, 6" % (s(sA), s(sA)))
        k("s_and_b32 %s, %s, 1" % (s(sB), s(sRole)))
        k("s_lshl_b32 %s, %s, 3" % (s(sB), s(sB)))
        k("s_add_u32 %s, %s, %s" % (s(sA), s(sA), s(sB)))
        k("s_bfe_u32 %s, %s, 0x40001" % (s(sB), s(sRole)))
        k("s_lshl_b32 %s, %s, 11" % (s(sT), s(sRole)))
        k("s_add_u32 %s, %s, 0x%x" % (s(sT), s(sT), L.FT))
        k("v_and_b32 %s, 12, %s" % (v(t[5]), v(vn)))
        k("v_and_b32 %s, 3, %s" % (v(t[4]), v(vn)))
        k("v_lshl_add_u32 %s, %s, 2, %s" % (v(t[4]), v(t[5]), v(t[4])))
        k("v_add_u32 %s, %s, %s" % (v(t[4]), s(sA), v(t[4])))
        k("s_mov_b32 %s, 0" % s(sM8))
        k("s_mov_b32 %s, -1" % s(sM8 + 1))
        k("v_mov_b32 %s, %s" % (v(t[6]), fbits(1 / 16)))
        k("v_mov_b32 %s, %s" % (v(t[7]), s(sDC)))
        k("s_cmp_eq_u32 %s, 0" % s(sB))
        k("s_cselect_b64 vcc, -1, 0")
        for i in range(4):
            kk = tmp + i
            k("v_lshl_add_u32 %s, %s, 7, %s" % (v(kk), v(vg), s(sB)))
            k("v_add_u32 %s, %d, %s" % (v(kk), 32 * i, v(kk)))
            k("v_sub_u32 %s, 512, %s" % (v(t[5]), v(kk)))
            k("v_add_u32 %s, %d, %s" % (v(t[1]), -240, v(kk)))
            k("v_cndmask_b32 %s, %s, %s, vcc" % (v(t[5]), v(t[5]), v(t[1])))
            k("v_cndmask_b32 %s, %s, %s, %s" % (v(kk), v(kk), v(t[5]), s(sM8, 2)))
        k("v_cmp_eq_u32 vcc, 0, %s" % v(tmp))
        k("v_mov_b32 %s, 256" % v(t[5]))
        k("v_cndmask_b32 %s, %s, %s, vcc" % (v(tmp), v(tmp), v(t[5])))
        k("v_cndmask_b32 %s, %s, %s, vcc" % (v(t[5]), v(t[6]), v(t[7])))
        for c in range(2):
            k("v_add_u32 %s, %d, %s" % (v(t[1]), 4 * c, v(t[4])))
            for i in range(4):
                an, cs, sn = tmp + 4 + i, tmp + 8 + i, tmp + 12 + i
                k("v_mul_u32_u24 %s, %s, %s" % (v(an), v(tmp + i), v(t[1])))
                k("v_and_b32 %s, 511, %s" % (v(an), v(an)))
                k("v_cvt_f32_u32 %s, %s" % (v(an), v(an)))
                k("v_mul_f32 %s, %s, %s" % (v(an), fbits(1 / 512), v(an)))
                k("v_cos_f32 %s, %s" % (v(cs), v(an)))
                k("v_sin_f32 %s, %s" % (v(sn), v(an)))
            for i in range(4):
                cs, sn = tmp + 8 + i, tmp + 12 + i
                k("v_mul_f32 %s, %s, %s" % (v(cs), v(t[5] if i == 0 else t[6]), v(cs)))
                k("v_mul_f32 %s, %s, %s" % (v(sn), fbits(-1 / 16), v(sn)))
                if i == 0:
                    k("v_cndmask_b32 %s, %s, %s, vcc" % (v(sn), v(sn), v(t[7])))
                k("v_cvt_pk_bf16_f32 %s, %s, %s" % (v(BS + 4 + 4 * c + i), v(cs), v(sn)))
            k(ST % (v(BS + 4 + 4 * c, 4), v(vrA), s(sT), c * 1024), tag="p0")

    k.label("PRE_FT")
    k("s_sub_u32 %s, s2, 240" % s(sRole))
    k("s_lshl_b32 %s, %s, 2" % (s(sRole), s(sRole)))
    k("s_add_u32 %s, %s, %s" % (s(sRole), s(sRole), s(sWv)))
    k.label("PRE_FT_LOOP")
    inv_table()
    k("s_add_u32 %s, %s, 64" % (s(sRole), s(sRole)))
    k("s_cmp_lt_u32 %s, 256" % s(sRole))
    k("s_cbranch_scc1 PRE_FT_LOOP")
    k("s_branch PRE_DONE")

    k.label("PRE_FILT")
    k("s_mov_b32 %s, %d" % (s(IN + 2), 2048 * 514))
    k("s_mov_b32 %s, %d" % (s(IN2 + 2), 2048 * 514))
    k("s_mov_b32 %s, 0x20000" % s(IN2 + 3))
    k("s_mov_b64 %s, s[18:19]" % s(IN, 2))
    k("s_mov_b64 %s, s[20:21]" % s(IN2, 2))
    sCb, sRb = sS, sU
    k("s_and_b32 %s, s2, 7" % s(sRb))
    k("s_lshl_b32 %s, %s, 2" % (s(sRb), s(sRb)))
    k("s_bfe_u32 %s, s2, 0x20004" % s(sC))
    k("s_add_u32 %s, %s, %s" % (s(sRb), s(sRb), s(sC)))
    k("s_bfe_u32 %s, s2, 0x10003" % s(sC))
    k("s_lshl_b32 %s, %s, 1" % (s(sRec), s(sRb)))
    k("s_add_u32 %s, %s, %s" % (s(sRec), s(sRec), s(sC)))
    k("s_add_u32 %s, %s, 64" % (s(sRec), s(sRec)))
    k("s_lshl_b32 %s, %s, 2" % (s(sCb), s(sC)))
    k("s_add_u32 %s, %s, %s" % (s(sCb), s(sCb), s(sWv)))
    k("s_lshr_b32 %s, %s, 3" % (s(sA), s(sRb)))
    k("s_lshl_b32 %s, %s, 4" % (s(sA), s(sA)))
    k("s_and_b32 %s, %s, 7" % (s(sC), s(sRb)))
    k("s_lshl_b32 %s, %s, 8" % (s(sC), s(sC)))
    k("s_add_u32 %s, %s, %s" % (s(sA), s(sA), s(sC)))
    k("s_mul_i32 %s, %s, 514" % (s(sA), s(sA)))
    k("s_lshl_b32 %s, %s, 6" % (s(sC), s(sCb)))
    k("s_add_u32 %s, %s, %s" % (s(sA), s(sA), s(sC)))
    k("v_bfe_u32 %s, v0, 2, 4" % v(t[1]))
    k("v_mul_u32_u24 %s, 514, %s" % (v(t[0]), v(t[1])))
    k("v_and_b32 %s, 48, %s" % (v(t[2]), v(vrA)))
    k("v_add_u32 %s, %s, %s" % (v(t[0]), v(t[2]), v(t[0])))
    for r in range(4):
        k("s_add_u32 %s, %s, %d" % (s(sC), s(sA), r * 64 * 514 + 2))
        k("buffer_load_dwordx4 %s, %s, %s, %s offen" % (v(A + 8 * r, 4), v(t[0]), s(IN, 4), s(sC)))
        k("buffer_load_dwordx4 %s, %s, %s, %s offen" % (v(A + 8 * r + 4, 4), v(t[0]), s(IN2, 4), s(sC)))
    k("v_mul_u32_u24 %s, 17, %s" % (v(t[2]), v(t[2])))
    k("v_lshl_add_u32 %s, %s, 4, %s" % (v(t[2]), v(t[1]), v(t[2])))
    k("v_add_u32 %s, %s, %s" % (v(t[2]), s(sLds), v(t[2])))
    k("v_lshl_add_u32 %s, %s, 4, %s" % (v(t[3]), v(vg), v(vrA)))
    k("v_add_u32 %s, %s, %s" % (v(t[3]), s(sLds), v(t[3])))
    q0, qs, q7 = t[4], t[5], t[6]
    k("s_lshl_b32 %s, %s, 4" % (s(sA), s(sCb)))
    k("s_add_u32 %s, %s, 1" % (s(sB), s(sA)))
    k("v_lshl_add_u32 %s, %s, 3, %s" % (v(q0), v(vg), s(sB)))
    k("s_sub_u32 %s, 271, %s" % (s(sB), s(sA)))
    k("v_lshlrev_b32 %s, 3, %s" % (v(t[7]), v(vg)))
    k("v_sub_u32 %s, %s, %s" % (v(t[7]), s(sB), v(t[7])))
    k("s_mov_b32 vcc_lo, 0")
    k("s_mov_b32 vcc_hi, -1")
    k("v_cndmask_b32 %s, %s, %s, vcc" % (v(q0), v(q0), v(t[7])))
    k("v_cndmask_b32 %s, 1, -1, vcc" % v(qs))
    k("s_add_u32 %s, %s, 128" % (s(sB), s(sA)))
    k("s_add_u32 %s, %s, 16" % (s(sC), s(sA)))
    k("s_and_b32 %s, %s, 127" % (s(sC), s(sC)))
    k("v_mov_b32 %s, %s" % (v(q7), s(sB)))
    k("v_mov_b32 %s, %s" % (v(t[7]), s(sC)))
    k("v_cndmask_b32 %s, %s, %s, vcc" % (v(q7), v(q7), v(t[7])))
    k("v_mad_i32_i24 %s, %s, 7, %s" % (v(t[7]), v(qs), v(q0)))
    k("s_mov_b32 vcc_lo, 0xffff0000")
    k("s_mov_b32 vcc_hi, 0xffff0000")
    k("v_cndmask_b32 %s, %s, %s, vcc" % (v(q7), v(t[7]), v(q7)))
    k("v_lshlrev_b32 %s, 4, %s" % (v(t[7]), v(vn)))
    k("v_lshl_add_u32 %s, %s, 13, %s" % (v(q0), v(q0), v(t[7])))
    k("v_lshl_add_u32 %s, %s, 13, %s" % (v(q7), v(q7), v(t[7])))
    k("v_lshlrev_b32 %s, 13, %s" % (v(qs), v(qs)))
    k("s_lshl_b32 %s, %s, 8" % (s(sC), s(sRb)))
    k("s_add_u32 %s, %s, 0x%x" % (s(sC), s(sC), L.WT))
    warm(BS, sB)
    for j in range(8):
        k("ds_write_b128 %s, %s offset:%d" % (v(t[2]), v(A + 4 * j, 4), j * PITCH))
    for j in range(8):
        k("ds_read_b128 %s, %s offset:%d" % (v(RAW + 4 * j, 4), v(t[3]), j * PITCH))
    for e in range(8):
        for r in range(4):
            k("v_perm_b32 %s, %s, %s, %s" % (v(O + 4 * e + r), v(RAW + 8 * r + 4 + (e >> 1)), v(RAW + 8 * r + (e >> 1)),
                                            s(sSelHi if e & 1 else sSelLo)))
        k(ST % (v(O + 4 * e, 4), v(q7 if e == 7 else q0), s(sC), 0), tag="p0")
        if e < 6:
            k("v_add_u32 %s, %s, %s" % (v(q0), v(q0), v(qs)))
    k("s_branch PRE_DONE")

    k.label("PRE_IN_W1")
    k("s_mov_b32 %s, 0x1c0000" % s(IN + 2))
    k("s_mov_b64 %s, s[24:25]" % s(IN, 2))
    k("s_and_b32 %s, s2, 7" % s(sT))
    k("s_mul_i32 %s, %s, 7" % (s(sT), s(sT)))
    k("s_bfe_u32 %s, s2, 0x30003" % s(sC))
    k("s_add_u32 %s, %s, %s" % (s(sT), s(sT), s(sC)))
    k("s_mul_i32 %s, %s, %d" % (s(sA), s(sWv), 128 * 3584))
    k("s_lshl_b32 %s, %s, 6" % (s(sC), s(sT)))
    k("s_add_u32 %s, %s, %s" % (s(sA), s(sA), s(sC)))
    k("s_lshl_b32 %s, %s, 13" % (s(sB), s(sWv)))

    def w1_in():
        k("v_bfe_u32 %s, v0, 2, 4" % v(A))
        k("v_mul_u32_u24 %s, 3584, %s" % (v(A), v(A)))
        k("v_xor_b32 %s, v0, %s" % (v(A + 1), v(vg)) if M.o.get("swz", 1) else "v_mov_b32 %s, v0" % v(A + 1))
        k("v_and_b32 %s, 3, %s" % (v(A + 1), v(A + 1)))
        k("v_lshl_add_u32 %s, %s, 4, %s" % (v(A), v(A + 1), v(A)))
        for j in range(8):
            k("s_add_u32 m0, %s, %d" % (s(sB), j * 1024))
            k("s_add_u32 %s, %s, %d" % (s(sC), s(sA), j * 16 * 3584))
            k("buffer_load_dwordx4 %s, %s, %s offen lds" % (v(A), s(IN, 4), s(sC)), tag="in")
    if not late & 2:
        w1_in()
    k("s_lshl_b32 %s, %s, 2" % (s(sT), s(sT)))
    k("s_add_u32 %s, %s, %s" % (s(sT), s(sT), s(sWv)))
    k("s_mov_b32 %s, 0" % s(sDC))
    k("s_mov_b32 %s, 2" % s(sRole))

    k.label("PRE_CONST")
    f1, b1, f2, b2 = t[0], t[1], t[2], t[3]
    k("v_mul_f32 %s, %s, %s" % (v(f1), fbits(1 / 32), v(vfn)))
    k("v_mul_f32 %s, %s, %s" % (v(b1), v(f1), v(vfg4)))
    k("v_cndmask_b32 %s, %s, 0.5, %s" % (v(f2), v(f1), s(sM0, 2)))
    k("v_mov_b32 %s, %s" % (v(t[4]), fbits(0.25)))
    k("v_cndmask_b32 %s, %s, 0, %s" % (v(t[4]), v(t[4]), s(sM0, 2)))
    k("v_fma_f32 %s, %s, %s, %s" % (v(b2), v(f2), v(vfg4), v(t[4])))
    for jj in range(8):
        c = fbits(16 * (jj >> 2) + (jj & 3))
        k("v_fmamk_f32 %s, %s, %s, %s" % (v(tmp + jj), v(f1), c, v(b1)))
        k("v_fmamk_f32 %s, %s, %s, %s" % (v(tmp + 8 + jj), v(f2), c, v(b2)))
    for i in range(16):
        k("v_cos_f32 %s, %s" % (v(tmp + i), v(tmp + i)))
    for i in range(4):
        k("v_cvt_pk_bf16_f32 %s, %s, %s" % (v(B1re + i), v(tmp + 2 * i), v(tmp + 2 * i + 1)))
        k("v_cvt_pk_bf16_f32 %s, %s, %s" % (v(B1im + i), v(tmp + 8 + 2 * i), v(tmp + 8 + 2 * i + 1)))
    def late_loads():
        if late & 1:
            k("s_cmp_eq_u32 %s, 1" % s(sRole))
            k("s_cbranch_scc0 PRE_L1")
            w2_in()
            k.label("PRE_L1")
        if late & 2:
            k("s_cmp_eq_u32 %s, 2" % s(sRole))
            k("s_cbranch_scc0 PRE_L2")
            w1_in()
            k.label("PRE_L2")
    if M.o.get("wp", 1) == 0:
        late_loads()
    ftw, fa2, fs2, sctw, scs, vsh, vsg = t[0], t[1], t[2], t[3], t[4], t[5], t[6]
    k("v_mul_f32 %s, %s, %s" % (v(ftw), fbits(1 / 512), v(vfn)))
    k("v_mul_f32 %s, %s, %s" % (v(fa2), fbits(1 / 16), v(vfn)))
    k("v_add_f32 %s, %s, %s" % (v(fs2), fbits(-15 / 32), v(fa2)))
    k("v_cndmask_b32 %s, %s, %s, %s" % (v(fs2), v(fa2), v(fs2), s(sM8, 2)))
    k("v_cndmask_b32 %s, %s, 0.5, %s" % (v(fs2), v(fs2), s(sM0, 2)))
    k("v_mov_b32 %s, %s" % (v(scs), fbits(1 / 16)))
    k("v_cndmask_b32 %s, %s, 0, %s" % (v(sctw), v(scs), s(sM0, 2)))
    k("v_mov_b32 %s, %s" % (v(t[7]), fbits(1 / (16 * math.sqrt(2)))))
    k("v_cndmask_b32 %s, %s, %s, %s" % (v(scs), v(scs), v(t[7]), s(sM0, 2)))
    k("v_cndmask_b32 %s, 0, 16, %s" % (v(vsh), s(sM8, 2)))
    k("v_mov_b32 %s, 0x80008000" % v(vsg))
    k("v_cndmask_b32 %s, 0, %s, %s" % (v(vsg), v(vsg), s(sM8, 2)))
    k("v_mov_b32 %s, %s" % (v(t[7]), s(sDC)))
    for r in range(4):
        fb = tmp + 12 + r
        k("v_add_f32 %s, %s, %s" % (v(fb), fbits(r), v(vfg4)))
        k("v_mul_f32 %s, %s, %s" % (v(tmp + r), v(fb), v(ftw)))
        k("v_mul_f32 %s, %s, %s" % (v(tmp + 4 + r), v(fb), v(fa2)))
        k("v_mul_f32 %s, %s, %s" % (v(tmp + 8 + r), v(fb), v(fs2)))
    for r in range(4):
        k("v_cos_f32 %s, %s" % (v(TC + r), v(tmp + r)))
        k("v_sin_f32 %s, %s" % (v(TS + r), v(tmp + r)))
        k("v_cos_f32 %s, %s" % (v(O + r), v(tmp + 4 + r)))
        k("v_sin_f32 %s, %s" % (v(O + 4 + r), v(tmp + 4 + r)))
        k("v_cos_f32 %s, %s" % (v(S2re + r), v(tmp + 8 + r)))
        k("v_sin_f32 %s, %s" % (v(S2im + r), v(tmp + 8 + r)))
    if M.o.get("wp", 1) == 1:
        late_loads()
    for r in range(4):
        k("v_mul_f32 %s, %s, %s" % (v(TC + r), v(TC + r), v(sctw)))
        k("v_mul_f32 %s, %s, %s" % (v(TS + r), v(TS + r), v(sctw)))
        k("v_cvt_pk_bf16_f32 %s, %s, %s" % (v(A2re + r), v(O + r), v(O + 4 + r)))
        k("v_cvt_pk_bf16_f32 %s, -%s, %s" % (v(A2im + r), v(O + 4 + r), v(O + r)))
        k("v_xor_b32 %s, %s, %s" % (v(A2im + r), v(A2im + r), v(vsg)))
        k("v_mul_f32 %s, %s, %s" % (v(S2re + r), v(S2re + r), v(scs)))
        k("v_mul_f32 %s, %s, %s" % (v(S2im + r), fbits(-1 / 16), v(S2im + r)))
        k("v_cndmask_b32 %s, %s, %s, %s" % (v(S2im + r), v(S2im + r), v(t[7]), s(sM0, 2)))
        k("v_cvt_pk_bf16_f32 %s, %s, 0" % (v(S2re + r), v(S2re + r)))
        k("v_cvt_pk_bf16_f32 %s, %s, 0" % (v(S2im + r), v(S2im + r)))
        k("v_lshlrev_b32 %s, %s, %s" % (v(S2re + r), v(vsh), v(S2re + r)))
        k("v_lshlrev_b32 %s, %s, %s" % (v(S2im + r), v(vsh), v(S2im + r)))
    for i in range(32):
        k("v_mov_b32 %s, 0" % v(BS + i))

    warm(O, sC)
    k("s_cmp_eq_u32 %s, 2" % s(sRole))
    k("s_cbranch_scc1 PRE_A_W1")
    k("v_lshrrev_b32 %s, 1, %s" % (v(t[0]), v(vrA)))
    k("v_add_u32 %s, %s, %s" % (v(t[0]), s(sLds), v(t[0])))
    k.wait_tag("in")
    for j in range(8):
        k("ds_read_b64_tr_b16 %s, %s offset:%d" % (v(A + 4 * j, 2), v(t[0]), j * PITCH))
        k("ds_read_b64_tr_b16 %s, %s offset:%d" % (v(A + 4 * j + 2, 2), v(t[0]), j * PITCH + 512))
    k("s_branch PRE_CORE")
    k.label("PRE_A_W1")
    k("v_lshrrev_b32 %s, 2, %s" % (v(t[1]), v(vn)))
    k("v_xor_b32 %s, %s, %s" % (v(t[1]), s(sWv), v(t[1])) if M.o.get("swz", 1) else "v_mov_b32 %s, %s" % (v(t[1]), s(sWv)))
    k("v_lshlrev_b32 %s, 4, %s" % (v(t[1]), v(t[1])))
    k("v_lshl_add_u32 %s, %s, 6, %s" % (v(t[0]), v(vn), v(t[1])))
    k("v_lshl_add_u32 %s, %s, 12, %s" % (v(t[0]), v(vg), v(t[0])))
    k.wait_tag("in")
    k("s_barrier")
    for jj in range(8):
        k("ds_read_b128 %s, %s offset:%d" % (v(RAW + 4 * jj, 4), v(t[0]), (16 * (jj >> 2) + (jj & 3)) * 1024))
    for j in range(8):
        for i in range(4):
            k("v_perm_b32 %s, %s, %s, %s" % (v(A + 4 * j + i), v(RAW + 4 * (2 * i + 1) + (j >> 1)),
                                            v(RAW + 4 * (2 * i) + (j >> 1)), s(sSelHi if j & 1 else sSelLo)))

    k.label("PRE_CORE")
    st("p_in")
    for j in range(8):
        k("%s %s, %s, %s, 0" % (MF, v(D + 8 * j, 4), v(A + 4 * j, 4), v(B1re, 4)))
        k("%s %s, %s, %s, 0" % (MF, v(D + 8 * j + 4, 4), v(A + 4 * j, 4), v(B1im, 4)))
    k("s_mov_b64 exec, %s" % s(sM0, 2))
    for j in range(8):
        for r in range(4):
            k("v_cvt_pk_bf16_f32 %s, %s, %s" % (v(BS + 4 * j + r), v(D + 8 * j + r), v(D + 8 * j + 4 + r)))
    k("s_mov_b64 exec, -1")
    for j in range(8):
        re, im, tt = D + 8 * j, D + 8 * j + 4, tmp + 8 * (j & 1)
        for h in (0, 2):
            k("v_pk_mul_f32 %s, %s, %s" % (v(tt + h, 2), v(im + h, 2), v(TS + h, 2)))
            k("v_pk_mul_f32 %s, %s, %s" % (v(tt + 4 + h, 2), v(re + h, 2), v(TS + h, 2)))
        for h in (0, 2):
            k("v_pk_fma_f32 %s, %s, %s, %s" % (v(tt + h, 2), v(re + h, 2), v(TC + h, 2), v(tt + h, 2)))
            k("v_pk_fma_f32 %s, %s, %s, %s neg_lo:[0,0,1] neg_hi:[0,0,1]"
              % (v(tt + 4 + h, 2), v(im + h, 2), v(TC + h, 2), v(tt + 4 + h, 2)))
        for r in range(4):
            k("v_cvt_pk_bf16_f32 %s, %s, %s" % (v(A + 4 * j + r), v(tt + r), v(tt + 4 + r)))

    def stage2(fill):
        for j in range(8):
            for n, (d, am, bm) in enumerate(((D + 8 * j, A2re, A), (D + 8 * j, S2re, BS), (D + 8 * j + 4, A2im, A), (D + 8 * j + 4, S2im, BS))):
                k("%s %s, %s, %s, %s" % (MF, v(d, 4), v(am, 4), v(bm + 4 * j, 4), v(d, 4) if n & 1 else "0"))
                for txt in fill.get(4 * j + n, []):
                    k(txt)

    def spread(items, first):
        fill = {}
        for m in range(first, 32):
            fill[m], items = items[:2], items[2:]
        return fill, items

    k("s_cmp_eq_u32 %s, 0" % s(sRole))
    k("s_cbranch_scc0 PRE_OUT_W")

    pre = ["v_lshl_add_u32 %s, %s, 6, %s" % (v(t[0]), v(vg), v(vn)),
           "v_mul_u32_u24 %s, 144, %s" % (v(t[0]), v(t[0])),
           "s_lshl_b32 %s, %s, 5" % (s(sA), s(sWv)),
           "s_add_u32 %s, %s, %d" % (s(sC), s(sA), IMG),
           "v_add_u32 %s, %s, %s" % (v(t[0]), s(sC), v(t[0])),
           "v_lshrrev_b32 %s, 3, v0" % v(t[2]),
           "v_and_b32 %s, 7, %s" % (v(t[3]), v(t[2])),
           "v_and_b32 %s, 0xc0, v0" % v(t[2]),
           "v_add_u32 %s, %s, %s" % (v(t[2]), v(t[2]), v(t[3])),
           "v_and_b32 %s, 0x70, %s" % (v(t[3]), v(vrA)),
           "v_mul_u32_u24 %s, 144, %s" % (v(t[1]), v(t[2])),
           "v_add_u32 %s, %s, %s" % (v(t[1]), v(t[1]), v(t[3])),
           "v_lshl_add_u32 %s, %s, 13, %s" % (v(t[2]), v(t[2]), v(t[3])),
           "s_lshl_b32 %s, s2, 7" % s(sB)]
    fill, _ = spread(pre, 0)
    cv = lambda j: ["v_cvt_pk_bf16_f32 %s, %s, %s" % (v(O + 8 * r + j), v(D + 8 * j + r), v(D + 8 * j + 4 + r)) for r in range(4)]
    for j in range(6):
        fill[4 * j + 9], fill[4 * j + 10] = cv(j)[:2], cv(j)[2:]
    for r in range(4):
        fill[24 + 2 * r - (r > 1)] = fill.get(24 + 2 * r - (r > 1), []) + \
            ["ds_write_b128 %s, %s offset:%d" % (v(t[0]), v(O + 8 * r, 4), 16 * 144 * r)]
    stage2(fill)
    st("p_core")
    for txt in cv(6) + cv(7):
        k(txt)
    for r in range(4):
        k("ds_write_b128 %s, %s offset:%d" % (v(t[0]), v(O + 8 * r + 4, 4), 16 * 144 * r + 16))
    k("s_mov_b64 exec, 1")
    for j in range(8):
        k("v_mov_b32 %s, 0" % v(D + 8 * j + 4))
    k("s_mov_b64 exec, -1")
    for j in range(8):
        k("v_pk_mul_f32 %s, %s, %s" % (v(tmp + 2 * j, 2), v(D + 8 * j, 2), v(D + 8 * j, 2)))
    k("s_waitcnt vmcnt(0) lgkmcnt(0)")
    k("s_barrier")
    for i in range(8):
        k("ds_read_b128 %s, %s offset:%d" % (v(O + 4 * i, 4), v(t[1]), IMG + 8 * 144 * i))
    red = ["v_pk_fma_f32 %s, %s, %s, %s" % (v(tmp + 2 * j, 2), v(D + 8 * j + h, 2), v(D + 8 * j + h, 2), v(tmp + 2 * j, 2))
           for h in (2, 4, 6) for j in range(8)]
    for txt in red[:10]:
        k(txt)
    red = red[10:] + ["v_add_f32 %s, %s, %s" % (v(A + j), v(tmp + 2 * j), v(tmp + 2 * j + 1)) for j in range(8)]
    red += ["v_permlane32_swap_b32 %s, %s" % (v(A + j), v(A + j + 4)) for j in range(4)]
    red += ["v_add_f32 %s, %s, %s" % (v(A + j), v(A + j), v(A + j + 4)) for j in range(4)]
    red += ["v_permlane16_swap_b32 %s, %s" % (v(A + e), v(A + e + 2)) for e in range(2)]
    red += ["v_add_f32 %s, %s, %s" % (v(A + e), v(A + e), v(A + e + 2)) for e in range(2)]
    red += ["v_add_f32_dpp %s, %s, %s row_ror:%d row_mask:0xf bank_mask:0xf" % (v(A + e), v(A + e), v(A + e), sh)
            for sh in (8, 4, 2, 1) for e in range(2)]
    for i in range(8):
        k("s_add_u32 %s, %s, 0x%x" % (s(sC), s(sB), L.X0 + i * 8 * 8192))
        k(ST % (v(O + 4 * i, 4), v(t[2]), s(sC), 0), tag="p0")
        for txt in red[6 * i:6 * i + 6]:
            k(txt)
    k("v_lshlrev_b32 %s, 3, %s" % (v(t[0]), v(vg)))
    k("s_add_u32 %s, %s, %s" % (s(sC), s(sA), s(sB)))
    k("s_add_u32 %s, %s, 0x%x" % (s(sC), s(sC), L.SSQ0))
    k("s_mov_b64 exec, %s" % s(sM0, 2))
    k("buffer_store_dwordx2 %s, %s, %s, %s offen sc1" % (v(A, 2), v(t[0]), WS, s(sC)), tag="p0")
    k("s_mov_b64 exec, -1")
    k("s_branch PRE_DONE")

    k.label("PRE_OUT_W")
    stage2({})
    st("p_core")
    k("s_cmp_eq_u32 %s, 2" % s(sRole))
    k("s_cbranch_scc1 PRE_OUT_W1")
    k("s_cmp_eq_u32 %s, 3" % s(sRole))
    k("s_cbranch_scc1 PRE_OUT_B2")

    k("v_lshrrev_b32 %s, 2, %s" % (v(t[1]), v(vn)))
    k("v_mul_u32_u24 %s, %d, %s" % (v(t[1]), PITCH, v(t[1])))
    k("v_and_b32 %s, 3, %s" % (v(t[2]), v(vn)))
    k("v_lshl_add_u32 %s, %s, 5, %s" % (v(t[1]), v(t[2]), v(t[1])))
    k("v_lshl_add_u32 %s, %s, 3, %s" % (v(t[1]), v(vg), v(t[1])))
    k("v_add_u32 %s, %s, %s" % (v(t[1]), s(sLds), v(t[1])))
    for dt in range(8):
        k("ds_read_b64_tr_b16 %s, %s offset:%d" % (a(224 + 4 * dt, 2), v(t[1]), dt * 128))
        k("ds_read_b64_tr_b16 %s, %s offset:%d" % (a(226 + 4 * dt, 2), v(t[1]), dt * 128 + 4 * PITCH))
    w2_frag(sA)
    k("v_mul_u32_u24 %s, %d, %s" % (v(t[0]), 2 * 229376, v(vg)))
    k("v_lshl_add_u32 %s, %s, 4, %s" % (v(t[0]), v(vn), v(t[0])))
    for r in range(4):
        k("s_add_u32 %s, %s, 0x%x" % (s(sC), s(sA), L.W2F + (r >> 1) * 229376 + (r & 1) * 2048))
        for ri in range(2):
            o = O + 8 * r + 4 * ri
            for i in range(4):
                k("v_cvt_pk_bf16_f32 %s, %s, %s" % (v(o + i), v(D + 16 * i + 4 * ri + r), v(D + 16 * i + 8 + 4 * ri + r)))
            k(ST % (v(o, 4), v(t[0]), s(sC), ri * 1024), tag="p0")
    if not M.o.get("park", 1):
        k("v_lshlrev_b32 %s, 10, %s" % (v(t[0]), v(vg)))
        k("v_lshl_add_u32 %s, %s, 4, %s" % (v(t[0]), v(vn), v(t[0])))
        for dt in range(8):
            k("s_add_u32 %s, %s, 0x%x" % (s(sC), s(sA), L.W2T + dt * 229376))
            k(ST % (a(224 + 4 * dt, 4), v(t[0]), s(sC), 0), tag="p0")
    k("s_branch PRE_DONE")

    k.label("PRE_OUT_B2")
    k("v_lshl_add_u32 %s, %s, 6, %s" % (v(t[0]), v(vg), v(vn)))
    k("v_lshlrev_b32 %s, 2, %s" % (v(t[0]), v(t[0])))
    k("s_mov_b32 %s, 0x%x" % (s(sC), L.B2F))
    for r in range(4):
        for ri in range(2):
            k("buffer_store_dword %s, %s, %s, %s offen offset:%d sc1" % (v(D + 4 * ri + r), v(t[0]), WS, s(sC), r * 64 + ri * 1024), tag="p0")
    k("s_nop 7")
    k("s_branch PRE_FT")

    k.label("PRE_OUT_W1")
    k("s_mul_i32 %s, %s, 9216" % (s(sLds), s(sWv)))
    k("s_add_u32 %s, %s, %d" % (s(sLds), s(sLds), IMG))
    k("v_mul_u32_u24 %s, 9, %s" % (v(t[0]), v(vrA)))
    k("v_add_u32 %s, %s, %s" % (v(t[0]), s(sLds), v(t[0])))
    for j in range(8):
        for r in range(4):
            k("v_cvt_pk_bf16_f32 %s, %s, %s" % (v(O + 4 * j + r), v(D + 8 * j + r), v(D + 8 * j + 4 + r)))
        k("ds_write_b128 %s, %s offset:%d" % (v(t[0]), v(O + 4 * j, 4), 16 * j))
    k("v_bfe_u32 %s, v0, 3, 3" % v(t[2]))
    k("v_and_b32 %s, 0x70, %s" % (v(t[3]), v(vrA)))
    k("v_mul_u32_u24 %s, 144, %s" % (v(t[1]), v(t[2])))
    k("v_add3_u32 %s, %s, %s, %s" % (v(t[1]), v(t[1]), v(t[3]), s(sLds)))
    for i in range(8):
        k("ds_read_b128 %s, %s offset:%d" % (v(A + 4 * i, 4), v(t[1]), 8 * 144 * i))
    split14(k, sS, sU, sT)
    k("s_lshr_b32 %s, %s, 1" % (s(sA), s(sU)))
    k("s_mul_i32 %s, %s, 112" % (s(sB), s(sS)))
    k("s_add_u32 %s, %s, %s" % (s(sB), s(sB), s(sA)))
    k("s_cmp_lt_u32 %s, 4" % s(sA))
    k("s_cselect_b32 %s, 0, 60" % s(sA))
    k("s_movk_i32 %s, 0x1000" % s(sG))
    k("s_cselect_b32 %s, %s, 0xc00" % (s(sG), s(sG)))
    k("s_add_u32 %s, %s, %s" % (s(sA), s(sA), s(sB)))
    k("s_lshl_b32 %s, %s, 10" % (s(sA), s(sA)))
    k("s_and_b32 %s, %s, 1" % (s(sU), s(sU)))
    k("s_lshl_b32 %s, %s, 7" % (s(sU), s(sU)))
    k("s_add_u32 %s, %s, %s" % (s(sA), s(sA), s(sU)))
    k("s_add_u32 %s, %s, 0x%x" % (s(sA), s(sA), L.W1F))
    k("s_lshl_b32 %s, %s, 3" % (s(sC), s(sG)))
    k("s_add_u32 %s, %s, %s" % (s(sC), s(sC), s(sA)))
    k("v_mad_u32_u24 %s, %s, %s, %s" % (v(t[0]), v(t[2]), s(sG), v(t[3])))
    for i in range(8):
        k(ST % (v(A + 4 * i, 4), v(t[0]), s(sC if i & 1 else sA), (i >> 1) * 256), tag="p0")
    k.label("PRE_DONE")
    k("s_add_u32 %s, %s, 0x%x" % (s(sA), s(sA), L.W2T))
    k("s_sub_u32 %s, s2, 184" % s(sC))
    k("s_cmp_lt_u32 %s, 56" % s(sC))
    k("s_cselect_b32 s29, %s, 0x40000000" % s(sA))
```

```python
from asmlib import Kernel, Alloc, v, a, s, fbits
import layout as L
import k_pre

MF = "v_mfma_f32_16x16x32_bf16"
LDS_BYTES = 163840
WB = 65536
PRIV = 114688
WS = "s[4:7]"
C0 = -2 * 0.7978845608028654 * 1.4426950408889634
C1 = C0 * 0.044715
EPS = 1e-5
TILE = 57344

vrA, vP, vV, vL4 = 1, 2, 3, 4
sE, sRec = 48, 49
sWv, sP, sI, sPhi, sCt, sRB, sX, sW1, sT, sU, sW2, sHst, sFl, sPl, sV = 3, 12, 13, 14, 15, 16, 17, 18, 19, 20, 21, 22, 23, 24, 25
sHA, sHB, sH6, sHt, sQ, sG = 26, 27, 28, 30, 34, 35


class Main:
    def __init__(self, name, stamp, opts):
        self.o = opts or {}
        self.k = Kernel(name)
        self.name = name
        self.stamp = stamp
        self.queue = []
        self.issued = {}
        self.nlab = 0

    def st(self, n, **kw):
        pr = self.o.get("probe")
        if pr:
            k, key = self.k, "%s%d" % (n, self.layer)
            if key == pr[0]:
                k("s_memrealtime s[90:91]")
            if key == pr[1]:
                k("s_memrealtime s[92:93]")
            if n == "end":
                k("s_waitcnt vmcnt(0) lgkmcnt(0)")
                k("s_memrealtime s[94:95]")
                k("s_sub_u32 s90, s92, s90")
                k("s_min_u32 s90, s90, 20000")
                k("s_lshl_b32 s90, s90, 3")
                k("s_cmp_lg_u32 s2, %d" % self.o.get("pwg", 0))
                k("s_cbranch_scc1 MAIN_END")
                k.label("SPIN")
                k("s_memrealtime s[96:97]")
                k("s_waitcnt lgkmcnt(0)")
                k("s_sub_u32 s96, s96, s94")
                k("s_cmp_lt_u32 s96, s90")
                k("s_cbranch_scc1 SPIN")
        if self.o.get("stp") and n in ("geluA", "passB", "geluB", "pollA", "h0", "preB", "pollB", "gemm2"):
            return
        if n.startswith("g_") and not self.o.get("stg"):
            return
        if self.o.get("stg") and n in ("p_go", "c_x1", "c_x2", "c_end", "s_pub", "s_go", "first", "l2", "s2_pub", "s2_go", "passA"):
            return
        if not self.o.get("stp") and n in ("p_in", "p_core", "p_out", "p_pub", "c_const", "p_w0", "p_w1", "p_w2"):
            return
        if self.stamp and (n in ("start", "end") or self.o.get("stl", 0) == self.layer):
            self.stamp(self.k, n, **kw)

    def count(self, slot):
        if self.o.get("cnt") == 1 or self.o.get("cnt") == 2 and slot == 0:
            k = self.k
            k("s_mov_b64 s[96:97], exec\ns_mov_b64 exec, 1\ns_mov_b32 s98, 0x%x" % (L.STAMP + 0x100000 + 4 * slot))
            k("v_mov_b32 %s, 1" % v(vP))
            k("buffer_atomic_add %s, %s, %s, s98 offen" % (v(vP), v(vL4), WS))
            k("s_mov_b64 exec, s[96:97]")

    def dma(self, vv, ss, off, tag, sc=" sc1"):
        def op():
            self.issued[tag] = self.issued.get(tag, 0) + 1
            self.k("buffer_load_dwordx4 %s, %s, %s offen offset:%d%s lds" % (v(vv), WS, s(ss), off, sc), tag=tag)
        return op

    def setup(self, m0base, m0off, sd, sbase, off):
        def op():
            self.k("s_add_u32 m0, %s, %d" % (s(m0base), m0off))
            self.k("s_add_u32 %s, %s, %d" % (s(sd), s(sbase), off))
        return op

    def issue(self, ops):
        for su, ld in ops:
            if su:
                su()
            ld()

    def side(self, n=1):
        for _ in range(n):
            if self.queue:
                self.issue([self.queue.pop(0)])

    def w2_ops(self):
        k, ops = self.k, []
        for kf in range(14):
            for c in range(4):
                su = None
                if c == 0:
                    su = lambda kf=kf: k("s_add_u32 %s, %s, %d" % (s(sU), s(sW2), kf * 4096))
                if c == 2:
                    su = lambda: k("s_xor_b32 %s, %s, 0x800" % (s(sU), s(sU)))
                ld = lambda kf=kf, c=c: k("buffer_load_dwordx4 %s, %s, %s, %s offen offset:%d sc1"
                                          % (a(16 * kf + 4 * c, 4), v(vrA), WS, s(sU), (c & 1) * 1024))
                ld.head = c == 0
                ops.append((su, ld))
        return ops

    def flag_store(self, sflag):
        k = self.k
        k("s_mov_b64 exec, 0x%x" % ((1 << self.o["FW"]) - 1) if "FW" in self.o else "s_mov_b32 exec_hi, 0")
        k("buffer_store_dword %s, %s, %s, %s offen sc1" % (v(vV), v(vL4), WS, s(sflag)))
        k("s_mov_b64 exec, -1")

    def publish(self, tag, sflag):
        self.k.wait_tag(tag)
        self.flag_store(sflag)

    def publish_wg(self, sflag):
        k = self.k
        self.nlab += 1
        k("s_barrier")
        k("s_cmp_lg_u32 %s, 0" % s(sWv))
        k("s_cbranch_scc1 PUB%d" % self.nlab)
        self.flag_store(sflag)
        k.label("PUB%d" % self.nlab)

    def poll_issue(self, voff, sbase, dst=vP):
        self.k("buffer_load_dword %s, %s, %s, %s offen sc1" % (v(dst), v(voff), WS, s(sbase)))

    def poll_check(self, voff, sbase, dst=vP, sleep=0, data=False):
        k = self.k
        self.nlab += 1
        go, again = "GO%d" % self.nlab, "POLL%d" % self.nlab
        test = "v_cmp_eq_u32 vcc, -1, %s" % v(dst) if data else "v_cmp_ne_u32 vcc, %s, %s" % (s(sE), v(dst))
        k(test)
        k("s_cbranch_vccz " + go)
        k("s_mov_b32 %s, 0" % s(sV))
        k.label(again)
        self.count(self.nlab)
        k("s_mov_b64 exec, vcc")
        if sleep:
            k("s_sleep %d" % sleep)
        self.poll_issue(voff, sbase, dst)
        k("s_add_u32 %s, %s, 1" % (s(sV), s(sV)))
        k("s_waitcnt vmcnt(0)")
        k(test)
        k("s_cmp_lt_u32 %s, 0x8000" % s(sV))
        k("s_cselect_b64 vcc, vcc, 0")
        k("s_cbranch_vccnz " + again)
        k("s_mov_b64 exec, -1")
        k.label(go)

    def col_alloc(self):
        va = Alloc(6, 256)
        r = self.c = type("R", (), {})()
        r.voff, r.vwr, r.vrd, r.vfg4, r.vfk, r.vfn, r.vsn, r.veps = (va() for _ in range(8))
        r.t = [va() for _ in range(5)]
        r.XR, r.SQ, r.WR = va(8, 4), va(8, 4), va(8, 4)
        r.C64, r.C32 = va(32, 4), va(32, 4)
        r.T1C, r.T1S, r.T2C, r.T2S, r.WC, r.WS = (va(8, 4) for _ in range(6))
        r.XF, r.FR, r.AC, r.PK, r.tmp = va(16, 4), va(32, 4), va(16, 4), va(8, 4), va(16, 4)

    def col_addr(self):
        k, r = self.k, self.c
        k("v_lshrrev_b32 %s, 6, v0" % v(r.t[0]))
        k("v_lshl_add_u32 %s, %s, 11, %s" % (v(r.voff), v(r.t[0]), v(vrA)))

    def col_load_w(self):
        k, r = self.k, self.c
        k("s_add_u32 %s, %s, 0x%x" % (s(sT), s(sQ), L.WT))
        for b in range(2):
            k("buffer_load_dwordx4 %s, %s, %s, %s offen offset:%d sc1" % (v(r.WR + 4 * b, 4), v(r.voff), WS, s(sT), 1024 * b))

    def col_load_x(self):
        k, r, li = self.k, self.c, self.layer
        k("s_mov_b32 %s, 0x%x" % (s(sHA), (L.SSQ0, L.SSQ2)[li]))
        k("s_add_u32 %s, %s, 0x%x" % (s(sT), s(sQ), (L.X0, L.X2)[li]))
        for b in range(2):
            if li == 0:
                k("buffer_load_dwordx4 %s, %s, %s, %s offen offset:%d sc1" % (v(r.SQ + 4 * b, 4), v(r.voff), WS, s(sHA), 1024 * b))
            k("buffer_load_dwordx4 %s, %s, %s, %s offen offset:%d sc1" % (v(r.XR + 4 * b, 4), v(r.voff), WS, s(sT), 1024 * b))
        if li:
            for j in range(4):
                k("buffer_load_dwordx4 %s, %s, %s, %s offen offset:%d sc1" % (v(r.FR + 4 * j, 4), v(5), WS, s(sHA), 2048 * (j >> 1) + 16 * (j & 1)))

    def col_gate(self):
        k, r = self.k, self.c
        x, c, u = r.XR, r.FR + 1, r.AC

        def test():
            k("v_max3_u32 %s, %s, %s, %s" % (v(u), v(x), v(x + 1), v(x + 2)))
            k("v_max3_u32 %s, %s, %s, %s" % (v(u + 1), v(x + 3), v(x + 4), v(x + 5)))
            k("v_max3_u32 %s, %s, %s, %s" % (v(u), v(u), v(x + 6), v(x + 7)))
            k("v_max_u32 %s, %s, %s" % (v(u), v(u), v(u + 1)))
            k("v_cmp_eq_u32 s[8:9], -1, %s" % v(u))
            k("v_min3_f32 %s, %s, %s, %s" % (v(u), v(c), v(c + 2), v(c + 4)))
            k("v_min3_f32 %s, %s, %s, %s" % (v(u + 1), v(c + 6), v(c + 8), v(c + 10)))
            k("v_min3_f32 %s, %s, %s, %s" % (v(u), v(u), v(c + 12), v(c + 14)))
            k("v_min_f32 %s, %s, %s" % (v(u), v(u), v(u + 1)))
            k("v_cmp_gt_f32 vcc, %s, %s" % (fbits(15.5), v(u)))
            k("s_or_b64 vcc, vcc, s[8:9]")
        test()
        k("s_cbranch_vccz GATE_GO")
        k("s_mov_b32 %s, 0" % s(sV))
        k.label("GATE_AGAIN")
        self.count(31)
        k("s_mov_b64 exec, vcc")
        self.col_load_x()
        k("s_add_u32 %s, %s, 1" % (s(sV), s(sV)))
        k("s_waitcnt vmcnt(0)")
        test()
        k("s_cmp_lt_u32 %s, 0x8000" % s(sV))
        k("s_cselect_b64 vcc, vcc, 0")
        k("s_cbranch_vccnz GATE_AGAIN")
        k("s_mov_b64 exec, -1")
        k.label("GATE_GO")

    def col_consts(self):
        r, out = self.c, []
        k, t, tmp = out.append, r.t, r.tmp
        k("v_add_u32 %s, %s, %s" % (v(r.vwr), s(sRB), v(vrA)))
        k("v_add_u32 %s, %d, %s" % (v(r.vrd), PRIV, v(vrA)))
        k("v_bfe_u32 %s, v0, 4, 2" % v(t[1]))
        k("v_lshlrev_b32 %s, 2, %s" % (v(t[1]), v(t[1])))
        k("v_cvt_f32_u32 %s, %s" % (v(r.vfg4), v(t[1])))
        k("v_and_b32 %s, 15, v0" % v(t[2]))
        k("v_cvt_f32_u32 %s, %s" % (v(r.vfn), v(t[2])))
        k("v_lshl_add_u32 %s, %s, 4, %s" % (v(t[2]), v(t[0]), v(t[2])))
        k("v_cvt_f32_u32 %s, %s" % (v(r.vfk), v(t[2])))
        k("v_lshl_add_u32 %s, %s, 4, %s" % (v(t[2]), v(t[0]), v(t[1])))
        k("v_cvt_f32_u32 %s, %s" % (v(t[2]), v(t[2])))
        k("v_and_b32 %s, 1, v0" % v(r.vsn))
        k("v_mul_u32_u24 %s, 0x8000, %s" % (v(r.vsn), v(r.vsn)))
        k("v_lshl_or_b32 %s, %s, 16, %s" % (v(r.vsn), v(r.vsn), v(r.vsn)))
        k("v_mov_b32 %s, %s" % (v(r.veps), fbits(EPS * 2.0 ** 22)))
        f, b0 = t[3], t[4]
        k("v_mul_f32 %s, %s, %s" % (v(f), fbits(1 / 64), v(r.vfk)))
        k("v_mul_f32 %s, %s, %s" % (v(b0), v(f), v(r.vfg4)))
        for i in range(8):
            k("v_fmamk_f32 %s, %s, %s, %s" % (v(r.T1C + i), v(f), fbits(16 * (i >> 2) + (i & 3)), v(b0)))
        for i in range(8):
            k("v_sin_f32 %s, %s" % (v(tmp + 8 + i), v(r.T1C + i)))
            k("v_cos_f32 %s, %s" % (v(tmp + i), v(r.T1C + i)))
        for i in range(8):
            ks, rr = i >> 2, i & 3
            k("v_cvt_pk_bf16_f32 %s, %s, %s" % (v(r.C64 + 8 * ks + rr), v(tmp + i), v(tmp + 8 + i)))
            k("v_cvt_pk_bf16_f32 %s, -%s, %s" % (v(r.C64 + 8 * ks + 4 + rr), v(tmp + 8 + i), v(tmp + i)))
        for i in range(16):
            k("v_xor_b32 %s, %s, %s" % (v(r.C64 + 16 + i), v(r.vsn), v(r.C64 + i)))
        self.n_first = len(out)
        for i in range(8):
            k("v_mul_f32 %s, %s, %s" % (v(r.T1C + i), fbits(1 / 32), v(r.T1C + i)))
        for i in range(8):
            k("v_sin_f32 %s, %s" % (v(r.T1S + i), v(r.T1C + i)))
            k("v_cos_f32 %s, %s" % (v(r.T1C + i), v(r.T1C + i)))
        k("v_mul_f32 %s, %s, %s" % (v(f), fbits(1 / 32), v(r.vfn)))
        k("v_mul_f32 %s, %s, %s" % (v(b0), v(f), v(r.vfg4)))
        for rr in range(4):
            k("v_fmamk_f32 %s, %s, %s, %s" % (v(r.T2C + rr), v(f), fbits(rr), v(b0)))
        for rr in range(4):
            k("v_sin_f32 %s, %s" % (v(r.T2S + rr), v(r.T2C + rr)))
            k("v_cos_f32 %s, %s" % (v(r.T2C + rr), v(r.T2C + rr)))
        for rr in range(4):
            k("v_cvt_pk_bf16_f32 %s, %s, %s" % (v(r.C32 + rr), v(r.T2C + rr), v(r.T2S + rr)))
            k("v_cvt_pk_bf16_f32 %s, -%s, %s" % (v(r.C32 + 4 + rr), v(r.T2S + rr), v(r.T2C + rr)))
        for i in range(8):
            k("v_xor_b32 %s, %s, %s" % (v(r.C32 + 8 + i), v(r.vsn), v(r.C32 + i)))
        for i in range(16):
            if i & 1:
                k("v_xor_b32 %s, 0x80008000, %s" % (v(r.C32 + 16 + i), v(r.C32 + i)))
            else:
                k("v_mov_b32 %s, %s" % (v(r.C32 + 16 + i), v(r.C32 + i)))
        for bt in range(2):
            if bt == 0:
                k("v_mul_f32 %s, %s, %s" % (v(f), fbits(1 / 2048), v(r.vfn)))
            else:
                k("v_add_f32 %s, %s, %s" % (v(f), fbits(16 / 2048), v(f)))
            k("v_mul_f32 %s, %s, %s" % (v(b0), v(f), v(t[2])))
            for rr in range(4):
                k("v_fmamk_f32 %s, %s, %s, %s" % (v(r.T2C + 4 * bt + rr), v(f), fbits(rr), v(b0)))
        for i in range(8):
            k("v_sin_f32 %s, %s" % (v(r.T2S + i), v(r.T2C + i)))
            k("v_cos_f32 %s, %s" % (v(r.T2C + i), v(r.T2C + i)))
        return out

    def col_unpack_w(self):
        r = self.c
        return [x for i in range(8) for x in ("v_lshlrev_b32 %s, 16, %s" % (v(r.WC + i), v(r.WR + i)),
                                              "v_and_b32 %s, 0xffff0000, %s" % (v(r.WS + i), v(r.WR + i)))]

    def cmul(self, re, im, c, sn, conj):
        k, tmp = self.k, self.c.tmp
        for h in (0, 2):
            k("v_pk_mul_f32 %s, %s, %s" % (v(tmp + h, 2), v(im + h, 2), v(sn + h, 2)))
            k("v_pk_mul_f32 %s, %s, %s" % (v(tmp + 4 + h, 2), v(re + h, 2), v(sn + h, 2)))
        neg = " neg_lo:[0,0,1] neg_hi:[0,0,1]"
        for h in (0, 2):
            k("v_pk_fma_f32 %s, %s, %s, %s%s" % (v(tmp + h, 2), v(re + h, 2), v(c + h, 2), v(tmp + h, 2), neg if conj else ""))
            k("v_pk_fma_f32 %s, %s, %s, %s%s" % (v(tmp + 4 + h, 2), v(im + h, 2), v(c + h, 2), v(tmp + 4 + h, 2), "" if conj else neg))

    def col_compute(self, late, before_bar1=None, before_bar2=None, after_bar1=None, NC=0, late2=()):
        k, r, li = self.k, self.c, self.layer
        tmp, late = r.tmp, list(late)

        def fill(n):
            for _ in range(n):
                if late:
                    k(late.pop(0))
        for b in range(2):
            for rr in range(4):
                src = r.FR + 8 * b + 2 * rr if li else r.SQ + 4 * b + rr
                k("v_fmamk_f32 %s, %s, %s, %s" % (v(r.SQ + 4 * b + rr), v(src), fbits(2.0 ** 13), v(r.veps)))
            for rr in range(4):
                k("v_rsq_f32 %s, %s" % (v(r.SQ + 4 * b + rr), v(r.SQ + 4 * b + rr)))
            for rr in range(4):
                k("v_lshlrev_b32 %s, 16, %s" % (v(r.XF + 8 * b + rr), v(r.XR + 4 * b + rr)))
                k("v_and_b32 %s, 0xffff0000, %s" % (v(r.XF + 8 * b + 4 + rr), v(r.XR + 4 * b + rr)))
            for h in (0, 2):
                k("v_pk_mul_f32 %s, %s, %s" % (v(tmp + h, 2), v(r.XF + 8 * b + h, 2), v(r.SQ + 4 * b + h, 2)))
                k("v_pk_mul_f32 %s, %s, %s" % (v(tmp + 4 + h, 2), v(r.XF + 8 * b + 4 + h, 2), v(r.SQ + 4 * b + h, 2)))
            for rr in range(4):
                k("v_cvt_pk_bf16_f32 %s, %s, %s" % (v(r.PK + 4 * b + rr), v(tmp + rr), v(tmp + 4 + rr)))
        k("s_cmp_lg_u32 s2, 0")
        k("s_cbranch_scc1 COL_A%d" % li)
        for i in range(8):
            k("v_and_b32 %s, 0xffff, %s" % (v(r.PK + i), v(r.PK + i)))
        k.label("COL_A%d" % li)
        for b in range(2):
            k("ds_write_b128 %s, %s offset:%d" % (v(r.vwr), v(r.PK + 4 * b, 4), 1024 * b))
        fill(12)
        if before_bar1:
            before_bar1()
        k("s_waitcnt lgkmcnt(0)")
        k("s_barrier")
        for bt in range(2):
            for ks in range(4):
                k("ds_read_b128 %s, %s offset:%d" % (v(r.FR + 16 * bt + 4 * ks, 4), v(r.vrd), 12288 * ks + 1024 * bt))
        if li == 0 and self.o.get("DG_0", 0):
            self.publish("pf", sFl)
        if after_bar1:
            after_bar1()
        fill(max(12, len(late) - 24))
        self.st("c_x1")
        for bt in range(2):
            for ri in range(2):
                for ks in range(4):
                    d = v(r.AC + 8 * bt + 4 * ri, 4)
                    k("%s %s, %s, %s, %s" % (MF, d, v(r.FR + 16 * bt + 4 * ks, 4), v(r.C64 + 8 * ks + 4 * ri, 4), d if ks else "0"))
                    fill(1 if late and "_sin" in late[0] or late and "_cos" in late[0] else 2)
                    if ks == 1:
                        self.side(NC)
                    if li == 0 and self.o.get("F2", 1) and bt == 0:
                        if ri == 0 and ks < 2:
                            k("v_mov_b32 %s, -1\nv_mov_b32 %s, -1" % (v(r.SQ + 2 * ks), v(r.SQ + 2 * ks + 1)))
                        if ri == 0 and ks == 2:
                            k("s_add_u32 %s, %s, 0x%x" % (s(sHA), s(sQ), L.X2))
                        if ks == 3:
                            k("buffer_store_dwordx4 %s, %s, %s, %s offen offset:%d sc1" % (v(r.SQ, 4), v(r.voff), WS, s(sHA), 1024 * ri), tag="p2")
        fill(len(late))
        for bt in range(2):
            self.cmul(r.AC + 8 * bt, r.AC + 8 * bt + 4, r.T1C + 4 * bt, r.T1S + 4 * bt, False)
            for rr in range(4):
                k("v_cvt_pk_bf16_f32 %s, %s, %s" % (v(r.PK + 4 * bt + rr), v(tmp + rr), v(tmp + 4 + rr)))
        late += list(late2)
        for kt in range(2):
            for ri in range(2):
                for ks in range(2):
                    d = v(r.FR + 8 * kt + 4 * ri, 4)
                    k("%s %s, %s, %s, %s" % (MF, d, v(r.C32 + 16 * kt + 8 * ks + 4 * ri, 4), v(r.PK + 4 * ks, 4), d if ks else "0"))
                    fill(2)
                    if ks == 1 and ri == 0:
                        self.side(NC)
        P2 = r.FR + 16
        for kt in range(2):
            self.cmul(r.FR + 8 * kt, r.FR + 8 * kt + 4, r.WC + 4 * kt, r.WS + 4 * kt, True)
            for rr in range(4):
                k("v_cvt_pk_bf16_f32 %s, %s, %s" % (v(P2 + 4 * kt + rr), v(tmp + 4 + rr), v(tmp + rr)))
        for bt in range(2):
            for ri in range(2):
                for ks in range(2):
                    d = v(r.AC + 8 * bt + 4 * (1 - ri), 4)
                    k("%s %s, %s, %s, %s" % (MF, d, v(P2 + 4 * ks, 4), v(r.C32 + 16 * bt + 8 * ks + 4 * ri, 4), d if ks else "0"))
                    if ks == 1 and ri == 0:
                        self.side(NC)
        for bt in range(2):
            self.cmul(r.AC + 8 * bt, r.AC + 8 * bt + 4, r.T2C + 4 * bt, r.T2S + 4 * bt, True)
            for rr in range(4):
                k("v_cvt_pk_bf16_f32 %s, %s, %s" % (v(r.PK + 4 * bt + rr), v(tmp + 4 + rr), v(tmp + rr)))
            k("ds_write_b128 %s, %s offset:%d" % (v(r.vwr), v(r.PK + 4 * bt, 4), 2048 + 1024 * bt))
        k("s_add_u32 %s, %s, 0x%x" % (s(sT), s(sQ), (L.X1, L.X3)[li]))
        k.wait_tag("p2")
        self.side(2 * NC)
        if before_bar2:
            before_bar2()
        k("s_waitcnt lgkmcnt(0)")
        k("s_barrier")
        for bt in range(2):
            for ks in range(4):
                k("ds_read_b128 %s, %s offset:%d" % (v(r.FR + 16 * bt + 4 * ks, 4), v(r.vrd), 2048 + 12288 * ks + 1024 * bt))
        self.st("c_x2")
        for bt in range(2):
            for ri in range(2):
                for ks in range(4):
                    d = v(r.XF + 8 * bt + 4 * (1 - ri), 4)
                    k("%s %s, %s, %s, %s" % (MF, d, v(r.C64 + 8 * ks + 4 * ri, 4), v(r.FR + 16 * bt + 4 * ks, 4), d))
        k("s_cmp_lg_u32 s2, 0")
        for bt in range(2):
            for rr in range(4):
                k("v_cvt_pk_bf16_f32 %s, %s, %s" % (v(r.PK + 4 * bt + rr), v(r.XF + 8 * bt + rr), v(r.XF + 8 * bt + 4 + rr)))
            k("s_cbranch_scc1 COL_B%d%d" % (li, bt))
            k("s_mov_b32 %s, 0xffff" % s(sV))
            for rr in range(4):
                k("v_bfi_b32 %s, %s, %s, %s" % (v(r.PK + 4 * bt + rr), s(sV), v(r.PK + 4 * bt + rr), v(r.XR + 4 * bt + rr)))
            k.label("COL_B%d%d" % (li, bt))
            k("buffer_store_dwordx4 %s, %s, %s, %s offen offset:%d sc1" % (v(r.PK + 4 * bt, 4), v(r.voff), WS, s(sT), 1024 * bt), tag="xs")
        self.st("c_end")

    def mlp(self):
        k, li = self.k, self.layer
        o = dict(self.o)
        o.update({n[:-2]: x for n, x in self.o.items() if isinstance(n, str) and n.endswith("_%d" % li)})
        D, PD, CH = o.get("D", 6), o.get("PD", 14), o.get("CH", 2)
        FS = 128
        XIN, H = (L.X1, L.X3)[li], (L.H1, L.H2)[li]
        TS = TILE if li == 0 else 4 * TILE
        va = Alloc(5, 256)
        vX, vX2, vrX, vH6, vB1, vA2, vF = (va() for _ in range(7))
        vS, vC = va(2), va(2)
        tmp = va(16, 4)
        t = [tmp + i for i in range(8)]
        XB, ACC, AF = va(128, 4), va(64, 4), va(32, 4)
        SSQ = ACC + 56
        acc1 = lambda ft, tt: ACC + 16 * (ft >> 1) + 8 * tt + 4 * (ft & 1) if ft < 6 else ACC + 48 + 4 * tt
        queue, side = self.queue, self.side

        DG = o.get("DG", li)
        if DG and li == 0:
            k("v_lshlrev_b32 %s, 7, v0" % v(vF))
            k("s_lshr_b32 %s, %s, 2" % (s(sG), s(sP)))
            k("s_lshl_b32 %s, %s, 15" % (s(sG), s(sG)))
            k("s_add_u32 %s, %s, 0x%x" % (s(sG), s(sG), L.GFLAGS))
            side(o.get("N0", 2))
            self.poll_issue(vF, sG)
        side(o.get("N1", 10 if li == 0 else 0))
        if DG and li == 0:
            self.poll_check(vF, sG)
        if not DG:
            k("s_lshl_b32 %s, %s, 8" % (s(sV), s(sWv)))
            k("s_add_u32 %s, %s, s2" % (s(sV), s(sV)))
            k("s_mul_i32 %s, %s, %d" % (s(sV), s(sV), FS))
            k("s_add_u32 %s, %s, 0x%x" % (s(sV), s(sV), L.GFLAGS + 262144 * li))
            self.publish("xs", sV)
        self.st("s_pub")
        pre = []
        P = pre.append
        P("v_mov_b32 %s, %s" % (v(vC), fbits(C1)))
        P("v_mov_b32 %s, %s" % (v(vC + 1), fbits(C0)))
        P("v_lshrrev_b32 %s, 6, v0" % v(t[0]))
        P("v_bfe_u32 %s, v0, 3, 2" % v(t[1]))
        P("v_lshlrev_b32 %s, 19, %s" % (v(vX), v(t[1])))
        P("v_bfe_u32 %s, v0, 5, 1" % v(t[1]))
        P("v_lshl_add_u32 %s, %s, 17, %s" % (v(vX), v(t[1]), v(vX)))
        P("v_and_b32 %s, 7, v0" % v(t[1]))
        P("v_lshl_add_u32 %s, %s, 4, %s" % (v(vX), v(t[1]), v(vX)))
        P("v_lshl_add_u32 %s, %s, 7, %s" % (v(vX), v(t[0]), v(vX)))
        P("v_add_u32 %s, %d, %s" % (v(vX2), 32 * 8192 - 1024, v(vX)))
        P("v_lshrrev_b32 %s, 1, %s" % (v(t[1]), v(vrA)))
        P("v_add_u32 %s, %s, %s" % (v(vrX), s(sRB), v(t[1])))
        P("v_and_b32 %s, 48, v0" % v(t[1]))
        P("v_add_u32 %s, %s, %s" % (v(vB1), s(sRB), v(t[1])))
        P("v_add_u32 %s, %d, %s" % (v(vA2), WB, v(vrA)))
        P("v_bfe_u32 %s, v0, 4, 1" % v(t[1]))
        P("v_mul_u32_u24 %s, %d, %s" % (v(vH6), TS, v(t[1])))
        P("v_bfe_u32 %s, v0, 5, 1" % v(t[1]))
        P("v_lshl_add_u32 %s, %s, 8, %s" % (v(vH6), v(t[1]), v(vH6)))
        P("v_and_b32 %s, 15, v0" % v(t[1]))
        P("v_lshl_add_u32 %s, %s, 4, %s" % (v(vH6), v(t[1]), v(vH6)))
        P("v_mul_u32_u24 %s, %d, v0" % (v(vF), 8192 if DG else FS))
        P("s_lshl_b32 %s, %s, 9" % (s(sX), s(sP)))
        P("s_add_u32 %s, %s, 0x%x" % (s(sX), s(sX), XIN))
        if DG:
            P("s_and_b32 %s, %s, 3" % (s(sG), s(sI)) if o.get("GL", 3) == 4 else "s_mov_b32 %s, %d" % (s(sG), o.get("GL", 3)))
            P("s_lshl_b32 %s, %s, 7" % (s(sG), s(sG)))
            P("s_add_u32 %s, %s, %s" % (s(sG), s(sG), s(sX)))
        else:
            P("s_lshr_b32 %s, %s, 2" % (s(sG), s(sP)))
            P("s_mul_i32 %s, %s, %d" % (s(sG), s(sG), 256 * FS))
            P("s_add_u32 %s, %s, 0x%x" % (s(sG), s(sG), L.GFLAGS + 262144 * li))
        P("s_mul_i32 %s, %s, %d" % (s(sHst), s(sP), 8 * TILE))
        P("s_add_u32 %s, %s, 0x%x" % (s(sHst), s(sHst), H))
        P("s_mul_i32 %s, %s, %d" % (s(sHA), s(sWv), 2 * TILE if li == 0 else TILE))
        P("s_add_u32 %s, %s, %s" % (s(sHA), s(sHA), s(sHst)))
        P("s_lshr_b32 %s, %s, 2" % (s(sV), s(sI)))
        P("s_mul_i32 %s, %s, 14336" % (s(sV), s(sV)))
        P("s_add_u32 %s, %s, %s" % (s(sHA), s(sHA), s(sV)))
        P("s_and_b32 %s, %s, 3" % (s(sV), s(sI)))
        P("s_lshl_b32 %s, %s, 9" % (s(sV), s(sV)))
        P("s_add_u32 %s, %s, %s" % (s(sH6), s(sHA), s(sV)))
        P("s_add_u32 %s, %s, %s" % (s(sHB), s(sH6), s(sV)))
        P("s_lshl_b32 %s, %s, 2" % (s(sV), s(sV)))
        P("s_add_u32 %s, %s, %s" % (s(sHA), s(sHA), s(sV)))
        P("s_add_u32 %s, %s, %d" % (s(sH6), s(sH6), 12 * 1024))
        P("s_add_u32 %s, %s, %d" % (s(sHB), s(sHB), 8 * 1024))
        P("s_mul_i32 %s, %s, %d" % (s(sV), s(sPhi), 4 * TILE))
        P("s_add_u32 %s, %s, %s" % (s(sHst), s(sHst), s(sV)))
        P("s_mul_i32 %s, %s, 14336" % (s(sV), s(sWv)))
        P("s_add_u32 %s, %s, %s" % (s(sHst), s(sHst), s(sV)))
        P("s_and_b32 %s, %s, %d" % (s(sPl), s(sWv), 2 if li == 0 else 3))
        for kt in range(4):
            P("s_xor_b32 %s, %s, %d" % (s(sV), s(sPl), kt ^ (2 if li == 0 else 3)))
            P("s_mul_i32 %s, %s, %d" % (s(sV), s(sV), TILE))
            P("s_add_u32 %s, %s, %s" % (s(sHt + kt), s(sHst), s(sV)))
        P("s_lshl_b32 %s, %s, 4" % (s(sPl), s(sP)))
        P("s_add_u32 %s, %s, %s" % (s(sFl), s(sPl), s(sI)))
        P("s_lshl_b32 %s, %s, 2" % (s(sFl), s(sFl)))
        P("s_add_u32 %s, %s, %s" % (s(sFl), s(sFl), s(sWv)))
        P("s_lshl_b32 %s, %s, 7" % (s(sFl), s(sFl)))
        P("s_add_u32 %s, %s, 0x%x" % (s(sFl), s(sFl), L.FLAGS + li * 262144))
        P("s_lshl_b32 %s, %s, 9" % (s(sPl), s(sPl)))
        P("s_lshl_b32 %s, %s, 11" % (s(sV), s(sWv)))
        P("s_add_u32 %s, %s, %s" % (s(sPl), s(sPl), s(sV)))
        P("s_add_u32 %s, %s, 0x%x" % (s(sPl), s(sPl), L.FLAGS + li * 262144))
        for m, c in ((8, 0x22222222), (9, 0x22222222), (10, 0x44444444), (11, 0x44444444), (36, 0x88888888), (37, 0x88888888)):
            P("s_mov_b32 %s, 0x%x" % (s(m), c))
        n2 = o.get("N2", 18 if li == 0 else 6)
        per = -(-len(pre) // max(1, n2))
        for j in range(n2):
            side()
            for txt in pre[:per]:
                k(txt)
            del pre[:per]
        for txt in pre:
            k(txt)
        self.poll_issue(vF, sG)
        while li == 0 and self.issued["w1"] < 28:
            side()
        k("s_mul_i32 %s, %s, 448" % (s(sW1), s(sI)))
        k("s_add_u32 %s, %s, 0x%x" % (s(sW1), s(sW1), L.B1X))
        if li == 0:
            for i in range(4):
                k("v_mov_b32 %s, 0" % v(tmp + 4 + i))
            k("s_lshl_b32 %s, %s, 8" % (s(sV), s(sWv)))
            k("s_add_u32 %s, %s, s2" % (s(sV), s(sV)))
            k("s_lshl_b32 %s, %s, 7" % (s(sV), s(sV)))
            k("s_sub_u32 %s, %s, 0x%x" % (s(sT), s(sFl), L.FLAGS))
            k("v_mov_b32 %s, %s" % (v(t[0]), s(sT)))
            k("v_mov_b32 %s, %s" % (v(t[1]), s(sV)))
            k("s_mov_b64 vcc, 0xff00")
            k("v_cndmask_b32 %s, %s, %s, vcc" % (v(t[0]), v(t[0]), v(t[1])))
            k("s_lshr_b32 %s, %s, 2" % (s(sT), s(sT)))
            k("v_mov_b32 %s, %s" % (v(t[1]), s(sT)))
            k("s_mov_b64 vcc, 0xff")
            k("v_cndmask_b32 %s, %s, %s, vcc" % (v(t[0]), v(t[0]), v(t[1])))
            k("v_bfe_u32 %s, v0, 3, 3" % v(t[1]))
            k("v_lshl_add_u32 %s, %s, 17, %s" % (v(t[0]), v(t[1]), v(t[0])))
            k("v_and_b32 %s, 0x70, %s" % (v(t[1]), v(vrA)))
            k("v_add_u32 %s, %s, %s" % (v(t[0]), v(t[0]), v(t[1])))
            k("s_cmp_eq_u32 %s, 0" % s(sWv))
            k("s_cselect_b32 exec_lo, -1, 0xffffff00")
            k("s_mov_b32 exec_hi, 0xffff")
            k("s_mov_b32 %s, 0x%x" % (s(sT), L.GFLAGS + 131072))
            k("buffer_store_dwordx4 %s, %s, %s, %s offen sc1" % (v(tmp + 4, 4), v(t[0]), WS, s(sT)))
            k("s_mov_b64 exec, -1")
            if self.o.get("DG_1", 1):
                for i in range(4):
                    k("v_mov_b32 %s, -1" % v(tmp + 8 + i))
                k("s_lshl_b32 %s, %s, 11" % (s(sT), s(sWv)))
                k("s_add_u32 %s, %s, %s" % (s(sT), s(sT), s(sQ)))
                k("s_add_u32 %s, %s, 0x%x" % (s(sT), s(sT), L.X3))
                for b in range(2):
                    k("buffer_store_dwordx4 %s, %s, %s, %s offen offset:%d sc1" % (v(tmp + 8, 4), v(vrA), WS, s(sT), 1024 * b))
        side(o.get("N3", 4 if li == 0 else 0))
        while queue and not getattr(queue[0][1], "head", False):
            side()
        if o.get("nogate"):
            k("v_mov_b32 %s, %s" % (v(vP), v(vP)))
        else:
            self.poll_check(vF, sG, data=DG)
        k.wait_tag("w1")
        k("s_barrier")
        self.st("s_go")
        if li == 0:
            k("s_or_b32 %s, s2, %s" % (s(sV), s(sWv)))
            k("s_cbranch_scc1 NO_EPOCH")
            k("s_mov_b32 %s, 0x%x" % (s(sV), L.EPOCH))
            self.flag_store(sV)
            k.label("NO_EPOCH")

        def bundle(ks):
            tg = ("b", ks)
            if ks == 16:
                return [(lambda: k("s_add_u32 m0, %s, %d" % (s(sRB), 4 * 2048)), self.dma(vrA, sW1, 0, tg))]
            return [(self.setup(sRB, (ks % 6) * 2048, sT, sX, 0 if o.get("xfix") else ks * 8192), self.dma(vX, sT, 0, tg, " sc1")),
                    (None, self.dma(vX2, sT, 1024, tg, " sc1"))]

        def x_read(ks, n):
            i, ro = ((0, 0), (1, 4), (2, 2), (3, 6))[n]
            return lambda: k("ds_read_b64 %s, %s offset:%d" % (v(XB + 8 * ks + ro, 2), v(vrX), (ks % 6) * 2048 + 512 * i))

        def x_swap(ks, n):
            return lambda: k("v_swap_b32 %s, %s" % (v(XB + 8 * ks + 1 + 2 * n), v(XB + 8 * ks + 4 + 2 * n)))

        def a_read(ks, ft):
            return lambda: k("ds_read_b128 %s, %s offset:%d" % (v(AF + 16 * (ks & 1) + 4 * ft, 4), v(vrA), (4 * ks + ft) * 1024))

        def b1_read(reg, ft):
            return lambda: k("ds_read_b128 %s, %s offset:%d" % (v(reg, 4), v(vB1), 4 * 2048 + 64 * ft))

        def diag(tt):
            def op():
                k("v_cndmask_b32 %s, %s, %s, s[8:9]" % (v(t[tt]), v(SSQ + 4 * tt), v(SSQ + 4 * tt + 1)))
                k("v_cndmask_b32 %s, %s, %s, s[10:11]" % (v(t[tt]), v(t[tt]), v(SSQ + 4 * tt + 2)))
                k("v_cndmask_b32 %s, %s, %s, s[36:37]" % (v(t[tt]), v(t[tt]), v(SSQ + 4 * tt + 3)))
                k("ds_bpermute_b32 %s, %s, %s" % (v(vS + tt), v(t[2]), v(t[tt])))
            return op

        k("s_mov_b32 %s, 0" % s(sG))
        k.label("PASS_A%d" % li)
        for ks in range(D):
            self.issue(bundle(ks))
        for ft in range(4):
            a_read(0, ft)()
        k("v_mov_b32 %s, 0xffff" % v(t[4]))
        k("v_cmp_gt_u32 vcc, 256, %s" % v(vrA))
        k("v_cndmask_b32 %s, -1, %s, vcc" % (v(vS), v(t[4])))
        k("v_and_b32 %s, 12, v0" % v(t[2]))
        k("v_and_b32 %s, 15, v0" % v(t[3]))
        k("v_lshlrev_b32 %s, 7, %s" % (v(vF), v(t[3])))
        k("v_lshl_add_u32 %s, %s, 2, %s" % (v(t[2]), v(t[2]), v(t[3])))
        k("v_lshlrev_b32 %s, 2, %s" % (v(t[2]), v(t[2])))
        k("v_mov_b32 %s, %s" % (v(t[3]), fbits(EPS * EPS)))
        k.wait_tag(("b", 0))
        self.st("first")
        for n in range(4):
            x_read(0, n)()
        x_swap(0, 0)()
        x_swap(0, 1)()
        for ks in range(16):
            k.wait_tag(("b", ks + 1))
            fill = [[] for _ in range(10)]
            ops = bundle(ks + D) if ks + D <= 16 else []
            while len(ops) < (2 if ks < 15 else 0) and queue:
                ops.append(queue.pop(0))
            if 2 <= ks < 16 - D and ks % o.get("XS", 2) == 0 and queue:
                ops.append(queue.pop(0))
            for n, (su, ld) in enumerate(ops):
                if su:
                    fill[(4, 8, 2)[n]].append(su)
                fill[(5, 9, 2)[n]].append(ld)
            if ks < 15:
                for n in range(4):
                    fill[n >> 1].append(x_read(ks + 1, n))
                    fill[(2, 3, 3, 4)[n]].append(a_read(ks + 1, n))
                if ks:
                    fill[1].append(lambda: k.wait(lg=4))
                fill[6].insert(0, lambda: k.wait(lg=4))
                fill[6].append(x_swap(ks + 1, 0))
                fill[7].append(x_swap(ks + 1, 1))
            else:
                for n in range(4):
                    fill[n >> 1].append(b1_read(AF + 4 * n, n))
                fill[4].append(diag(0))
                fill[6].append(diag(1))
            order = list(range(10))
            if ks == 0:
                order = order[2:] + order[:2]
                for tt in range(2):
                    fill[2 + 3 * tt].append(lambda tt=tt: k("v_and_b32 %s, %s, %s\nv_mov_b32 %s, %s" % (
                        v(tmp + 8 + 4 * tt), v(vS), v(XB + 4 * tt), v(tmp + 9 + 4 * tt), v(XB + 4 * tt + 1))))
                    fill[4 + 2 * tt].append(lambda tt=tt: k("v_mov_b32 %s, %s\nv_mov_b32 %s, %s" % (
                        v(tmp + 10 + 4 * tt), v(XB + 4 * tt + 2), v(tmp + 11 + 4 * tt), v(XB + 4 * tt + 3))))
            for pos, m in enumerate(order):
                tt = m & 1
                bb = v(XB + 8 * ks + 4 * tt, 4)
                if m < 2:
                    d = v(SSQ + 4 * tt, 4)
                    k("%s %s, %s, %s, %s" % (MF, d, v(tmp + 8 + 4 * tt, 4) if ks == 0 else bb, bb, d if ks else "0"))
                else:
                    ft = (m - 2) >> 1
                    d = v(acc1(ft, tt), 4)
                    k("%s %s, %s, %s, %s" % (MF, d, v(AF + 16 * (ks & 1) + 4 * ft, 4), bb, d if ks else "0"))
                for op in fill[pos]:
                    op()
        self.st("passA")

        def b_slot(j):
            return AF + 4 * ((j + 4) % 8)

        def b_read(j):
            k("ds_read_b128 %s, %s offset:%d" % (v(b_slot(j), 4), v(vA2), j * 1024))

        if DG:
            k("v_cmp_u_f32 vcc, %s, %s" % (v(vS), v(vS + 1)))
            k("s_cbranch_vccz A_OK%d" % li)
            k("s_add_u32 %s, %s, 1" % (s(sG), s(sG)))
            self.count(0)
            k("s_waitcnt vmcnt(0) lgkmcnt(0)")
            k("s_nop 7")
            k("s_cmp_lt_u32 %s, 64" % s(sG))
            k("s_cbranch_scc1 PASS_A%d" % li)
            k.label("A_OK%d" % li)
        for j in range(4):
            b_read(j)
        for tt in range(2):
            k("v_fmamk_f32 %s, %s, %s, %s" % (v(vS + tt), v(vS + tt), fbits((1 + EPS) / 512), v(t[3])))
        for tt in range(2):
            k("v_rsq_f32 %s, %s" % (v(vS + tt), v(vS + tt)))

        nunit = [0]

        def gelu(x, tts, bias, store):
            ob = tmp + 8 + 4 * (nunit[0] & 1)
            nunit[0] += 1
            for h in range(4):
                k("v_pk_fma_f32 %s, %s, %s, %s op_sel:[0,%d,0] op_sel_hi:[1,%d,1]"
                  % (v(x + 2 * h, 2), v(x + 2 * h, 2), v(vS, 2), v(bias[h], 2), tts[h], tts[h]))
            for h in range(4):
                k("v_pk_mul_f32 %s, %s, %s" % (v(tmp + 2 * h, 2), v(x + 2 * h, 2), v(x + 2 * h, 2)))
            for h in range(4):
                k("v_pk_fma_f32 %s, %s, %s, %s op_sel:[0,0,1] op_sel_hi:[1,0,1]" % (v(tmp + 2 * h, 2), v(tmp + 2 * h, 2), v(vC, 2), v(vC, 2)))
            for h in range(4):
                k("v_pk_mul_f32 %s, %s, %s" % (v(tmp + 2 * h, 2), v(x + 2 * h, 2), v(tmp + 2 * h, 2)))
            GS = o.get("GS", 3 if li == 0 else 0)
            side(GS // 3)
            for i in range(8):
                k("v_exp_f32 %s, %s" % (v(tmp + i), v(tmp + i)))
            side((GS + 2) // 3)
            for h in range(4):
                k("v_pk_add_f32 %s, %s, 1.0 op_sel_hi:[1,0]" % (v(tmp + 2 * h, 2), v(tmp + 2 * h, 2)))
            for i in range(8):
                k("v_rcp_f32 %s, %s" % (v(tmp + i), v(tmp + i)))
            side((GS + 1) // 3)
            for h in range(4):
                k("v_pk_mul_f32 %s, %s, %s" % (v(tmp + 2 * h, 2), v(x + 2 * h, 2), v(tmp + 2 * h, 2)))
            for h in (0, 2, 1, 3):
                k("v_cvt_pk_bf16_f32 %s, %s, %s" % (v(ob + h), v(tmp + 2 * h), v(tmp + 2 * h + 1)))
            store(ob)

        def st_pair(sb, off, tag):
            return lambda ob: k("buffer_store_dwordx4 %s, %s, %s, %s offen offset:%d sc1" % (v(ob, 4), v(vrA), WS, s(sb), off), tag=tag)

        def st_six(ob):
            k("v_permlane16_swap_b32 %s, %s" % (v(ob), v(ob + 2)))
            k("v_permlane16_swap_b32 %s, %s" % (v(ob + 1), v(ob + 3)))
            k("buffer_store_dwordx4 %s, %s, %s, %s offen sc1" % (v(ob, 4), v(vH6), WS, s(sH6)), tag="hB")

        for tt in range(2):
            for pr in range(2):
                gelu(acc1(2 * pr, tt), [tt] * 4, [AF + 8 * pr + 2 * h for h in range(4)], st_pair(sHA, pr * 1024, "hA"))
            if tt == 0:
                k("s_add_u32 %s, %s, %d" % (s(sHA), s(sHA), TS))
                if li == 1:
                    k("s_barrier")
        park = li == 0 and o.get("park", 1)
        if park:
            k("v_and_b32 %s, 0xf0, %s" % (v(vX), v(vrA)))
            k("v_and_b32 %s, 48, v0" % v(vX2))
            k("v_lshl_add_u32 %s, %s, 6, %s" % (v(vX), v(vX2), v(vX)))

            def w2t(dt):
                def op():
                    self.issued["w2t"] = self.issued.get("w2t", 0) + 1
                    k("buffer_store_dwordx4 %s, %s, %s, %s offen sc1" % (a(224 + 4 * dt, 4), v(vX), WS, s(sT)))
                return (lambda: k("s_add_u32 %s, s29, %d" % (s(sT), dt * 229376)), op)
            at = o.get("WP", 0)
            queue[at:at] = [w2t(dt) for dt in range(8)]
        if li == 1:
            k("s_lshl_b32 %s, %s, 14" % (s(sG), s(sWv)))
            k("s_lshl_b32 %s, %s, 16" % (s(sX), s(sCt)))
            k("s_add_u32 %s, %s, %s" % (s(sX), s(sX), s(sG)))
            k("s_add_u32 %s, %s, 0x%x" % (s(sX), s(sX), L.FT))
            queue[0:0] = [(self.setup(sG, (j >> 2) * 4096, sT, sX, (j >> 2) * 4096) if j & 3 == 0 else None,
                           self.dma(vrA, sT, (j & 3) * 1024, "ft")) for j in range(16)]
        self.st("geluA")

        FA = o.get("FA", 60)
        for j in range(4, 7):
            b_read(j)
        for j in range(48):
            ks, ft = j // 3, 4 + j % 3
            pend = None
            for tt in range(2):
                d = v(acc1(ft, tt), 4)
                k("%s %s, %s, %s, %s" % (MF, d, v(b_slot(j), 4), v(XB + 8 * ks + 4 * tt, 4), d if ks else "0"))
                if tt == 0:
                    if j + 7 < 48:
                        b_read(j + 7)
                    elif j + 7 < 51:
                        b1_read(b_slot(j + 7), j + 7 - 44)()
                    if j & 1 and queue:
                        su, pend = queue.pop(0)
                        if su:
                            su()
                elif pend:
                    pend()
                if 2 * j + tt == FA:
                    self.publish("hA", sFl)
                    k("s_add_u32 %s, %s, 131072" % (s(sFl), s(sFl)))
        self.st("passB")
        RES, BIAS, vRes = AF, AF + 8, vX
        if li == 0:
            assert not park or self.issued["w2t"] == 8
            k("v_bfe_u32 %s, v0, 4, 2" % v(vX2))
            k("v_lshrrev_b32 %s, 4, %s" % (v(vRes), v(vF)))
            k("v_lshl_add_u32 %s, %s, 15, %s" % (v(vRes), v(vX2), v(vRes)))
            k("v_lshlrev_b32 %s, 4, %s" % (v(vX2), v(vX2)))
            k("s_lshl_b32 %s, %s, 1" % (s(sG), s(sCt)))
            k("s_and_b32 %s, %s, 1" % (s(sV), s(sWv)))
            k("s_add_u32 %s, %s, %s" % (s(sG), s(sG), s(sV)))
            k("s_lshl_b32 %s, %s, 17" % (s(sV), s(sG)))
            k("s_add_u32 %s, %s, %s" % (s(sX), s(sX), s(sV)))
            k("s_lshl_b32 %s, %s, 6" % (s(sG), s(sG)))
            k("s_add_u32 %s, %s, 0x%x" % (s(sG), s(sG), L.B2F))
            k("s_lshl_b32 %s, %s, 1" % (s(sT), s(sPhi)))
            k("s_lshr_b32 %s, %s, 1" % (s(sV), s(sWv)))
            k("s_add_u32 %s, %s, %s" % (s(sT), s(sT), s(sV)))
            k("s_lshl_b32 %s, %s, 7" % (s(sHA), s(sT)))
            k("s_add_u32 %s, %s, %s" % (s(sX), s(sX), s(sHA)))
            for r in range(4):
                queue.append((lambda r=r: k("s_add_u32 %s, %s, %d" % (s(sT), s(sX), r * 8192)),
                              lambda r=r: k("buffer_load_dwordx2 %s, %s, %s, %s offen sc1" % (v(RES + 2 * r, 2), v(vRes), WS, s(sT)))))
            for ri in range(2):
                queue.append((None, lambda ri=ri: k("buffer_load_dwordx4 %s, %s, %s, %s offen offset:%d sc1" % (v(BIAS + 4 * ri, 4), v(vX2), WS, s(sG), ri * 1024))))
        else:
            assert self.issued["ft"] == 16
            k("v_and_b32 %s, 48, v0" % v(vX2))
            k("v_lshlrev_b32 %s, 1, %s" % (v(vX2), v(vX2)))
            k("s_lshl_b32 %s, %s, 7" % (s(sG), s(sCt)))
            for e in range(2):
                k("buffer_load_dwordx4 %s, %s, s[40:43], %s offen offset:%d" % (v(RES + 4 * e, 4), v(vX2), s(sG), e * 16))
        PA = o.get("PA", 1)
        bb = b_slot(48)
        for u in range(3):
            if u == PA:
                self.poll_issue(vF, sPl)
            if u < 2:
                gelu(acc1(4, u), [u] * 4, [bb + 2 * h for h in range(4)], st_pair(sHB, 0, "hB"))
                if u == 0:
                    k("s_add_u32 %s, %s, %d" % (s(sHB), s(sHB), TS))
            else:
                gelu(acc1(6, 0), [0, 0, 1, 1], [bb + 8, bb + 10, bb + 8, bb + 10], st_six)
        if PA == 3:
            self.poll_issue(vF, sPl)
        self.st("geluB")

        loads = [(kt, kf) for kt in range(4) for kf in range(8)] + [(kt, kf) for kt in range(4) for kf in range(8, 14)]
        slot = {x: XB + 4 * (j % 32) for j, x in enumerate(loads)}
        acc2 = lambda kt, c: ACC + 16 * kt + 4 * c
        own = [acc2(2 + (g >> 1), 2 + (g & 1)) for g in range(4)] if li == 0 else [acc2(3, g) for g in range(4)]

        def h_load(j):
            kt, kf = loads[j]
            if kf % 4 == 0:
                k("s_add_u32 %s, %s, %d" % ((s(sHst), s(sHt), 0) if o.get("hfix") else (s(sHst), s(sHt + kt), kf * 1024)))
            k("buffer_load_dwordx4 %s, %s, %s, %s offen offset:%d sc1" % (v(slot[loads[j]], 4), v(vrA), WS, s(sHst), (kf & 3) * 1024))

        FB = min(PD - 1, o.get("FB", 10))
        if li == 0:
            side(len(queue))
            self.poll_check(vF, sPl)
            self.st("pollA")
            for j in range(PD):
                h_load(j)
                if j == FB:
                    self.st("g_pre")
                    self.publish("hB", sFl)
                    if park:
                        k("s_sub_u32 %s, s2, 184" % s(sV))
                        k("s_cmp_ge_u32 %s, 56" % s(sV))
                        k("s_cbranch_scc1 NO_WFLAG")
                        k("s_lshl_b32 %s, %s, 2" % (s(sV), s(sV)))
                        k("s_add_u32 %s, %s, %s" % (s(sV), s(sV), s(sWv)))
                        k("s_lshl_b32 %s, %s, 7" % (s(sV), s(sV)))
                        k("s_add_u32 %s, %s, 0x%x" % (s(sV), s(sV), L.WFLAGS))
                        self.flag_store(sV)
                        k.label("NO_WFLAG")
                    self.st("g_pub")
            for tt in range(2):
                for r in range(4):
                    k("v_lshlrev_b32 %s, 16, %s" % (v(own[2 * tt] + r), v(RES + 2 * r + tt)))
                    k("v_and_b32 %s, 0xffff0000, %s" % (v(own[2 * tt + 1] + r), v(RES + 2 * r + tt)))
            for g in range(4):
                for h in (0, 2):
                    k("v_pk_add_f32 %s, %s, %s" % (v(own[g] + h, 2), v(own[g] + h, 2), v(BIAS + 4 * (g & 1) + h, 2)))
        else:
            side(len(queue))
            for c in range(4):
                for h in range(2):
                    k("v_lshlrev_b32 %s, 16, %s" % (v(own[c] + 2 * h), v(RES + 2 * c + h)))
                    k("v_and_b32 %s, 0xffff0000, %s" % (v(own[c] + 2 * h + 1), v(RES + 2 * c + h)))
            k.wait_tag("ft")
            k("s_barrier")
            k("s_cmp_eq_u32 %s, 1" % s(sPhi))
            k("s_cbranch_scc1 X3B")
            for tt in range(2):
                if tt == 1:
                    k.label("X3B")
                for j in range(7):
                    k("ds_read_b128 %s, %s offset:%d" % (v(AF + 4 * j, 4), v(vrA), j * 1024))
                nh = 0
                for j in range(64):
                    ks, c = j >> 2, j & 3
                    d = v(own[c], 4)
                    k("%s %s, %s, %s, %s" % (MF, d, v(AF + 4 * (j % 8), 4), v(XB + 8 * ks + 4 * tt, 4), d))
                    if j + 7 < 64:
                        k("ds_read_b128 %s, %s offset:%d" % (v(AF + 4 * ((j + 7) % 8), 4), v(vrA), (j + 7) * 1024))
                    if c == 1 and ks >= o.get("XH", 1) and nh < PD:
                        if nh == 0:
                            self.poll_check(vF, sPl)
                        assert nh < 2 * ks
                        h_load(nh)
                        nh += 1
                    if j == o.get("FBX", 44):
                        self.publish("hB", sFl)
                for j in range(nh, PD):
                    h_load(j)
                if tt == 0:
                    k("s_branch X3E")
            k.label("X3E")
            self.st("pollA")
        k("s_add_u32 %s, %s, 131072" % (s(sPl), s(sPl)))

        vRW, vRd, vO, vI = vrX, [AF + 16, AF + 17, AF + 18], vX, AF + 19
        late = []
        Q = late.append
        Q("v_add_u32 %s, %s, %s" % (v(vRW), s(sRB), v(vrA)))
        for dl in range(1, 4):
            Q("s_xor_b32 %s, %s, %d\ns_mul_i32 %s, %s, 12288" % (s(sV), s(sWv), dl, s(sV), s(sV)))
            Q("s_add_u32 %s, %s, %d\nv_add_u32 %s, %s, %s" % (s(sV), s(sV), PRIV + (3 ^ dl) * 4096, v(vRd[dl - 1]), s(sV), v(vrA)))
        if li == 1 and o.get("OC", 1):
            Q("s_mul_i32 %s, %s, 2304\ns_add_u32 %s, %s, %d" % (s(sV), s(sWv), s(sV), s(sV), WB))
            Q("v_and_b32 %s, 15, v0\nv_mul_u32_u24 %s, 144, %s" % (v(t[0]), v(t[0]), v(t[0])))
            Q("v_add3_u32 %s, %s, %s, %s\nv_bfe_u32 %s, v0, 3, 3" % (v(vI), v(t[0]), v(vX2), s(sV), v(t[0])))
            Q("v_and_b32 %s, 0x70, %s\nv_mul_u32_u24 %s, 144, %s" % (v(vX2), v(vrA), v(t[1]), v(t[0])))
            Q("v_add3_u32 %s, %s, %s, %s\nv_lshl_add_u32 %s, %s, 1, %s" % (v(vI + 1), v(t[1]), v(vX2), s(sV), v(t[2]), v(t[0]), s(sPhi)))
        elif li == 1:
            Q("v_and_b32 %s, 15, v0\nv_lshl_add_u32 %s, %s, 1, %s" % (v(t[0]), v(t[2]), v(t[0]), s(sPhi)))
        if li == 1:
            Q("v_and_b32 %s, 3, %s\nv_lshrrev_b32 %s, 1, %s" % (v(t[2]), v(t[2]), v(t[0]), v(t[0])))
            Q("v_lshl_add_u32 %s, %s, 5, %s\nv_lshl_add_u32 %s, %s, 10, %s" % (v(t[0]), v(t[2]), v(t[0]), v(vO), v(t[0]), v(vX2)))
            Q("s_lshr_b32 %s, %s, 2\ns_lshl_b32 %s, %s, 9" % (s(sV), s(sP), s(sX), s(sV)))
            Q("s_and_b32 %s, %s, 1\ns_lshl_b32 %s, %s, 8" % (s(sV), s(sP), s(sV), s(sV)))
            Q("s_add_u32 %s, %s, %s\ns_lshr_b32 %s, %s, 1" % (s(sX), s(sX), s(sV), s(sV), s(sWv)))
            Q("s_lshl_b32 %s, %s, 7\ns_add_u32 %s, %s, %s" % (s(sV), s(sV), s(sX), s(sX), s(sV)))
            Q("s_bfe_u32 %s, %s, 0x10001\ns_lshl_b32 %s, %s, 4" % (s(sV), s(sP), s(sV), s(sV)))
            Q("s_add_u32 %s, %s, %s\ns_and_b32 %s, %s, 1" % (s(sX), s(sX), s(sV), s(sV), s(sWv)))
            Q("s_lshl_b32 %s, %s, 3\ns_add_u32 %s, %s, %s" % (s(sV), s(sV), s(sX), s(sX), s(sV)))
            Q("s_lshl_b32 %s, %s, 10\ns_add_u32 %s, %s, %s" % (s(sX), s(sX), s(sX), s(sX), s(sG)))
        else:
            Q("s_add_u32 %s, %s, 0x%x\ns_cmp_eq_u32 %s, 0x%x" % (s(sX), s(sX), (L.X2 - XIN) & 0xffffffff, s(sG), L.B2F) +
              "\ns_cselect_b32 s8, 0xffff, 0")
            Q("s_mov_b32 s9, 0\nv_bfe_u32 %s, v0, 4, 1" % v(t[0]))
            Q("v_lshrrev_b32 %s, 4, %s\nv_lshl_add_u32 %s, %s, 2, %s" % (v(vI), v(vF), v(vI), v(t[0]), v(vI)))
            Q("v_bfe_u32 %s, v0, 5, 1\nv_lshlrev_b32 %s, 1, %s" % (v(t[0]), v(vI), v(vI)))
            Q("v_lshl_add_u32 %s, %s, 2, %s\ns_mov_b32 s10, 0\ns_mov_b32 s11, -1" % (v(vI), v(t[0]), v(vI)))
            Q("s_lshl_b32 %s, %s, 9\ns_add_u32 %s, %s, %s" % (s(sV), s(sP), s(sHA), s(sHA), s(sV)))
            Q("s_lshl_b32 %s, %s, 1\ns_add_u32 %s, %s, 0x%x" % (s(sHA), s(sHA), s(sHA), s(sHA), L.SSQ2))
            Q("v_min_u32 %s, 0x370, %s\nv_lshlrev_b32 %s, 3, %s" % (v(vF), v(vrA), v(vF), v(vF)))
            Q("s_mul_i32 %s, %s, %d\ns_add_u32 %s, %s, 0x%x" % (s(sPl), s(sWv), 56 * 128, s(sPl), s(sPl), L.WFLAGS))

        def quarter(kap):
            return [acc2(2 * (kap >> 1) + (g >> 1), 2 * (kap & 1) + (g & 1)) for g in range(4)] if li == 0 else [acc2(kap, g) for g in range(4)]

        def block(kts, kfs, cs):
            return [(kt, kf, c) for kt in kts for g0 in range(0, len(kfs), CH) for c in cs for kf in kfs[g0:g0 + CH]]
        A8, B6, ALL = list(range(8)), list(range(8, 14)), list(range(4))
        seq = block(ALL, A8, ALL)
        if li == 0:
            seq += block([0, 1], B6, ALL) + block([2, 3], B6, [0, 1]) + block([2, 3], B6, [2, 3])
            wr = {176 + 6 + 2 * n: (n >> 2, n & 3) for n in range(8)}
        else:
            seq += block(ALL, B6, ALL)
            wr = {152 + 24 * (n >> 2) + 6 + 2 * (n & 3): (n >> 2, n & 3) for n in range(8)}
        wr.update({200 + 5 + n: (2, n) for n in range(4)})
        seen, nld = set(), PD
        RB = o.get("RB", 213)
        for m, (kt, kf, c) in enumerate(seq):
            d = acc2(kt, c)
            first = d not in seen and d not in own
            seen.add(d)
            k("%s %s, %s, %s, %s" % (MF, v(d, 4), a(16 * kf + 4 * c, 4), v(slot[(kt, kf)], 4), "0" if first else v(d, 4)))
            if m == 0:
                self.st("h0")
            if m in (32, 64, 96, 128, 160, 192, 212):
                self.st("g_%d" % m)
            if m % 4 == 1 and nld < 56:
                if nld == 32:
                    self.st("preB")
                    self.poll_check(vF, sPl)
                    self.st("pollB")
                h_load(nld)
                nld += 1
            elif m == 4 * o.get("PB", 10) + 3:
                self.poll_issue(vF, sPl)
            elif m % 2 == 0 and nld > 33 and late:
                k(late.pop(0))
            if park and m == 4 * (56 - PD) + 5:
                assert nld == 56 and not late
                self.poll_issue(vF, sPl)
            if m in wr:
                kap, g = wr[m]
                assert not late
                k("ds_write_b128 %s, %s offset:%d" % (v(vRW), v(quarter(kap)[g], 4), kap * 4096 + g * 1024))
            if m == RB:
                k("s_waitcnt lgkmcnt(0)")
                k("s_barrier")
            if RB <= m < RB + 6:
                for n in (2 * (m - RB), 2 * (m - RB) + 1):
                    k("ds_read_b128 %s, %s offset:%d" % (v(XB + 4 * n, 4), v(vRd[n >> 2]), (n & 3) * 1024))
        self.st("gemm2")
        for n in range(8):
            k("v_pk_add_f32 %s, %s, %s" % (v(XB + 2 * n, 2), v(XB + 2 * n, 2), v(XB + 16 + 2 * n, 2)))
        for n in range(8):
            k("v_pk_add_f32 %s, %s, %s" % (v(XB + 2 * n, 2), v(XB + 2 * n, 2), v(XB + 32 + 2 * n, 2)))
        for n in range(8):
            d = v(own[n >> 1] + 2 * (n & 1), 2)
            k("v_pk_add_f32 %s, %s, %s" % (d, d, v(XB + 2 * n, 2)))
        if li == 0:
            for r in range(4):
                for tt in range(2):
                    k("v_cvt_pk_bf16_f32 %s, %s, %s" % (v(tmp + 2 * r + tt), v(own[2 * tt] + r), v(own[2 * tt + 1] + r)))
                k("s_add_u32 %s, %s, %d" % (s(sT), s(sX), r * 8192))
                k("buffer_store_dwordx2 %s, %s, %s, %s offen sc1" % (v(tmp + 2 * r, 2), v(vRes), WS, s(sT)), tag="xs")
            q = tmp + 8
            for tt in range(2):
                k("v_cndmask_b32 %s, %s, 0, s[8:9]" % (v(own[2 * tt + 1]), v(own[2 * tt + 1])))
            for tt in range(2):
                k("v_pk_mul_f32 %s, %s, %s" % (v(q + 2 * tt, 2), v(own[2 * tt], 2), v(own[2 * tt], 2)))
            for h in (2, 4, 6):
                for tt in range(2):
                    k("v_pk_fma_f32 %s, %s, %s, %s" % (v(q + 2 * tt, 2), v(own[2 * tt] + h, 2), v(own[2 * tt] + h, 2), v(q + 2 * tt, 2)))
            k("v_add_f32 %s, %s, %s" % (v(q), v(q), v(q + 1)))
            k("v_add_f32 %s, %s, %s" % (v(q + 2), v(q + 2), v(q + 3)))
            k("v_permlane16_swap_b32 %s, %s" % (v(q), v(q + 2)))
            k("v_add_f32 %s, %s, %s" % (v(q), v(q), v(q + 2)))
            k("v_mov_b32 %s, %s" % (v(q + 1), v(q)))
            k("v_permlane32_swap_b32 %s, %s" % (v(q), v(q + 1)))
            k("v_add_f32 %s, %s, %s" % (v(q), v(q), v(q + 1)))
            k("v_cndmask_b32 %s, %s, 1.0, s[10:11]" % (v(q), v(q)))
            k("buffer_atomic_add_f32 %s, %s, %s, %s offen" % (v(q), v(vI), WS, s(sHA)), tag="xs")
            if park:
                self.poll_check(vF, sPl)
        elif o.get("OC", 1):
            for e in range(2):
                for i in range(4):
                    k("v_cvt_pk_bf16_f32 %s, %s, %s" % (v(tmp + 4 * e + i), v(own[0] + 8 * e + 2 * i), v(own[0] + 8 * e + 2 * i + 1)))
                k("ds_write_b128 %s, %s offset:%d" % (v(vI), v(tmp + 4 * e, 4), 16 * e))
            for e in range(2):
                k("ds_read_b128 %s, %s offset:%d" % (v(tmp + 8 + 4 * e, 4), v(vI + 1), 8 * 144 * e))
            k("s_add_u32 %s, %s, 4096" % (s(sT), s(sX)))
            for e in range(2):
                k("buffer_store_dwordx4 %s, %s, s[44:47], %s offen%s" % (v(tmp + 8 + 4 * e, 4), v(vO), s((sX, sT)[e]), " sc1" if o.get("OS", 1) else ""))
        else:
            for e in range(2):
                for i in range(4):
                    k("v_cvt_pk_bf16_f32 %s, %s, %s" % (v(tmp + 4 * e + i), v(own[0] + 8 * e + 2 * i), v(own[0] + 8 * e + 2 * i + 1)))
                k("buffer_store_dwordx4 %s, %s, s[44:47], %s offen offset:%d" % (v(tmp + 4 * e, 4), v(vO), s(sX), 16 * e))
        self.st("epi")

    def build(self):
        k, o = self.k, self.o
        k.entry(self.name)
        self.layer = 0
        self.col_alloc()
        r = self.c
        k("s_cmp_ge_u32 s2, 256")
        k("s_cbranch_scc1 MAIN_END")
        k_pre.emit(self)
        self.st("p_out")
        self.col_addr()
        k("s_mov_b32 s42, 0x400")
        k("s_mov_b32 s43, 0x20000")
        k("s_mov_b32 s46, 0x200000")
        k("s_mov_b32 s47, 0x20000")
        k("s_lshl_b32 %s, s2, 13" % s(sQ))
        k("s_mul_i32 %s, %s, 12288" % (s(sRB), s(sWv)))
        k("s_add_u32 %s, %s, %d" % (s(sRB), s(sRB), PRIV))
        if o.get("map", 1):
            k("s_and_b32 %s, s2, 6" % s(sP))
            k("s_lshl_b32 %s, %s, 1" % (s(sP), s(sP)))
            k("s_lshr_b32 %s, s2, 6" % s(sT))
            k("s_add_u32 %s, %s, %s" % (s(sP), s(sP), s(sT)))
            k("s_bfe_u32 %s, s2, 0x30003" % s(sI))
            k("s_and_b32 %s, s2, 1" % s(sCt))
            k("s_lshl_b32 %s, %s, 3" % (s(sT), s(sCt)))
            k("s_add_u32 %s, %s, %s" % (s(sI), s(sI), s(sT)))
            k("s_bfe_u32 %s, s2, 0x10005" % s(sPhi))
            k("s_lshl_b32 %s, %s, 2" % (s(sCt), s(sCt)))
            k("s_bfe_u32 %s, s2, 0x20003" % s(sT))
            k("s_add_u32 %s, %s, %s" % (s(sCt), s(sCt), s(sT)))
        else:
            k("s_and_b32 %s, s2, 7" % s(sP))
            k("s_lshl_b32 %s, %s, 1" % (s(sP), s(sP)))
            k("s_lshr_b32 %s, s2, 7" % s(sT))
            k("s_add_u32 %s, %s, %s" % (s(sP), s(sP), s(sT)))
            k("s_bfe_u32 %s, s2, 0x40003" % s(sI))
            k("s_lshr_b32 %s, %s, 3" % (s(sPhi), s(sI)))
            k("s_and_b32 %s, %s, 7" % (s(sCt), s(sI)))
        k("s_lshl_b32 s38, %s, 12" % s(sWv))
        k("s_mul_i32 %s, %s, 114688" % (s(sW1), s(sI)))
        k("s_add_u32 %s, %s, s38" % (s(sW1), s(sW1)))
        k("s_add_u32 %s, %s, 0x%x" % (s(sW1), s(sW1), L.W1F))
        k("s_mul_i32 s39, %s, 229376" % s(sCt))
        k("s_mul_i32 %s, %s, 57344" % (s(sV), s(sWv)))
        k("s_add_u32 s39, s39, %s" % s(sV))
        k("s_and_b32 %s, %s, 1" % (s(sV), s(sWv)))
        k("s_xor_b32 %s, %s, 1" % (s(sV), s(sV)))
        k("s_lshl_b32 %s, %s, 11" % (s(sV), s(sV)))
        k("s_add_u32 %s, s39, %s" % (s(sW2), s(sV)))
        k("s_add_u32 %s, %s, 0x%x" % (s(sW2), s(sW2), L.W2F))
        self.queue += [(self.setup(38, (j >> 2) * 16384, sU, sW1, (j >> 2) * 16384) if j & 3 == 0 else None,
                        self.dma(vrA, sU, (j & 3) * 1024, "w1")) for j in range(28)] + self.w2_ops()
        consts = self.col_consts()
        np_, n0 = o.get("CP", 90), o.get("C0", 170)
        for txt in consts[:np_]:
            k(txt)
        def publish0():
            k("v_add_u32 %s, 1, %s" % (v(vV), v(vV)))
            k("v_max_u32 %s, 1, %s" % (v(vV), v(vV)))
            k("v_readfirstlane_b32 %s, %s" % (s(sE), v(vV)))
            self.publish_wg(sRec)
            self.st("p_pub")
        nlate = o.get("LP", 56)
        k("s_sub_u32 %s, s2, 128" % s(sH6))
        k("s_cmp_lt_u32 %s, %d" % (s(sH6), nlate))
        k("s_cbranch_scc1 P0_LATE")
        k("s_waitcnt vmcnt(0)")
        publish0()
        k.label("P0_LATE")
        for txt in consts[np_:n0]:
            k(txt)
        vF1, vF2 = r.AC + 1, 5
        SW = o.get("SW", 1)
        k("v_and_b32 %s, 15, v0" % v(vF1))
        if not SW:
            k("v_and_b32 %s, 16, v0" % v(vF2))
            k("v_lshl_add_u32 %s, %s, 2, %s" % (v(vF1), v(vF2), v(vF1)))
        k("v_lshl_add_u32 %s, %s, 4, %s" % (v(vF1), v(r.t[0]), v(vF1)))
        k("v_lshlrev_b32 %s, 7, %s" % (v(vF1), v(vF1)))
        k("v_and_b32 %s, 31, v0" % v(vF2))
        k("v_lshl_add_u32 %s, %s, 5, %s" % (v(vF2), v(r.t[0]), v(vF2)))
        k("v_lshlrev_b32 %s, 7, %s" % (v(vF2), v(vF2)))
        k("s_mov_b32 %s, 0x%x" % (s(sG), L.PFLAGS))
        self.poll_issue(vF1, sG)
        for txt in consts[n0:]:
            k(txt)
        self.st("c_const")
        k("s_waitcnt vmcnt(0)")
        k("s_cmp_ge_u32 %s, %d" % (s(sH6), nlate))
        k("s_cbranch_scc1 P0_EARLY")
        publish0()
        k.label("P0_EARLY")
        self.poll_check(vF1, sG, sleep=o.get("SL0", 0))
        self.st("p_go")
        self.col_load_x()
        if SW:
            k("s_add_u32 %s, %s, %d" % (s(sHB), s(sG), 64 * 128))
            self.poll_issue(vF1, sHB)
        else:
            self.col_load_w()
        if o.get("DG_0", 0):
            for i in range(4):
                k("v_mov_b32 %s, -1" % v(r.FR + i))
            k("s_add_u32 %s, %s, 0x%x" % (s(sT), s(sQ), L.X1))
            for b in range(2):
                k("buffer_store_dwordx4 %s, %s, %s, %s offen offset:%d sc1" % (v(r.FR, 4), v(r.voff), WS, s(sT), 1024 * b), tag="pf")
            k("s_lshl_b32 %s, %s, 8" % (s(sFl), s(sWv)))
            k("s_add_u32 %s, %s, s2" % (s(sFl), s(sFl)))
            k("s_lshl_b32 %s, %s, 7" % (s(sFl), s(sFl)))
            k("s_add_u32 %s, %s, 0x%x" % (s(sFl), s(sFl), L.GFLAGS))
        k("s_add_u32 %s, %s, %d" % (s(sG), s(sG), 128 * 128))
        chk = lambda: self.poll_check(vF2, sG)
        EW = o.get("EW", 0)
        if EW:
            vF3, w1q = r.AC, self.queue[:28]
            del self.queue[:28]
            k("v_min_u32 %s, 208, %s" % (v(vF3), v(vrA)))
            k("v_lshlrev_b32 %s, 3, %s" % (v(vF3), v(vF3)))
            k("s_mul_i32 %s, %s, %d" % (s(sHA), s(sWv), 14 * 128))
            k("s_add_u32 %s, %s, 0x%x" % (s(sHA), s(sHA), L.PFLAGS + 184 * 128))
            self.poll_issue(vF3, sHA)

            def after1():
                self.poll_check(vF3, sHA)
                self.poll_issue(vF2, sG)
            self.col_compute(self.col_unpack_w(), None, chk, after1, EW)
            while not getattr(self.queue[0][1], "head", False):
                self.side()
            self.queue[0:0] = w1q
        elif SW:
            def filt():
                self.poll_check(vF1, sHB)
                self.col_load_w()
            self.col_compute([], filt, chk, lambda: self.poll_issue(vF2, sG), 0, late2=self.col_unpack_w())
        else:
            self.col_compute(self.col_unpack_w(), None, chk, lambda: self.poll_issue(vF2, sG), 0)
        self.mlp()

        self.layer = 1
        self.st("l2")
        self.col_addr()
        self.col_load_w()
        if o.get("cp2", 1):
            k("s_getpc_b64 s[8:9]")
            k.raw("L2_PC:")
            k("s_mov_b32 s10, CODE_END-L2_PC")
            k("s_mov_b32 s11, 0x20000")
            k("v_lshlrev_b32 %s, 7, v0" % v(r.XF))
            k("s_cmp_ge_u32 s2, %d" % o.get("cp2w", 16))
            k("s_cbranch_scc1 NO_CP2")
            k("buffer_load_dword v5, %s, s[8:11], 0 offen" % v(r.XF))
            k.label("NO_CP2")
        k("s_add_u32 %s, s39, 0x%x" % (s(sW2), L.W2T))
        self.queue += self.w2_ops()
        consts = self.col_consts() + self.col_unpack_w()
        n1, n7 = o.get("C1", 120), o.get("N7", 4)
        for j, txt in enumerate(consts[:n1]):
            k(txt)
            if j % 14 == 8 and j // 14 < n7:
                self.side()
        F2 = o.get("F2", 1)
        if F2:
            k("s_barrier")
        else:
            k("s_lshl_b32 %s, %s, 4" % (s(sV), s(sP)))
            k("s_add_u32 %s, %s, %s" % (s(sV), s(sV), s(sI)))
            k("s_lshl_b32 %s, %s, 7" % (s(sV), s(sV)))
            k("s_add_u32 %s, %s, 0x%x" % (s(sV), s(sV), L.GFLAGS + 131072))
            k.wait_tag("xs")
            self.publish_wg(sV)
        self.st("s2_pub")
        rest, n4 = consts[n1:], o.get("N4", 10)
        per = -(-len(rest) // max(1, n4))
        for j in range(n4):
            self.side()
            for txt in rest[:per]:
                k(txt)
            del rest[:per]
        for txt in rest:
            k(txt)
        k("v_lshlrev_b32 v5, 1, %s" % v(r.voff))
        self.st("s2_pi")
        if F2:
            self.col_load_x()
            self.side(o.get("N6", 4))
            self.col_gate()
            self.st("s2_go")
        else:
            k("v_lshlrev_b32 %s, 7, v0" % v(r.t[1]))
            k("s_mov_b32 %s, 0x%x" % (s(sG), L.GFLAGS + 131072))
            self.poll_issue(r.t[1], sG)
            self.side(o.get("N5", 0))
            self.poll_check(r.t[1], sG)
            self.st("s2_go")
            self.col_load_x()
            self.side(o.get("N6", 4))
        self.col_compute([], NC=o.get("NC", 1))
        self.mlp()
        self.st("end", final=True)
        k.label("MAIN_END")
        k("s_endpgm")
        return k


def build(name, stamp=None, opts=None):
    return Main(name, stamp, opts).build()
```

```python
import math
from asmlib import Alloc, v, a, s, fbits
import layout as L

MF = "v_mfma_f32_16x16x32_bf16"
WS = "s[4:7]"
IN, IN2 = 8, 12
PITCH = 1088
IMG = 40960
vrA = 1
sWv, sE, sRec = 3, 48, 49
ST = "buffer_store_dwordx4 %s, %s, " + WS + ", %s offen offset:%d sc1"


def split14(k, sS, sU, sT):
    k("s_mul_i32 %s, %s, 4682" % (s(sS), s(sT)))
    k("s_lshr_b32 %s, %s, 16" % (s(sS), s(sS)))
    k("s_mul_i32 %s, %s, 14" % (s(sU), s(sS)))
    k("s_sub_u32 %s, %s, %s" % (s(sU), s(sT), s(sU)))


def emit(M):
    k, st = M.k, M.st
    va = Alloc(6, 256)
    vn, vg, vfn, vfg4 = va(), va(), va(), va()
    t = [va() for _ in range(8)]
    A = va(32, 4)
    D = va(64, 4)
    RAW = D
    B1re, B1im, A2re, A2im, S2re, S2im, TC, TS = (va(4, 4) for _ in range(8))
    tmp = va(16, 4)
    O = va(32, 4)
    BS = va(32, 4)
    sM0, sM8, sDC, sT, sA, sB, sC, sLds, sSelLo, sSelHi = 32, 34, 36, 37, 38, 39, 42, 43, 46, 47
    sS, sU, sG, sRole = 16, 17, 18, 19

    k("s_load_dwordx16 s[16:31], s[0:1], 0")
    k("s_load_dwordx2 s[4:5], s[0:1], 80")
    k("s_load_dwordx2 s[44:45], s[0:1], 64")
    k("s_load_dwordx2 s[40:41], s[0:1], 56")
    if M.o.get("cpf", 1):
        k("s_getpc_b64 s[12:13]")
        k.raw("PRE_PC:")
        k("s_sub_u32 s12, s12, PRE_PC-%s" % M.name)
        k("s_subb_u32 s13, s13, 0")
        k("s_mov_b32 s14, CODE_END-%s" % M.name)
        k("s_mov_b32 s15, 0x20000")
        k("v_lshlrev_b32 %s, 7, v0" % v(t[0]))
        k("s_bfe_u32 %s, s2, 0x10003" % s(sC))
        k("s_lshl_b32 %s, %s, 15" % (s(sC), s(sC)))
        k("s_cmp_lt_u32 s2, 240")
        k("s_cbranch_scc1 PRE_NOPF")
        k("buffer_load_dword v2, %s, s[12:15], %s offen" % (v(t[0]), s(sC)))
        k.label("PRE_NOPF")
    st("start")
    k("v_lshrrev_b32 %s, 6, v0" % v(t[0]))
    k("v_and_b32 %s, 63, v0" % v(vrA))
    k("v_readfirstlane_b32 %s, %s" % (s(sWv), v(t[0])))
    k("v_lshlrev_b32 %s, 4, %s" % (v(A), v(vrA)))
    k("s_mov_b32 %s, 0x20000" % s(IN + 3))
    k("s_mul_i32 %s, %s, %d" % (s(sLds), s(sWv), 8 * PITCH))

    def basics():
        k("v_and_b32 %s, 15, v0" % v(vn))
        k("v_lshrrev_b32 %s, 4, %s" % (v(vg), v(vrA)))
        k("v_lshlrev_b32 %s, 4, %s" % (v(vrA), v(vrA)))
        k("s_mov_b32 s6, 0x%x" % L.WS_USED)
        k("s_mov_b32 s7, 0x20000")
        k("s_mov_b32 %s, 0x05040100" % s(sSelLo))
        k("s_mov_b32 %s, 0x07060302" % s(sSelHi))
        k("s_mov_b32 %s, s2" % s(sRec))

    def row_consts():
        out = []
        k = out.append
        k("s_mov_b32 %s, 0x00010001" % s(sM0))
        k("s_mov_b32 %s, %s" % (s(sM0 + 1), s(sM0)))
        k("s_mov_b32 %s, 0xff00ff00" % s(sM8))
        k("s_mov_b32 %s, %s" % (s(sM8 + 1), s(sM8)))
        k("s_cmp_eq_u32 %s, 2\ns_cselect_b32 %s, 0, %s" % (s(sRole), s(sDC), fbits(1 / (16 * math.sqrt(2)))))
        k("v_cvt_f32_u32 %s, %s" % (v(vfn), v(vn)))
        k("v_lshlrev_b32 %s, 2, %s" % (v(t[1]), v(vg)))
        k("v_cvt_f32_u32 %s, %s" % (v(vfg4), v(t[1])))
        f1, b1, f2, b2 = t[0], t[1], t[2], t[3]
        k("v_mul_f32 %s, %s, %s" % (v(f1), fbits(1 / 32), v(vfn)))
        k("v_mul_f32 %s, %s, %s" % (v(b1), v(f1), v(vfg4)))
        k("v_cndmask_b32 %s, %s, 0.5, %s" % (v(f2), v(f1), s(sM0, 2)))
        k("v_mov_b32 %s, %s" % (v(t[4]), fbits(0.25)))
        k("v_cndmask_b32 %s, %s, 0, %s" % (v(t[4]), v(t[4]), s(sM0, 2)))
        k("v_fma_f32 %s, %s, %s, %s" % (v(b2), v(f2), v(vfg4), v(t[4])))
        for jj in range(8):
            c = fbits(16 * (jj >> 2) + (jj & 3))
            k("v_fmamk_f32 %s, %s, %s, %s" % (v(tmp + jj), v(f1), c, v(b1)))
            k("v_fmamk_f32 %s, %s, %s, %s" % (v(tmp + 8 + jj), v(f2), c, v(b2)))
        for i in range(16):
            k("v_cos_f32 %s, %s" % (v(tmp + i), v(tmp + i)))
        for i in range(4):
            k("v_cvt_pk_bf16_f32 %s, %s, %s" % (v(B1re + i), v(tmp + 2 * i), v(tmp + 2 * i + 1)))
            k("v_cvt_pk_bf16_f32 %s, %s, %s" % (v(B1im + i), v(tmp + 8 + 2 * i), v(tmp + 8 + 2 * i + 1)))
        ftw, fa2, fs2, sctw, scs, vsh, vsg = t[0], t[1], t[2], t[3], t[4], t[5], t[6]
        k("v_mul_f32 %s, %s, %s" % (v(ftw), fbits(1 / 512), v(vfn)))
        k("v_mul_f32 %s, %s, %s" % (v(fa2), fbits(1 / 16), v(vfn)))
        k("v_add_f32 %s, %s, %s" % (v(fs2), fbits(-15 / 32), v(fa2)))
        k("v_cndmask_b32 %s, %s, %s, %s" % (v(fs2), v(fa2), v(fs2), s(sM8, 2)))
        k("v_cndmask_b32 %s, %s, 0.5, %s" % (v(fs2), v(fs2), s(sM0, 2)))
        k("v_mov_b32 %s, %s" % (v(scs), fbits(1 / 16)))
        k("v_cndmask_b32 %s, %s, 0, %s" % (v(sctw), v(scs), s(sM0, 2)))
        k("v_mov_b32 %s, %s" % (v(t[7]), fbits(1 / (16 * math.sqrt(2)))))
        k("v_cndmask_b32 %s, %s, %s, %s" % (v(scs), v(scs), v(t[7]), s(sM0, 2)))
        k("v_cndmask_b32 %s, 0, 16, %s" % (v(vsh), s(sM8, 2)))
        k("v_mov_b32 %s, 0x80008000" % v(vsg))
        k("v_cndmask_b32 %s, 0, %s, %s" % (v(vsg), v(vsg), s(sM8, 2)))
        for r in range(4):
            fb = tmp + 12 + r
            k("v_add_f32 %s, %s, %s" % (v(fb), fbits(r), v(vfg4)))
            k("v_mul_f32 %s, %s, %s" % (v(tmp + r), v(fb), v(ftw)))
            k("v_mul_f32 %s, %s, %s" % (v(tmp + 4 + r), v(fb), v(fa2)))
            k("v_mul_f32 %s, %s, %s" % (v(tmp + 8 + r), v(fb), v(fs2)))
        for r in range(4):
            k("v_cos_f32 %s, %s" % (v(TC + r), v(tmp + r)))
            k("v_sin_f32 %s, %s" % (v(TS + r), v(tmp + r)))
            k("v_cos_f32 %s, %s" % (v(O + r), v(tmp + 4 + r)))
            k("v_sin_f32 %s, %s" % (v(O + 4 + r), v(tmp + 4 + r)))
            k("v_cos_f32 %s, %s" % (v(S2re + r), v(tmp + 8 + r)))
            k("v_sin_f32 %s, %s" % (v(S2im + r), v(tmp + 8 + r)))
        k("v_mov_b32 %s, %s" % (v(t[7]), s(sDC)))
        for r in range(4):
            k("v_mul_f32 %s, %s, %s" % (v(TC + r), v(TC + r), v(sctw)))
            k("v_mul_f32 %s, %s, %s" % (v(TS + r), v(TS + r), v(sctw)))
            k("v_cvt_pk_bf16_f32 %s, %s, %s" % (v(A2re + r), v(O + r), v(O + 4 + r)))
            k("v_cvt_pk_bf16_f32 %s, -%s, %s" % (v(A2im + r), v(O + 4 + r), v(O + r)))
            k("v_xor_b32 %s, %s, %s" % (v(A2im + r), v(A2im + r), v(vsg)))
            k("v_mul_f32 %s, %s, %s" % (v(S2re + r), v(S2re + r), v(scs)))
            k("v_mul_f32 %s, %s, %s" % (v(S2im + r), fbits(-1 / 16), v(S2im + r)))
            k("v_cndmask_b32 %s, %s, %s, %s" % (v(S2im + r), v(S2im + r), v(t[7]), s(sM0, 2)))
            k("v_cvt_pk_bf16_f32 %s, %s, 0" % (v(S2re + r), v(S2re + r)))
            k("v_cvt_pk_bf16_f32 %s, %s, 0" % (v(S2im + r), v(S2im + r)))
            k("v_lshlrev_b32 %s, %s, %s" % (v(S2re + r), v(vsh), v(S2re + r)))
            k("v_lshlrev_b32 %s, %s, %s" % (v(S2im + r), v(vsh), v(S2im + r)))
        for i in range(32):
            k("v_mov_b32 %s, 0" % v(BS + i))
        return out

    late = M.o.get("wl", 1)
    sM, sPitch, sStep = 20, 21, 22
    k("s_mov_b64 vcc, 0")
    k("s_cmp_lt_u32 s2, 64")
    k("s_cbranch_scc1 PRE_IN_X")
    k("s_sub_u32 %s, s2, 128" % s(sC))
    k("s_cmp_ge_u32 %s, 56" % s(sC))
    k("s_cbranch_scc1 PRE_OTHER")

    def warm(q, sx):
        stz = "s_mov_b32 exec_hi, 0\nbuffer_store_dword %s, v4, %s, %s offen sc1\ns_mov_b32 exec_hi, -1" % (v(q), WS, s(sx))
        return ["s_lshl_b32 %s, %s, 7\ns_add_u32 %s, %s, 0x%x" % (s(sRec), s(sRec), s(sRec), s(sRec), L.PFLAGS),
                "s_mov_b32 %s, 0x%x\nv_lshrrev_b32 v4, 2, %s\nv_mov_b32 %s, 0" % (s(sx), L.EPOCH, v(vrA), v(q)),
                "buffer_load_dword v3, %s, %s, %s offen sc1" % (v(q), WS, s(sx)),
                "s_lshl_b32 %s, %s, 8\ns_add_u32 %s, %s, s2" % (s(sx), s(sWv), s(sx), s(sx)),
                "s_lshl_b32 %s, %s, 7\ns_add_u32 %s, %s, 0x%x" % (s(sx), s(sx), s(sx), s(sx), L.GFLAGS),
                "s_lshl_b32 %s, s2, 7\ns_add_u32 %s, %s, 0x%x" % (s(sE), s(sE), s(sE), L.SSQ0),
                stz,
                "s_cmp_eq_u32 %s, 0\ns_cselect_b32 %s, %s, %s" % (s(sWv), s(sx), s(sRec), s(sx)),
                "s_cmp_lt_u32 s2, 64\ns_cselect_b32 %s, %s, %s" % (s(sE), s(sE), s(sx)),
                "s_cmp_eq_u32 %s, 1\ns_cselect_b32 %s, %s, %s" % (s(sWv), s(sx), s(sE), s(sx)),
                stz]

    def w2_rows(sa, sb):
        k("s_lshr_b32 %s, %s, 2" % (s(sG), s(sU)))
        k("s_mul_i32 %s, %s, 112" % (s(sa), s(sS)))
        k("s_lshl_b32 %s, %s, 5" % (s(sC), s(sG)))
        k("s_add_u32 %s, %s, %s" % (s(sa), s(sa), s(sC)))
        k("s_and_b32 %s, %s, 3" % (s(sC), s(sU)))
        k("s_cmp_eq_u32 %s, 3" % s(sG))
        k("s_cselect_b32 %s, 3, 2" % s(sb))
        k("s_cselect_b32 %s, 4, 16" % s(sG))
        k("s_lshl_b32 %s, %s, %s" % (s(sC), s(sC), s(sb)))
        k("s_add_u32 %s, %s, %s" % (s(sa), s(sa), s(sC)))
        k("s_add_u32 %s, %s, %s" % (s(sb), s(sa), s(sG)))
        k("s_lshl_b32 %s, %s, 10" % (s(sa), s(sa)))
        k("s_lshl_b32 %s, %s, 10" % (s(sb), s(sb)))

    def w2_frag(sd):
        k("s_and_b32 %s, %s, 3" % (s(sB), s(sS)))
        k("s_lshr_b32 %s, %s, 2" % (s(sC), s(sU)))
        k("s_lshl_b32 %s, %s, 1" % (s(sd), s(sB)))
        k("s_add_u32 %s, %s, %s" % (s(sd), s(sd), s(sC)))
        k("s_add_u32 %s, %s, 8" % (s(sG), s(sB)))
        k("s_cmp_eq_u32 %s, 2" % s(sC))
        k("s_cselect_b32 %s, %s, %s" % (s(sd), s(sG), s(sd)))
        k("s_lshr_b32 %s, %s, 1" % (s(sG), s(sB)))
        k("s_add_u32 %s, %s, 12" % (s(sG), s(sG)))
        k("s_and_b32 %s, %s, 1" % (s(sB), s(sB)))
        k("s_lshl_b32 %s, %s, 1" % (s(sB), s(sB)))
        k("s_cmp_eq_u32 %s, 3" % s(sC))
        k("s_cselect_b32 %s, %s, %s" % (s(sd), s(sG), s(sd)))
        k("s_cselect_b32 %s, %s, 0" % (s(sB), s(sB)))
        k("s_and_b32 %s, %s, 3" % (s(sG), s(sU)))
        k("s_add_u32 %s, %s, %s" % (s(sG), s(sG), s(sB)))
        k("s_lshr_b32 %s, %s, 2" % (s(sB), s(sS)))
        k("s_mul_i32 %s, %s, 14" % (s(sB), s(sB)))
        k("s_add_u32 %s, %s, %s" % (s(sd), s(sd), s(sB)))
        k("s_lshl_b32 %s, %s, 12" % (s(sd), s(sd)))
        k("s_lshl_b32 %s, %s, 8" % (s(sG), s(sG)))
        k("s_add_u32 %s, %s, %s" % (s(sd), s(sd), s(sG)))

    def rows(role, ptr, nbytes, step, m=sLds, pitch=PITCH):
        k("s_mov_b32 %s, 0x%x" % (s(IN + 2), nbytes))
        k("s_mov_b64 %s, %s" % (s(IN, 2), s(ptr, 2)))
        k("s_mov_b32 %s, %d" % (s(sRole), role))
        k("s_mov_b32 %s, %s" % (s(sM), s(m)))
        k("s_mov_b32 %s, %d" % (s(sPitch), pitch))
        k("s_mov_b32 %s, %d" % (s(sStep), step))

    k("s_and_b32 %s, s2, 7" % s(sT))
    k("s_mul_i32 %s, %s, 7" % (s(sT), s(sT)))
    k("s_bfe_u32 %s, s2, 0x30003" % s(sC))
    k("s_add_u32 %s, %s, %s" % (s(sT), s(sT), s(sC)))
    k("s_mul_i32 %s, %s, %d" % (s(sA), s(sWv), 128 * 3584))
    k("s_lshl_b32 %s, %s, 6" % (s(sC), s(sT)))
    k("s_add_u32 %s, %s, %s" % (s(sA), s(sA), s(sC)))
    k("s_add_u32 %s, %s, %d" % (s(sB), s(sA), 64 * 3584))
    k("s_lshl_b32 %s, %s, 13" % (s(sLds), s(sWv)))
    k("v_bfe_u32 %s, v0, 2, 4" % v(A))
    k("v_mul_u32_u24 %s, 3584, %s" % (v(A), v(A)))
    k("v_lshrrev_b32 %s, 4, v0" % v(A + 1))
    k("v_xor_b32 %s, v0, %s" % (v(A + 1), v(A + 1)))
    k("v_and_b32 %s, 3, %s" % (v(A + 1), v(A + 1)))
    k("v_lshl_add_u32 %s, %s, 4, %s" % (v(A), v(A + 1), v(A)))
    k("s_lshl_b32 %s, %s, 2" % (s(sT), s(sT)))
    k("s_add_u32 %s, %s, %s" % (s(sT), s(sT), s(sWv)))
    rows(2, 24, 0x1c0000, 16 * 3584, pitch=1024)
    if late & 2:
        k("s_mov_b64 vcc, -1")
    k("s_branch PRE_CONST")

    k.label("PRE_IN_X")
    dbg = M.o.get("only_w1")
    k("s_lshr_b32 %s, s2, 4" % s(sA))
    k("s_lshl_b32 %s, %s, 9" % (s(sA), s(sA)))
    k("s_bfe_u32 %s, s2, 0x10003" % s(sC))
    k("s_lshl_b32 %s, %s, 4" % (s(sC), s(sC)))
    k("s_add_u32 %s, %s, %s" % (s(sA), s(sA), s(sC)))
    k("s_bfe_u32 %s, s2, 0x20001" % s(sC))
    k("s_lshl_b32 %s, %s, 7" % (s(sC), s(sC)))
    k("s_add_u32 %s, %s, %s" % (s(sA), s(sA), s(sC)))
    k("s_and_b32 %s, s2, 1" % s(sC))
    k("s_lshl_b32 %s, %s, 2" % (s(sC), s(sC)))
    k("s_add_u32 %s, %s, %s" % (s(sC), s(sC), s(sWv)))
    k("s_lshl_b32 %s, %s, 1" % (s(sC), s(sC)))
    k("s_add_u32 %s, %s, %s" % (s(sA), s(sA), s(sC)))
    k("s_lshl_b32 %s, %s, 10" % (s(sA), s(sA)))
    k("s_add_u32 %s, %s, 1024" % (s(sB), s(sA)))
    rows(0, 16, 0 if dbg else 0x200000, 32768)

    k.label("PRE_CONST")
    def row_loads(tagn):
        k("s_mov_b32 m0, %s" % s(sM))
        k("s_mov_b32 %s, %s" % (s(sC), s(sA)))
        k("s_mov_b32 s23, 0")
        k.label("PRE_RL%d" % tagn)
        k("buffer_load_dwordx4 %s, %s, %s offen lds" % (v(A), s(IN, 4), s(sC)), tag="in")
        k("s_add_u32 m0, m0, %s" % s(sPitch))
        k("s_add_u32 %s, %s, %s" % (s(sC), s(sC), s(sStep)))
        k("s_add_u32 s23, s23, 1")
        k("s_cmp_eq_u32 s23, 4")
        k("s_cselect_b32 %s, %s, %s" % (s(sC), s(sB), s(sC)))
        k("s_cmp_lt_u32 s23, 8")
        k("s_cbranch_scc1 PRE_RL%d" % tagn)
    k("s_cbranch_vccnz PRE_SK")
    row_loads(0)
    k.label("PRE_SK")
    basics()
    consts, n1 = row_consts(), M.o.get("pc", 105)
    for txt in consts[:n1]:
        k(txt)
    k("s_cbranch_vccz PRE_NL")
    row_loads(1)
    k.label("PRE_NL")
    for txt in consts[n1:]:
        k(txt)
    k("s_cmp_eq_u32 %s, 2" % s(sRole))
    k("s_cbranch_scc1 PRE_A_W1")
    k("v_lshrrev_b32 %s, 1, %s" % (v(t[0]), v(vrA)))
    k("v_add_u32 %s, %s, %s" % (v(t[0]), s(sLds), v(t[0])))
    k.wait_tag("in")
    for j in range(8):
        k("ds_read_b64_tr_b16 %s, %s offset:%d" % (v(A + 4 * j, 2), v(t[0]), j * PITCH))
        k("ds_read_b64_tr_b16 %s, %s offset:%d" % (v(A + 4 * j + 2, 2), v(t[0]), j * PITCH + 512))
    k("s_branch PRE_CORE")
    k.label("PRE_A_W1")
    k("v_lshrrev_b32 %s, 2, %s" % (v(t[1]), v(vn)))
    k("v_xor_b32 %s, %s, %s" % (v(t[1]), s(sWv), v(t[1])))
    k("v_lshlrev_b32 %s, 4, %s" % (v(t[1]), v(t[1])))
    k("v_lshl_add_u32 %s, %s, 6, %s" % (v(t[0]), v(vn), v(t[1])))
    k("v_lshl_add_u32 %s, %s, 12, %s" % (v(t[0]), v(vg), v(t[0])))
    st("p_w0")
    k.wait_tag("in")
    st("p_w1")
    k("s_barrier")
    st("p_w2")
    for jj in range(8):
        k("ds_read_b128 %s, %s offset:%d" % (v(RAW + 4 * jj, 4), v(t[0]), (16 * (jj >> 2) + (jj & 3)) * 1024))
    for j in range(8):
        for i in range(4):
            k("v_perm_b32 %s, %s, %s, %s" % (v(A + 4 * j + i), v(RAW + 4 * (2 * i + 1) + (j >> 1)),
                                            v(RAW + 4 * (2 * i) + (j >> 1)), s(sSelHi if j & 1 else sSelLo)))

    k.label("PRE_CORE")
    st("p_in")
    wm = warm(O, sC)
    for j in range(16):
        k("%s %s, %s, %s, 0" % (MF, v(D + 4 * j, 4), v(A + 4 * (j >> 1), 4), v(B1im if j & 1 else B1re, 4)))
        if wm:
            k(wm.pop(0))
    k("s_mov_b64 exec, %s" % s(sM0, 2))
    for j in range(8):
        for r in range(4):
            k("v_cvt_pk_bf16_f32 %s, %s, %s" % (v(BS + 4 * j + r), v(D + 8 * j + r), v(D + 8 * j + 4 + r)))
    k("s_mov_b64 exec, -1")
    for j in range(8):
        re, im, tt = D + 8 * j, D + 8 * j + 4, tmp + 8 * (j & 1)
        for h in (0, 2):
            k("v_pk_mul_f32 %s, %s, %s" % (v(tt + h, 2), v(im + h, 2), v(TS + h, 2)))
            k("v_pk_mul_f32 %s, %s, %s" % (v(tt + 4 + h, 2), v(re + h, 2), v(TS + h, 2)))
        for h in (0, 2):
            k("v_pk_fma_f32 %s, %s, %s, %s" % (v(tt + h, 2), v(re + h, 2), v(TC + h, 2), v(tt + h, 2)))
            k("v_pk_fma_f32 %s, %s, %s, %s neg_lo:[0,0,1] neg_hi:[0,0,1]"
              % (v(tt + 4 + h, 2), v(im + h, 2), v(TC + h, 2), v(tt + 4 + h, 2)))
        for r in range(4):
            k("v_cvt_pk_bf16_f32 %s, %s, %s" % (v(A + 4 * j + r), v(tt + r), v(tt + 4 + r)))

    def stage2(fill):
        for j in range(8):
            for n, (d, am, bm) in enumerate(((D + 8 * j, A2re, A), (D + 8 * j, S2re, BS), (D + 8 * j + 4, A2im, A), (D + 8 * j + 4, S2im, BS))):
                k("%s %s, %s, %s, %s" % (MF, v(d, 4), v(am, 4), v(bm + 4 * j, 4), v(d, 4) if n & 1 else "0"))
                for txt in fill.get(4 * j + n, []):
                    k(txt)

    def spread(items, first):
        fill = {}
        for m in range(first, 32):
            fill[m], items = items[:2], items[2:]
        return fill, items

    k("s_cmp_eq_u32 %s, 0" % s(sRole))
    k("s_cbranch_scc0 PRE_OUT_W")

    pre = ["v_lshl_add_u32 %s, %s, 6, %s" % (v(t[0]), v(vg), v(vn)),
           "v_mul_u32_u24 %s, 144, %s" % (v(t[0]), v(t[0])),
           "s_lshl_b32 %s, %s, 5" % (s(sA), s(sWv)),
           "s_add_u32 %s, %s, %d" % (s(sC), s(sA), IMG),
           "v_add_u32 %s, %s, %s" % (v(t[0]), s(sC), v(t[0])),
           "v_lshrrev_b32 %s, 3, v0" % v(t[2]),
           "v_and_b32 %s, 7, %s" % (v(t[3]), v(t[2])),
           "v_and_b32 %s, 0xc0, v0" % v(t[2]),
           "v_add_u32 %s, %s, %s" % (v(t[2]), v(t[2]), v(t[3])),
           "v_and_b32 %s, 0x70, %s" % (v(t[3]), v(vrA)),
           "v_mul_u32_u24 %s, 144, %s" % (v(t[1]), v(t[2])),
           "v_add_u32 %s, %s, %s" % (v(t[1]), v(t[1]), v(t[3])),
           "v_lshl_add_u32 %s, %s, 13, %s" % (v(t[2]), v(t[2]), v(t[3])),
           "s_lshl_b32 %s, s2, 7" % s(sB)]
    fill, _ = spread(pre, 0)
    cv = lambda j: ["v_cvt_pk_bf16_f32 %s, %s, %s" % (v(O + 8 * r + j), v(D + 8 * j + r), v(D + 8 * j + 4 + r)) for r in range(4)]
    for j in range(6):
        fill[4 * j + 9], fill[4 * j + 10] = cv(j)[:2], cv(j)[2:]
    for r in range(4):
        fill[24 + 2 * r - (r > 1)] = fill.get(24 + 2 * r - (r > 1), []) + \
            ["ds_write_b128 %s, %s offset:%d" % (v(t[0]), v(O + 8 * r, 4), 16 * 144 * r)]
    stage2(fill)
    st("p_core")
    for txt in cv(6) + cv(7):
        k(txt)
    for r in range(4):
        k("ds_write_b128 %s, %s offset:%d" % (v(t[0]), v(O + 8 * r + 4, 4), 16 * 144 * r + 16))
    k("s_mov_b64 exec, 1")
    for j in range(8):
        k("v_mov_b32 %s, 0" % v(D + 8 * j + 4))
    k("s_mov_b64 exec, -1")
    k("s_waitcnt lgkmcnt(0)")
    k("s_barrier")
    for i in range(8):
        k("ds_read_b128 %s, %s offset:%d" % (v(O + 4 * i, 4), v(t[1]), IMG + 8 * 144 * i))
    for j in range(8):
        k("v_pk_mul_f32 %s, %s, %s" % (v(tmp + 2 * j, 2), v(D + 8 * j, 2), v(D + 8 * j, 2)))
    red = ["v_pk_fma_f32 %s, %s, %s, %s" % (v(tmp + 2 * j, 2), v(D + 8 * j + h, 2), v(D + 8 * j + h, 2), v(tmp + 2 * j, 2))
           for h in (2, 4, 6) for j in range(8)]
    red = red + ["v_add_f32 %s, %s, %s" % (v(A + j), v(tmp + 2 * j), v(tmp + 2 * j + 1)) for j in range(8)]
    red += ["v_permlane32_swap_b32 %s, %s" % (v(A + j), v(A + j + 4)) for j in range(4)]
    red += ["v_add_f32 %s, %s, %s" % (v(A + j), v(A + j), v(A + j + 4)) for j in range(4)]
    red += ["v_permlane16_swap_b32 %s, %s" % (v(A + e), v(A + e + 2)) for e in range(2)]
    red += ["v_add_f32 %s, %s, %s" % (v(A + e), v(A + e), v(A + e + 2)) for e in range(2)]
    red += ["v_add_f32_dpp %s, %s, %s row_ror:%d row_mask:0xf bank_mask:0xf" % (v(A + e), v(A + e), v(A + e), sh)
            for sh in (8, 4, 2, 1) for e in range(2)]
    for i in range(8):
        k("s_add_u32 %s, %s, 0x%x" % (s(sC), s(sB), L.X0 + i * 8 * 8192))
        k(ST % (v(O + 4 * i, 4), v(t[2]), s(sC), 0), tag="p0")
        for txt in red[7 * i:7 * i + 7]:
            k(txt)
    k("v_lshlrev_b32 %s, 3, %s" % (v(t[0]), v(vg)))
    k("s_add_u32 %s, %s, %s" % (s(sC), s(sA), s(sB)))
    k("s_add_u32 %s, %s, 0x%x" % (s(sC), s(sC), L.SSQ0))
    k("s_waitcnt vmcnt(8)")
    k("s_barrier")
    k("s_mov_b64 exec, %s" % s(sM0, 2))
    k("buffer_store_dwordx2 %s, %s, %s, %s offen sc1" % (v(A, 2), v(t[0]), WS, s(sC)), tag="p0")
    k("s_mov_b64 exec, -1")
    k("s_branch PRE_DONE")

    k.label("PRE_OUT_W")
    k("s_cmp_eq_u32 %s, 2" % s(sRole))
    k("s_cbranch_scc1 PRE_OUT_W1")
    stage2({})
    st("p_core")
    k("s_cmp_eq_u32 %s, 3" % s(sRole))
    k("s_cbranch_scc1 PRE_OUT_B2")

    k("v_lshrrev_b32 %s, 2, %s" % (v(t[1]), v(vn)))
    k("v_mul_u32_u24 %s, %d, %s" % (v(t[1]), PITCH, v(t[1])))
    k("v_and_b32 %s, 3, %s" % (v(t[2]), v(vn)))
    k("v_lshl_add_u32 %s, %s, 5, %s" % (v(t[1]), v(t[2]), v(t[1])))
    k("v_lshl_add_u32 %s, %s, 3, %s" % (v(t[1]), v(vg), v(t[1])))
    k("v_add_u32 %s, %s, %s" % (v(t[1]), s(sLds), v(t[1])))
    for dt in range(8):
        k("ds_read_b64_tr_b16 %s, %s offset:%d" % (a(224 + 4 * dt, 2), v(t[1]), dt * 128))
        k("ds_read_b64_tr_b16 %s, %s offset:%d" % (a(226 + 4 * dt, 2), v(t[1]), dt * 128 + 4 * PITCH))
    w2_frag(sA)
    k("v_mul_u32_u24 %s, %d, %s" % (v(t[0]), 2 * 229376, v(vg)))
    k("v_lshl_add_u32 %s, %s, 4, %s" % (v(t[0]), v(vn), v(t[0])))
    for r in range(4):
        k("s_add_u32 %s, %s, 0x%x" % (s(sC), s(sA), L.W2F + (r >> 1) * 229376 + (r & 1) * 2048))
        for ri in range(2):
            o = O + 8 * r + 4 * ri
            for i in range(4):
                k("v_cvt_pk_bf16_f32 %s, %s, %s" % (v(o + i), v(D + 16 * i + 4 * ri + r), v(D + 16 * i + 8 + 4 * ri + r)))
            k(ST % (v(o, 4), v(t[0]), s(sC), ri * 1024), tag="p0")
    if not M.o.get("park", 1):
        k("v_lshlrev_b32 %s, 10, %s" % (v(t[0]), v(vg)))
        k("v_lshl_add_u32 %s, %s, 4, %s" % (v(t[0]), v(vn), v(t[0])))
        for dt in range(8):
            k("s_add_u32 %s, %s, 0x%x" % (s(sC), s(sA), L.W2T + dt * 229376))
            k(ST % (a(224 + 4 * dt, 4), v(t[0]), s(sC), 0), tag="p0")
    k("s_branch PRE_DONE")

    k.label("PRE_OUT_B2")
    k("v_lshl_add_u32 %s, %s, 6, %s" % (v(t[0]), v(vg), v(vn)))
    k("v_lshlrev_b32 %s, 2, %s" % (v(t[0]), v(t[0])))
    k("s_mov_b32 %s, 0x%x" % (s(sC), L.B2F))
    for r in range(4):
        for ri in range(2):
            k("buffer_store_dword %s, %s, %s, %s offen offset:%d sc1" % (v(D + 4 * ri + r), v(t[0]), WS, s(sC), r * 64 + ri * 1024), tag="p0")
    k("s_branch PRE_FT")

    k.label("PRE_OUT_W1")
    pre = []
    P = pre.append
    P("s_mul_i32 %s, %s, 9216" % (s(sLds), s(sWv)))
    P("s_add_u32 %s, %s, %d" % (s(sLds), s(sLds), IMG))
    P("v_mul_u32_u24 %s, 9, %s" % (v(t[4]), v(vrA)))
    P("v_add_u32 %s, %s, %s" % (v(t[4]), s(sLds), v(t[4])))
    P("v_bfe_u32 %s, v0, 3, 3" % v(t[2]))
    P("v_and_b32 %s, 0x70, %s" % (v(t[3]), v(vrA)))
    P("v_mul_u32_u24 %s, 144, %s" % (v(t[1]), v(t[2])))
    P("v_add3_u32 %s, %s, %s, %s" % (v(t[1]), v(t[1]), v(t[3]), s(sLds)))
    split14(P, sS, sU, sT)
    P("s_lshr_b32 %s, %s, 1" % (s(sA), s(sU)))
    P("s_mul_i32 %s, %s, 112" % (s(sB), s(sS)))
    P("s_add_u32 %s, %s, %s\ns_movk_i32 %s, 0x1000" % (s(sB), s(sB), s(sA), s(sG)))
    P("s_cmp_lt_u32 %s, 4\ns_cselect_b32 %s, 0, 60\ns_cselect_b32 %s, %s, 0xc00" % (s(sA), s(sA), s(sG), s(sG)))
    fill, _ = spread(pre, 0)
    tail = ["s_add_u32 %s, %s, %s" % (s(sA), s(sA), s(sB)),
            "s_lshl_b32 %s, %s, 10" % (s(sA), s(sA)),
            "s_and_b32 %s, %s, 1" % (s(sU), s(sU)),
            "s_lshl_b32 %s, %s, 7" % (s(sU), s(sU)),
            "s_add_u32 %s, %s, %s" % (s(sA), s(sA), s(sU)),
            "s_add_u32 %s, %s, 0x%x" % (s(sA), s(sA), L.W1F),
            "s_lshl_b32 %s, %s, 3" % (s(sC), s(sG)),
            "s_add_u32 %s, %s, %s" % (s(sC), s(sC), s(sA)),
            "v_mad_u32_u24 %s, %s, %s, %s" % (v(t[0]), v(t[2]), s(sG), v(t[3]))]
    cv = lambda j: ["v_cvt_pk_bf16_f32 %s, %s, %s" % (v(O + 4 * j + r), v(D + 8 * j + r), v(D + 8 * j + 4 + r)) for r in range(4)]
    wr = lambda j: "ds_write_b128 %s, %s offset:%d" % (v(t[4]), v(O + 4 * j, 4), 16 * j)
    for j in range(6):
        fill[4 * j + 8] = tail[2 * j:2 * j + 2]
        fill[4 * j + 9], fill[4 * j + 10], fill[4 * j + 11] = cv(j)[:2], cv(j)[2:], [wr(j)]
    stage2(fill)
    st("p_core")
    for j in (6, 7):
        for txt in cv(j) + [wr(j)]:
            k(txt)
    for i in range(8):
        k("ds_read_b128 %s, %s offset:%d" % (v(A + 4 * i, 4), v(t[1]), 8 * 144 * i))
    for i in range(8):
        k(ST % (v(A + 4 * i, 4), v(t[0]), s(sC if i & 1 else sA), (i >> 1) * 256), tag="p0")
    k("s_branch PRE_DONE")

    k.label("PRE_OTHER")
    k("s_cmp_ge_u32 s2, 240")
    k("s_cbranch_scc1 PRE_MISC")
    k("s_cmp_lt_u32 s2, 128")
    k("s_cbranch_scc1 PRE_FILT")

    rows(1, 28, 0 if dbg else 0x1c0000, 1024)
    k("s_sub_u32 %s, s2, 184" % s(sT))
    k("s_lshl_b32 %s, %s, 2" % (s(sT), s(sT)))
    k("s_add_u32 %s, %s, %s" % (s(sT), s(sT), s(sWv)))
    split14(k, sS, sU, sT)
    w2_rows(sA, sB)
    if late & 1:
        k("s_mov_b64 vcc, -1")
    k("s_branch PRE_CONST")

    k.label("PRE_MISC")
    k("s_lshl_b32 %s, s2, 2" % s(sT))
    k("s_add_u32 %s, %s, %s" % (s(sT), s(sT), s(sWv)))
    k("s_cmp_eq_u32 %s, 1016" % s(sT))
    k("s_cbranch_scc1 PRE_IN_B2")
    basics()
    k("\n".join(warm(BS, sC)))
    k("s_cmp_eq_u32 %s, 1017" % s(sT))
    k("s_cbranch_scc1 PRE_B1")
    k("s_cmp_eq_u32 %s, 1018" % s(sT))
    k("s_cbranch_scc1 PRE_ZERO")
    k("s_branch PRE_FT")
    k.label("PRE_IN_B2")
    k("s_mov_b32 %s, 0" % s(sA))
    k("s_movk_i32 %s, 0x1000" % s(sB))
    rows(3, 30, 0x400, 1024)
    k("s_branch PRE_CONST")
    k.label("PRE_B1")
    k("s_mov_b32 %s, 3584" % s(IN + 2))
    k("s_mov_b64 %s, s[26:27]" % s(IN, 2))
    k("v_lshrrev_b32 %s, 1, %s" % (v(t[1]), v(vrA)))
    for j in range(7):
        k("buffer_load_dwordx2 %s, %s, %s, 0 offen offset:%d" % (v(RAW + 2 * j, 2), v(t[1]), s(IN, 4), j * 512))
    for j in range(7):
        for h in range(2):
            k("v_lshlrev_b32 %s, 16, %s" % (v(O + 4 * j + 2 * h), v(RAW + 2 * j + h)))
            k("v_and_b32 %s, 0xffff0000, %s" % (v(O + 4 * j + 2 * h + 1), v(RAW + 2 * j + h)))
        k("s_mov_b32 %s, 0x%x" % (s(sC), L.B1X + j * 1024))
        k(ST % (v(O + 4 * j, 4), v(vrA), s(sC), 0), tag="p0")
    k("s_branch PRE_FT")
    k.label("PRE_ZERO")
    for i in range(4):
        k("v_mov_b32 %s, 0" % v(O + i))
    for j in range(16):
        k("s_mov_b32 %s, 0x%x" % (s(sC), L.SSQ2 + j * 1024))
        k(ST % (v(O, 4), v(vrA), s(sC), 0), tag="p0")

    def inv_table():
        k("s_lshr_b32 %s, %s, 5" % (s(sA), s(sRole)))
        k("s_lshl_b32 %s, %s, 6" % (s(sA), s(sA)))
        k("s_and_b32 %s, %s, 1" % (s(sB), s(sRole)))
        k("s_lshl_b32 %s, %s, 3" % (s(sB), s(sB)))
        k("s_add_u32 %s, %s, %s" % (s(sA), s(sA), s(sB)))
        k("s_bfe_u32 %s, %s, 0x40001" % (s(sB), s(sRole)))
        k("s_lshl_b32 %s, %s, 11" % (s(sT), s(sRole)))
        k("s_add_u32 %s, %s, 0x%x" % (s(sT), s(sT), L.FT))
        k("v_and_b32 %s, 12, %s" % (v(t[5]), v(vn)))
        k("v_and_b32 %s, 3, %s" % (v(t[4]), v(vn)))
        k("v_lshl_add_u32 %s, %s, 2, %s" % (v(t[4]), v(t[5]), v(t[4])))
        k("v_add_u32 %s, %s, %s" % (v(t[4]), s(sA), v(t[4])))
        k("s_mov_b32 %s, 0" % s(sM8))
        k("s_mov_b32 %s, -1" % s(sM8 + 1))
        k("v_mov_b32 %s, %s" % (v(t[6]), fbits(1 / 16)))
        k("v_mov_b32 %s, %s" % (v(t[7]), fbits(1 / (16 * math.sqrt(2)))))
        k("s_cmp_eq_u32 %s, 0" % s(sB))
        k("s_cselect_b64 vcc, -1, 0")
        for i in range(4):
            kk = tmp + i
            k("v_lshl_add_u32 %s, %s, 7, %s" % (v(kk), v(vg), s(sB)))
            k("v_add_u32 %s, %d, %s" % (v(kk), 32 * i, v(kk)))
            k("v_sub_u32 %s, 512, %s" % (v(t[5]), v(kk)))
            k("v_add_u32 %s, %d, %s" % (v(t[1]), -240, v(kk)))
            k("v_cndmask_b32 %s, %s, %s, vcc" % (v(t[5]), v(t[5]), v(t[1])))
            k("v_cndmask_b32 %s, %s, %s, %s" % (v(kk), v(kk), v(t[5]), s(sM8, 2)))
        k("v_cmp_eq_u32 vcc, 0, %s" % v(tmp))
        k("v_mov_b32 %s, 256" % v(t[5]))
        k("v_cndmask_b32 %s, %s, %s, vcc" % (v(tmp), v(tmp), v(t[5])))
        k("v_cndmask_b32 %s, %s, %s, vcc" % (v(t[5]), v(t[6]), v(t[7])))
        for c in range(2):
            k("v_add_u32 %s, %d, %s" % (v(t[1]), 4 * c, v(t[4])))
            for i in range(4):
                an, cs, sn = tmp + 4 + i, tmp + 8 + i, tmp + 12 + i
                k("v_mul_u32_u24 %s, %s, %s" % (v(an), v(tmp + i), v(t[1])))
                k("v_and_b32 %s, 511, %s" % (v(an), v(an)))
                k("v_cvt_f32_u32 %s, %s" % (v(an), v(an)))
                k("v_mul_f32 %s, %s, %s" % (v(an), fbits(1 / 512), v(an)))
                k("v_cos_f32 %s, %s" % (v(cs), v(an)))
                k("v_sin_f32 %s, %s" % (v(sn), v(an)))
            for i in range(4):
                cs, sn = tmp + 8 + i, tmp + 12 + i
                k("v_mul_f32 %s, %s, %s" % (v(cs), v(t[5] if i == 0 else t[6]), v(cs)))
                k("v_mul_f32 %s, %s, %s" % (v(sn), fbits(-1 / 16), v(sn)))
                if i == 0:
                    k("v_cndmask_b32 %s, %s, %s, vcc" % (v(sn), v(sn), v(t[7])))
                k("v_cvt_pk_bf16_f32 %s, %s, %s" % (v(BS + 4 + 4 * c + i), v(cs), v(sn)))
            k(ST % (v(BS + 4 + 4 * c, 4), v(vrA), s(sT), c * 1024), tag="p0")

    ftf = M.o.get("ftf", 0)
    k.label("PRE_FT")
    if not ftf:
        k("s_sub_u32 %s, s2, 240" % s(sRole))
        k("s_lshl_b32 %s, %s, 2" % (s(sRole), s(sRole)))
        k("s_add_u32 %s, %s, %s" % (s(sRole), s(sRole), s(sWv)))
        k.label("PRE_FT_LOOP")
        inv_table()
        k("s_add_u32 %s, %s, 64" % (s(sRole), s(sRole)))
        k("s_cmp_lt_u32 %s, 256" % s(sRole))
        k("s_cbranch_scc1 PRE_FT_LOOP")
    k("s_branch PRE_DONE")

    k.label("PRE_FILT")
    basics()
    k("s_mov_b32 %s, %d" % (s(IN + 2), 0 if dbg else 2048 * 514))
    k("s_mov_b32 %s, %d" % (s(IN2 + 2), 0 if dbg else 2048 * 514))
    k("s_mov_b32 %s, 0x20000" % s(IN2 + 3))
    k("s_mov_b64 %s, s[18:19]" % s(IN, 2))
    k("s_mov_b64 %s, s[20:21]" % s(IN2, 2))
    if ftf:
        k("s_sub_u32 %s, s2, 64" % s(sRole))
        k("s_lshl_b32 %s, %s, 2" % (s(sRole), s(sRole)))
        k("s_add_u32 %s, %s, %s" % (s(sRole), s(sRole), s(sWv)))
        inv_table()
    sCb, sRb = sS, sU
    k("s_and_b32 %s, s2, 7" % s(sRb))
    k("s_lshl_b32 %s, %s, 2" % (s(sRb), s(sRb)))
    k("s_bfe_u32 %s, s2, 0x20004" % s(sC))
    k("s_add_u32 %s, %s, %s" % (s(sRb), s(sRb), s(sC)))
    k("s_bfe_u32 %s, s2, 0x10003" % s(sC))
    k("s_lshl_b32 %s, %s, 1" % (s(sRec), s(sRb)))
    k("s_add_u32 %s, %s, %s" % (s(sRec), s(sRec), s(sC)))
    k("s_add_u32 %s, %s, 64" % (s(sRec), s(sRec)))
    k("s_lshl_b32 %s, %s, 2" % (s(sCb), s(sC)))
    k("s_add_u32 %s, %s, %s" % (s(sCb), s(sCb), s(sWv)))
    k("s_lshr_b32 %s, %s, 3" % (s(sA), s(sRb)))
    k("s_lshl_b32 %s, %s, 4" % (s(sA), s(sA)))
    k("s_and_b32 %s, %s, 7" % (s(sC), s(sRb)))
    k("s_lshl_b32 %s, %s, 8" % (s(sC), s(sC)))
    k("s_add_u32 %s, %s, %s" % (s(sA), s(sA), s(sC)))
    k("s_mul_i32 %s, %s, 514" % (s(sA), s(sA)))
    k("s_lshl_b32 %s, %s, 6" % (s(sC), s(sCb)))
    k("s_add_u32 %s, %s, %s" % (s(sA), s(sA), s(sC)))
    if M.o.get("fw", 0):
        k("\n".join(warm(BS, sB)))
    k("v_bfe_u32 %s, v0, 2, 4" % v(t[1]))
    k("v_mul_u32_u24 %s, 514, %s" % (v(t[0]), v(t[1])))
    k("v_and_b32 %s, 48, %s" % (v(t[2]), v(vrA)))
    k("v_add_u32 %s, %s, %s" % (v(t[0]), v(t[2]), v(t[0])))
    for r in range(4):
        k("s_add_u32 %s, %s, %d" % (s(sC), s(sA), r * 64 * 514 + 2))
        k("buffer_load_dwordx4 %s, %s, %s, %s offen" % (v(A + 8 * r, 4), v(t[0]), s(IN, 4), s(sC)))
        k("buffer_load_dwordx4 %s, %s, %s, %s offen" % (v(A + 8 * r + 4, 4), v(t[0]), s(IN2, 4), s(sC)))
    if not M.o.get("fw", 0):
        k("\n".join(warm(BS, sB)))
    k("v_mul_u32_u24 %s, 17, %s" % (v(t[2]), v(t[2])))
    k("v_lshl_add_u32 %s, %s, 4, %s" % (v(t[2]), v(t[1]), v(t[2])))
    k("v_add_u32 %s, %s, %s" % (v(t[2]), s(sLds), v(t[2])))
    k("v_lshl_add_u32 %s, %s, 4, %s" % (v(t[3]), v(vg), v(vrA)))
    k("v_add_u32 %s, %s, %s" % (v(t[3]), s(sLds), v(t[3])))
    q0, qs, q7 = t[4], t[5], t[6]
    k("s_lshl_b32 %s, %s, 4" % (s(sA), s(sCb)))
    k("s_add_u32 %s, %s, 1" % (s(sB), s(sA)))
    k("v_lshl_add_u32 %s, %s, 3, %s" % (v(q0), v(vg), s(sB)))
    k("s_sub_u32 %s, 271, %s" % (s(sB), s(sA)))
    k("v_lshlrev_b32 %s, 3, %s" % (v(t[7]), v(vg)))
    k("v_sub_u32 %s, %s, %s" % (v(t[7]), s(sB), v(t[7])))
    k("s_mov_b32 vcc_lo, 0")
    k("s_mov_b32 vcc_hi, -1")
    k("v_cndmask_b32 %s, %s, %s, vcc" % (v(q0), v(q0), v(t[7])))
    k("v_cndmask_b32 %s, 1, -1, vcc" % v(qs))
    k("s_add_u32 %s, %s, 128" % (s(sB), s(sA)))
    k("s_add_u32 %s, %s, 16" % (s(sC), s(sA)))
    k("s_and_b32 %s, %s, 127" % (s(sC), s(sC)))
    k("v_mov_b32 %s, %s" % (v(q7), s(sB)))
    k("v_mov_b32 %s, %s" % (v(t[7]), s(sC)))
    k("v_cndmask_b32 %s, %s, %s, vcc" % (v(q7), v(q7), v(t[7])))
    k("v_mad_i32_i24 %s, %s, 7, %s" % (v(t[7]), v(qs), v(q0)))
    k("s_mov_b32 vcc_lo, 0xffff0000")
    k("s_mov_b32 vcc_hi, 0xffff0000")
    k("v_cndmask_b32 %s, %s, %s, vcc" % (v(q7), v(t[7]), v(q7)))
    k("v_lshlrev_b32 %s, 4, %s" % (v(t[7]), v(vn)))
    k("v_lshl_add_u32 %s, %s, 13, %s" % (v(q0), v(q0), v(t[7])))
    k("v_lshl_add_u32 %s, %s, 13, %s" % (v(q7), v(q7), v(t[7])))
    k("v_lshlrev_b32 %s, 13, %s" % (v(qs), v(qs)))
    k("s_lshl_b32 %s, %s, 8" % (s(sC), s(sRb)))
    k("s_add_u32 %s, %s, 0x%x" % (s(sC), s(sC), L.WT))
    for j in range(8):
        k("ds_write_b128 %s, %s offset:%d" % (v(t[2]), v(A + 4 * j, 4), j * PITCH))
    for j in range(8):
        k("ds_read_b128 %s, %s offset:%d" % (v(RAW + 4 * j, 4), v(t[3]), j * PITCH))
    for e in range(8):
        for r in range(4):
            k("v_perm_b32 %s, %s, %s, %s" % (v(O + 4 * e + r), v(RAW + 8 * r + 4 + (e >> 1)), v(RAW + 8 * r + (e >> 1)),
                                            s(sSelHi if e & 1 else sSelLo)))
        k(ST % (v(O + 4 * e, 4), v(q7 if e == 7 else q0), s(sC), 0), tag="p0")
        if e < 6:
            k("v_add_u32 %s, %s, %s" % (v(q0), v(q0), v(qs)))
    k("s_branch PRE_DONE")

    k.label("PRE_DONE")
    k("s_add_u32 %s, %s, 0x%x" % (s(sA), s(sA), L.W2T))
    k("s_sub_u32 %s, s2, 184" % s(sC))
    k("s_cmp_lt_u32 %s, 56" % s(sC))
    k("s_cselect_b32 s29, %s, 0x40000000" % s(sA))
```

```python
from asmlib import Kernel, Alloc, v, a, s, fbits
import layout as L
import k_pre

MF = "v_mfma_f32_16x16x32_bf16"
LDS_BYTES = 163840
WB = 65536
PRIV = 114688
WS = "s[4:7]"
C0 = -2 * 0.7978845608028654 * 1.4426950408889634
C1 = C0 * 0.044715
EPS = 1e-5
TILE = 57344

vrA, vP, vV, vL4 = 1, 2, 3, 4
sE, sRec, sWf = 48, 49, 50
sWv, sP, sI, sPhi, sCt, sRB, sX, sW1, sT, sU, sW2, sHst, sFl, sPl, sV = 3, 12, 13, 14, 15, 16, 17, 18, 19, 20, 21, 22, 23, 24, 25
sHA, sHB, sH6, sHt, sQ, sG = 26, 27, 28, 30, 34, 35


class Main:
    def __init__(self, name, stamp, opts):
        self.o = opts or {}
        self.k = Kernel(name)
        self.name = name
        self.stamp = stamp
        self.queue = []
        self.issued = {}
        self.nlab = 0

    def st(self, n, **kw):
        pr = self.o.get("probe")
        if pr:
            k, key = self.k, "%s%d" % (n, self.layer)
            if key == pr[0]:
                k("s_memrealtime s[90:91]")
            if key == pr[1]:
                k("s_memrealtime s[92:93]")
            if n == "end":
                k("s_waitcnt vmcnt(0) lgkmcnt(0)")
                k("s_memrealtime s[94:95]")
                k("s_sub_u32 s90, s92, s90")
                lo, hi, inv = self.o["pwg"]
                if inv:
                    k("s_sub_u32 s90, 1200, s90")
                k("s_min_u32 s90, s90, 20000")
                k("s_lshl_b32 s90, s90, 3")
                k("s_sub_u32 s91, s2, %d" % lo)
                k("s_cmp_ge_u32 s91, %d" % (hi - lo))
                k("s_cbranch_scc1 MAIN_END")
                k.label("SPIN")
                k("s_memrealtime s[96:97]")
                k("s_waitcnt lgkmcnt(0)")
                k("s_sub_u32 s96, s96, s94")
                k("s_cmp_lt_u32 s96, s90")
                k("s_cbranch_scc1 SPIN")
        if self.o.get("stp") and n in ("geluA", "passB", "geluB", "pollA", "h0", "preB", "pollB", "gemm2"):
            return
        if n.startswith("g_") and not self.o.get("stg"):
            return
        if self.o.get("stg") and n in ("p_go", "c_x1", "c_x2", "c_end", "s_pub", "s_go", "first", "l2", "s2_pub", "s2_go", "passA"):
            return
        if not self.o.get("stp") and n in ("p_in", "p_core", "p_out", "p_pub", "c_const", "p_w0", "p_w1", "p_w2"):
            return
        if self.stamp and (n in ("start", "end") or self.o.get("stl", 0) == self.layer):
            self.stamp(self.k, n, **kw)

    def count(self, slot):
        if self.o.get("cnt") == 1 or self.o.get("cnt") == 2 and slot == 0:
            k = self.k
            k("s_mov_b64 s[96:97], exec\ns_mov_b64 exec, 1\ns_mov_b32 s98, 0x%x" % (L.STAMP + 0x100000 + 4 * slot))
            k("v_mov_b32 %s, 1" % v(vP))
            k("buffer_atomic_add %s, %s, %s, s98 offen" % (v(vP), v(vL4), WS))
            k("s_mov_b64 exec, s[96:97]")

    def dma(self, vv, ss, off, tag, sc=" sc1"):
        def op():
            self.issued[tag] = self.issued.get(tag, 0) + 1
            self.k("buffer_load_dwordx4 %s, %s, %s offen offset:%d%s lds" % (v(vv), WS, s(ss), off, sc), tag=tag)
        return op

    def setup(self, m0base, m0off, sd, sbase, off):
        def op():
            self.k("s_add_u32 m0, %s, %d" % (s(m0base), m0off))
            self.k("s_add_u32 %s, %s, %d" % (s(sd), s(sbase), off))
        return op

    def issue(self, ops):
        for su, ld in ops:
            if su:
                su()
            ld()

    def side(self, n=1):
        for _ in range(n):
            if self.queue:
                self.issue([self.queue.pop(0)])

    def w2_ops(self):
        k, ops = self.k, []
        for kf in range(14):
            for c in range(4):
                su = None
                if c == 0:
                    su = lambda kf=kf: k("s_add_u32 %s, %s, %d" % (s(sU), s(sW2), kf * 4096))
                if c == 2:
                    su = lambda: k("s_xor_b32 %s, %s, 0x800" % (s(sU), s(sU)))
                ld = lambda kf=kf, c=c: k("buffer_load_dwordx4 %s, %s, %s, %s offen offset:%d sc1"
                                          % (a(16 * kf + 4 * c, 4), v(vrA), WS, s(sU), (c & 1) * 1024))
                ld.head = c == 0
                ops.append((su, ld))
        return ops

    def flag_store(self, sflag):
        k = self.k
        k("s_mov_b64 exec, 0x%x" % ((1 << self.o["FW"]) - 1) if "FW" in self.o else "s_mov_b32 exec_hi, 0")
        k("buffer_store_dword %s, %s, %s, %s offen sc1" % (v(vV), v(vL4), WS, s(sflag)))
        k("s_mov_b64 exec, -1")

    def publish(self, tag, sflag):
        self.k.wait_tag(tag)
        self.flag_store(sflag)

    def publish_wg(self, sflag):
        k = self.k
        self.nlab += 1
        k("s_barrier")
        k("s_cmp_lg_u32 %s, 0" % s(sWv))
        k("s_cbranch_scc1 PUB%d" % self.nlab)
        self.flag_store(sflag)
        k.label("PUB%d" % self.nlab)

    def poll_issue(self, voff, sbase, dst=vP):
        self.k("buffer_load_dword %s, %s, %s, %s offen sc1" % (v(dst), v(voff), WS, s(sbase)))

    def poll_check(self, voff, sbase, dst=vP, sleep=0, data=False):
        k = self.k
        self.nlab += 1
        go, again = "GO%d" % self.nlab, "POLL%d" % self.nlab
        test = "v_cmp_eq_u32 vcc, -1, %s" % v(dst) if data else "v_cmp_ne_u32 vcc, %s, %s" % (s(sE), v(dst))
        k(test)
        k("s_cbranch_vccz " + go)
        k("s_mov_b32 %s, 0" % s(sV))
        k.label(again)
        self.count(self.nlab)
        k("s_mov_b64 exec, vcc")
        if sleep:
            k("s_sleep %d" % sleep)
        self.poll_issue(voff, sbase, dst)
        k("s_add_u32 %s, %s, 1" % (s(sV), s(sV)))
        k("s_waitcnt vmcnt(0)")
        k(test)
        k("s_cmp_lt_u32 %s, 0x8000" % s(sV))
        k("s_cselect_b64 vcc, vcc, 0")
        k("s_cbranch_vccnz " + again)
        k("s_mov_b64 exec, -1")
        k.label(go)

    def col_alloc(self):
        va = Alloc(6, 256)
        r = self.c = type("R", (), {})()
        r.voff, r.vwr, r.vrd, r.vfg4, r.vfk, r.vfn, r.vsn, r.veps = (va() for _ in range(8))
        r.t = [va() for _ in range(5)]
        r.XR, r.SQ, r.WR = va(8, 4), va(8, 4), va(8, 4)
        r.C64, r.C32 = va(32, 4), va(32, 4)
        r.T1C, r.T1S, r.T2C, r.T2S, r.WC, r.WS = (va(8, 4) for _ in range(6))
        r.XF, r.FR, r.AC, r.PK, r.tmp = va(16, 4), va(32, 4), va(16, 4), va(8, 4), va(16, 4)

    def col_addr(self):
        k, r = self.k, self.c
        k("v_lshrrev_b32 %s, 6, v0" % v(r.t[0]))
        k("v_lshl_add_u32 %s, %s, 11, %s" % (v(r.voff), v(r.t[0]), v(vrA)))

    def col_load_w(self):
        k, r = self.k, self.c
        k("s_add_u32 %s, %s, 0x%x" % (s(sT), s(sQ), L.WT))
        for b in range(2):
            k("buffer_load_dwordx4 %s, %s, %s, %s offen offset:%d sc1" % (v(r.WR + 4 * b, 4), v(r.voff), WS, s(sT), 1024 * b))

    def col_load_x(self):
        k, r, li = self.k, self.c, self.layer
        k("s_mov_b32 %s, 0x%x" % (s(sHA), (L.SSQ0, L.SSQ2)[li]))
        k("s_add_u32 %s, %s, 0x%x" % (s(sT), s(sQ), (L.X0, L.X2)[li]))
        for b in range(2):
            if li == 0:
                k("buffer_load_dwordx4 %s, %s, %s, %s offen offset:%d sc1" % (v(r.SQ + 4 * b, 4), v(r.voff), WS, s(sHA), 1024 * b))
            k("buffer_load_dwordx4 %s, %s, %s, %s offen offset:%d sc1" % (v(r.XR + 4 * b, 4), v(r.voff), WS, s(sT), 1024 * b))
        if li:
            for j in range(4):
                k("buffer_load_dwordx4 %s, %s, %s, %s offen offset:%d sc1" % (v(r.FR + 4 * j, 4), v(5), WS, s(sHA), 2048 * (j >> 1) + 16 * (j & 1)))

    def col_gate(self):
        k, r = self.k, self.c
        x, c, u = r.XR, r.FR + 1, r.AC

        def test():
            k("v_max3_u32 %s, %s, %s, %s" % (v(u), v(x), v(x + 1), v(x + 2)))
            k("v_max3_u32 %s, %s, %s, %s" % (v(u + 1), v(x + 3), v(x + 4), v(x + 5)))
            k("v_max3_u32 %s, %s, %s, %s" % (v(u), v(u), v(x + 6), v(x + 7)))
            k("v_max_u32 %s, %s, %s" % (v(u), v(u), v(u + 1)))
            k("v_cmp_eq_u32 s[8:9], -1, %s" % v(u))
            k("v_min3_f32 %s, %s, %s, %s" % (v(u), v(c), v(c + 2), v(c + 4)))
            k("v_min3_f32 %s, %s, %s, %s" % (v(u + 1), v(c + 6), v(c + 8), v(c + 10)))
            k("v_min3_f32 %s, %s, %s, %s" % (v(u), v(u), v(c + 12), v(c + 14)))
            k("v_min_f32 %s, %s, %s" % (v(u), v(u), v(u + 1)))
            k("v_cmp_gt_f32 vcc, %s, %s" % (fbits(15.5), v(u)))
            k("s_or_b64 vcc, vcc, s[8:9]")
        test()
        k("s_cbranch_vccz GATE_GO")
        k("s_mov_b32 %s, 0" % s(sV))
        k.label("GATE_AGAIN")
        self.count(31)
        k("s_mov_b64 exec, vcc")
        self.col_load_x()
        k("s_add_u32 %s, %s, 1" % (s(sV), s(sV)))
        k("s_waitcnt vmcnt(0)")
        test()
        k("s_cmp_lt_u32 %s, 0x8000" % s(sV))
        k("s_cselect_b64 vcc, vcc, 0")
        k("s_cbranch_vccnz GATE_AGAIN")
        k("s_mov_b64 exec, -1")
        k.label("GATE_GO")

    def col_consts(self):
        r, out = self.c, []
        k, t, tmp = out.append, r.t, r.tmp
        k("v_add_u32 %s, %s, %s" % (v(r.vwr), s(sRB), v(vrA)))
        k("v_add_u32 %s, %d, %s" % (v(r.vrd), PRIV, v(vrA)))
        k("v_bfe_u32 %s, v0, 4, 2" % v(t[1]))
        k("v_lshlrev_b32 %s, 2, %s" % (v(t[1]), v(t[1])))
        k("v_cvt_f32_u32 %s, %s" % (v(r.vfg4), v(t[1])))
        k("v_and_b32 %s, 15, v0" % v(t[2]))
        k("v_cvt_f32_u32 %s, %s" % (v(r.vfn), v(t[2])))
        k("v_lshl_add_u32 %s, %s, 4, %s" % (v(t[2]), v(t[0]), v(t[2])))
        k("v_cvt_f32_u32 %s, %s" % (v(r.vfk), v(t[2])))
        k("v_lshl_add_u32 %s, %s, 4, %s" % (v(t[2]), v(t[0]), v(t[1])))
        k("v_cvt_f32_u32 %s, %s" % (v(t[2]), v(t[2])))
        k("v_and_b32 %s, 1, v0" % v(r.vsn))
        k("v_mul_u32_u24 %s, 0x8000, %s" % (v(r.vsn), v(r.vsn)))
        k("v_lshl_or_b32 %s, %s, 16, %s" % (v(r.vsn), v(r.vsn), v(r.vsn)))
        k("v_mov_b32 %s, %s" % (v(r.veps), fbits(EPS * 2.0 ** 22)))
        f, b0 = t[3], t[4]
        k("v_mul_f32 %s, %s, %s" % (v(f), fbits(1 / 64), v(r.vfk)))
        k("v_mul_f32 %s, %s, %s" % (v(b0), v(f), v(r.vfg4)))
        for i in range(8):
            k("v_fmamk_f32 %s, %s, %s, %s" % (v(r.T1C + i), v(f), fbits(16 * (i >> 2) + (i & 3)), v(b0)))
        for i in range(8):
            k("v_sin_f32 %s, %s" % (v(tmp + 8 + i), v(r.T1C + i)))
            k("v_cos_f32 %s, %s" % (v(tmp + i), v(r.T1C + i)))
        for i in range(8):
            ks, rr = i >> 2, i & 3
            k("v_cvt_pk_bf16_f32 %s, %s, %s" % (v(r.C64 + 8 * ks + rr), v(tmp + i), v(tmp + 8 + i)))
            k("v_cvt_pk_bf16_f32 %s, -%s, %s" % (v(r.C64 + 8 * ks + 4 + rr), v(tmp + 8 + i), v(tmp + i)))
        for i in range(16):
            k("v_xor_b32 %s, %s, %s" % (v(r.C64 + 16 + i), v(r.vsn), v(r.C64 + i)))
        self.n_first = len(out)
        for i in range(8):
            k("v_mul_f32 %s, %s, %s" % (v(r.T1C + i), fbits(1 / 32), v(r.T1C + i)))
        for i in range(8):
            k("v_sin_f32 %s, %s" % (v(r.T1S + i), v(r.T1C + i)))
            k("v_cos_f32 %s, %s" % (v(r.T1C + i), v(r.T1C + i)))
        k("v_mul_f32 %s, %s, %s" % (v(f), fbits(1 / 32), v(r.vfn)))
        k("v_mul_f32 %s, %s, %s" % (v(b0), v(f), v(r.vfg4)))
        for rr in range(4):
            k("v_fmamk_f32 %s, %s, %s, %s" % (v(r.T2C + rr), v(f), fbits(rr), v(b0)))
        for rr in range(4):
            k("v_sin_f32 %s, %s" % (v(r.T2S + rr), v(r.T2C + rr)))
            k("v_cos_f32 %s, %s" % (v(r.T2C + rr), v(r.T2C + rr)))
        for rr in range(4):
            k("v_cvt_pk_bf16_f32 %s, %s, %s" % (v(r.C32 + rr), v(r.T2C + rr), v(r.T2S + rr)))
            k("v_cvt_pk_bf16_f32 %s, -%s, %s" % (v(r.C32 + 4 + rr), v(r.T2S + rr), v(r.T2C + rr)))
        for i in range(8):
            k("v_xor_b32 %s, %s, %s" % (v(r.C32 + 8 + i), v(r.vsn), v(r.C32 + i)))
        for i in range(16):
            if i & 1:
                k("v_xor_b32 %s, 0x80008000, %s" % (v(r.C32 + 16 + i), v(r.C32 + i)))
            else:
                k("v_mov_b32 %s, %s" % (v(r.C32 + 16 + i), v(r.C32 + i)))
        for bt in range(2):
            if bt == 0:
                k("v_mul_f32 %s, %s, %s" % (v(f), fbits(1 / 2048), v(r.vfn)))
            else:
                k("v_add_f32 %s, %s, %s" % (v(f), fbits(16 / 2048), v(f)))
            k("v_mul_f32 %s, %s, %s" % (v(b0), v(f), v(t[2])))
            for rr in range(4):
                k("v_fmamk_f32 %s, %s, %s, %s" % (v(r.T2C + 4 * bt + rr), v(f), fbits(rr), v(b0)))
        for i in range(8):
            k("v_sin_f32 %s, %s" % (v(r.T2S + i), v(r.T2C + i)))
            k("v_cos_f32 %s, %s" % (v(r.T2C + i), v(r.T2C + i)))
        return out

    def col_unpack_w(self):
        r = self.c
        return [x for i in range(8) for x in ("v_lshlrev_b32 %s, 16, %s" % (v(r.WC + i), v(r.WR + i)),
                                              "v_and_b32 %s, 0xffff0000, %s" % (v(r.WS + i), v(r.WR + i)))]

    def cmul(self, re, im, c, sn, conj):
        k, tmp = self.k, self.c.tmp
        for h in (0, 2):
            k("v_pk_mul_f32 %s, %s, %s" % (v(tmp + h, 2), v(im + h, 2), v(sn + h, 2)))
            k("v_pk_mul_f32 %s, %s, %s" % (v(tmp + 4 + h, 2), v(re + h, 2), v(sn + h, 2)))
        neg = " neg_lo:[0,0,1] neg_hi:[0,0,1]"
        for h in (0, 2):
            k("v_pk_fma_f32 %s, %s, %s, %s%s" % (v(tmp + h, 2), v(re + h, 2), v(c + h, 2), v(tmp + h, 2), neg if conj else ""))
            k("v_pk_fma_f32 %s, %s, %s, %s%s" % (v(tmp + 4 + h, 2), v(im + h, 2), v(c + h, 2), v(tmp + 4 + h, 2), "" if conj else neg))

    def col_compute(self, late, before_bar1=None, before_bar2=None, after_bar1=None, NC=0, late2=()):
        k, r, li = self.k, self.c, self.layer
        tmp, late = r.tmp, list(late)

        def fill(n):
            for _ in range(n):
                if late:
                    k(late.pop(0))
        for b in range(2):
            for rr in range(4):
                src = r.FR + 8 * b + 2 * rr if li else r.SQ + 4 * b + rr
                k("v_fmamk_f32 %s, %s, %s, %s" % (v(r.SQ + 4 * b + rr), v(src), fbits(2.0 ** 13), v(r.veps)))
            for rr in range(4):
                k("v_rsq_f32 %s, %s" % (v(r.SQ + 4 * b + rr), v(r.SQ + 4 * b + rr)))
            for rr in range(4):
                k("v_lshlrev_b32 %s, 16, %s" % (v(r.XF + 8 * b + rr), v(r.XR + 4 * b + rr)))
                k("v_and_b32 %s, 0xffff0000, %s" % (v(r.XF + 8 * b + 4 + rr), v(r.XR + 4 * b + rr)))
            for h in (0, 2):
                k("v_pk_mul_f32 %s, %s, %s" % (v(tmp + h, 2), v(r.XF + 8 * b + h, 2), v(r.SQ + 4 * b + h, 2)))
                k("v_pk_mul_f32 %s, %s, %s" % (v(tmp + 4 + h, 2), v(r.XF + 8 * b + 4 + h, 2), v(r.SQ + 4 * b + h, 2)))
            for rr in range(4):
                k("v_cvt_pk_bf16_f32 %s, %s, %s" % (v(r.PK + 4 * b + rr), v(tmp + rr), v(tmp + 4 + rr)))
        k("s_cmp_lg_u32 s2, 0")
        k("s_cbranch_scc1 COL_A%d" % li)
        for i in range(8):
            k("v_and_b32 %s, 0xffff, %s" % (v(r.PK + i), v(r.PK + i)))
        k.label("COL_A%d" % li)
        for b in range(2):
            k("ds_write_b128 %s, %s offset:%d" % (v(r.vwr), v(r.PK + 4 * b, 4), 1024 * b))
        fill(12)
        if before_bar1:
            before_bar1()
        k("s_waitcnt lgkmcnt(0)")
        k("s_barrier")
        for bt in range(2):
            for ks in range(4):
                k("ds_read_b128 %s, %s offset:%d" % (v(r.FR + 16 * bt + 4 * ks, 4), v(r.vrd), 12288 * ks + 1024 * bt))
        if li == 0 and self.o.get("DG_0", 0):
            self.publish("pf", sFl)
        if after_bar1:
            after_bar1()
        fill(max(12, len(late) - 24))
        self.st("c_x1")
        for bt in range(2):
            for ri in range(2):
                for ks in range(4):
                    d = v(r.AC + 8 * bt + 4 * ri, 4)
                    k("%s %s, %s, %s, %s" % (MF, d, v(r.FR + 16 * bt + 4 * ks, 4), v(r.C64 + 8 * ks + 4 * ri, 4), d if ks else "0"))
                    fill(1 if late and "_sin" in late[0] or late and "_cos" in late[0] else 2)
                    if ks == 1:
                        self.side(NC)
                    if li == 0 and self.o.get("F2", 1) and bt == 0:
                        if ri == 0 and ks < 2:
                            k("v_mov_b32 %s, -1\nv_mov_b32 %s, -1" % (v(r.SQ + 2 * ks), v(r.SQ + 2 * ks + 1)))
                        if ri == 0 and ks == 2:
                            k("s_add_u32 %s, %s, 0x%x" % (s(sHA), s(sQ), L.X2))
                        if ks == 3:
                            k("buffer_store_dwordx4 %s, %s, %s, %s offen offset:%d sc1" % (v(r.SQ, 4), v(r.voff), WS, s(sHA), 1024 * ri), tag="p2")
        fill(len(late))
        for bt in range(2):
            self.cmul(r.AC + 8 * bt, r.AC + 8 * bt + 4, r.T1C + 4 * bt, r.T1S + 4 * bt, False)
            for rr in range(4):
                k("v_cvt_pk_bf16_f32 %s, %s, %s" % (v(r.PK + 4 * bt + rr), v(tmp + rr), v(tmp + 4 + rr)))
        late += list(late2)
        for kt in range(2):
            for ri in range(2):
                for ks in range(2):
                    d = v(r.FR + 8 * kt + 4 * ri, 4)
                    k("%s %s, %s, %s, %s" % (MF, d, v(r.C32 + 16 * kt + 8 * ks + 4 * ri, 4), v(r.PK + 4 * ks, 4), d if ks else "0"))
                    fill(2)
                    if ks == 1 and ri == 0:
                        self.side(NC)
        P2 = r.FR + 16
        for kt in range(2):
            self.cmul(r.FR + 8 * kt, r.FR + 8 * kt + 4, r.WC + 4 * kt, r.WS + 4 * kt, True)
            for rr in range(4):
                k("v_cvt_pk_bf16_f32 %s, %s, %s" % (v(P2 + 4 * kt + rr), v(tmp + 4 + rr), v(tmp + rr)))
        for bt in range(2):
            for ri in range(2):
                for ks in range(2):
                    d = v(r.AC + 8 * bt + 4 * (1 - ri), 4)
                    k("%s %s, %s, %s, %s" % (MF, d, v(P2 + 4 * ks, 4), v(r.C32 + 16 * bt + 8 * ks + 4 * ri, 4), d if ks else "0"))
                    if ks == 1 and ri == 0:
                        self.side(NC)
        for bt in range(2):
            self.cmul(r.AC + 8 * bt, r.AC + 8 * bt + 4, r.T2C + 4 * bt, r.T2S + 4 * bt, True)
            for rr in range(4):
                k("v_cvt_pk_bf16_f32 %s, %s, %s" % (v(r.PK + 4 * bt + rr), v(tmp + 4 + rr), v(tmp + rr)))
            k("ds_write_b128 %s, %s offset:%d" % (v(r.vwr), v(r.PK + 4 * bt, 4), 2048 + 1024 * bt))
        k("s_add_u32 %s, %s, 0x%x" % (s(sT), s(sQ), (L.X1, L.X3)[li]))
        if self.o.get("DG_0", 0):
            k.wait_tag("p2")
        self.side(2 * NC)
        if before_bar2:
            before_bar2()
        k("s_waitcnt lgkmcnt(0)")
        k("s_barrier")
        for bt in range(2):
            for ks in range(4):
                k("ds_read_b128 %s, %s offset:%d" % (v(r.FR + 16 * bt + 4 * ks, 4), v(r.vrd), 2048 + 12288 * ks + 1024 * bt))
        self.st("c_x2")
        for bt in range(2):
            for ri in range(2):
                for ks in range(4):
                    d = v(r.XF + 8 * bt + 4 * (1 - ri), 4)
                    k("%s %s, %s, %s, %s" % (MF, d, v(r.C64 + 8 * ks + 4 * ri, 4), v(r.FR + 16 * bt + 4 * ks, 4), d))
        k("s_cmp_lg_u32 s2, 0")
        for bt in range(2):
            for rr in range(4):
                k("v_cvt_pk_bf16_f32 %s, %s, %s" % (v(r.PK + 4 * bt + rr), v(r.XF + 8 * bt + rr), v(r.XF + 8 * bt + 4 + rr)))
            k("s_cbranch_scc1 COL_B%d%d" % (li, bt))
            k("s_mov_b32 %s, 0xffff" % s(sV))
            for rr in range(4):
                k("v_bfi_b32 %s, %s, %s, %s" % (v(r.PK + 4 * bt + rr), s(sV), v(r.PK + 4 * bt + rr), v(r.XR + 4 * bt + rr)))
            k.label("COL_B%d%d" % (li, bt))
            k("buffer_store_dwordx4 %s, %s, %s, %s offen offset:%d sc1" % (v(r.PK + 4 * bt, 4), v(r.voff), WS, s(sT), 1024 * bt), tag="xs")
        self.st("c_end")

    def mlp(self):
        k, li = self.k, self.layer
        o = dict(self.o)
        o.update({n[:-2]: x for n, x in self.o.items() if isinstance(n, str) and n.endswith("_%d" % li)})
        D, PD, CH = o.get("D", 6), o.get("PD", 14), o.get("CH", 2)
        FS = 128
        XIN, H = (L.X1, L.X3)[li], (L.H1, L.H2)[li]
        TS = TILE if li == 0 else 4 * TILE
        va = Alloc(5, 256)
        vX, vX2, vrX, vH6, vB1, vA2, vF = (va() for _ in range(7))
        vS, vC = va(2), va(2)
        tmp = va(16, 4)
        t = [tmp + i for i in range(8)]
        XB, ACC, AF = va(128, 4), va(64, 4), va(32, 4)
        SSQ = ACC + 56
        acc1 = lambda ft, tt: ACC + 16 * (ft >> 1) + 8 * tt + 4 * (ft & 1) if ft < 6 else ACC + 48 + 4 * tt
        queue, side = self.queue, self.side

        DG = o.get("DG", li)
        if DG and li == 0:
            k("v_lshlrev_b32 %s, 7, v0" % v(vF))
            k("s_lshr_b32 %s, %s, 2" % (s(sG), s(sP)))
            k("s_lshl_b32 %s, %s, 15" % (s(sG), s(sG)))
            k("s_add_u32 %s, %s, 0x%x" % (s(sG), s(sG), L.GFLAGS))
            side(o.get("N0", 2))
            self.poll_issue(vF, sG)
        side(o.get("N1", 10 if li == 0 else 0))
        if DG and li == 0:
            self.poll_check(vF, sG)
        if not DG:
            k("s_lshl_b32 %s, %s, 8" % (s(sV), s(sWv)))
            k("s_add_u32 %s, %s, s2" % (s(sV), s(sV)))
            k("s_mul_i32 %s, %s, %d" % (s(sV), s(sV), FS))
            k("s_add_u32 %s, %s, 0x%x" % (s(sV), s(sV), L.GFLAGS + 262144 * li))
            self.publish("xs", sV)
        self.st("s_pub")
        pre = []
        P = pre.append
        P("v_mov_b32 %s, %s" % (v(vC), fbits(C1)))
        P("v_mov_b32 %s, %s" % (v(vC + 1), fbits(C0)))
        P("v_lshrrev_b32 %s, 6, v0" % v(t[0]))
        P("v_bfe_u32 %s, v0, 3, 2" % v(t[1]))
        P("v_lshlrev_b32 %s, 19, %s" % (v(vX), v(t[1])))
        P("v_bfe_u32 %s, v0, 5, 1" % v(t[1]))
        P("v_lshl_add_u32 %s, %s, 17, %s" % (v(vX), v(t[1]), v(vX)))
        P("v_and_b32 %s, 7, v0" % v(t[1]))
        P("v_lshl_add_u32 %s, %s, 4, %s" % (v(vX), v(t[1]), v(vX)))
        P("v_lshl_add_u32 %s, %s, 7, %s" % (v(vX), v(t[0]), v(vX)))
        P("v_add_u32 %s, %d, %s" % (v(vX2), 32 * 8192 - 1024, v(vX)))
        P("v_lshrrev_b32 %s, 1, %s" % (v(t[1]), v(vrA)))
        P("v_add_u32 %s, %s, %s" % (v(vrX), s(sRB), v(t[1])))
        P("v_and_b32 %s, 48, v0" % v(t[1]))
        P("v_add_u32 %s, %s, %s" % (v(vB1), s(sRB), v(t[1])))
        P("v_add_u32 %s, %d, %s" % (v(vA2), WB, v(vrA)))
        P("v_bfe_u32 %s, v0, 4, 1" % v(t[1]))
        P("v_mul_u32_u24 %s, %d, %s" % (v(vH6), TS, v(t[1])))
        P("v_bfe_u32 %s, v0, 5, 1" % v(t[1]))
        P("v_lshl_add_u32 %s, %s, 8, %s" % (v(vH6), v(t[1]), v(vH6)))
        P("v_and_b32 %s, 15, v0" % v(t[1]))
        P("v_lshl_add_u32 %s, %s, 4, %s" % (v(vH6), v(t[1]), v(vH6)))
        P("v_mul_u32_u24 %s, %d, v0" % (v(vF), 8192 if DG else FS))
        P("s_lshl_b32 %s, %s, 9" % (s(sX), s(sP)))
        P("s_add_u32 %s, %s, 0x%x" % (s(sX), s(sX), XIN))
        if DG:
            P("s_and_b32 %s, %s, 3" % (s(sG), s(sI)) if o.get("GL", 3) == 4 else "s_mov_b32 %s, %d" % (s(sG), o.get("GL", 3)))
            P("s_lshl_b32 %s, %s, 7" % (s(sG), s(sG)))
            P("s_add_u32 %s, %s, %s" % (s(sG), s(sG), s(sX)))
        else:
            P("s_lshr_b32 %s, %s, 2" % (s(sG), s(sP)))
            P("s_mul_i32 %s, %s, %d" % (s(sG), s(sG), 256 * FS))
            P("s_add_u32 %s, %s, 0x%x" % (s(sG), s(sG), L.GFLAGS + 262144 * li))
        P("s_mul_i32 %s, %s, %d" % (s(sHst), s(sP), 8 * TILE))
        P("s_add_u32 %s, %s, 0x%x" % (s(sHst), s(sHst), H))
        P("s_mul_i32 %s, %s, %d" % (s(sHA), s(sWv), 2 * TILE if li == 0 else TILE))
        P("s_add_u32 %s, %s, %s" % (s(sHA), s(sHA), s(sHst)))
        P("s_lshr_b32 %s, %s, 2" % (s(sV), s(sI)))
        P("s_mul_i32 %s, %s, 14336" % (s(sV), s(sV)))
        P("s_add_u32 %s, %s, %s" % (s(sHA), s(sHA), s(sV)))
        P("s_and_b32 %s, %s, 3" % (s(sV), s(sI)))
        P("s_lshl_b32 %s, %s, 9" % (s(sV), s(sV)))
        P("s_add_u32 %s, %s, %s" % (s(sH6), s(sHA), s(sV)))
        P("s_add_u32 %s, %s, %s" % (s(sHB), s(sH6), s(sV)))
        P("s_lshl_b32 %s, %s, 2" % (s(sV), s(sV)))
        P("s_add_u32 %s, %s, %s" % (s(sHA), s(sHA), s(sV)))
        P("s_add_u32 %s, %s, %d" % (s(sH6), s(sH6), 12 * 1024))
        P("s_add_u32 %s, %s, %d" % (s(sHB), s(sHB), 8 * 1024))
        P("s_mul_i32 %s, %s, %d" % (s(sV), s(sPhi), 4 * TILE))
        P("s_add_u32 %s, %s, %s" % (s(sHst), s(sHst), s(sV)))
        P("s_mul_i32 %s, %s, 14336" % (s(sV), s(sWv)))
        P("s_add_u32 %s, %s, %s" % (s(sHst), s(sHst), s(sV)))
        P("s_and_b32 %s, %s, %d" % (s(sPl), s(sWv), 2 if li == 0 else 3))
        for kt in range(4):
            P("s_xor_b32 %s, %s, %d" % (s(sV), s(sPl), kt ^ (2 if li == 0 else 3)))
            P("s_mul_i32 %s, %s, %d" % (s(sV), s(sV), TILE))
            P("s_add_u32 %s, %s, %s" % (s(sHt + kt), s(sHst), s(sV)))
        P("s_lshl_b32 %s, %s, 4" % (s(sPl), s(sP)))
        P("s_add_u32 %s, %s, %s" % (s(sFl), s(sPl), s(sI)))
        P("s_lshl_b32 %s, %s, 2" % (s(sFl), s(sFl)))
        P("s_add_u32 %s, %s, %s" % (s(sFl), s(sFl), s(sWv)))
        P("s_lshl_b32 %s, %s, 7" % (s(sFl), s(sFl)))
        P("s_add_u32 %s, %s, 0x%x" % (s(sFl), s(sFl), L.FLAGS + li * 262144))
        P("s_lshl_b32 %s, %s, 9" % (s(sPl), s(sPl)))
        P("s_lshl_b32 %s, %s, 11" % (s(sV), s(sWv)))
        P("s_add_u32 %s, %s, %s" % (s(sPl), s(sPl), s(sV)))
        P("s_add_u32 %s, %s, 0x%x" % (s(sPl), s(sPl), L.FLAGS + li * 262144))
        for m, c in ((8, 0x22222222), (9, 0x22222222), (10, 0x44444444), (11, 0x44444444), (36, 0x88888888), (37, 0x88888888)):
            P("s_mov_b32 %s, 0x%x" % (s(m), c))
        n2 = o.get("N2", 18 if li == 0 else 6)
        per = -(-len(pre) // max(1, n2))
        for j in range(n2):
            side()
            for txt in pre[:per]:
                k(txt)
            del pre[:per]
        for txt in pre:
            k(txt)
        self.poll_issue(vF, sG)
        while li == 0 and self.issued["w1"] < 28:
            side()
        k("s_mul_i32 %s, %s, 448" % (s(sW1), s(sI)))
        k("s_add_u32 %s, %s, 0x%x" % (s(sW1), s(sW1), L.B1X))
        if li == 0:
            for i in range(4):
                k("v_mov_b32 %s, 0" % v(tmp + 4 + i))
            k("s_lshl_b32 %s, %s, 8" % (s(sV), s(sWv)))
            k("s_add_u32 %s, %s, s2" % (s(sV), s(sV)))
            k("s_lshl_b32 %s, %s, 7" % (s(sV), s(sV)))
            k("s_sub_u32 %s, %s, 0x%x" % (s(sT), s(sFl), L.FLAGS))
            k("v_mov_b32 %s, %s" % (v(t[0]), s(sT)))
            k("v_mov_b32 %s, %s" % (v(t[1]), s(sV)))
            k("s_mov_b64 vcc, 0xff00")
            k("v_cndmask_b32 %s, %s, %s, vcc" % (v(t[0]), v(t[0]), v(t[1])))
            k("s_lshr_b32 %s, %s, 2" % (s(sT), s(sT)))
            k("v_mov_b32 %s, %s" % (v(t[1]), s(sT)))
            k("s_mov_b64 vcc, 0xff")
            k("v_cndmask_b32 %s, %s, %s, vcc" % (v(t[0]), v(t[0]), v(t[1])))
            k("v_bfe_u32 %s, v0, 3, 3" % v(t[1]))
            k("v_lshl_add_u32 %s, %s, 17, %s" % (v(t[0]), v(t[1]), v(t[0])))
            k("v_and_b32 %s, 0x70, %s" % (v(t[1]), v(vrA)))
            k("v_add_u32 %s, %s, %s" % (v(t[0]), v(t[0]), v(t[1])))
            k("s_cmp_eq_u32 %s, 0" % s(sWv))
            k("s_cselect_b32 exec_lo, -1, 0xffffff00")
            k("s_mov_b32 exec_hi, 0xffff")
            k("s_mov_b32 %s, 0x%x" % (s(sT), L.GFLAGS + 131072))
            k("buffer_store_dwordx4 %s, %s, %s, %s offen sc1" % (v(tmp + 4, 4), v(t[0]), WS, s(sT)))
            k("s_mov_b64 exec, -1")
            if self.o.get("DG_1", 1):
                for i in range(4):
                    k("v_mov_b32 %s, -1" % v(tmp + 8 + i))
                k("s_lshl_b32 %s, %s, 11" % (s(sT), s(sWv)))
                k("s_add_u32 %s, %s, %s" % (s(sT), s(sT), s(sQ)))
                k("s_add_u32 %s, %s, 0x%x" % (s(sT), s(sT), L.X3))
                for b in range(2):
                    k("buffer_store_dwordx4 %s, %s, %s, %s offen offset:%d sc1" % (v(tmp + 8, 4), v(vrA), WS, s(sT), 1024 * b))
        side(o.get("N3", 4 if li == 0 else 0))
        while queue and not getattr(queue[0][1], "head", False):
            side()
        if o.get("nogate"):
            k("v_mov_b32 %s, %s" % (v(vP), v(vP)))
        else:
            self.poll_check(vF, sG, data=DG)
        k.wait_tag("w1")
        k("s_barrier")
        self.st("s_go")
        if li == 0:
            k("s_or_b32 %s, s2, %s" % (s(sV), s(sWv)))
            k("s_cbranch_scc1 NO_EPOCH")
            k("s_mov_b32 %s, 0x%x" % (s(sV), L.EPOCH))
            self.flag_store(sV)
            k.label("NO_EPOCH")

        def bundle(ks):
            tg = ("b", ks)
            if ks == 16:
                return [(lambda: k("s_add_u32 m0, %s, %d" % (s(sRB), 4 * 2048)), self.dma(vrA, sW1, 0, tg))]
            return [(self.setup(sRB, (ks % 6) * 2048, sT, sX, 0 if o.get("xfix") else ks * 8192), self.dma(vX, sT, 0, tg, " sc1")),
                    (None, self.dma(vX2, sT, 1024, tg, " sc1"))]

        def x_read(ks, n):
            i, ro = ((0, 0), (1, 4), (2, 2), (3, 6))[n]
            return lambda: k("ds_read_b64 %s, %s offset:%d" % (v(XB + 8 * ks + ro, 2), v(vrX), (ks % 6) * 2048 + 512 * i))

        def x_swap(ks, n):
            return lambda: k("v_swap_b32 %s, %s" % (v(XB + 8 * ks + 1 + 2 * n), v(XB + 8 * ks + 4 + 2 * n)))

        def a_read(ks, ft):
            return lambda: k("ds_read_b128 %s, %s offset:%d" % (v(AF + 16 * (ks & 1) + 4 * ft, 4), v(vrA), (4 * ks + ft) * 1024))

        def b1_read(reg, ft):
            return lambda: k("ds_read_b128 %s, %s offset:%d" % (v(reg, 4), v(vB1), 4 * 2048 + 64 * ft))

        def diag(tt):
            def op():
                k("v_cndmask_b32 %s, %s, %s, s[8:9]" % (v(t[tt]), v(SSQ + 4 * tt), v(SSQ + 4 * tt + 1)))
                k("v_cndmask_b32 %s, %s, %s, s[10:11]" % (v(t[tt]), v(t[tt]), v(SSQ + 4 * tt + 2)))
                k("v_cndmask_b32 %s, %s, %s, s[36:37]" % (v(t[tt]), v(t[tt]), v(SSQ + 4 * tt + 3)))
                k("ds_bpermute_b32 %s, %s, %s" % (v(vS + tt), v(t[2]), v(t[tt])))
            return op

        k("s_mov_b32 %s, 0" % s(sG))
        k.label("PASS_A%d" % li)
        for ks in range(D):
            self.issue(bundle(ks))
        for ft in range(4):
            a_read(0, ft)()
        k("v_mov_b32 %s, 0xffff" % v(t[4]))
        k("v_cmp_gt_u32 vcc, 256, %s" % v(vrA))
        k("v_cndmask_b32 %s, -1, %s, vcc" % (v(vS), v(t[4])))
        k("v_and_b32 %s, 12, v0" % v(t[2]))
        k("v_and_b32 %s, 15, v0" % v(t[3]))
        k("v_lshlrev_b32 %s, 7, %s" % (v(vF), v(t[3])))
        k("v_lshl_add_u32 %s, %s, 2, %s" % (v(t[2]), v(t[2]), v(t[3])))
        k("v_lshlrev_b32 %s, 2, %s" % (v(t[2]), v(t[2])))
        k("v_mov_b32 %s, %s" % (v(t[3]), fbits(EPS * EPS)))
        k.wait_tag(("b", 0))
        self.st("first")
        for n in range(4):
            x_read(0, n)()
        x_swap(0, 0)()
        x_swap(0, 1)()
        for ks in range(16):
            k.wait_tag(("b", ks + 1))
            fill = [[] for _ in range(10)]
            ops = bundle(ks + D) if ks + D <= 16 else []
            while len(ops) < (2 if ks < 15 else 0) and queue:
                ops.append(queue.pop(0))
            if 2 <= ks < 16 - D and ks % o.get("XS", 2) == 0 and queue:
                ops.append(queue.pop(0))
            for n, (su, ld) in enumerate(ops):
                if su:
                    fill[(4, 8, 2)[n]].append(su)
                fill[(5, 9, 2)[n]].append(ld)
            if ks < 15:
                for n in range(4):
                    fill[n >> 1].append(x_read(ks + 1, n))
                    fill[(2, 3, 3, 4)[n]].append(a_read(ks + 1, n))
                if ks:
                    fill[1].append(lambda: k.wait(lg=4))
                fill[6].insert(0, lambda: k.wait(lg=4))
                fill[6].append(x_swap(ks + 1, 0))
                fill[7].append(x_swap(ks + 1, 1))
            else:
                for n in range(4):
                    fill[n >> 1].append(b1_read(AF + 4 * n, n))
                fill[4].append(diag(0))
                fill[6].append(diag(1))
            order = list(range(10))
            if ks == 0:
                order = order[2:] + order[:2]
                for tt in range(2):
                    fill[2 + 3 * tt].append(lambda tt=tt: k("v_and_b32 %s, %s, %s\nv_mov_b32 %s, %s" % (
                        v(tmp + 8 + 4 * tt), v(vS), v(XB + 4 * tt), v(tmp + 9 + 4 * tt), v(XB + 4 * tt + 1))))
                    fill[4 + 2 * tt].append(lambda tt=tt: k("v_mov_b32 %s, %s\nv_mov_b32 %s, %s" % (
                        v(tmp + 10 + 4 * tt), v(XB + 4 * tt + 2), v(tmp + 11 + 4 * tt), v(XB + 4 * tt + 3))))
            for pos, m in enumerate(order):
                tt = m & 1
                bb = v(XB + 8 * ks + 4 * tt, 4)
                if m < 2:
                    d = v(SSQ + 4 * tt, 4)
                    k("%s %s, %s, %s, %s" % (MF, d, v(tmp + 8 + 4 * tt, 4) if ks == 0 else bb, bb, d if ks else "0"))
                else:
                    ft = (m - 2) >> 1
                    d = v(acc1(ft, tt), 4)
                    k("%s %s, %s, %s, %s" % (MF, d, v(AF + 16 * (ks & 1) + 4 * ft, 4), bb, d if ks else "0"))
                for op in fill[pos]:
                    op()
        self.st("passA")

        def b_slot(j):
            return AF + 4 * ((j + 4) % 8)

        def b_read(j):
            k("ds_read_b128 %s, %s offset:%d" % (v(b_slot(j), 4), v(vA2), j * 1024))

        if DG:
            k("v_cmp_u_f32 vcc, %s, %s" % (v(vS), v(vS + 1)))
            k("s_cbranch_vccz A_OK%d" % li)
            k("s_add_u32 %s, %s, 1" % (s(sG), s(sG)))
            self.count(0)
            k("s_waitcnt vmcnt(0) lgkmcnt(0)")
            k("s_nop 7")
            k("s_cmp_lt_u32 %s, 64" % s(sG))
            k("s_cbranch_scc1 PASS_A%d" % li)
            k.label("A_OK%d" % li)
        for j in range(4):
            b_read(j)
        for tt in range(2):
            k("v_fmamk_f32 %s, %s, %s, %s" % (v(vS + tt), v(vS + tt), fbits((1 + EPS) / 512), v(t[3])))
        for tt in range(2):
            k("v_rsq_f32 %s, %s" % (v(vS + tt), v(vS + tt)))

        nunit = [0]

        def gelu(x, tts, bias, store):
            ob = tmp + 8 + 4 * (nunit[0] & 1)
            nunit[0] += 1
            for h in range(4):
                k("v_pk_fma_f32 %s, %s, %s, %s op_sel:[0,%d,0] op_sel_hi:[1,%d,1]"
                  % (v(x + 2 * h, 2), v(x + 2 * h, 2), v(vS, 2), v(bias[h], 2), tts[h], tts[h]))
            for h in range(4):
                k("v_pk_mul_f32 %s, %s, %s" % (v(tmp + 2 * h, 2), v(x + 2 * h, 2), v(x + 2 * h, 2)))
            for h in range(4):
                k("v_pk_fma_f32 %s, %s, %s, %s op_sel:[0,0,1] op_sel_hi:[1,0,1]" % (v(tmp + 2 * h, 2), v(tmp + 2 * h, 2), v(vC, 2), v(vC, 2)))
            for h in range(4):
                k("v_pk_mul_f32 %s, %s, %s" % (v(tmp + 2 * h, 2), v(x + 2 * h, 2), v(tmp + 2 * h, 2)))
            GS = o.get("GS", 3 if li == 0 else 0)
            side(GS // 3)
            for i in range(8):
                k("v_exp_f32 %s, %s" % (v(tmp + i), v(tmp + i)))
            side((GS + 2) // 3)
            for h in range(4):
                k("v_pk_add_f32 %s, %s, 1.0 op_sel_hi:[1,0]" % (v(tmp + 2 * h, 2), v(tmp + 2 * h, 2)))
            for i in range(8):
                k("v_rcp_f32 %s, %s" % (v(tmp + i), v(tmp + i)))
            side((GS + 1) // 3)
            for h in range(4):
                k("v_pk_mul_f32 %s, %s, %s" % (v(tmp + 2 * h, 2), v(x + 2 * h, 2), v(tmp + 2 * h, 2)))
            for h in (0, 2, 1, 3):
                k("v_cvt_pk_bf16_f32 %s, %s, %s" % (v(ob + h), v(tmp + 2 * h), v(tmp + 2 * h + 1)))
            store(ob)

        def st_pair(sb, off, tag):
            return lambda ob: k("buffer_store_dwordx4 %s, %s, %s, %s offen offset:%d sc1" % (v(ob, 4), v(vrA), WS, s(sb), off), tag=tag)

        def st_six(ob):
            k("v_permlane16_swap_b32 %s, %s" % (v(ob), v(ob + 2)))
            k("v_permlane16_swap_b32 %s, %s" % (v(ob + 1), v(ob + 3)))
            k("buffer_store_dwordx4 %s, %s, %s, %s offen sc1" % (v(ob, 4), v(vH6), WS, s(sH6)), tag="hB")

        for tt in range(2):
            for pr in range(2):
                gelu(acc1(2 * pr, tt), [tt] * 4, [AF + 8 * pr + 2 * h for h in range(4)], st_pair(sHA, pr * 1024, "hA"))
            if tt == 0:
                k("s_add_u32 %s, %s, %d" % (s(sHA), s(sHA), TS))
                if li == 1:
                    k("s_barrier")
        park = li == 0 and o.get("park", 1)
        if park:
            k("v_and_b32 %s, 0xf0, %s" % (v(vX), v(vrA)))
            k("v_and_b32 %s, 48, v0" % v(vX2))
            k("v_lshl_add_u32 %s, %s, 6, %s" % (v(vX), v(vX2), v(vX)))

            def w2t(dt):
                def op():
                    self.issued["w2t"] = self.issued.get("w2t", 0) + 1
                    k("buffer_store_dwordx4 %s, %s, %s, %s offen sc1" % (a(224 + 4 * dt, 4), v(vX), WS, s(sT)))
                return (lambda: k("s_add_u32 %s, s29, %d" % (s(sT), dt * 229376)), op)
            at = o.get("WP", 0)
            queue[at:at] = [w2t(dt) for dt in range(8)]
        if li == 1:
            k("s_lshl_b32 %s, %s, 14" % (s(sG), s(sWv)))
            k("s_lshl_b32 %s, %s, 16" % (s(sX), s(sCt)))
            k("s_add_u32 %s, %s, %s" % (s(sX), s(sX), s(sG)))
            k("s_add_u32 %s, %s, 0x%x" % (s(sX), s(sX), L.FT))
            queue[0:0] = [(self.setup(sG, (j >> 2) * 4096, sT, sX, (j >> 2) * 4096) if j & 3 == 0 else None,
                           self.dma(vrA, sT, (j & 3) * 1024, "ft")) for j in range(16)]
        self.st("geluA")

        FA = o.get("FA", 60)
        for j in range(4, 7):
            b_read(j)
        for j in range(48):
            ks, ft = j // 3, 4 + j % 3
            pend = None
            for tt in range(2):
                d = v(acc1(ft, tt), 4)
                k("%s %s, %s, %s, %s" % (MF, d, v(b_slot(j), 4), v(XB + 8 * ks + 4 * tt, 4), d if ks else "0"))
                if tt == 0:
                    if j + 7 < 48:
                        b_read(j + 7)
                    elif j + 7 < 51:
                        b1_read(b_slot(j + 7), j + 7 - 44)()
                    if j & 1 and queue:
                        su, pend = queue.pop(0)
                        if su:
                            su()
                elif pend:
                    pend()
                if 2 * j + tt == FA:
                    self.publish("hA", sFl)
                    k("s_add_u32 %s, %s, 131072" % (s(sFl), s(sFl)))
        self.st("passB")
        RES, BIAS, vRes = AF, AF + 8, vX
        if li == 0:
            assert not park or self.issued["w2t"] == 8
            k("v_bfe_u32 %s, v0, 4, 2" % v(vX2))
            k("v_lshrrev_b32 %s, 4, %s" % (v(vRes), v(vF)))
            k("v_lshl_add_u32 %s, %s, 15, %s" % (v(vRes), v(vX2), v(vRes)))
            k("v_lshlrev_b32 %s, 4, %s" % (v(vX2), v(vX2)))
            k("s_lshl_b32 %s, %s, 1" % (s(sG), s(sCt)))
            k("s_and_b32 %s, %s, 1" % (s(sV), s(sWv)))
            k("s_add_u32 %s, %s, %s" % (s(sG), s(sG), s(sV)))
            k("s_lshl_b32 %s, %s, 17" % (s(sV), s(sG)))
            k("s_add_u32 %s, %s, %s" % (s(sX), s(sX), s(sV)))
            k("s_lshl_b32 %s, %s, 6" % (s(sG), s(sG)))
            k("s_add_u32 %s, %s, 0x%x" % (s(sG), s(sG), L.B2F))
            k("s_lshl_b32 %s, %s, 1" % (s(sT), s(sPhi)))
            k("s_lshr_b32 %s, %s, 1" % (s(sV), s(sWv)))
            k("s_add_u32 %s, %s, %s" % (s(sT), s(sT), s(sV)))
            k("s_lshl_b32 %s, %s, 7" % (s(sHA), s(sT)))
            k("s_add_u32 %s, %s, %s" % (s(sX), s(sX), s(sHA)))
            for r in range(4):
                queue.append((lambda r=r: k("s_add_u32 %s, %s, %d" % (s(sT), s(sX), r * 8192)),
                              lambda r=r: k("buffer_load_dwordx2 %s, %s, %s, %s offen sc1" % (v(RES + 2 * r, 2), v(vRes), WS, s(sT)))))
            for ri in range(2):
                queue.append((None, lambda ri=ri: k("buffer_load_dwordx4 %s, %s, %s, %s offen offset:%d sc1" % (v(BIAS + 4 * ri, 4), v(vX2), WS, s(sG), ri * 1024))))
        else:
            assert self.issued["ft"] == 16
            k("v_and_b32 %s, 48, v0" % v(vX2))
            k("v_lshlrev_b32 %s, 1, %s" % (v(vX2), v(vX2)))
            k("s_lshl_b32 %s, %s, 7" % (s(sG), s(sCt)))
            for e in range(2):
                k("buffer_load_dwordx4 %s, %s, s[40:43], %s offen offset:%d" % (v(RES + 4 * e, 4), v(vX2), s(sG), e * 16))
        PA = o.get("PA", 1)
        bb = b_slot(48)
        for u in range(3):
            if u == PA:
                self.poll_issue(vF, sPl)
            if u < 2:
                gelu(acc1(4, u), [u] * 4, [bb + 2 * h for h in range(4)], st_pair(sHB, 0, "hB"))
                if u == 0:
                    k("s_add_u32 %s, %s, %d" % (s(sHB), s(sHB), TS))
            else:
                gelu(acc1(6, 0), [0, 0, 1, 1], [bb + 8, bb + 10, bb + 8, bb + 10], st_six)
        if PA == 3:
            self.poll_issue(vF, sPl)
        self.st("geluB")

        loads = [(kt, kf) for kt in range(4) for kf in range(8)] + [(kt, kf) for kt in range(4) for kf in range(8, 14)]
        slot = {x: XB + 4 * (j % 32) for j, x in enumerate(loads)}
        acc2 = lambda kt, c: ACC + 16 * kt + 4 * c
        own = [acc2(2 + (g >> 1), 2 + (g & 1)) for g in range(4)] if li == 0 else [acc2(3, g) for g in range(4)]

        def h_load(j):
            kt, kf = loads[j]
            if kf % 4 == 0:
                k("s_add_u32 %s, %s, %d" % ((s(sHst), s(sHt), 0) if o.get("hfix") else (s(sHst), s(sHt + kt), kf * 1024)))
            k("buffer_load_dwordx4 %s, %s, %s, %s offen offset:%d sc1" % (v(slot[loads[j]], 4), v(vrA), WS, s(sHst), (kf & 3) * 1024))

        FB = min(PD - 1, o.get("FB", 10))
        if li == 0:
            side(len(queue))
            self.poll_check(vF, sPl)
            self.st("pollA")
            for j in range(PD):
                h_load(j)
                if j == FB:
                    self.st("g_pre")
                    self.publish("hB", sFl)
                    if park:
                        self.flag_store(sWf)
                    self.st("g_pub")
            for tt in range(2):
                for r in range(4):
                    k("v_lshlrev_b32 %s, 16, %s" % (v(own[2 * tt] + r), v(RES + 2 * r + tt)))
                    k("v_and_b32 %s, 0xffff0000, %s" % (v(own[2 * tt + 1] + r), v(RES + 2 * r + tt)))
            for g in range(4):
                for h in (0, 2):
                    k("v_pk_add_f32 %s, %s, %s" % (v(own[g] + h, 2), v(own[g] + h, 2), v(BIAS + 4 * (g & 1) + h, 2)))
        else:
            side(len(queue))
            for c in range(4):
                for h in range(2):
                    k("v_lshlrev_b32 %s, 16, %s" % (v(own[c] + 2 * h), v(RES + 2 * c + h)))
                    k("v_and_b32 %s, 0xffff0000, %s" % (v(own[c] + 2 * h + 1), v(RES + 2 * c + h)))
            k.wait_tag("ft")
            k("s_barrier")
            k("s_cmp_eq_u32 %s, 1" % s(sPhi))
            k("s_cbranch_scc1 X3B")
            for tt in range(2):
                if tt == 1:
                    k.label("X3B")
                for j in range(7):
                    k("ds_read_b128 %s, %s offset:%d" % (v(AF + 4 * j, 4), v(vrA), j * 1024))
                nh = 0
                for j in range(64):
                    ks, c = j >> 2, j & 3
                    d = v(own[c], 4)
                    k("%s %s, %s, %s, %s" % (MF, d, v(AF + 4 * (j % 8), 4), v(XB + 8 * ks + 4 * tt, 4), d))
                    if j + 7 < 64:
                        k("ds_read_b128 %s, %s offset:%d" % (v(AF + 4 * ((j + 7) % 8), 4), v(vrA), (j + 7) * 1024))
                    if c == 1 and ks >= o.get("XH", 1) and nh < PD:
                        if nh == 0:
                            self.poll_check(vF, sPl)
                        assert nh < 2 * ks
                        h_load(nh)
                        nh += 1
                    if j == o.get("FBX", 44):
                        self.publish("hB", sFl)
                for j in range(nh, PD):
                    h_load(j)
                if tt == 0:
                    k("s_branch X3E")
            k.label("X3E")
            self.st("pollA")
        k("s_add_u32 %s, %s, 131072" % (s(sPl), s(sPl)))

        vRW, vRd, vO, vI = vrX, [AF + 16, AF + 17, AF + 18], vX, AF + 19
        late = []
        Q = late.append
        Q("v_add_u32 %s, %s, %s" % (v(vRW), s(sRB), v(vrA)))
        for dl in range(1, 4):
            Q("s_xor_b32 %s, %s, %d\ns_mul_i32 %s, %s, 12288" % (s(sV), s(sWv), dl, s(sV), s(sV)))
            Q("s_add_u32 %s, %s, %d\nv_add_u32 %s, %s, %s" % (s(sV), s(sV), PRIV + (3 ^ dl) * 4096, v(vRd[dl - 1]), s(sV), v(vrA)))
        if li == 1 and o.get("OC", 1):
            Q("s_mul_i32 %s, %s, 2304\ns_add_u32 %s, %s, %d" % (s(sV), s(sWv), s(sV), s(sV), WB))
            Q("v_and_b32 %s, 15, v0\nv_mul_u32_u24 %s, 144, %s" % (v(t[0]), v(t[0]), v(t[0])))
            Q("v_add3_u32 %s, %s, %s, %s\nv_bfe_u32 %s, v0, 3, 3" % (v(vI), v(t[0]), v(vX2), s(sV), v(t[0])))
            Q("v_and_b32 %s, 0x70, %s\nv_mul_u32_u24 %s, 144, %s" % (v(vX2), v(vrA), v(t[1]), v(t[0])))
            Q("v_add3_u32 %s, %s, %s, %s\nv_lshl_add_u32 %s, %s, 1, %s" % (v(vI + 1), v(t[1]), v(vX2), s(sV), v(t[2]), v(t[0]), s(sPhi)))
        elif li == 1:
            Q("v_and_b32 %s, 15, v0\nv_lshl_add_u32 %s, %s, 1, %s" % (v(t[0]), v(t[2]), v(t[0]), s(sPhi)))
        if li == 1:
            Q("v_and_b32 %s, 3, %s\nv_lshrrev_b32 %s, 1, %s" % (v(t[2]), v(t[2]), v(t[0]), v(t[0])))
            Q("v_lshl_add_u32 %s, %s, 5, %s\nv_lshl_add_u32 %s, %s, 10, %s" % (v(t[0]), v(t[2]), v(t[0]), v(vO), v(t[0]), v(vX2)))
            Q("s_lshr_b32 %s, %s, 2\ns_lshl_b32 %s, %s, 9" % (s(sV), s(sP), s(sX), s(sV)))
            Q("s_and_b32 %s, %s, 1\ns_lshl_b32 %s, %s, 8" % (s(sV), s(sP), s(sV), s(sV)))
            Q("s_add_u32 %s, %s, %s\ns_lshr_b32 %s, %s, 1" % (s(sX), s(sX), s(sV), s(sV), s(sWv)))
            Q("s_lshl_b32 %s, %s, 7\ns_add_u32 %s, %s, %s" % (s(sV), s(sV), s(sX), s(sX), s(sV)))
            Q("s_bfe_u32 %s, %s, 0x10001\ns_lshl_b32 %s, %s, 4" % (s(sV), s(sP), s(sV), s(sV)))
            Q("s_add_u32 %s, %s, %s\ns_and_b32 %s, %s, 1" % (s(sX), s(sX), s(sV), s(sV), s(sWv)))
            Q("s_lshl_b32 %s, %s, 3\ns_add_u32 %s, %s, %s" % (s(sV), s(sV), s(sX), s(sX), s(sV)))
            Q("s_lshl_b32 %s, %s, 10\ns_add_u32 %s, %s, %s" % (s(sX), s(sX), s(sX), s(sX), s(sG)))
        else:
            Q("s_add_u32 %s, %s, 0x%x\ns_cmp_eq_u32 %s, 0x%x" % (s(sX), s(sX), (L.X2 - XIN) & 0xffffffff, s(sG), L.B2F) +
              "\ns_cselect_b32 s8, 0xffff, 0")
            Q("s_mov_b32 s9, 0\nv_bfe_u32 %s, v0, 4, 1" % v(t[0]))
            Q("v_lshrrev_b32 %s, 4, %s\nv_lshl_add_u32 %s, %s, 2, %s" % (v(vI), v(vF), v(vI), v(t[0]), v(vI)))
            Q("v_bfe_u32 %s, v0, 5, 1\nv_lshlrev_b32 %s, 1, %s" % (v(t[0]), v(vI), v(vI)))
            Q("v_lshl_add_u32 %s, %s, 2, %s\ns_mov_b32 s10, 0\ns_mov_b32 s11, -1" % (v(vI), v(t[0]), v(vI)))
            Q("s_lshl_b32 %s, %s, 9\ns_add_u32 %s, %s, %s" % (s(sV), s(sP), s(sHA), s(sHA), s(sV)))
            Q("s_lshl_b32 %s, %s, 1\ns_add_u32 %s, %s, 0x%x" % (s(sHA), s(sHA), s(sHA), s(sHA), L.SSQ2))
            Q("v_min_u32 %s, 0x370, %s\nv_lshlrev_b32 %s, 3, %s" % (v(vF), v(vrA), v(vF), v(vF)))
            Q("s_mul_i32 %s, %s, %d\ns_add_u32 %s, %s, 0x%x" % (s(sPl), s(sWv), 56 * 128, s(sPl), s(sPl), L.WFLAGS))

        def quarter(kap):
            return [acc2(2 * (kap >> 1) + (g >> 1), 2 * (kap & 1) + (g & 1)) for g in range(4)] if li == 0 else [acc2(kap, g) for g in range(4)]

        def block(kts, kfs, cs):
            return [(kt, kf, c) for kt in kts for g0 in range(0, len(kfs), CH) for c in cs for kf in kfs[g0:g0 + CH]]
        A8, B6, ALL = list(range(8)), list(range(8, 14)), list(range(4))
        seq = block(ALL, A8, ALL)
        if li == 0:
            seq += block([0, 1], B6, ALL) + block([2, 3], B6, [0, 1]) + block([2, 3], B6, [2, 3])
            wr = {176 + 6 + 2 * n: (n >> 2, n & 3) for n in range(8)}
        else:
            seq += block(ALL, B6, ALL)
            wr = {152 + 24 * (n >> 2) + 6 + 2 * (n & 3): (n >> 2, n & 3) for n in range(8)}
        wr.update({200 + 5 + n: (2, n) for n in range(4)})
        seen, nld = set(), PD
        RB = o.get("RB", 213)
        for m, (kt, kf, c) in enumerate(seq):
            d = acc2(kt, c)
            first = d not in seen and d not in own
            seen.add(d)
            k("%s %s, %s, %s, %s" % (MF, v(d, 4), a(16 * kf + 4 * c, 4), v(slot[(kt, kf)], 4), "0" if first else v(d, 4)))
            if m == 0:
                self.st("h0")
            if m in (32, 64, 96, 128, 160, 192, 212):
                self.st("g_%d" % m)
            if m % 4 == 1 and nld < 56:
                if nld == 32:
                    self.st("preB")
                    self.poll_check(vF, sPl)
                    self.st("pollB")
                h_load(nld)
                nld += 1
            elif m == 4 * o.get("PB", 10) + 3:
                self.poll_issue(vF, sPl)
            elif m % 2 == 0 and nld > 33 and late:
                k(late.pop(0))
            if park and m == 4 * (56 - PD) + 5:
                assert nld == 56 and not late
                self.poll_issue(vF, sPl)
            if m in wr:
                kap, g = wr[m]
                assert not late
                k("ds_write_b128 %s, %s offset:%d" % (v(vRW), v(quarter(kap)[g], 4), kap * 4096 + g * 1024))
            if m == RB:
                k("s_waitcnt lgkmcnt(0)")
                k("s_barrier")
            if RB <= m < RB + 6:
                for n in (2 * (m - RB), 2 * (m - RB) + 1):
                    k("ds_read_b128 %s, %s offset:%d" % (v(XB + 4 * n, 4), v(vRd[n >> 2]), (n & 3) * 1024))
        self.st("gemm2")
        for n in range(8):
            k("v_pk_add_f32 %s, %s, %s" % (v(XB + 2 * n, 2), v(XB + 2 * n, 2), v(XB + 16 + 2 * n, 2)))
        for n in range(8):
            k("v_pk_add_f32 %s, %s, %s" % (v(XB + 2 * n, 2), v(XB + 2 * n, 2), v(XB + 32 + 2 * n, 2)))
        for n in range(8):
            d = v(own[n >> 1] + 2 * (n & 1), 2)
            k("v_pk_add_f32 %s, %s, %s" % (d, d, v(XB + 2 * n, 2)))
        if li == 0:
            for r in range(4):
                for tt in range(2):
                    k("v_cvt_pk_bf16_f32 %s, %s, %s" % (v(tmp + 2 * r + tt), v(own[2 * tt] + r), v(own[2 * tt + 1] + r)))
                k("s_add_u32 %s, %s, %d" % (s(sT), s(sX), r * 8192))
                k("buffer_store_dwordx2 %s, %s, %s, %s offen sc1" % (v(tmp + 2 * r, 2), v(vRes), WS, s(sT)), tag="xs")
            q = tmp + 8
            for tt in range(2):
                k("v_cndmask_b32 %s, %s, 0, s[8:9]" % (v(own[2 * tt + 1]), v(own[2 * tt + 1])))
            for tt in range(2):
                k("v_pk_mul_f32 %s, %s, %s" % (v(q + 2 * tt, 2), v(own[2 * tt], 2), v(own[2 * tt], 2)))
            for h in (2, 4, 6):
                for tt in range(2):
                    k("v_pk_fma_f32 %s, %s, %s, %s" % (v(q + 2 * tt, 2), v(own[2 * tt] + h, 2), v(own[2 * tt] + h, 2), v(q + 2 * tt, 2)))
            k("v_add_f32 %s, %s, %s" % (v(q), v(q), v(q + 1)))
            k("v_add_f32 %s, %s, %s" % (v(q + 2), v(q + 2), v(q + 3)))
            k("v_permlane16_swap_b32 %s, %s" % (v(q), v(q + 2)))
            k("v_add_f32 %s, %s, %s" % (v(q), v(q), v(q + 2)))
            k("v_mov_b32 %s, %s" % (v(q + 1), v(q)))
            k("v_permlane32_swap_b32 %s, %s" % (v(q), v(q + 1)))
            k("v_add_f32 %s, %s, %s" % (v(q), v(q), v(q + 1)))
            k("v_cndmask_b32 %s, %s, 1.0, s[10:11]" % (v(q), v(q)))
            k("buffer_atomic_add_f32 %s, %s, %s, %s offen" % (v(q), v(vI), WS, s(sHA)), tag="xs")
            if park:
                self.poll_check(vF, sPl)
        elif o.get("OC", 1):
            for e in range(2):
                for i in range(4):
                    k("v_cvt_pk_bf16_f32 %s, %s, %s" % (v(tmp + 4 * e + i), v(own[0] + 8 * e + 2 * i), v(own[0] + 8 * e + 2 * i + 1)))
                k("ds_write_b128 %s, %s offset:%d" % (v(vI), v(tmp + 4 * e, 4), 16 * e))
            for e in range(2):
                k("ds_read_b128 %s, %s offset:%d" % (v(tmp + 8 + 4 * e, 4), v(vI + 1), 8 * 144 * e))
            k("s_add_u32 %s, %s, 4096" % (s(sT), s(sX)))
            for e in range(2):
                k("buffer_store_dwordx4 %s, %s, s[44:47], %s offen%s" % (v(tmp + 8 + 4 * e, 4), v(vO), s((sX, sT)[e]), " sc1" if o.get("OS", 1) else ""))
        else:
            for e in range(2):
                for i in range(4):
                    k("v_cvt_pk_bf16_f32 %s, %s, %s" % (v(tmp + 4 * e + i), v(own[0] + 8 * e + 2 * i), v(own[0] + 8 * e + 2 * i + 1)))
                k("buffer_store_dwordx4 %s, %s, s[44:47], %s offen offset:%d" % (v(tmp + 4 * e, 4), v(vO), s(sX), 16 * e))
        self.st("epi")

    def build(self):
        k, o = self.k, self.o
        k.entry(self.name)
        self.layer = 0
        self.col_alloc()
        r = self.c
        k("s_cmp_ge_u32 s2, 256")
        k("s_cbranch_scc1 MAIN_END")
        k_pre.emit(self)
        self.st("p_out")
        self.col_addr()
        k("s_mov_b32 s42, 0x400")
        k("s_mov_b32 s43, 0x20000")
        k("s_mov_b32 s46, 0x200000")
        k("s_mov_b32 s47, 0x20000")
        k("s_lshl_b32 %s, s2, 13" % s(sQ))
        k("s_mul_i32 %s, %s, 12288" % (s(sRB), s(sWv)))
        k("s_add_u32 %s, %s, %d" % (s(sRB), s(sRB), PRIV))
        if o.get("map", 1):
            k("s_and_b32 %s, s2, 6" % s(sP))
            k("s_lshl_b32 %s, %s, 1" % (s(sP), s(sP)))
            k("s_lshr_b32 %s, s2, 6" % s(sT))
            k("s_add_u32 %s, %s, %s" % (s(sP), s(sP), s(sT)))
            k("s_bfe_u32 %s, s2, 0x30003" % s(sI))
            k("s_and_b32 %s, s2, 1" % s(sCt))
            k("s_lshl_b32 %s, %s, 3" % (s(sT), s(sCt)))
            k("s_add_u32 %s, %s, %s" % (s(sI), s(sI), s(sT)))
            k("s_bfe_u32 %s, s2, 0x10005" % s(sPhi))
            k("s_lshl_b32 %s, %s, 2" % (s(sCt), s(sCt)))
            k("s_bfe_u32 %s, s2, 0x20003" % s(sT))
            k("s_add_u32 %s, %s, %s" % (s(sCt), s(sCt), s(sT)))
        else:
            k("s_and_b32 %s, s2, 7" % s(sP))
            k("s_lshl_b32 %s, %s, 1" % (s(sP), s(sP)))
            k("s_lshr_b32 %s, s2, 7" % s(sT))
            k("s_add_u32 %s, %s, %s" % (s(sP), s(sP), s(sT)))
            k("s_bfe_u32 %s, s2, 0x40003" % s(sI))
            k("s_lshr_b32 %s, %s, 3" % (s(sPhi), s(sI)))
            k("s_and_b32 %s, %s, 7" % (s(sCt), s(sI)))
        k("s_lshl_b32 s38, %s, 12" % s(sWv))
        k("s_mul_i32 %s, %s, 114688" % (s(sW1), s(sI)))
        k("s_add_u32 %s, %s, s38" % (s(sW1), s(sW1)))
        k("s_add_u32 %s, %s, 0x%x" % (s(sW1), s(sW1), L.W1F))
        k("s_mul_i32 s39, %s, 229376" % s(sCt))
        k("s_mul_i32 %s, %s, 57344" % (s(sV), s(sWv)))
        k("s_add_u32 s39, s39, %s" % s(sV))
        k("s_and_b32 %s, %s, 1" % (s(sV), s(sWv)))
        k("s_xor_b32 %s, %s, 1" % (s(sV), s(sV)))
        k("s_lshl_b32 %s, %s, 11" % (s(sV), s(sV)))
        k("s_add_u32 %s, s39, %s" % (s(sW2), s(sV)))
        k("s_add_u32 %s, %s, 0x%x" % (s(sW2), s(sW2), L.W2F))
        self.queue += [(self.setup(38, (j >> 2) * 16384, sU, sW1, (j >> 2) * 16384) if j & 3 == 0 else None,
                        self.dma(vrA, sU, (j & 3) * 1024, "w1")) for j in range(28)] + self.w2_ops()
        consts = self.col_consts()
        np_, n0 = o.get("CP", 90), o.get("C0", 170)
        for txt in consts[:np_]:
            k(txt)
        def publish0():
            k("v_add_u32 %s, 1, %s" % (v(vV), v(vV)))
            k("v_max_u32 %s, 1, %s" % (v(vV), v(vV)))
            k("v_readfirstlane_b32 %s, %s" % (s(sE), v(vV)))
            self.publish_wg(sRec)
            self.st("p_pub")
        nlate = o.get("LP", 7)
        k("s_and_b32 %s, s2, 0xc7" % s(sH6))
        k("s_sub_u32 %s, %s, 128" % (s(sH6), s(sH6)))
        k("s_cmp_lt_u32 %s, %d" % (s(sH6), nlate))
        k("s_cbranch_scc1 P0_LATE")
        k("s_waitcnt vmcnt(0)")
        publish0()
        k.label("P0_LATE")
        for txt in consts[np_:n0]:
            k(txt)
        vF1, vF2 = r.AC + 1, 5
        SW = o.get("SW", 1)
        k("v_and_b32 %s, 15, v0" % v(vF1))
        if not SW:
            k("v_and_b32 %s, 16, v0" % v(vF2))
            k("v_lshl_add_u32 %s, %s, 2, %s" % (v(vF1), v(vF2), v(vF1)))
        k("v_lshl_add_u32 %s, %s, 4, %s" % (v(vF1), v(r.t[0]), v(vF1)))
        k("v_lshlrev_b32 %s, 7, %s" % (v(vF1), v(vF1)))
        k("v_and_b32 %s, 31, v0" % v(vF2))
        k("v_lshl_add_u32 %s, %s, 5, %s" % (v(vF2), v(r.t[0]), v(vF2)))
        k("v_lshlrev_b32 %s, 7, %s" % (v(vF2), v(vF2)))
        k("s_mov_b32 %s, 0x%x" % (s(sG), L.PFLAGS))
        self.poll_issue(vF1, sG)
        for txt in consts[n0:]:
            k(txt)
        self.st("c_const")
        k("s_waitcnt vmcnt(0)")
        k("s_cmp_ge_u32 %s, %d" % (s(sH6), nlate))
        k("s_cbranch_scc1 P0_EARLY")
        publish0()
        k.label("P0_EARLY")
        self.poll_check(vF1, sG, sleep=o.get("SL0", 0))
        self.st("p_go")
        self.col_load_x()
        if SW:
            k("s_add_u32 %s, %s, %d" % (s(sHB), s(sG), 64 * 128))
            self.poll_issue(vF1, sHB)
        else:
            self.col_load_w()
        if o.get("DG_0", 0):
            for i in range(4):
                k("v_mov_b32 %s, -1" % v(r.FR + i))
            k("s_add_u32 %s, %s, 0x%x" % (s(sT), s(sQ), L.X1))
            for b in range(2):
                k("buffer_store_dwordx4 %s, %s, %s, %s offen offset:%d sc1" % (v(r.FR, 4), v(r.voff), WS, s(sT), 1024 * b), tag="pf")
            k("s_lshl_b32 %s, %s, 8" % (s(sFl), s(sWv)))
            k("s_add_u32 %s, %s, s2" % (s(sFl), s(sFl)))
            k("s_lshl_b32 %s, %s, 7" % (s(sFl), s(sFl)))
            k("s_add_u32 %s, %s, 0x%x" % (s(sFl), s(sFl), L.GFLAGS))
        k("s_add_u32 %s, %s, %d" % (s(sG), s(sG), 128 * 128))
        chk = lambda: self.poll_check(vF2, sG)
        if SW:
            def filt():
                self.poll_check(vF1, sHB)
                self.col_load_w()
            self.col_compute([], filt, chk, lambda: self.poll_issue(vF2, sG), 0, late2=self.col_unpack_w())
        else:
            self.col_compute(self.col_unpack_w(), None, chk, lambda: self.poll_issue(vF2, sG), 0)
        self.mlp()

        self.layer = 1
        self.st("l2")
        self.col_addr()
        self.col_load_w()
        if o.get("cp2", 1):
            k("s_getpc_b64 s[8:9]")
            k.raw("L2_PC:")
            k("s_mov_b32 s10, CODE_END-L2_PC")
            k("s_mov_b32 s11, 0x20000")
            k("v_lshlrev_b32 %s, 7, v0" % v(r.XF))
            k("s_cmp_ge_u32 s2, %d" % o.get("cp2w", 16))
            k("s_cbranch_scc1 NO_CP2")
            k("buffer_load_dword v5, %s, s[8:11], 0 offen" % v(r.XF))
            k.label("NO_CP2")
        k("s_add_u32 %s, s39, 0x%x" % (s(sW2), L.W2T))
        self.queue += self.w2_ops()
        consts = self.col_consts() + self.col_unpack_w()
        n1, n7 = o.get("C1", 120), o.get("N7", 4)
        for j, txt in enumerate(consts[:n1]):
            k(txt)
            if j % 14 == 8 and j // 14 < n7:
                self.side()
        F2 = o.get("F2", 1)
        if F2:
            k("s_barrier")
        else:
            k("s_lshl_b32 %s, %s, 4" % (s(sV), s(sP)))
            k("s_add_u32 %s, %s, %s" % (s(sV), s(sV), s(sI)))
            k("s_lshl_b32 %s, %s, 7" % (s(sV), s(sV)))
            k("s_add_u32 %s, %s, 0x%x" % (s(sV), s(sV), L.GFLAGS + 131072))
            k.wait_tag("xs")
            self.publish_wg(sV)
        self.st("s2_pub")
        rest, n4 = consts[n1:], o.get("N4", 10)
        per = -(-len(rest) // max(1, n4))
        for j in range(n4):
            self.side()
            for txt in rest[:per]:
                k(txt)
            del rest[:per]
        for txt in rest:
            k(txt)
        k("v_lshlrev_b32 v5, 1, %s" % v(r.voff))
        self.st("s2_pi")
        if F2:
            self.col_load_x()
            self.side(o.get("N6", 4))
            self.col_gate()
            self.st("s2_go")
        else:
            k("v_lshlrev_b32 %s, 7, v0" % v(r.t[1]))
            k("s_mov_b32 %s, 0x%x" % (s(sG), L.GFLAGS + 131072))
            self.poll_issue(r.t[1], sG)
            self.side(o.get("N5", 0))
            self.poll_check(r.t[1], sG)
            self.st("s2_go")
            self.col_load_x()
            self.side(o.get("N6", 4))
        self.col_compute([], NC=o.get("NC", 1))
        self.mlp()
        self.st("end", final=True)
        k.label("MAIN_END")
        k("s_endpgm")
        return k


def build(name, stamp=None, opts=None):
    return Main(name, stamp, opts).build()
```

```python
import math
from asmlib import Alloc, v, a, s, fbits
import layout as L

MF = "v_mfma_f32_16x16x32_bf16"
WS = "s[4:7]"
IN, IN2 = 8, 12
PITCH = 1088
IMG = 40960
vrA = 1
sWv, sE, sRec, sWf = 3, 48, 49, 50
ST0 = "buffer_store_dwordx4 %s, %s, " + WS + ", %s offen offset:%d sc1"


def split14(k, sS, sU, sT):
    k("s_mul_i32 %s, %s, 4682" % (s(sS), s(sT)))
    k("s_lshr_b32 %s, %s, 16" % (s(sS), s(sS)))
    k("s_mul_i32 %s, %s, 14" % (s(sU), s(sS)))
    k("s_sub_u32 %s, %s, %s" % (s(sU), s(sT), s(sU)))


def emit(M):
    k, st = M.k, M.st
    ST = ST0 + {0: "", 1: " nt", 2: " sc0"}[M.o.get("pol", 0)]
    va = Alloc(6, 256)
    vn, vg, vfn, vfg4 = va(), va(), va(), va()
    t = [va() for _ in range(8)]
    A = va(32, 4)
    D = va(64, 4)
    RAW = D
    B1re, B1im, A2re, A2im, S2re, S2im, TC, TS = (va(4, 4) for _ in range(8))
    tmp = va(16, 4)
    O = va(32, 4)
    BS = va(32, 4)
    sM0, sM8, sDC, sT, sA, sB, sC, sLds, sSelLo, sSelHi = 32, 34, 36, 37, 38, 39, 42, 43, 46, 47
    sS, sU, sG, sRole = 16, 17, 18, 19

    k("s_load_dwordx16 s[16:31], s[0:1], 0")
    k("s_load_dwordx2 s[4:5], s[0:1], 80")
    k("s_load_dwordx2 s[44:45], s[0:1], 64")
    k("s_load_dwordx2 s[40:41], s[0:1], 56")
    if M.o.get("cpf", 1):
        k("s_getpc_b64 s[12:13]")
        k.raw("PRE_PC:")
        k("s_sub_u32 s12, s12, PRE_PC-%s" % M.name)
        k("s_subb_u32 s13, s13, 0")
        k("s_mov_b32 s14, CODE_END-%s" % M.name)
        k("s_mov_b32 s15, 0x20000")
        k("v_lshlrev_b32 %s, 7, v0" % v(t[0]))
        k("s_bfe_u32 %s, s2, 0x10003" % s(sC))
        k("s_lshl_b32 %s, %s, 15" % (s(sC), s(sC)))
        k("s_cmp_lt_u32 s2, 240")
        k("s_cbranch_scc1 PRE_NOPF")
        k("buffer_load_dword v2, %s, s[12:15], %s offen" % (v(t[0]), s(sC)))
        k.label("PRE_NOPF")
    st("start")
    k("v_lshrrev_b32 %s, 6, v0" % v(t[0]))
    k("v_and_b32 %s, 63, v0" % v(vrA))
    k("v_readfirstlane_b32 %s, %s" % (s(sWv), v(t[0])))
    k("v_lshlrev_b32 %s, 4, %s" % (v(A), v(vrA)))
    k("s_mov_b32 %s, 0x20000" % s(IN + 3))
    k("s_mul_i32 %s, %s, %d" % (s(sLds), s(sWv), 8 * PITCH))

    def basics():
        k("v_and_b32 %s, 15, v0" % v(vn))
        k("v_lshrrev_b32 %s, 4, %s" % (v(vg), v(vrA)))
        k("v_lshlrev_b32 %s, 4, %s" % (v(vrA), v(vrA)))
        k("s_mov_b32 s6, 0x%x" % L.WS_USED)
        k("s_mov_b32 s7, 0x20000")
        k("s_mov_b32 %s, 0x05040100" % s(sSelLo))
        k("s_mov_b32 %s, 0x07060302" % s(sSelHi))
        k("s_mov_b32 %s, s2" % s(sRec))

    def row_consts():
        out = []
        k = out.append
        k("s_mov_b32 %s, 0x00010001" % s(sM0))
        k("s_mov_b32 %s, %s" % (s(sM0 + 1), s(sM0)))
        k("s_mov_b32 %s, 0xff00ff00" % s(sM8))
        k("s_mov_b32 %s, %s" % (s(sM8 + 1), s(sM8)))
        k("s_cmp_eq_u32 %s, 2\ns_cselect_b32 %s, 0, %s" % (s(sRole), s(sDC), fbits(1 / (16 * math.sqrt(2)))))
        k("v_cvt_f32_u32 %s, %s" % (v(vfn), v(vn)))
        k("v_lshlrev_b32 %s, 2, %s" % (v(t[1]), v(vg)))
        k("v_cvt_f32_u32 %s, %s" % (v(vfg4), v(t[1])))
        f1, b1, f2, b2 = t[0], t[1], t[2], t[3]
        k("v_mul_f32 %s, %s, %s" % (v(f1), fbits(1 / 32), v(vfn)))
        k("v_mul_f32 %s, %s, %s" % (v(b1), v(f1), v(vfg4)))
        k("v_cndmask_b32 %s, %s, 0.5, %s" % (v(f2), v(f1), s(sM0, 2)))
        k("v_mov_b32 %s, %s" % (v(t[4]), fbits(0.25)))
        k("v_cndmask_b32 %s, %s, 0, %s" % (v(t[4]), v(t[4]), s(sM0, 2)))
        k("v_fma_f32 %s, %s, %s, %s" % (v(b2), v(f2), v(vfg4), v(t[4])))
        for jj in range(8):
            c = fbits(16 * (jj >> 2) + (jj & 3))
            k("v_fmamk_f32 %s, %s, %s, %s" % (v(tmp + jj), v(f1), c, v(b1)))
            k("v_fmamk_f32 %s, %s, %s, %s" % (v(tmp + 8 + jj), v(f2), c, v(b2)))
        for i in range(16):
            k("v_cos_f32 %s, %s" % (v(tmp + i), v(tmp + i)))
        for i in range(4):
            k("v_cvt_pk_bf16_f32 %s, %s, %s" % (v(B1re + i), v(tmp + 2 * i), v(tmp + 2 * i + 1)))
            k("v_cvt_pk_bf16_f32 %s, %s, %s" % (v(B1im + i), v(tmp + 8 + 2 * i), v(tmp + 8 + 2 * i + 1)))
        ftw, fa2, fs2, sctw, scs, vsh, vsg = t[0], t[1], t[2], t[3], t[4], t[5], t[6]
        k("v_mul_f32 %s, %s, %s" % (v(ftw), fbits(1 / 512), v(vfn)))
        k("v_mul_f32 %s, %s, %s" % (v(fa2), fbits(1 / 16), v(vfn)))
        k("v_add_f32 %s, %s, %s" % (v(fs2), fbits(-15 / 32), v(fa2)))
        k("v_cndmask_b32 %s, %s, %s, %s" % (v(fs2), v(fa2), v(fs2), s(sM8, 2)))
        k("v_cndmask_b32 %s, %s, 0.5, %s" % (v(fs2), v(fs2), s(sM0, 2)))
        k("v_mov_b32 %s, %s" % (v(scs), fbits(1 / 16)))
        k("v_cndmask_b32 %s, %s, 0, %s" % (v(sctw), v(scs), s(sM0, 2)))
        k("v_mov_b32 %s, %s" % (v(t[7]), fbits(1 / (16 * math.sqrt(2)))))
        k("v_cndmask_b32 %s, %s, %s, %s" % (v(scs), v(scs), v(t[7]), s(sM0, 2)))
        k("v_cndmask_b32 %s, 0, 16, %s" % (v(vsh), s(sM8, 2)))
        k("v_mov_b32 %s, 0x80008000" % v(vsg))
        k("v_cndmask_b32 %s, 0, %s, %s" % (v(vsg), v(vsg), s(sM8, 2)))
        for r in range(4):
            fb = tmp + 12 + r
            k("v_add_f32 %s, %s, %s" % (v(fb), fbits(r), v(vfg4)))
            k("v_mul_f32 %s, %s, %s" % (v(tmp + r), v(fb), v(ftw)))
            k("v_mul_f32 %s, %s, %s" % (v(tmp + 4 + r), v(fb), v(fa2)))
            k("v_mul_f32 %s, %s, %s" % (v(tmp + 8 + r), v(fb), v(fs2)))
        for r in range(4):
            k("v_cos_f32 %s, %s" % (v(TC + r), v(tmp + r)))
            k("v_sin_f32 %s, %s" % (v(TS + r), v(tmp + r)))
            k("v_cos_f32 %s, %s" % (v(O + r), v(tmp + 4 + r)))
            k("v_sin_f32 %s, %s" % (v(O + 4 + r), v(tmp + 4 + r)))
            k("v_cos_f32 %s, %s" % (v(S2re + r), v(tmp + 8 + r)))
            k("v_sin_f32 %s, %s" % (v(S2im + r), v(tmp + 8 + r)))
        k("v_mov_b32 %s, %s" % (v(t[7]), s(sDC)))
        for r in range(4):
            k("v_mul_f32 %s, %s, %s" % (v(TC + r), v(TC + r), v(sctw)))
            k("v_mul_f32 %s, %s, %s" % (v(TS + r), v(TS + r), v(sctw)))
            k("v_cvt_pk_bf16_f32 %s, %s, %s" % (v(A2re + r), v(O + r), v(O + 4 + r)))
            k("v_cvt_pk_bf16_f32 %s, -%s, %s" % (v(A2im + r), v(O + 4 + r), v(O + r)))
            k("v_xor_b32 %s, %s, %s" % (v(A2im + r), v(A2im + r), v(vsg)))
            k("v_mul_f32 %s, %s, %s" % (v(S2re + r), v(S2re + r), v(scs)))
            k("v_mul_f32 %s, %s, %s" % (v(S2im + r), fbits(-1 / 16), v(S2im + r)))
            k("v_cndmask_b32 %s, %s, %s, %s" % (v(S2im + r), v(S2im + r), v(t[7]), s(sM0, 2)))
            k("v_cvt_pk_bf16_f32 %s, %s, 0" % (v(S2re + r), v(S2re + r)))
            k("v_cvt_pk_bf16_f32 %s, %s, 0" % (v(S2im + r), v(S2im + r)))
            k("v_lshlrev_b32 %s, %s, %s" % (v(S2re + r), v(vsh), v(S2re + r)))
            k("v_lshlrev_b32 %s, %s, %s" % (v(S2im + r), v(vsh), v(S2im + r)))
        for i in range(32):
            k("v_mov_b32 %s, 0" % v(BS + i))
        return out

    late = M.o.get("wl", 1)
    sM, sPitch, sStep = 20, 21, 22
    k("s_mov_b64 vcc, 0")
    k("s_cmp_lt_u32 s2, 64")
    k("s_cbranch_scc1 PRE_IN_X")
    k("s_and_b32 %s, s2, 0xc7" % s(sC))
    k("s_sub_u32 %s, %s, 128" % (s(sT), s(sC)))
    k("s_cmp_ge_u32 %s, 7" % s(sT))
    k("s_cbranch_scc1 PRE_OTHER")

    def warm(q, sx):
        stz = "s_mov_b32 exec_hi, 0\nbuffer_store_dword %s, v4, %s, %s offen sc1\ns_mov_b32 exec_hi, -1" % (v(q), WS, s(sx))
        return ["s_lshl_b32 %s, %s, 7\ns_add_u32 %s, %s, 0x%x" % (s(sRec), s(sRec), s(sRec), s(sRec), L.PFLAGS),
                "s_mov_b32 %s, 0x%x\nv_lshrrev_b32 v4, 2, %s\nv_mov_b32 %s, 0" % (s(sx), L.EPOCH, v(vrA), v(q)),
                "buffer_load_dword v3, %s, %s, %s offen sc1" % (v(q), WS, s(sx)),
                "s_lshl_b32 %s, %s, 8\ns_add_u32 %s, %s, s2" % (s(sx), s(sWv), s(sx), s(sx)),
                "s_lshl_b32 %s, %s, 7\ns_add_u32 %s, %s, 0x%x" % (s(sx), s(sx), s(sx), s(sx), L.GFLAGS),
                "s_lshl_b32 %s, s2, 7\ns_add_u32 %s, %s, 0x%x" % (s(sE), s(sE), s(sE), L.SSQ0),
                stz,
                "s_cmp_eq_u32 %s, 0\ns_cselect_b32 %s, %s, %s" % (s(sWv), s(sx), s(sRec), s(sx)),
                "s_cmp_lt_u32 s2, 64\ns_cselect_b32 %s, %s, %s" % (s(sE), s(sE), s(sx)),
                "s_cmp_eq_u32 %s, 1\ns_cselect_b32 %s, %s, %s" % (s(sWv), s(sx), s(sE), s(sx)),
                stz]

    def w2_rows(sa, sb):
        k("s_lshr_b32 %s, %s, 2" % (s(sG), s(sU)))
        k("s_mul_i32 %s, %s, 112" % (s(sa), s(sS)))
        k("s_lshl_b32 %s, %s, 5" % (s(sC), s(sG)))
        k("s_add_u32 %s, %s, %s" % (s(sa), s(sa), s(sC)))
        k("s_and_b32 %s, %s, 3" % (s(sC), s(sU)))
        k("s_cmp_eq_u32 %s, 3" % s(sG))
        k("s_cselect_b32 %s, 3, 2" % s(sb))
        k("s_cselect_b32 %s, 4, 16" % s(sG))
        k("s_lshl_b32 %s, %s, %s" % (s(sC), s(sC), s(sb)))
        k("s_add_u32 %s, %s, %s" % (s(sa), s(sa), s(sC)))
        k("s_add_u32 %s, %s, %s" % (s(sb), s(sa), s(sG)))
        k("s_lshl_b32 %s, %s, 10" % (s(sa), s(sa)))
        k("s_lshl_b32 %s, %s, 10" % (s(sb), s(sb)))

    def w2_frag(sd):
        k("s_and_b32 %s, %s, 3" % (s(sB), s(sS)))
        k("s_lshr_b32 %s, %s, 2" % (s(sC), s(sU)))
        k("s_lshl_b32 %s, %s, 1" % (s(sd), s(sB)))
        k("s_add_u32 %s, %s, %s" % (s(sd), s(sd), s(sC)))
        k("s_add_u32 %s, %s, 8" % (s(sG), s(sB)))
        k("s_cmp_eq_u32 %s, 2" % s(sC))
        k("s_cselect_b32 %s, %s, %s" % (s(sd), s(sG), s(sd)))
        k("s_lshr_b32 %s, %s, 1" % (s(sG), s(sB)))
        k("s_add_u32 %s, %s, 12" % (s(sG), s(sG)))
        k("s_and_b32 %s, %s, 1" % (s(sB), s(sB)))
        k("s_lshl_b32 %s, %s, 1" % (s(sB), s(sB)))
        k("s_cmp_eq_u32 %s, 3" % s(sC))
        k("s_cselect_b32 %s, %s, %s" % (s(sd), s(sG), s(sd)))
        k("s_cselect_b32 %s, %s, 0" % (s(sB), s(sB)))
        k("s_and_b32 %s, %s, 3" % (s(sG), s(sU)))
        k("s_add_u32 %s, %s, %s" % (s(sG), s(sG), s(sB)))
        k("s_lshr_b32 %s, %s, 2" % (s(sB), s(sS)))
        k("s_mul_i32 %s, %s, 14" % (s(sB), s(sB)))
        k("s_add_u32 %s, %s, %s" % (s(sd), s(sd), s(sB)))
        k("s_lshl_b32 %s, %s, 12" % (s(sd), s(sd)))
        k("s_lshl_b32 %s, %s, 8" % (s(sG), s(sG)))
        k("s_add_u32 %s, %s, %s" % (s(sd), s(sd), s(sG)))

    def rows(role, ptr, nbytes, step, m=sLds, pitch=PITCH):
        k("s_mov_b32 %s, 0x%x" % (s(IN + 2), nbytes))
        k("s_mov_b64 %s, %s" % (s(IN, 2), s(ptr, 2)))
        k("s_mov_b32 %s, %d" % (s(sRole), role))
        k("s_mov_b32 %s, %s" % (s(sM), s(m)))
        k("s_mov_b32 %s, %d" % (s(sPitch), pitch))
        k("s_mov_b32 %s, %d" % (s(sStep), step))

    k("s_lshl_b32 %s, %s, 3" % (s(sT), s(sT)))
    k("s_bfe_u32 %s, s2, 0x30003" % s(sC))
    k("s_add_u32 %s, %s, %s" % (s(sT), s(sT), s(sC)))
    k("s_mul_i32 %s, %s, %d" % (s(sA), s(sWv), 128 * 3584))
    k("s_lshl_b32 %s, %s, 6" % (s(sC), s(sT)))
    k("s_add_u32 %s, %s, %s" % (s(sA), s(sA), s(sC)))
    k("s_add_u32 %s, %s, %d" % (s(sB), s(sA), 64 * 3584))
    k("s_lshl_b32 %s, %s, 13" % (s(sLds), s(sWv)))
    k("v_bfe_u32 %s, v0, 2, 4" % v(A))
    k("v_mul_u32_u24 %s, 3584, %s" % (v(A), v(A)))
    k("v_lshrrev_b32 %s, 4, v0" % v(A + 1))
    k("v_xor_b32 %s, v0, %s" % (v(A + 1), v(A + 1)))
    k("v_and_b32 %s, 3, %s" % (v(A + 1), v(A + 1)))
    k("v_lshl_add_u32 %s, %s, 4, %s" % (v(A), v(A + 1), v(A)))
    k("s_lshl_b32 %s, %s, 2" % (s(sT), s(sT)))
    k("s_add_u32 %s, %s, %s" % (s(sT), s(sT), s(sWv)))
    rows(2, 24, 0x1c0000, 16 * 3584, pitch=1024)
    if M.o.get("lin", 2) == 1:
        k("v_lshlrev_b32 %s, 7, %s" % (v(A + 1), v(vrA)))
        k("s_lshl_b32 %s, %s, 13" % (s(sC), s(sT)))
        k("buffer_load_dword v2, %s, %s, %s offen" % (v(A + 1), s(IN, 4), s(sC)))
    if M.o.get("lin", 2) == 2:
        k("v_bfe_u32 %s, v0, 2, 4" % v(A + 1))
        k("v_mul_u32_u24 %s, 3584, %s" % (v(A + 1), v(A + 1)))
        k("v_and_b32 %s, 3, v0" % v(A + 2))
        k("v_lshl_add_u32 %s, %s, 7, %s" % (v(A + 1), v(A + 2), v(A + 1)))
        k("s_and_b32 %s, %s, 31" % (s(sC), s(sT)))
        k("s_mul_i32 %s, %s, %d" % (s(sC), s(sC), 16 * 3584))
        k("s_lshr_b32 s23, %s, 5" % s(sT))
        k("s_lshl_b32 s23, s23, 9")
        k("s_add_u32 %s, %s, s23" % (s(sC), s(sC)))
        k("buffer_load_dword v2, %s, %s, %s offen" % (v(A + 1), s(IN, 4), s(sC)))
    if late & 2:
        k("s_mov_b64 vcc, -1")
    k("s_branch PRE_CONST")

    k.label("PRE_IN_X")
    dbg = M.o.get("only_w1")
    k("s_lshr_b32 %s, s2, 4" % s(sA))
    k("s_lshl_b32 %s, %s, 9" % (s(sA), s(sA)))
    k("s_bfe_u32 %s, s2, 0x10003" % s(sC))
    k("s_lshl_b32 %s, %s, 4" % (s(sC), s(sC)))
    k("s_add_u32 %s, %s, %s" % (s(sA), s(sA), s(sC)))
    k("s_bfe_u32 %s, s2, 0x20001" % s(sC))
    k("s_lshl_b32 %s, %s, 7" % (s(sC), s(sC)))
    k("s_add_u32 %s, %s, %s" % (s(sA), s(sA), s(sC)))
    k("s_and_b32 %s, s2, 1" % s(sC))
    k("s_lshl_b32 %s, %s, 2" % (s(sC), s(sC)))
    k("s_add_u32 %s, %s, %s" % (s(sC), s(sC), s(sWv)))
    k("s_lshl_b32 %s, %s, 1" % (s(sC), s(sC)))
    k("s_add_u32 %s, %s, %s" % (s(sA), s(sA), s(sC)))
    k("s_lshl_b32 %s, %s, 10" % (s(sA), s(sA)))
    k("s_add_u32 %s, %s, 1024" % (s(sB), s(sA)))
    rows(0, 16, 0 if dbg else 0x200000, 32768)

    k.label("PRE_CONST")
    def row_loads(tagn):
        k("s_mov_b32 m0, %s" % s(sM))
        k("s_mov_b32 %s, %s" % (s(sC), s(sA)))
        k("s_mov_b32 s23, 0")
        k.label("PRE_RL%d" % tagn)
        k("buffer_load_dwordx4 %s, %s, %s offen lds" % (v(A), s(IN, 4), s(sC)), tag="in")
        k("s_add_u32 m0, m0, %s" % s(sPitch))
        k("s_add_u32 %s, %s, %s" % (s(sC), s(sC), s(sStep)))
        k("s_add_u32 s23, s23, 1")
        k("s_cmp_eq_u32 s23, 4")
        k("s_cselect_b32 %s, %s, %s" % (s(sC), s(sB), s(sC)))
        k("s_cmp_lt_u32 s23, 8")
        k("s_cbranch_scc1 PRE_RL%d" % tagn)
    k("s_cbranch_vccnz PRE_SK")
    row_loads(0)
    k.label("PRE_SK")
    basics()
    consts, n1 = row_consts(), M.o.get("pc", 185)
    for txt in consts[:n1]:
        k(txt)
    k("s_cbranch_vccz PRE_NL")
    row_loads(1)
    k.label("PRE_NL")
    for txt in consts[n1:]:
        k(txt)
    k("s_cmp_eq_u32 %s, 2" % s(sRole))
    k("s_cbranch_scc1 PRE_A_W1")
    k("v_lshrrev_b32 %s, 1, %s" % (v(t[0]), v(vrA)))
    k("v_add_u32 %s, %s, %s" % (v(t[0]), s(sLds), v(t[0])))
    k.wait_tag("in")
    for j in range(8):
        k("ds_read_b64_tr_b16 %s, %s offset:%d" % (v(A + 4 * j, 2), v(t[0]), j * PITCH))
        k("ds_read_b64_tr_b16 %s, %s offset:%d" % (v(A + 4 * j + 2, 2), v(t[0]), j * PITCH + 512))
    k("s_branch PRE_CORE")
    k.label("PRE_A_W1")
    k("v_lshrrev_b32 %s, 2, %s" % (v(t[1]), v(vn)))
    k("v_xor_b32 %s, %s, %s" % (v(t[1]), s(sWv), v(t[1])))
    k("v_lshlrev_b32 %s, 4, %s" % (v(t[1]), v(t[1])))
    k("v_lshl_add_u32 %s, %s, 6, %s" % (v(t[0]), v(vn), v(t[1])))
    k("v_lshl_add_u32 %s, %s, 12, %s" % (v(t[0]), v(vg), v(t[0])))
    st("p_w0")
    k.wait_tag("in")
    st("p_w1")
    k("s_barrier")
    st("p_w2")
    for jj in range(8):
        k("ds_read_b128 %s, %s offset:%d" % (v(RAW + 4 * jj, 4), v(t[0]), (16 * (jj >> 2) + (jj & 3)) * 1024))
    for j in range(8):
        for i in range(4):
            k("v_perm_b32 %s, %s, %s, %s" % (v(A + 4 * j + i), v(RAW + 4 * (2 * i + 1) + (j >> 1)),
                                            v(RAW + 4 * (2 * i) + (j >> 1)), s(sSelHi if j & 1 else sSelLo)))

    k.label("PRE_CORE")
    st("p_in")
    wm = warm(O, sC)
    for j in range(16):
        k("%s %s, %s, %s, 0" % (MF, v(D + 4 * j, 4), v(A + 4 * (j >> 1), 4), v(B1im if j & 1 else B1re, 4)))
        if wm:
            k(wm.pop(0))
    k("s_mov_b64 exec, %s" % s(sM0, 2))
    for j in range(8):
        for r in range(4):
            k("v_cvt_pk_bf16_f32 %s, %s, %s" % (v(BS + 4 * j + r), v(D + 8 * j + r), v(D + 8 * j + 4 + r)))
    k("s_mov_b64 exec, -1")
    for j in range(8):
        re, im, tt = D + 8 * j, D + 8 * j + 4, tmp + 8 * (j & 1)
        for h in (0, 2):
            k("v_pk_mul_f32 %s, %s, %s" % (v(tt + h, 2), v(im + h, 2), v(TS + h, 2)))
            k("v_pk_mul_f32 %s, %s, %s" % (v(tt + 4 + h, 2), v(re + h, 2), v(TS + h, 2)))
        for h in (0, 2):
            k("v_pk_fma_f32 %s, %s, %s, %s" % (v(tt + h, 2), v(re + h, 2), v(TC + h, 2), v(tt + h, 2)))
            k("v_pk_fma_f32 %s, %s, %s, %s neg_lo:[0,0,1] neg_hi:[0,0,1]"
              % (v(tt + 4 + h, 2), v(im + h, 2), v(TC + h, 2), v(tt + 4 + h, 2)))
        for r in range(4):
            k("v_cvt_pk_bf16_f32 %s, %s, %s" % (v(A + 4 * j + r), v(tt + r), v(tt + 4 + r)))

    def stage2(fill):
        for j in range(8):
            for n, (d, am, bm) in enumerate(((D + 8 * j, A2re, A), (D + 8 * j, S2re, BS), (D + 8 * j + 4, A2im, A), (D + 8 * j + 4, S2im, BS))):
                k("%s %s, %s, %s, %s" % (MF, v(d, 4), v(am, 4), v(bm + 4 * j, 4), v(d, 4) if n & 1 else "0"))
                for txt in fill.get(4 * j + n, []):
                    k(txt)

    def spread(items, first):
        fill = {}
        for m in range(first, 32):
            fill[m], items = items[:2], items[2:]
        return fill, items

    k("s_cmp_eq_u32 %s, 0" % s(sRole))
    k("s_cbranch_scc0 PRE_OUT_W")

    pre = ["v_lshl_add_u32 %s, %s, 6, %s" % (v(t[0]), v(vg), v(vn)),
           "v_mul_u32_u24 %s, 144, %s" % (v(t[0]), v(t[0])),
           "s_lshl_b32 %s, %s, 5" % (s(sA), s(sWv)),
           "s_add_u32 %s, %s, %d" % (s(sC), s(sA), IMG),
           "v_add_u32 %s, %s, %s" % (v(t[0]), s(sC), v(t[0])),
           "v_lshrrev_b32 %s, 3, v0" % v(t[2]),
           "v_and_b32 %s, 7, %s" % (v(t[3]), v(t[2])),
           "v_and_b32 %s, 0xc0, v0" % v(t[2]),
           "v_add_u32 %s, %s, %s" % (v(t[2]), v(t[2]), v(t[3])),
           "v_and_b32 %s, 0x70, %s" % (v(t[3]), v(vrA)),
           "v_mul_u32_u24 %s, 144, %s" % (v(t[1]), v(t[2])),
           "v_add_u32 %s, %s, %s" % (v(t[1]), v(t[1]), v(t[3])),
           "v_lshl_add_u32 %s, %s, 13, %s" % (v(t[2]), v(t[2]), v(t[3])),
           "s_lshl_b32 %s, s2, 7" % s(sB)]
    fill, _ = spread(pre, 0)
    cv = lambda j: ["v_cvt_pk_bf16_f32 %s, %s, %s" % (v(O + 8 * r + j), v(D + 8 * j + r), v(D + 8 * j + 4 + r)) for r in range(4)]
    for j in range(6):
        fill[4 * j + 9], fill[4 * j + 10] = cv(j)[:2], cv(j)[2:]
    for r in range(4):
        fill[24 + 2 * r - (r > 1)] = fill.get(24 + 2 * r - (r > 1), []) + \
            ["ds_write_b128 %s, %s offset:%d" % (v(t[0]), v(O + 8 * r, 4), 16 * 144 * r)]
    stage2(fill)
    st("p_core")
    for txt in cv(6) + cv(7):
        k(txt)
    for r in range(4):
        k("ds_write_b128 %s, %s offset:%d" % (v(t[0]), v(O + 8 * r + 4, 4), 16 * 144 * r + 16))
    k("s_mov_b64 exec, 1")
    for j in range(8):
        k("v_mov_b32 %s, 0" % v(D + 8 * j + 4))
    k("s_mov_b64 exec, -1")
    k("s_waitcnt lgkmcnt(0)")
    k("s_barrier")
    for i in range(8):
        k("ds_read_b128 %s, %s offset:%d" % (v(O + 4 * i, 4), v(t[1]), IMG + 8 * 144 * i))
    for j in range(8):
        k("v_pk_mul_f32 %s, %s, %s" % (v(tmp + 2 * j, 2), v(D + 8 * j, 2), v(D + 8 * j, 2)))
    red = ["v_pk_fma_f32 %s, %s, %s, %s" % (v(tmp + 2 * j, 2), v(D + 8 * j + h, 2), v(D + 8 * j + h, 2), v(tmp + 2 * j, 2))
           for h in (2, 4, 6) for j in range(8)]
    red = red + ["v_add_f32 %s, %s, %s" % (v(A + j), v(tmp + 2 * j), v(tmp + 2 * j + 1)) for j in range(8)]
    red += ["v_permlane32_swap_b32 %s, %s" % (v(A + j), v(A + j + 4)) for j in range(4)]
    red += ["v_add_f32 %s, %s, %s" % (v(A + j), v(A + j), v(A + j + 4)) for j in range(4)]
    red += ["v_permlane16_swap_b32 %s, %s" % (v(A + e), v(A + e + 2)) for e in range(2)]
    red += ["v_add_f32 %s, %s, %s" % (v(A + e), v(A + e), v(A + e + 2)) for e in range(2)]
    red += ["v_add_f32_dpp %s, %s, %s row_ror:%d row_mask:0xf bank_mask:0xf" % (v(A + e), v(A + e), v(A + e), sh)
            for sh in (8, 4, 2, 1) for e in range(2)]
    for i in range(8):
        k("s_add_u32 %s, %s, 0x%x" % (s(sC), s(sB), L.X0 + i * 8 * 8192))
        k(ST % (v(O + 4 * i, 4), v(t[2]), s(sC), 0), tag="p0")
        for txt in red[7 * i:7 * i + 7]:
            k(txt)
    k("v_lshlrev_b32 %s, 3, %s" % (v(t[0]), v(vg)))
    k("s_add_u32 %s, %s, %s" % (s(sC), s(sA), s(sB)))
    k("s_add_u32 %s, %s, 0x%x" % (s(sC), s(sC), L.SSQ0))
    k("s_waitcnt vmcnt(8)")
    k("s_barrier")
    k("s_mov_b64 exec, %s" % s(sM0, 2))
    k("buffer_store_dwordx2 %s, %s, %s, %s offen sc1" % (v(A, 2), v(t[0]), WS, s(sC)), tag="p0")
    k("s_mov_b64 exec, -1")
    k("s_branch PRE_DONE")

    k.label("PRE_OUT_W")
    k("s_cmp_eq_u32 %s, 2" % s(sRole))
    k("s_cbranch_scc1 PRE_OUT_W1")
    stage2({})
    st("p_core")
    k("s_cmp_eq_u32 %s, 3" % s(sRole))
    k("s_cbranch_scc1 PRE_OUT_B2")

    k("v_lshrrev_b32 %s, 2, %s" % (v(t[1]), v(vn)))
    k("v_mul_u32_u24 %s, %d, %s" % (v(t[1]), PITCH, v(t[1])))
    k("v_and_b32 %s, 3, %s" % (v(t[2]), v(vn)))
    k("v_lshl_add_u32 %s, %s, 5, %s" % (v(t[1]), v(t[2]), v(t[1])))
    k("v_lshl_add_u32 %s, %s, 3, %s" % (v(t[1]), v(vg), v(t[1])))
    k("v_add_u32 %s, %s, %s" % (v(t[1]), s(sLds), v(t[1])))
    for dt in range(8):
        k("ds_read_b64_tr_b16 %s, %s offset:%d" % (a(224 + 4 * dt, 2), v(t[1]), dt * 128))
        k("ds_read_b64_tr_b16 %s, %s offset:%d" % (a(226 + 4 * dt, 2), v(t[1]), dt * 128 + 4 * PITCH))
    w2_frag(sA)
    k("v_mul_u32_u24 %s, %d, %s" % (v(t[0]), 2 * 229376, v(vg)))
    k("v_lshl_add_u32 %s, %s, 4, %s" % (v(t[0]), v(vn), v(t[0])))
    for r in range(4):
        k("s_add_u32 %s, %s, 0x%x" % (s(sC), s(sA), L.W2F + (r >> 1) * 229376 + (r & 1) * 2048))
        for ri in range(2):
            o = O + 8 * r + 4 * ri
            for i in range(4):
                k("v_cvt_pk_bf16_f32 %s, %s, %s" % (v(o + i), v(D + 16 * i + 4 * ri + r), v(D + 16 * i + 8 + 4 * ri + r)))
            k(ST % (v(o, 4), v(t[0]), s(sC), ri * 1024), tag="p0")
    if not M.o.get("park", 1):
        k("v_lshlrev_b32 %s, 10, %s" % (v(t[0]), v(vg)))
        k("v_lshl_add_u32 %s, %s, 4, %s" % (v(t[0]), v(vn), v(t[0])))
        for dt in range(8):
            k("s_add_u32 %s, %s, 0x%x" % (s(sC), s(sA), L.W2T + dt * 229376))
            k(ST % (a(224 + 4 * dt, 4), v(t[0]), s(sC), 0), tag="p0")
    k("s_branch PRE_DONE")

    k.label("PRE_OUT_B2")
    k("v_lshl_add_u32 %s, %s, 6, %s" % (v(t[0]), v(vg), v(vn)))
    k("v_lshlrev_b32 %s, 2, %s" % (v(t[0]), v(t[0])))
    k("s_mov_b32 %s, 0x%x" % (s(sC), L.B2F))
    for r in range(4):
        for ri in range(2):
            k("buffer_store_dword %s, %s, %s, %s offen offset:%d sc1" % (v(D + 4 * ri + r), v(t[0]), WS, s(sC), r * 64 + ri * 1024), tag="p0")
    k("s_branch PRE_FT")

    k.label("PRE_OUT_W1")
    pre = []
    P = pre.append
    P("s_mul_i32 %s, %s, 9216" % (s(sLds), s(sWv)))
    P("s_add_u32 %s, %s, %d" % (s(sLds), s(sLds), IMG))
    P("v_mul_u32_u24 %s, 9, %s" % (v(t[4]), v(vrA)))
    P("v_add_u32 %s, %s, %s" % (v(t[4]), s(sLds), v(t[4])))
    P("v_bfe_u32 %s, v0, 3, 3" % v(t[2]))
    P("v_and_b32 %s, 0x70, %s" % (v(t[3]), v(vrA)))
    P("v_mul_u32_u24 %s, 144, %s" % (v(t[1]), v(t[2])))
    P("v_add3_u32 %s, %s, %s, %s" % (v(t[1]), v(t[1]), v(t[3]), s(sLds)))
    split14(P, sS, sU, sT)
    P("s_lshr_b32 %s, %s, 1" % (s(sA), s(sU)))
    P("s_mul_i32 %s, %s, 112" % (s(sB), s(sS)))
    P("s_add_u32 %s, %s, %s\ns_movk_i32 %s, 0x1000" % (s(sB), s(sB), s(sA), s(sG)))
    P("s_cmp_lt_u32 %s, 4\ns_cselect_b32 %s, 0, 60\ns_cselect_b32 %s, %s, 0xc00" % (s(sA), s(sA), s(sG), s(sG)))
    fill, _ = spread(pre, 0)
    tail = ["s_add_u32 %s, %s, %s" % (s(sA), s(sA), s(sB)),
            "s_lshl_b32 %s, %s, 10" % (s(sA), s(sA)),
            "s_and_b32 %s, %s, 1" % (s(sU), s(sU)),
            "s_lshl_b32 %s, %s, 7" % (s(sU), s(sU)),
            "s_add_u32 %s, %s, %s" % (s(sA), s(sA), s(sU)),
            "s_add_u32 %s, %s, 0x%x" % (s(sA), s(sA), L.W1F),
            "s_lshl_b32 %s, %s, 3" % (s(sC), s(sG)),
            "s_add_u32 %s, %s, %s" % (s(sC), s(sC), s(sA)),
            "v_mad_u32_u24 %s, %s, %s, %s" % (v(t[0]), v(t[2]), s(sG), v(t[3]))]
    cv = lambda j: ["v_cvt_pk_bf16_f32 %s, %s, %s" % (v(O + 4 * j + r), v(D + 8 * j + r), v(D + 8 * j + 4 + r)) for r in range(4)]
    wr = lambda j: "ds_write_b128 %s, %s offset:%d" % (v(t[4]), v(O + 4 * j, 4), 16 * j)
    for j in range(6):
        fill[4 * j + 8] = tail[2 * j:2 * j + 2]
        fill[4 * j + 9], fill[4 * j + 10], fill[4 * j + 11] = cv(j)[:2], cv(j)[2:], [wr(j)]
    stage2(fill)
    st("p_core")
    for j in (6, 7):
        for txt in cv(j) + [wr(j)]:
            k(txt)
    for i in range(8):
        k("ds_read_b128 %s, %s offset:%d" % (v(A + 4 * i, 4), v(t[1]), 8 * 144 * i))
    for i in range(8):
        k(ST % (v(A + 4 * i, 4), v(t[0]), s(sC if i & 1 else sA), (i >> 1) * 256), tag="p0")
    k("s_branch PRE_DONE")

    k.label("PRE_OTHER")
    k("s_cmp_ge_u32 s2, 240")
    k("s_cbranch_scc1 PRE_MISC")
    k("s_cmp_lt_u32 s2, 128")
    k("s_cbranch_scc1 PRE_FILT")

    rows(1, 28, 0 if dbg else 0x1c0000, 1024)
    k("s_lshr_b32 %s, s2, 3" % s(sC))
    k("s_add_u32 %s, %s, 32" % (s(sC), s(sC)))
    k("s_sub_u32 %s, s2, 192" % s(sT))
    k("s_cselect_b32 %s, %s, %s" % (s(sT), s(sC), s(sT)))
    k("s_lshl_b32 %s, %s, 2" % (s(sT), s(sT)))
    k("s_add_u32 %s, %s, %s" % (s(sT), s(sT), s(sWv)))
    split14(k, sS, sU, sT)
    w2_rows(sA, sB)
    if late & 1:
        k("s_mov_b64 vcc, -1")
    k("s_branch PRE_CONST")

    k.label("PRE_MISC")
    k("s_lshl_b32 %s, s2, 2" % s(sT))
    k("s_add_u32 %s, %s, %s" % (s(sT), s(sT), s(sWv)))
    k("s_cmp_eq_u32 %s, 1016" % s(sT))
    k("s_cbranch_scc1 PRE_IN_B2")
    basics()
    if M.o.get("flin", 1):
        k("s_bitcmp1_b32 s2, 3")
        k("s_cselect_b64 %s, s[20:21], s[18:19]" % s(IN, 2))
        k("s_mov_b32 %s, %d" % (s(IN + 2), 2048 * 514))
        k("s_and_b32 %s, s2, 7" % s(sC))
        k("s_mul_i32 %s, %s, %d" % (s(sC), s(sC), 256 * 514))
        k("s_add_u32 %s, %s, 0x20000" % (s(sC), s(sC)))
        k("v_lshlrev_b32 %s, 7, %s" % (v(t[0]), v(vg)))
        k("buffer_load_dword v2, %s, %s, %s offen" % (v(t[0]), s(IN, 4), s(sC)))
    k("\n".join(warm(BS, sC)))
    k("s_cmp_eq_u32 %s, 1017" % s(sT))
    k("s_cbranch_scc1 PRE_B1")
    k("s_cmp_eq_u32 %s, 1018" % s(sT))
    k("s_cbranch_scc1 PRE_ZERO")
    k("s_branch PRE_FT")
    k.label("PRE_IN_B2")
    k("s_mov_b32 %s, 0" % s(sA))
    k("s_movk_i32 %s, 0x1000" % s(sB))
    rows(3, 30, 0x400, 1024)
    k("s_branch PRE_CONST")
    k.label("PRE_B1")
    k("s_mov_b32 %s, 3584" % s(IN + 2))
    k("s_mov_b64 %s, s[26:27]" % s(IN, 2))
    k("v_lshrrev_b32 %s, 1, %s" % (v(t[1]), v(vrA)))
    for j in range(7):
        k("buffer_load_dwordx2 %s, %s, %s, 0 offen offset:%d" % (v(RAW + 2 * j, 2), v(t[1]), s(IN, 4), j * 512))
    for j in range(7):
        for h in range(2):
            k("v_lshlrev_b32 %s, 16, %s" % (v(O + 4 * j + 2 * h), v(RAW + 2 * j + h)))
            k("v_and_b32 %s, 0xffff0000, %s" % (v(O + 4 * j + 2 * h + 1), v(RAW + 2 * j + h)))
        k("s_mov_b32 %s, 0x%x" % (s(sC), L.B1X + j * 1024))
        k(ST % (v(O + 4 * j, 4), v(vrA), s(sC), 0), tag="p0")
    k("s_branch PRE_FT")
    k.label("PRE_ZERO")
    for i in range(4):
        k("v_mov_b32 %s, 0" % v(O + i))
    for j in range(16):
        k("s_mov_b32 %s, 0x%x" % (s(sC), L.SSQ2 + j * 1024))
        k(ST % (v(O, 4), v(vrA), s(sC), 0), tag="p0")

    def inv_table():
        k("s_lshr_b32 %s, %s, 5" % (s(sA), s(sRole)))
        k("s_lshl_b32 %s, %s, 6" % (s(sA), s(sA)))
        k("s_and_b32 %s, %s, 1" % (s(sB), s(sRole)))
        k("s_lshl_b32 %s, %s, 3" % (s(sB), s(sB)))
        k("s_add_u32 %s, %s, %s" % (s(sA), s(sA), s(sB)))
        k("s_bfe_u32 %s, %s, 0x40001" % (s(sB), s(sRole)))
        k("s_lshl_b32 %s, %s, 11" % (s(sT), s(sRole)))
        k("s_add_u32 %s, %s, 0x%x" % (s(sT), s(sT), L.FT))
        k("v_and_b32 %s, 12, %s" % (v(t[5]), v(vn)))
        k("v_and_b32 %s, 3, %s" % (v(t[4]), v(vn)))
        k("v_lshl_add_u32 %s, %s, 2, %s" % (v(t[4]), v(t[5]), v(t[4])))
        k("v_add_u32 %s, %s, %s" % (v(t[4]), s(sA), v(t[4])))
        k("s_mov_b32 %s, 0" % s(sM8))
        k("s_mov_b32 %s, -1" % s(sM8 + 1))
        k("v_mov_b32 %s, %s" % (v(t[6]), fbits(1 / 16)))
        k("v_mov_b32 %s, %s" % (v(t[7]), fbits(1 / (16 * math.sqrt(2)))))
        k("s_cmp_eq_u32 %s, 0" % s(sB))
        k("s_cselect_b64 vcc, -1, 0")
        for i in range(4):
            kk = tmp + i
            k("v_lshl_add_u32 %s, %s, 7, %s" % (v(kk), v(vg), s(sB)))
            k("v_add_u32 %s, %d, %s" % (v(kk), 32 * i, v(kk)))
            k("v_sub_u32 %s, 512, %s" % (v(t[5]), v(kk)))
            k("v_add_u32 %s, %d, %s" % (v(t[1]), -240, v(kk)))
            k("v_cndmask_b32 %s, %s, %s, vcc" % (v(t[5]), v(t[5]), v(t[1])))
            k("v_cndmask_b32 %s, %s, %s, %s" % (v(kk), v(kk), v(t[5]), s(sM8, 2)))
        k("v_cmp_eq_u32 vcc, 0, %s" % v(tmp))
        k("v_mov_b32 %s, 256" % v(t[5]))
        k("v_cndmask_b32 %s, %s, %s, vcc" % (v(tmp), v(tmp), v(t[5])))
        k("v_cndmask_b32 %s, %s, %s, vcc" % (v(t[5]), v(t[6]), v(t[7])))
        for c in range(2):
            k("v_add_u32 %s, %d, %s" % (v(t[1]), 4 * c, v(t[4])))
            for i in range(4):
                an, cs, sn = tmp + 4 + i, tmp + 8 + i, tmp + 12 + i
                k("v_mul_u32_u24 %s, %s, %s" % (v(an), v(tmp + i), v(t[1])))
                k("v_and_b32 %s, 511, %s" % (v(an), v(an)))
                k("v_cvt_f32_u32 %s, %s" % (v(an), v(an)))
                k("v_mul_f32 %s, %s, %s" % (v(an), fbits(1 / 512), v(an)))
                k("v_cos_f32 %s, %s" % (v(cs), v(an)))
                k("v_sin_f32 %s, %s" % (v(sn), v(an)))
            for i in range(4):
                cs, sn = tmp + 8 + i, tmp + 12 + i
                k("v_mul_f32 %s, %s, %s" % (v(cs), v(t[5] if i == 0 else t[6]), v(cs)))
                k("v_mul_f32 %s, %s, %s" % (v(sn), fbits(-1 / 16), v(sn)))
                if i == 0:
                    k("v_cndmask_b32 %s, %s, %s, vcc" % (v(sn), v(sn), v(t[7])))
                k("v_cvt_pk_bf16_f32 %s, %s, %s" % (v(BS + 4 + 4 * c + i), v(cs), v(sn)))
            k(ST % (v(BS + 4 + 4 * c, 4), v(vrA), s(sT), c * 1024), tag="p0")

    ftf = M.o.get("ftf", 1)
    k.label("PRE_FT")
    if not ftf:
        k("s_sub_u32 %s, s2, 240" % s(sRole))
        k("s_lshl_b32 %s, %s, 2" % (s(sRole), s(sRole)))
        k("s_add_u32 %s, %s, %s" % (s(sRole), s(sRole), s(sWv)))
        k.label("PRE_FT_LOOP")
        inv_table()
        k("s_add_u32 %s, %s, 64" % (s(sRole), s(sRole)))
        k("s_cmp_lt_u32 %s, 256" % s(sRole))
        k("s_cbranch_scc1 PRE_FT_LOOP")
    k("s_branch PRE_DONE")

    k.label("PRE_FILT")
    basics()
    k("s_mov_b32 %s, %d" % (s(IN + 2), 0 if dbg else 2048 * 514))
    k("s_mov_b32 %s, %d" % (s(IN2 + 2), 0 if dbg else 2048 * 514))
    k("s_mov_b32 %s, 0x20000" % s(IN2 + 3))
    k("s_mov_b64 %s, s[18:19]" % s(IN, 2))
    k("s_mov_b64 %s, s[20:21]" % s(IN2, 2))
    if ftf:
        k("s_sub_u32 %s, s2, 64" % s(sRole))
        k("s_lshl_b32 %s, %s, 2" % (s(sRole), s(sRole)))
        k("s_add_u32 %s, %s, %s" % (s(sRole), s(sRole), s(sWv)))
        inv_table()
    if M.o.get("flin", 1):
        k("v_lshlrev_b32 %s, 7, v0" % v(t[0]))
        k("s_and_b32 %s, s2, 7" % s(sC))
        k("s_mul_i32 %s, %s, %d" % (s(sC), s(sC), 256 * 514))
        k("s_bfe_u32 %s, s2, 0x20003" % s(sA))
        k("s_lshl_b32 %s, %s, 15" % (s(sA), s(sA)))
        k("s_add_u32 %s, %s, %s" % (s(sC), s(sC), s(sA)))
        k("s_bitcmp1_b32 s2, 5")
        k("s_cbranch_scc1 PRE_FL1")
        k("buffer_load_dword v2, %s, %s, %s offen" % (v(t[0]), s(IN, 4), s(sC)))
        k("s_branch PRE_FL2")
        k.label("PRE_FL1")
        k("buffer_load_dword v2, %s, %s, %s offen" % (v(t[0]), s(IN2, 4), s(sC)))
        k.label("PRE_FL2")
    sCb, sRb = sS, sU
    k("s_and_b32 %s, s2, 7" % s(sRb))
    k("s_bfe_u32 %s, s2, 0x20004" % s(sC))
    k("s_lshl_b32 %s, %s, 3" % (s(sC), s(sC)))
    k("s_add_u32 %s, %s, %s" % (s(sRb), s(sRb), s(sC)))
    k("s_bfe_u32 %s, s2, 0x10003" % s(sC))
    k("s_lshl_b32 %s, %s, 1" % (s(sRec), s(sRb)))
    k("s_add_u32 %s, %s, %s" % (s(sRec), s(sRec), s(sC)))
    k("s_add_u32 %s, %s, 64" % (s(sRec), s(sRec)))
    k("s_lshl_b32 %s, %s, 2" % (s(sCb), s(sC)))
    k("s_add_u32 %s, %s, %s" % (s(sCb), s(sCb), s(sWv)))
    k("s_lshr_b32 %s, %s, 3" % (s(sA), s(sRb)))
    k("s_lshl_b32 %s, %s, 4" % (s(sA), s(sA)))
    k("s_and_b32 %s, %s, 7" % (s(sC), s(sRb)))
    k("s_lshl_b32 %s, %s, 8" % (s(sC), s(sC)))
    k("s_add_u32 %s, %s, %s" % (s(sA), s(sA), s(sC)))
    k("s_mul_i32 %s, %s, 514" % (s(sA), s(sA)))
    k("s_lshl_b32 %s, %s, 6" % (s(sC), s(sCb)))
    k("s_add_u32 %s, %s, %s" % (s(sA), s(sA), s(sC)))
    if M.o.get("fw", 0):
        k("\n".join(warm(BS, sB)))
    k("v_bfe_u32 %s, v0, 2, 4" % v(t[1]))
    k("v_mul_u32_u24 %s, 514, %s" % (v(t[0]), v(t[1])))
    k("v_and_b32 %s, 48, %s" % (v(t[2]), v(vrA)))
    k("v_add_u32 %s, %s, %s" % (v(t[0]), v(t[2]), v(t[0])))
    for r in range(4):
        k("s_add_u32 %s, %s, %d" % (s(sC), s(sA), r * 64 * 514 + 2))
        k("buffer_load_dwordx4 %s, %s, %s, %s offen" % (v(A + 8 * r, 4), v(t[0]), s(IN, 4), s(sC)))
        k("buffer_load_dwordx4 %s, %s, %s, %s offen" % (v(A + 8 * r + 4, 4), v(t[0]), s(IN2, 4), s(sC)))
    if not M.o.get("fw", 0):
        k("\n".join(warm(BS, sB)))
    k("v_mul_u32_u24 %s, 17, %s" % (v(t[2]), v(t[2])))
    k("v_lshl_add_u32 %s, %s, 4, %s" % (v(t[2]), v(t[1]), v(t[2])))
    k("v_add_u32 %s, %s, %s" % (v(t[2]), s(sLds), v(t[2])))
    k("v_lshl_add_u32 %s, %s, 4, %s" % (v(t[3]), v(vg), v(vrA)))
    k("v_add_u32 %s, %s, %s" % (v(t[3]), s(sLds), v(t[3])))
    q0, qs, q7 = t[4], t[5], t[6]
    k("s_lshl_b32 %s, %s, 4" % (s(sA), s(sCb)))
    k("s_add_u32 %s, %s, 1" % (s(sB), s(sA)))
    k("v_lshl_add_u32 %s, %s, 3, %s" % (v(q0), v(vg), s(sB)))
    k("s_sub_u32 %s, 271, %s" % (s(sB), s(sA)))
    k("v_lshlrev_b32 %s, 3, %s" % (v(t[7]), v(vg)))
    k("v_sub_u32 %s, %s, %s" % (v(t[7]), s(sB), v(t[7])))
    k("s_mov_b32 vcc_lo, 0")
    k("s_mov_b32 vcc_hi, -1")
    k("v_cndmask_b32 %s, %s, %s, vcc" % (v(q0), v(q0), v(t[7])))
    k("v_cndmask_b32 %s, 1, -1, vcc" % v(qs))
    k("s_add_u32 %s, %s, 128" % (s(sB), s(sA)))
    k("s_add_u32 %s, %s, 16" % (s(sC), s(sA)))
    k("s_and_b32 %s, %s, 127" % (s(sC), s(sC)))
    k("v_mov_b32 %s, %s" % (v(q7), s(sB)))
    k("v_mov_b32 %s, %s" % (v(t[7]), s(sC)))
    k("v_cndmask_b32 %s, %s, %s, vcc" % (v(q7), v(q7), v(t[7])))
    k("v_mad_i32_i24 %s, %s, 7, %s" % (v(t[7]), v(qs), v(q0)))
    k("s_mov_b32 vcc_lo, 0xffff0000")
    k("s_mov_b32 vcc_hi, 0xffff0000")
    k("v_cndmask_b32 %s, %s, %s, vcc" % (v(q7), v(t[7]), v(q7)))
    k("v_lshlrev_b32 %s, 4, %s" % (v(t[7]), v(vn)))
    k("v_lshl_add_u32 %s, %s, 13, %s" % (v(q0), v(q0), v(t[7])))
    k("v_lshl_add_u32 %s, %s, 13, %s" % (v(q7), v(q7), v(t[7])))
    k("v_lshlrev_b32 %s, 13, %s" % (v(qs), v(qs)))
    k("s_lshl_b32 %s, %s, 8" % (s(sC), s(sRb)))
    k("s_add_u32 %s, %s, 0x%x" % (s(sC), s(sC), L.WT))
    for j in range(8):
        k("ds_write_b128 %s, %s offset:%d" % (v(t[2]), v(A + 4 * j, 4), j * PITCH))
    for j in range(8):
        k("ds_read_b128 %s, %s offset:%d" % (v(RAW + 4 * j, 4), v(t[3]), j * PITCH))
    for e in range(8):
        for r in range(4):
            k("v_perm_b32 %s, %s, %s, %s" % (v(O + 4 * e + r), v(RAW + 8 * r + 4 + (e >> 1)), v(RAW + 8 * r + (e >> 1)),
                                            s(sSelHi if e & 1 else sSelLo)))
        k(ST % (v(O + 4 * e, 4), v(q7 if e == 7 else q0), s(sC), 0), tag="p0")
        if e < 6:
            k("v_add_u32 %s, %s, %s" % (v(q0), v(q0), v(qs)))
    k("s_branch PRE_DONE")

    k.label("PRE_DONE")
    k("s_add_u32 %s, %s, 0x%x" % (s(sA), s(sA), L.W2T))
    k("s_lshl_b32 %s, %s, 7" % (s(sT), s(sT)))
    k("s_add_u32 %s, %s, 0x%x" % (s(sT), s(sT), L.WFLAGS))
    k("s_and_b32 %s, s2, 0xc7" % s(sC))
    k("s_cmp_eq_u32 %s, 135" % s(sC))
    k("s_cselect_b32 %s, 192, s2" % s(sC))
    k("s_sub_u32 %s, %s, 192" % (s(sC), s(sC)))
    k("s_cmp_lt_u32 %s, 48" % s(sC))
    k("s_cselect_b32 s29, %s, 0x40000000" % s(sA))
    k("s_cselect_b32 %s, %s, s29" % (s(sWf), s(sT)))
```
